```python
import torch

def _softmax(x, axis=-1):
    return torch.softmax(x, dim=axis)

def _gelu(x):
    return torch.nn.functional.gelu(x, approximate='tanh')

def _silu(x):
    return torch.nn.functional.silu(x)

def _sigmoid(x):
    return torch.sigmoid(x)

def _layernorm(x, axis=-1, eps=1e-05):
    m = x.mean(dim=axis, keepdim=True)
    v = x.var(dim=axis, keepdim=True, unbiased=False)
    return (x - m) / torch.sqrt(v + eps)

def _scatter_add(tgt, idx, src, axis=0):
    return tgt.clone().index_add_(axis, idx, src)

def _segment_sum(src, seg, n):
    out = torch.zeros((n,) + src.shape[1:], dtype=src.dtype)
    return out.index_add_(0, seg, src)

def _pad(x, pw):
    flat = tuple((v for pair in reversed(pw) for v in pair))
    return torch.nn.functional.pad(x, flat)
kernel_name = 'parallel_sum__memory_aug_recurrent_mem_tr__dense_activation_silu__prompt'

def setup_inputs():

    _w = lambda a: (lambda t: t.to(torch.bfloat16) if t.is_floating_point() else t)(torch.as_tensor(a))

    def _A_setup():
        B, S, Dm = (1, 2048, 576)
        H, Dh = (32, 128)
        M, seg = (8, 32)
        seg = min(seg, S)
        S = S // seg * seg
        return {'x': _w((lambda *s: torch.randn(*s, dtype=torch.bfloat16) * 0.05)(B, S, Dm)), 'mem0': _w((lambda *s: torch.randn(*s, dtype=torch.bfloat16) * 0.2)(B, M, Dm)), 'Wq': _w((lambda *s: torch.randn(*s, dtype=torch.bfloat16) * 1.6)(Dm, H, Dh) * Dm ** (-0.5)), 'Wk': _w((lambda *s: torch.randn(*s, dtype=torch.bfloat16) * 1.6)(Dm, H, Dh) * Dm ** (-0.5)), 'Wv': _w((lambda *s: torch.randn(*s, dtype=torch.bfloat16) * 0.2)(Dm, H, Dh) * Dm ** (-0.5)), 'Wo': _w((lambda *s: torch.randn(*s, dtype=torch.bfloat16) * 0.2)(H, Dh, Dm) * (H * Dh) ** (-0.5)), 'seg_len': seg}
    _A_in = _A_setup()

    def _B_setup():
        B, S, D, F = (1, 2048, 576, 4608)
        return {'x': _w((lambda *s: torch.randn(*s, dtype=torch.bfloat16) * 0.05)(B, S, D)), 'w1': _w((lambda *s: torch.randn(*s, dtype=torch.bfloat16) * 0.8)(D, F) * D ** (-0.5)), 'w2': _w((lambda *s: torch.randn(*s, dtype=torch.bfloat16) * 0.1)(F, D) * F ** (-0.5))}
    _B_in = _B_setup()
    return {'A_x': _A_in['x'], 'A_mem0': _A_in['mem0'], 'A_Wq': _A_in['Wq'], 'A_Wk': _A_in['Wk'], 'A_Wv': _A_in['Wv'], 'A_Wo': _A_in['Wo'], 'A_seg_len': _A_in['seg_len'], 'B_x': _B_in['x'], 'B_w1': _B_in['w1'], 'B_w2': _B_in['w2']}

def reference(A_x, A_mem0, A_Wq, A_Wk, A_Wv, A_Wo, A_seg_len, B_x, B_w1, B_w2):

    def _A_ref(x, mem0, Wq, Wk, Wv, Wo, seg_len):
        B, S, Dm = x.shape
        H, Dh = (Wq.shape[1], Wq.shape[2])
        M = mem0.shape[1]
        scale = Dh ** (-0.5)
        n_seg = S // seg_len
        L = M + seg_len
        idx = torch.arange(L)
        mask = (idx[:, None] < M) | (idx[:, None] >= idx[None, :])
        mem = mem0
        outs = []
        for s in range(n_seg):
            xs = x[:, s * seg_len:(s + 1) * seg_len, :].clone()
            h = torch.concatenate([mem, xs], axis=1)
            q = torch.einsum('btd,dhe->bhte', h, Wq)
            k = torch.einsum('btd,dhe->bhte', h, Wk)
            v = torch.einsum('btd,dhe->bhte', h, Wv)
            scores = torch.einsum('bhqe,bhke->bhqk', q, k) * scale
            scores = torch.where(mask[None, None], scores, -1000000000.0)
            p = _softmax(scores, axis=-1)
            o = torch.einsum('bhqk,bhke->bhqe', p, v)
            o = torch.einsum('bhte,hed->btd', o, Wo)
            mem = o[:, :M, :].clone()
            outs.append(o[:, M:, :])
        return torch.concatenate(outs, axis=1)

    def _B_ref(x, w1, w2):
        h = torch.einsum('bsd,df->bsf', x, w1)
        h = _silu(h)
        out = torch.einsum('bsf,fd->bsd', h, w2)
        return out
    x = A_x
    xn = _layernorm(x, axis=-1)
    return x + _A_ref(xn, A_mem0, A_Wq, A_Wk, A_Wv, A_Wo, A_seg_len) + _B_ref(xn, B_w1, B_w2)
```

```python
class Asm:
    def __init__(self):
        self.lines = []
        self.uid = 0
    def __call__(self, s):
        for l in s.strip("\n").split("\n"):
            self.lines.append(" " + l.strip())
    def c(self, s):
        self.lines.append(" ; " + s)
    def label(self, l):
        self.lines.append(l + ":")
    def newlabel(self, p):
        self.uid += 1
        return f"L_{p}_{self.uid}"
    def text(self):
        return "\n".join(self.lines) + "\n"

def v(i, n=1):
    return f"v{i}" if n == 1 else f"v[{i}:{i+n-1}]"
def a(i, n=1):
    return f"a{i}" if n == 1 else f"a[{i}:{i+n-1}]"
def s(i, n=1):
    return f"s{i}" if n == 1 else f"s[{i}:{i+n-1}]"
def r(idx, n=1):
    return v(idx, n) if idx < 256 else a(idx - 256, n)
```

```python
from common import *

BUF = f"s[{S_WS}:{S_WS+3}]"
SLAB = 73728
FL_KV, FL_ALL, FL_GRP = 32, 48, 96

def ranges():
    nF = [6, 6] + [5] * 12
    nKV = [9, 9, 10, 10] + [9] * 10
    nQ = [3, 3, 4, 4] + [5] * 10
    out, a, b, c = [], 0, 0, 0
    for j in range(14):
        out.append((a, nKV[j], b, nQ[j], c, nF[j]))
        a += nKV[j]; b += nQ[j]; c += nF[j]
    assert (a, b, c) == (128, 64, 72)
    return out

XN = 0
ACC0, ACC1 = 144, 160
FR = 176
HP = 192
OUTV = 208
vA = 240
vD1, vD2, vL, vT1, vT2, vT3, vT4, vD1F = 244, 245, 246, 247, 248, 249, 250, 251
sRB, sJ, sI, sN, sSRC, sOUT, sPOUT, sLB, sSEG = 50, 51, 52, 53, 54, 55, 56, 57, 58
sKV0, sNKV, sQ0, sNQ, sF0, sNF, sTYP, sNTYP, sRS32, sLOG = 59, 60, 61, 62, 63, 64, 65, 66, 67, 68
sT = 72
S_CUR = S_TMPD

def out_tile(dt):
    return 256 + 16 * dt if dt < 16 else OUTV + 16 * (dt - 16)

def setup(A):
    A.c("bulk: indices")
    A(f"s_and_b32 s{sRB}, s{S_ROLE}, 15")
    A(f"s_lshr_b32 s{sJ}, s{S_ROLE}, 4")
    for j, rg in enumerate(ranges()):
        A(f"s_cmp_eq_u32 s{sJ}, {j}")
        pk1 = rg[0] | rg[1] << 8 | rg[2] << 16 | rg[3] << 24
        pk2 = rg[4] | rg[5] << 8
        A(f"s_cselect_b32 s{sT}, {pk1}, s{sT}" if j else f"s_mov_b32 s{sT}, {pk1}")
        A(f"s_cselect_b32 s{sT+1}, {pk2}, s{sT+1}" if j else f"s_mov_b32 s{sT+1}, {pk2}")
    A(f"s_and_b32 s{sKV0}, s{sT}, 255")
    A(f"s_bfe_u32 s{sNKV}, s{sT}, 0x80008")
    A(f"s_bfe_u32 s{sQ0}, s{sT}, 0x80010")
    A(f"s_lshr_b32 s{sNQ}, s{sT}, 24")
    A(f"s_and_b32 s{sF0}, s{sT+1}, 255")
    A(f"s_lshr_b32 s{sNF}, s{sT+1}, 8")
    A(f"s_lshl_b32 s{sSEG}, s{sRB}, 2")
    A(f"s_add_u32 s{sSEG}, s{sSEG}, s{S_WAVE}")
    A(f"s_mov_b32 s{sLOG}, 0xbfb8aa3b")
    A(f"v_mov_b32 v{vL}, v0")
    A(f"v_lshrrev_b32 v{vT1}, 3, v{vL}")
    A(f"v_bfe_u32 v{vT2}, v{vL}, 4, 1")
    A(f"v_lshlrev_b32 v{vT2}, 2, v{vT2}")
    A(f"v_xor_b32 v{vT2}, v{vT2}, v{vL}")
    A(f"v_and_b32 v{vT2}, 7, v{vT2}")
    A(f"v_lshlrev_b32 v{vT2}, 4, v{vT2}")
    A(f"v_lshl_add_u32 v{vD1}, v{vT1}, 13, v{vT2}")
    A(f"v_mul_u32_u24 v{vD1F}, 9216, v{vT1}")
    A(f"v_add_u32 v{vD1F}, v{vD1F}, v{vT2}")
    A(f"v_bfe_u32 v{vT3}, v{vL}, 5, 1")
    A(f"v_and_b32 v{vT1}, 3, v{vT1}")
    A(f"v_lshl_add_u32 v{vT1}, v{vT3}, 3, v{vT1}")
    A(f"v_mul_u32_u24 v{vD2}, 1152, v{vT1}")
    A(f"v_add_u32 v{vD2}, v{vD2}, v{vT2}")
    read_addr(A, vA, vL, vT1, vT2)
    A(f"v_xor_b32 v{vA+2}, 64, v{vA}")
    A(f"v_add_u32 v{vA+1}, {18*2048}, v{vA}")
    A(f"v_add_u32 v{vA+3}, {18*2048}, v{vA+2}")
    A(f"v_lshlrev_b32 v{vL}, 4, v{vL}")

def read_addr(A, dst, ln, t1, t2):
    A(f"v_bfe_u32 v{t1}, v{ln}, 2, 2")
    A(f"v_bfe_u32 v{t2}, v{ln}, 5, 1")
    A(f"v_lshl_add_u32 v{t1}, v{t2}, 3, v{t1}")
    A(f"v_lshlrev_b32 v{dst}, 7, v{t1}")
    A(f"v_bfe_u32 v{t2}, v{ln}, 3, 1")
    A(f"v_lshl_add_u32 v{dst}, v{t2}, 6, v{dst}")
    A(f"v_bfe_u32 v{t2}, v{ln}, 4, 1")
    A(f"v_lshl_add_u32 v{dst}, v{t2}, 5, v{dst}")
    A(f"v_and_b32 v{t2}, 3, v{ln}")
    A(f"v_lshl_add_u32 v{dst}, v{t2}, 3, v{dst}")

def copy_srd(A, src):
    for i in range(4):
        A(f"s_mov_b32 s{S_CUR+i}, s{src+i}")

def params_qkv(A, idx):
    la, lb, le = A.newlabel("pq"), A.newlabel("pv"), A.newlabel("pe")
    A(f"s_cmp_ge_u32 s{idx}, s{sNKV}")
    A(f"s_cbranch_scc1 {la}")
    A(f"s_add_u32 s{sT}, s{sKV0}, s{idx}")
    A(f"s_cmp_ge_u32 s{sT}, 64")
    A(f"s_cbranch_scc1 {lb}")
    copy_srd(A, S_WK)
    A(f"s_mov_b32 s{sT+1}, {WS_K}")
    A(f"s_mov_b32 s{sNTYP}, 0")
    A(f"s_branch {le}")
    A.label(lb)
    A(f"s_sub_u32 s{sT}, s{sT}, 64")
    copy_srd(A, S_WV)
    A(f"s_mov_b32 s{sT+1}, {WS_V}")
    A(f"s_mov_b32 s{sNTYP}, 1")
    A(f"s_branch {le}")
    A.label(la)
    A(f"s_sub_u32 s{sT}, s{idx}, s{sNKV}")
    A(f"s_add_u32 s{sT}, s{sT}, s{sQ0}")
    copy_srd(A, S_WQ)
    A(f"s_mov_b32 s{sT+1}, {WS_Q}")
    A(f"s_mov_b32 s{sNTYP}, 0")
    A.label(le)
    A(f"s_lshl_b32 s{sSRC}, s{sT}, 7")
    A(f"s_lshl_b32 s3, s{S_WAVE}, 16")
    A(f"s_add_u32 s{sSRC}, s{sSRC}, s3")
    A(f"s_lshl_b32 s{sT+2}, s{sT}, 12")
    A(f"s_lshl_b32 s3, s{sSEG}, 18")
    A(f"s_add_u32 s{sT+2}, s{sT+2}, s3")
    A(f"s_add_u32 s{sT+2}, s{sT+2}, s{sT+1}")
    A(f"s_mov_b32 s{sRS32}, {32*8192}")

def params_w1(A, unit):
    copy_srd(A, S_W1)
    A(f"s_lshl_b32 s{sSRC}, s{unit}, 7")
    A(f"s_mul_i32 s3, s{S_WAVE}, {8*9216}")
    A(f"s_add_u32 s{sSRC}, s{sSRC}, s3")
    A(f"s_mov_b32 s{sRS32}, {32*9216}")

def params_w2(A, unit):
    copy_srd(A, S_W2)
    A(f"s_mul_i32 s{sSRC}, s{unit}, {64*1152}")
    A(f"s_lshr_b32 s3, s{S_WAVE}, 1")
    A(f"s_mul_i32 s3, s3, {16*1152}")
    A(f"s_add_u32 s{sSRC}, s{sSRC}, s3")
    A(f"s_and_b32 s3, s{S_WAVE}, 1")
    A(f"s_mul_i32 s3, s3, {4*1152}")
    A(f"s_add_u32 s{sSRC}, s{sSRC}, s3")

def dma_ops(kind, vo):
    ops = []
    for i in range(18):
        g = [f"s_add_u32 m0, s{sLB}, {i*4096}"]
        if kind == 2:
            g.append(f"s_add_u32 s{sT+3}, s{sSRC}, {(i & 1)*32*1152 + (i >> 1)*128}")
            g.append(f"buffer_load_dwordx4 v{vo}, s[{S_CUR}:{S_CUR+3}], s{sT+3} offen lds")
        else:
            g.append("s_nop 0")
            g.append(f"buffer_load_dwordx4 v{vo}, s[{S_CUR}:{S_CUR+3}], s{sSRC} offen lds")
            g.append(f"s_add_u32 s{sSRC}, s{sSRC}, s{sRS32}")
        ops.append(g)
    return ops

def flip(A):
    A("s_waitcnt vmcnt(0) lgkmcnt(0)")
    A("s_barrier")
    A(f"s_lshl_b32 s3, s{S_WAVE}, 10")
    A(f"s_sub_u32 s{sT+4}, s{sLB}, s3")
    A(f"s_sub_u32 s{sT+5}, {SLAB}, s{sT+4}")
    A(f"s_add_u32 s{sLB}, s{sT+5}, s3")
    A(f"s_sub_u32 s{sT+4}, s{sT+4}, s{sT+5}")
    for i in range(4):
        A(f"v_add_u32 v{vA+i}, s{sT+4}, v{vA+i}")

def store_epi(acc, soff, hp):
    ops = [f"v_cvt_pk_bf16_f32 v{hp+i}, v{acc+2*i}, v{acc+2*i+1}" for i in range(8)]
    return ops[:4] + [f"buffer_store_dwordx4 {v(hp,4)}, v{vL}, {BUF}, s{soff[0]} offen offset:{soff[1]} sc1"] + \
           ops[4:] + [f"buffer_store_dwordx4 {v(hp+4,4)}, v{vL}, {BUF}, s{soff[0]} offen offset:{soff[1]+1024} sc1"]

def silu_epi(acc, hp):
    ops = []
    for i in range(8):
        a0, a1 = acc + 2 * i, acc + 2 * i + 1
        t0, t1 = (vT1, vT2) if i % 2 == 0 else (vT3, vT4)
        ops += [f"v_mul_f32 v{t0}, s{sLOG}, v{a0}", f"v_mul_f32 v{t1}, s{sLOG}, v{a1}",
                f"v_exp_f32 v{t0}, v{t0}", f"v_exp_f32 v{t1}, v{t1}",
                f"v_add_f32 v{t0}, 1.0, v{t0}", f"v_add_f32 v{t1}, 1.0, v{t1}",
                f"v_rcp_f32 v{t0}, v{t0}", f"v_rcp_f32 v{t1}, v{t1}",
                f"v_mul_f32 v{a0}, v{a0}, v{t0}", f"v_mul_f32 v{a1}, v{a1}, v{t1}",
                f"v_cvt_pk_bf16_f32 v{hp+i}, v{a0}, v{a1}"]
    return ops

def mfma_stream(A, steps, fillers):
    L = LgkmTracker(A)
    tok = {}
    def rd(n):
        ad, off, _ = steps[n]
        f = FR + 4 * (n % 4)
        L.op(f"ds_read_b64_tr_b16 {v(f,2)}, v{ad} offset:{off}")
        tok[n] = L.op(f"ds_read_b64_tr_b16 {v(f+2,2)}, v{ad} offset:{off+512}")
    for n in range(3):
        rd(n)
    for n in range(len(steps)):
        L.wait(tok[n])
        A(steps[n][2](FR + 4 * (n % 4)))
        if n + 3 < len(steps):
            rd(n + 3)
        for t in fillers.get(n, []):
            A(t)

def spread(fillers, ops, start, per):
    n = start
    for i in range(0, len(ops), per):
        fillers.setdefault(n, []).extend(ops[i:i + per])
        n += 1
    return n

def proj_steps(vtype):
    steps = []
    for ct in range(2):
        acc = ACC0 if ct == 0 else ACC1
        for k in range(36):
            def f(fr, acc=acc, k=k):
                c = "0" if k == 0 else v(acc, 16)
                x, w = v(XN + 4 * k, 4), v(fr, 4)
                a_, b_ = (x, w) if vtype else (w, x)
                return f"v_mfma_f32_32x32x16_bf16 {v(acc,16)}, {a_}, {b_}, {c}"
            steps.append((vA + 2 * ct + k // 18, (k % 18) * 2048, f))
    return steps

def stage_proj(A, vtype, epi_prev, epi0, dma):
    fill = {}
    for i, g in enumerate(dma):
        fill.setdefault(1 + 3 * i, []).extend(g)
    per = 2 if len(epi0) < 20 else 4
    spread(fill, epi_prev, 2, 2)
    spread(fill, epi0, 40, per)
    mfma_stream(A, proj_steps(vtype), fill)

def stage_ffn2(A, epi1, dma):
    steps = []
    for k in range(4):
        for dt in range(18):
            def f(fr, dt=dt, k=k):
                o = r(out_tile(dt), 16)
                return f"v_mfma_f32_32x32x16_bf16 {o}, {v(fr,4)}, {v(HP+4*k,4)}, {o}"
            blk = 4 * (dt >> 1) + k
            steps.append((vA + 2 * (dt & 1) + blk // 18, (blk % 18) * 2048, f))
    fill = {}
    for i, g in enumerate(dma):
        fill.setdefault(1 + 3 * i, []).extend(g)
    spread(fill, epi1, 4, 4)
    mfma_stream(A, steps, fill)

def layernorm(A):
    A.c("bulk: load x rows as MFMA fragments and normalise them")
    A(f"v_bfe_u32 v{vT1}, v{vL}, 4, 5")
    A(f"s_lshl_b32 s3, s{sSEG}, 5")
    A(f"v_add_u32 v{vT1}, s3, v{vT1}")
    A(f"v_mul_u32_u24 v{vT1}, 1152, v{vT1}")
    A(f"v_bfe_u32 v{vT2}, v{vL}, 9, 1")
    A(f"v_lshl_add_u32 v{vT1}, v{vT2}, 4, v{vT1}")
    for k in range(36):
        A(f"buffer_load_dwordx4 {v(XN+4*k,4)}, v{vT1}, s[{S_X}:{S_X+3}], 0 offen offset:{32*k}")

def layernorm2(A, nyounger):
    s1, s2, one = ACC0, ACC0 + 4, ACC0 + 8
    for i in range(8):
        A(f"v_mov_b32 v{ACC0+i}, 0")
    A(f"v_mov_b32 v{one}, 0x3f803f80")
    for k in range(36):
        if k % 4 == 0:
            A(f"s_waitcnt vmcnt({32 - k + nyounger})")
        for i in range(4):
            A(f"v_dot2c_f32_bf16 v{s1+i}, v{XN+4*k+i}, v{one}")
            A(f"v_dot2c_f32_bf16 v{s2+i}, v{XN+4*k+i}, v{XN+4*k+i}")
    A("s_nop 2")
    for b in (s1, s2):
        A(f"v_add_f32 v{b}, v{b}, v{b+1}")
        A(f"v_add_f32 v{b+2}, v{b+2}, v{b+3}")
        A(f"v_add_f32 v{b}, v{b}, v{b+2}")
        A(f"v_mov_b32 v{b+1}, v{b}")
    A("s_nop 1")
    A(f"v_permlane32_swap_b32 v{s1}, v{s1+1}")
    A(f"v_permlane32_swap_b32 v{s2}, v{s2+1}")
    A(f"v_add_f32 v{s1}, v{s1}, v{s1+1}")
    A(f"v_add_f32 v{s2}, v{s2}, v{s2+1}")
    A(f"v_mul_f32 v{s1}, 0x3ae38e39, v{s1}")
    A(f"v_mul_f32 v{s2}, 0x3ae38e39, v{s2}")
    A(f"v_fma_f32 v{s2}, -v{s1}, v{s1}, v{s2}")
    A(f"v_max_f32 v{s2}, 0, v{s2}")
    A(f"v_cvt_pk_bf16_f32 v{s1+1}, v{s2}, v{s1}")
    A(f"v_lshlrev_b32 v{s2}, 16, v{s1+1}")
    A(f"v_and_b32 v{s1}, 0xffff0000, v{s1+1}")
    A(f"v_add_f32 v{s2}, 0x3727c5ac, v{s2}")
    A(f"v_cvt_pk_bf16_f32 v{s2}, v{s2}, v{s2}")
    A(f"v_lshlrev_b32 v{s2}, 16, v{s2}")
    A(f"v_sqrt_f32 v{s2}, v{s2}")
    A("s_nop 0")
    A(f"v_cvt_pk_bf16_f32 v{s2}, v{s2}, v{s2}")
    A(f"v_lshlrev_b32 v{s2}, 16, v{s2}")
    A(f"v_rcp_f32 v{s2}, v{s2}")
    A("s_nop 0")
    A(f"v_mul_f32 v{s1}, v{s1}, v{s2}")
    A(f"s_mov_b32 s3, 0xffff0000")
    for i in range(144):
        t = ACC1 + 2 * (i % 4)
        A(f"v_lshlrev_b32 v{t}, 16, v{XN+i}")
        A(f"v_and_b32 v{t+1}, s3, v{XN+i}")
        A(f"v_pk_fma_f32 {v(t,2)}, {v(t,2)}, {v(s2,2)}, {v(s1,2)} op_sel_hi:[1,0,0] neg_lo:[0,0,1] neg_hi:[0,0,1]")
        A(f"v_cvt_pk_bf16_f32 v{XN+i}, v{t}, v{t+1}")

def signal(A, line_sgpr):
    l = A.newlabel("sig")
    A(f"s_cmp_lg_u32 s{S_WAVE}, 0")
    A(f"s_cbranch_scc1 {l}")
    A(f"v_mov_b32 v{vT1}, 1")
    A(f"v_mov_b32 v{vT2}, 0")
    A("s_mov_b64 exec, 1")
    A(f"buffer_atomic_add v{vT1}, v{vT2}, {BUF}, s{line_sgpr} offen")
    A("s_mov_b64 exec, -1")
    A.label(l)

def run(A, fail):
    setup(A)
    layernorm(A)
    A(f"s_lshl_b32 s{sLB}, s{S_WAVE}, 10")
    A(f"s_mov_b32 s{sI}, 0")
    params_qkv(A, sI)
    for g in dma_ops(1, vD1):
        for t in g: A(t)
    layernorm2(A, 18)
    A(f"v_lshrrev_b32 v{vT1}, 2, v{vL}")
    for i in range(10):
        A(f"s_mov_b32 s{80+i}, s{51+i}")
    read_counts(A, fail, vT1)
    for i in range(10):
        A(f"s_mov_b32 s{51+i}, s{80+i}")
    for i in range(4):
        A(f"v_add_u32 v{vA+i}, {SLAB}, v{vA+i}")
    A(f"s_add_u32 s{sN}, s{sNKV}, s{sNQ}")
    A(f"s_mov_b32 s{sPOUT}, 0x40000000")
    lp, lv, lj, lnx, lnx2, lns = (A.newlabel(x) for x in ("proj", "projv", "projj", "nx", "nx2", "nosig"))
    A.label(lp)
    flip(A)
    A(f"s_mov_b32 s{sOUT}, s{sT+2}")
    A(f"s_mov_b32 s{sTYP}, s{sNTYP}")
    A(f"s_sub_u32 s3, s{sI}, 1")
    A(f"s_cmp_lg_u32 s3, s{sNKV}")
    A(f"s_cbranch_scc1 {lns}")
    A(f"s_lshl_b32 s{sT}, s{sRB}, 7")
    A(f"s_add_u32 s{sT}, s{sT}, {WS_FLAG + FL_KV*128}")
    signal(A, sT)
    A.label(lns)
    A(f"s_add_u32 s{sI}, s{sI}, 1")
    A(f"s_cmp_eq_u32 s{sI}, s{sN}")
    A(f"s_cbranch_scc1 {lnx}")
    params_qkv(A, sI)
    A(f"v_mov_b32 v{vT4+2}, v{vD1}")
    A(f"s_branch {lnx2}")
    A.label(lnx)
    params_w1(A, sF0)
    A(f"v_mov_b32 v{vT4+2}, v{vD1F}")
    A.label(lnx2)
    A(f"s_cmp_eq_u32 s{sTYP}, 1")
    A(f"s_cbranch_scc1 {lv}")
    for vt in range(2):
        if vt:
            A.label(lv)
        stage_proj(A, vt, store_epi(ACC1, (sPOUT, 2048), HP), store_epi(ACC0, (sOUT, 0), HP + 8), dma_ops(1, vT4 + 2))
        if not vt:
            A(f"s_branch {lj}")
    A.label(lj)
    A(f"s_mov_b32 s{sPOUT}, s{sOUT}")
    A(f"s_cmp_lt_u32 s{sI}, s{sN}")
    A(f"s_cbranch_scc1 {lp}")
    A("s_nop 7")
    A("s_nop 3")
    for t in store_epi(ACC1, (sPOUT, 2048), HP):
        A(t)
    A.c("bulk: fused FFN over this range of hidden units")
    for i in range(256):
        A(f"v_accvgpr_write_b32 a{i}, 0")
    for i in range(0, 32, 2):
        A(f"v_mov_b64 {v(OUTV+i,2)}, 0")
    A(f"s_mov_b32 s{sI}, 0")
    lf, lf2, lf3 = A.newlabel("ffn"), A.newlabel("ffnl"), A.newlabel("ffnj")
    A.label(lf)
    flip(A)
    A(f"s_add_u32 s{sT+6}, s{sF0}, s{sI}")
    params_w2(A, sT + 6)
    stage_proj(A, 0, [], silu_epi(ACC0, HP), dma_ops(2, vD2))
    flip(A)
    A(f"s_add_u32 s{sI}, s{sI}, 1")
    A(f"s_add_u32 s{sT+6}, s{sF0}, s{sI}")
    A(f"s_min_u32 s{sT+6}, s{sT+6}, 71")
    params_w1(A, sT + 6)
    stage_ffn2(A, silu_epi(ACC1, HP + 8), dma_ops(1, vD1F))
    A(f"s_cmp_lt_u32 s{sI}, s{sNF}")
    A(f"s_cbranch_scc1 {lf}")
    A.c("bulk: FFN partial -> workspace")
    A(f"s_mul_i32 s{sOUT}, s{sSEG}, {36*16384}")
    A(f"s_lshl_b32 s3, s{sJ}, 10")
    A(f"s_add_u32 s{sOUT}, s{sOUT}, s3")
    A(f"s_add_u32 s{sOUT}, s{sOUT}, {WS_FFN}")
    A("s_nop 7")
    for dt in range(18):
        for half in range(2):
            b = 2 * dt + half
            hp = HP + 4 * (b % 4)
            for i in range(4):
                o = out_tile(dt) + 8 * half + 2 * i
                if dt < 16:
                    A(f"v_accvgpr_read_b32 v{vT1}, a{o-256}")
                    A(f"v_accvgpr_read_b32 v{vT2}, a{o-255}")
                    A(f"v_cvt_pk_bf16_f32 v{hp+i}, v{vT1}, v{vT2}")
                else:
                    A(f"v_cvt_pk_bf16_f32 v{hp+i}, v{o}, v{o+1}")
            A(f"buffer_store_dwordx4 {v(hp,4)}, v{vL}, {BUF}, s{sOUT} offen sc1")
            A(f"s_add_u32 s{sOUT}, s{sOUT}, 16384")
    A("s_waitcnt vmcnt(0)")
    A("s_barrier")
    A(f"s_lshl_b32 s{sT}, s{sRB}, 7")
    A(f"s_add_u32 s{sT}, s{sT}, {WS_FLAG + FL_ALL*128}")
    signal(A, sT)
```

```python
from common import *

L_M   = 0
L_O   = 0
XP    = 1088
L_X   = 9216
L_VM  = L_X + 4 * XP
L_KX  = L_VM + 2 * XP
L_JUNK= L_KX + 8192
L_RES = 24576
assert L_JUNK + 512 <= L_RES and L_KX % 16 == 0

vL16, vIDX, vMASK, vRES, vMA, vXW, vXR, vOW, vPST, vT = range(10)
WV0 = 72
def wreg(i):
    return WV0 + 8 * i

QK_LDS_KAPPA = [3, 5, 7, 9, 11, 13, 15]
WO_REG = [(0, 0), (0, 1), (0, 2), (0, 3), (1, 3), (2, 1), (2, 3), (3, 1)]

def unit_tables():
    loc = {}
    n = 0
    for k in range(18):
        loc[('q', k)] = ('r', n); n += 1
        if k not in QK_LDS_KAPPA:
            loc[('k', k)] = ('r', n); n += 1
    for k in range(18):
        loc[('v', k)] = ('r', n); n += 1
    for u in WO_REG:
        loc[('o',) + u] = ('r', n); n += 1
    assert n == 55
    off = 0
    for k in QK_LDS_KAPPA:
        loc[('k', k)] = ('l', off); off += 8192
    for rd in range(4):
        for k in range(4):
            if (rd, k) not in WO_REG:
                loc[('o', rd, k)] = ('l', off); off += 8192
    for k in range(4):
        loc[('o', 4, k)] = ('l', off - 4096); off += 4096
    assert off == 17 * 8192
    return loc
LOC = unit_tables()
WO_BASE = 7 * 8192
WO4_BASE = 15 * 8192 - 4096

sH = S_ROLE
sSTEP, sCNT, sKVOFF, sRHO, sISRED = 50, 51, 52, 53, 54
sPST = 55
sRLD, sMST, sC, sMLD, sPUB, sFLAG, sKXO, sWARM = 60, 61, 62, 64, 65, 66, 67, 68
sONE = 76
sQKVB, sWOB = 69, 70
sH1W, sH1R, sH2W, sH2R = 69, 70, 71, 75
sT = 72
SPIN_MAX = 40000
BUF = f"s[{S_WS}:{S_WS+3}]"

def setup(A):
    A.c("chain: lane constants (v0 = lane id on entry)")
    n, g, t1, t2, ln = 10, 11, 12, 13, 14
    A(f"v_mov_b32 v{ln}, v0")
    A(f"v_and_b32 v{n}, 15, v{ln}")
    A(f"v_lshrrev_b32 v{g}, 4, v{ln}")
    A(f"v_mov_b32 v{vIDX}, 0x44444444")
    A(f"v_mov_b32 v{t1}, 0xeeeeeeee")
    A(f"v_cmp_lt_u32 vcc, 7, v{n}")
    A("s_nop 1")
    A(f"v_cndmask_b32 v{vIDX}, v{vIDX}, v{t1}, vcc")
    A(f"v_mov_b32 v{vMASK}, 0")
    A(f"v_mov_b32 v{t1}, 0xff800000")
    A(f"v_cmp_gt_u32 vcc, 32, v{ln}")
    A("s_nop 1")
    A(f"v_cndmask_b32 v{vMASK}, v{vMASK}, v{t1}, vcc")
    A(f"v_lshlrev_b32 v{vL16}, 4, v{ln}")
    A(f"s_lshl_b32 s3, s{S_WAVE}, 11")
    A(f"s_add_u32 s3, s3, {L_RES}")
    A(f"v_add_u32 v{vRES}, s3, v{vL16}")
    A(f"v_and_b32 v{t1}, 7, v{ln}")
    A(f"v_lshl_add_u32 v{t1}, v{g}, 3, v{t1}")
    A(f"v_lshlrev_b32 v{vMA}, 4, v{t1}")
    A(f"v_and_b32 v{t1}, 1, v{g}")
    A(f"v_mul_u32_u24 v{t1}, {XP}, v{t1}")
    A(f"v_lshrrev_b32 v{t2}, 1, v{g}")
    A(f"v_lshl_add_u32 v{t2}, v{t2}, 4, v{n}")
    A(f"s_lshl_b32 s3, s{S_WAVE}, 5")
    A(f"v_add_u32 v{t2}, s3, v{t2}")
    A(f"v_lshl_add_u32 v{vXW}, v{t2}, 3, v{t1}")
    A(f"v_add_u32 v{vXW}, {L_X}, v{vXW}")
    A(f"v_and_b32 v{t1}, 3, v{n}")
    A(f"v_mul_u32_u24 v{t1}, {XP}, v{t1}")
    A(f"v_lshrrev_b32 v{t2}, 1, v{g}")
    A(f"v_lshlrev_b32 v{t2}, 4, v{t2}")
    A(f"v_and_b32 v{vXR}, 1, v{g}")
    A(f"v_lshl_add_u32 v{t2}, v{vXR}, 2, v{t2}")
    A(f"v_lshrrev_b32 v{vXR}, 2, v{n}")
    A(f"v_add_u32 v{t2}, v{t2}, v{vXR}")
    A(f"v_lshl_add_u32 v{vXR}, v{t2}, 3, v{t1}")
    A(f"v_add_u32 v{vXR}, {L_X}, v{vXR}")
    A(f"s_lshl_b32 s3, s{S_WAVE}, 9")
    A(f"s_add_u32 s3, s3, {L_O}")
    A(f"v_mov_b32 v{t1}, s3")
    A(f"v_mov_b32 v{t2}, {L_JUNK}")
    A(f"v_cmp_lt_u32 vcc, 7, v{n}")
    A("s_nop 1")
    A(f"v_cndmask_b32 v{t1}, v{t1}, v{t2}, vcc")
    A(f"v_add_u32 v{vOW}, v{t1}, v{vMA}")
    A(f"v_and_b32 v{t1}, 2, v{g}")
    A(f"v_lshrrev_b32 v{vPST}, 3, v{n}")
    A(f"v_add_u32 v{t1}, v{t1}, v{vPST}")
    A(f"v_lshlrev_b32 v{t1}, 12, v{t1}")
    A(f"v_and_b32 v{t2}, 1, v{g}")
    A(f"v_lshl_add_u32 v{t1}, v{t2}, 3, v{t1}")
    A(f"v_and_b32 v{vPST}, 7, v{n}")
    A(f"v_lshl_add_u32 v{vPST}, v{vPST}, 4, v{t1}")

def setup_scalars(A):
    A.c("chain: scalar constants")
    A(f"s_lshl_b32 s3, s{sH}, 7")
    A(f"s_lshl_b32 s{sT}, s{S_WAVE}, 14")
    A(f"s_add_u32 s3, s3, s{sT}")
    A(f"s_add_u32 s{sPST}, s3, {WS_PART}")
    for rd in range(1, 4):
        A(f"s_add_u32 s{sPST+rd}, s{sPST}, {rd*65536}")
    A(f"s_add_u32 s{sPST+4}, s{sPST}, {4*65536 - 2*16384}")
    A(f"s_lshl_b32 s{sRHO}, s{sH}, 1")
    A(f"s_add_u32 s{sRHO}, s{sRHO}, s{S_WAVE}")
    A(f"s_add_u32 s3, s{sH}, 64")
    A(f"s_cmp_eq_u32 s{S_WAVE}, 2")
    A(f"s_cselect_b32 s{sRHO}, s3, s{sRHO}")
    A(f"s_cmp_lt_u32 s{sRHO}, 72")
    A(f"s_cselect_b32 s{sISRED}, 1, 0")
    A(f"s_cmp_eq_u32 s{S_WAVE}, 3")
    A(f"s_cselect_b32 s{sISRED}, 0, s{sISRED}")
    A(f"s_lshl_b32 s{sRLD}, s{sRHO}, 12")
    A(f"s_add_u32 s{sRLD}, s{sRLD}, {WS_PART}")
    A(f"s_lshl_b32 s{sMST}, s{sRHO}, 7")
    A(f"s_add_u32 s{sMST}, s{sMST}, {WS_M}")
    A(f"s_mul_i32 s{sMLD}, s{S_WAVE}, 3072")
    A(f"s_add_u32 s{sMLD}, s{sMLD}, {WS_M}")
    A(f"s_mov_b32 s{sC}, 0x3e029413")
    A(f"s_lshl_b32 s{sKVOFF}, s{sH}, 13")
    A(f"s_lshl_b32 s{sPUB}, s{sH}, 12")
    A(f"s_lshl_b32 s3, s{S_WAVE}, 10")
    A(f"s_add_u32 s{sPUB}, s{sPUB}, s3")
    A(f"s_add_u32 s{sPUB}, s{sPUB}, {WS_KVM - 32*4096}")
    A(f"s_lshl_b32 s{sFLAG}, s{sH}, 7")
    A(f"s_add_u32 s{sFLAG}, s{sFLAG}, {WS_FLAG}")
    A(f"s_lshl_b32 s{sKXO}, s{S_WAVE}, 11")
    A(f"s_lshl_b32 s{sH1W}, s{sH}, 2")
    A(f"s_add_u32 s{sH1W}, s{sH1W}, {WS_H1}")
    A(f"s_and_b32 s3, s{sH}, 3")
    A(f"s_lshl_b32 s3, s3, 7")
    A(f"s_add_u32 s{sH1R}, s3, {WS_H1}")
    A(f"s_add_u32 s{sH2R}, s3, {WS_H2}")
    A(f"s_lshr_b32 s{sH2W}, s{sRHO}, 5")
    A(f"s_lshl_b32 s{sH2W}, s{sH2W}, 9")
    A(f"s_and_b32 s3, s{sRHO}, 31")
    A(f"s_lshl_b32 s3, s3, 2")
    A(f"s_add_u32 s{sH2W}, s{sH2W}, s3")
    A(f"s_add_u32 s{sH2W}, s{sH2W}, {WS_H2}")
    A(f"s_mov_b32 s{sONE}, 0x3f803f80")
    A(f"s_mov_b32 s{sONE+1}, 0x3f803f80")
    A(f"s_mov_b32 s{sC+1}, s{sC}")
    A(f"s_lshr_b32 s{sWARM}, s{S_WAVE}, 1")
    A(f"s_mul_i32 s{sWARM}, s{sWARM}, {WS_V - WS_K}")
    A(f"s_and_b32 s3, s{S_WAVE}, 1")
    A(f"s_lshl_b32 s3, s3, 12")
    A(f"s_add_u32 s{sWARM}, s{sWARM}, s3")

def load_weights(A):
    A.c("chain: weight load")
    ln, vQ, vO, vO4, vTR, vTR4, t1, t2, t3 = 14, 15, 16, 17, 18, 19, 20, 21, 22
    CV = 24
    A(f"v_lshrrev_b32 v{t1}, 4, v{ln}")
    A(f"v_lshlrev_b32 v{t2}, 2, v{t1}")
    A(f"v_xor_b32 v{t2}, v{t2}, v{ln}")
    A(f"v_and_b32 v{t2}, 15, v{t2}")
    A(f"v_lshlrev_b32 v{t2}, 4, v{t2}")
    A(f"v_and_b32 v{t3}, 1, v{t1}")
    A(f"v_lshlrev_b32 v{t3}, 1, v{t3}")
    A(f"v_lshrrev_b32 v{vQ}, 1, v{t1}")
    A(f"v_add_u32 v{t3}, v{t3}, v{vQ}")
    A(f"v_lshl_add_u32 v{vQ}, v{t3}, 13, v{t2}")
    A(f"v_lshrrev_b32 v{t3}, 1, v{t1}")
    A(f"v_lshlrev_b32 v{t3}, 4, v{t3}")
    A(f"v_and_b32 v{vO}, 1, v{t1}")
    A(f"v_add_u32 v{t3}, v{t3}, v{vO}")
    A(f"v_mul_u32_u24 v{t3}, 1152, v{t3}")
    A(f"v_add_u32 v{vO}, v{t3}, v{t2}")
    A(f"v_lshrrev_b32 v{t1}, 3, v{ln}")
    A(f"v_bfe_u32 v{t2}, v{t1}, 1, 1")
    A(f"v_lshlrev_b32 v{t3}, 4, v{t2}")
    A(f"v_lshlrev_b32 v{t2}, 2, v{t2}")
    A(f"v_xor_b32 v{t2}, v{t2}, v{ln}")
    A(f"v_and_b32 v{t2}, 7, v{t2}")
    A(f"v_lshlrev_b32 v{t2}, 4, v{t2}")
    A(f"v_and_b32 v{vO4}, 1, v{t1}")
    A(f"v_add_u32 v{t3}, v{t3}, v{vO4}")
    A(f"v_bfe_u32 v{vO4}, v{t1}, 2, 1")
    A(f"v_lshl_add_u32 v{t3}, v{vO4}, 1, v{t3}")
    A(f"v_mul_u32_u24 v{t3}, 1152, v{t3}")
    A(f"v_add_u32 v{vO4}, v{t3}, v{t2}")
    A(f"v_bfe_u32 v{t1}, v{ln}, 4, 1")
    A(f"v_bfe_u32 v{t2}, v{ln}, 2, 1")
    A(f"v_lshl_add_u32 v{t1}, v{t1}, 1, v{t2}")
    A(f"v_bfe_u32 v{t2}, v{ln}, 5, 1")
    A(f"v_lshl_add_u32 v{t2}, v{t2}, 3, v{t1}")
    A(f"v_bfe_u32 v{t3}, v{ln}, 3, 1")
    A(f"v_lshlrev_b32 v{t3}, 5, v{t3}")
    A(f"v_and_b32 v{vTR}, 3, v{ln}")
    A(f"v_lshl_add_u32 v{t3}, v{vTR}, 3, v{t3}")
    A(f"v_xor_b32 v{vTR}, s{S_WAVE}, v{t1}")
    A(f"v_lshl_add_u32 v{vTR}, v{vTR}, 6, v{t3}")
    A(f"v_lshl_add_u32 v{vTR}, v{t2}, 8, v{vTR}")
    A(f"v_add_u32 v{vTR}, {L_RES}, v{vTR}")
    A(f"v_lshrrev_b32 v{t1}, 1, v{t1}")
    A(f"s_and_b32 s3, s{S_WAVE}, 1")
    A(f"v_xor_b32 v{vTR4}, s3, v{t1}")
    A(f"v_lshl_add_u32 v{vTR4}, v{vTR4}, 6, v{t3}")
    A(f"v_lshl_add_u32 v{vTR4}, v{t2}, 7, v{vTR4}")
    A(f"v_add_u32 v{vTR4}, {L_RES + 15*8192}, v{vTR4}")
    vTRb = [vTR, 40, 41]
    A(f"v_add_u32 v40, {7*8192}, v{vTR}")
    A(f"v_add_u32 v41, {14*8192}, v{vTR}")
    vRb = [vRES, 42, 43]
    A(f"v_add_u32 v42, {7*8192}, v{vRES}")
    A(f"v_add_u32 v43, {14*8192}, v{vRES}")
    A(f"s_lshl_b32 s{sQKVB}, s{sH}, 8")
    A(f"s_lshl_b32 s3, s{S_WAVE}, 16")
    A(f"s_add_u32 s{sQKVB}, s{sQKVB}, s3")
    A(f"s_mul_i32 s{sWOB}, s{sH}, {128*1152}")
    A(f"s_mul_i32 s3, s{S_WAVE}, {4*1152}")
    A(f"s_add_u32 s{sWOB}, s{sWOB}, s3")
    A(f"s_lshl_b32 s{sT+1}, s{S_WAVE}, 11")
    A(f"s_add_u32 s{sT+1}, s{sT+1}, {L_RES}")
    A(f"s_lshl_b32 s{sT+2}, s{S_WAVE}, 10")
    A(f"s_add_u32 s{sT+2}, s{sT+2}, {L_RES + 15*8192}")

    regu = sorted([u for u in LOC if LOC[u][0] == 'r'], key=lambda u: LOC[u][1])
    resu = sorted([u for u in LOC if LOC[u][0] == 'l' and not (u[0] == 'o' and u[1] == 4)], key=lambda u: LOC[u][1])
    NR = 15
    seq = regu + resu
    first = (-len(regu)) % NR
    slot = lambda i: (first + i) % NR
    def issue(i):
        u = seq[i]
        for q in range(2):
            if u[0] == 'o':
                A(f"s_add_u32 s{sT}, s{sWOB}, {(u[2]*32 + 2*q)*1152 + u[1]*256}")
                d, vo = S_WO, vO
            else:
                A(f"s_add_u32 s{sT}, s{sQKVB}, {(u[1]*32 + 4*q)*8192}")
                d, vo = {'q': S_WQ, 'k': S_WK, 'v': S_WV}[u[0]], vQ
            A(f"s_add_u32 m0, s{sT+1}, {slot(i)*8192 + q*1024}")
            A("s_nop 0")
            A(f"buffer_load_dwordx4 v{vo}, s[{d}:{d+3}], s{sT} offen lds")
    def trread(dst, sl):
        for u4 in range(4):
            A(f"ds_read_b64_tr_b16 {r(dst+2*u4,2)}, v{vTRb[sl//7]} offset:{(sl%7)*8192 + 4096*(u4>>1) + 1024*(u4&1)}")
    for k in range(4):
        A(f"s_add_u32 s{sT}, s{sWOB}, {k*32*1152 + 1024}")
        A(f"s_add_u32 m0, s{sT+2}, {k*4096}")
        A("s_nop 0")
        A(f"buffer_load_dwordx4 v{vO4}, s[{S_WO}:{S_WO+3}], s{sT} offen lds")
    issued = 0
    while issued < NR:
        issue(issued); issued += 1
    G = 2
    i = 0
    pending_w = []
    while i < len(seq):
        grp = list(range(i, min(i + G, len(seq))))
        if i < len(regu) < grp[-1] + 1:
            grp = list(range(i, len(regu)))
        A(f"s_waitcnt vmcnt({2*(issued - (grp[-1] + 1))})")
        A("s_barrier")
        for t in pending_w:
            A(t)
        pending_w = []
        while issued < min(len(seq), i + NR):
            issue(issued); issued += 1
        for j, b in enumerate(grp):
            if b < len(regu):
                trread(wreg(LOC[seq[b]][1]), slot(b))
            else:
                assert slot(b) * 8192 == LOC[seq[b]][1]
                cv = CV + 8 * j
                if j == 0:
                    A("s_waitcnt lgkmcnt(0)")
                trread(cv, slot(b))
                sl = slot(b)
                pending_w += [f"ds_write_b128 v{vRb[sl//7]}, {v(cv,4)} offset:{(sl%7)*8192}",
                              f"ds_write_b128 v{vRb[sl//7]}, {v(cv+4,4)} offset:{(sl%7)*8192+1024}"]
        A("s_waitcnt lgkmcnt(0)")
        i = grp[-1] + 1
    HB = 40
    for k in range(4):
        for u4 in range(4):
            A(f"ds_read_b64_tr_b16 {v(HB+8*k+2*u4,2)}, v{vTR4} offset:{k*4096 + 2048*(u4>>1) + 512*(u4&1)}")
    A(f"v_add_u32 v{t1}, {14*8192}, v{vRES}")
    pending_w = [x.replace("v43,", f"v{t1},").replace("v42,", f"v{t2},") for x in pending_w]
    A(f"v_add_u32 v{t2}, {7*8192}, v{vRES}")
    A("s_waitcnt lgkmcnt(0)")
    A("s_barrier")
    for t in pending_w:
        A(t)
    l = A.newlabel("hb")
    A(f"s_cmp_lt_u32 s{S_WAVE}, 2")
    A(f"s_cbranch_scc1 {l}")
    for k in range(4):
        A(f"ds_write_b128 v{t1}, {v(HB+8*k,4)} offset:{4096 + k*4096}")
        A(f"ds_write_b128 v{t1}, {v(HB+8*k+4,4)} offset:{4096 + k*4096 + 1024}")
    A.label(l)
    A("s_waitcnt lgkmcnt(0)")

def load_mem0(A):
    A.c("chain: mem0 -> LDS fragment image")
    q, t1, ad, D = 10, 11, 12, 14
    A(f"s_lshl_b32 s3, s{S_WAVE}, 6")
    A(f"v_lshrrev_b32 v{q}, 4, v{vL16}")
    A(f"v_add_u32 v{q}, s3, v{q}")
    A(f"v_bfe_u32 v{t1}, v{q}, 2, 3")
    A(f"v_mul_u32_u24 v{ad}, 1152, v{t1}")
    A(f"v_lshrrev_b32 v{t1}, 5, v{q}")
    A(f"v_lshl_add_u32 v{ad}, v{t1}, 4, v{ad}")
    A(f"v_and_b32 v{t1}, 1, v{q}")
    A(f"v_lshl_add_u32 v{ad}, v{t1}, 3, v{ad}")
    A(f"v_bfe_u32 v{t1}, v{q}, 1, 1")
    A(f"v_lshl_add_u32 v{ad}, v{t1}, 1, v{ad}")
    for it in range(9):
        A(f"buffer_load_ushort v{D+2*it}, v{ad}, s[{S_TMPD}:{S_TMPD+3}], 0 offen offset:{it*128}")
        A(f"buffer_load_ushort v{D+2*it+1}, v{ad}, s[{S_TMPD}:{S_TMPD+3}], 0 offen offset:{it*128+4}")
    A(f"v_lshlrev_b32 v{q}, 2, v{q}")
    A("s_waitcnt vmcnt(0)")
    for it in range(9):
        A(f"v_lshl_or_b32 v{D+2*it}, v{D+2*it+1}, 16, v{D+2*it}")
        A(f"ds_write_b32 v{q}, v{D+2*it} offset:{L_M + it*1024}")
    A("s_waitcnt lgkmcnt(0)")

AF, ST = 10, 26
QACC, KACC, VACC, VX, PUB = 42, 46, 50, 54, 62
tVX, tFL, tFV, tWA = 66, 67, 68, 69
XPK = 62
XF, KXF = 10, 26
SX0, SX1, SM = 42, 46, 62
VAF = 66
OPT = set()
PAR = dict(rdelay=0, mdelay=0, h1pos=15, h2pos=4)
V_IN_QK = 10

def warm(A, seg_off_sgpr, va):
    A(f"s_add_u32 s{sT}, s{seg_off_sgpr}, s{sWARM}")
    A(f"s_mov_b32 m0, {L_JUNK}")
    A("s_nop 0")
    A(f"buffer_load_dword v{va}, {BUF}, s{sT} offen sc1 lds")

def pub_read(A, cls):
    if cls == 0:
        A(f"v_bfe_u32 v{vT}, v{vL16}, 5, 1")
        A(f"v_mul_i32_i24 v{vT}, {256 - 2*XP}, v{vT}")
        A(f"s_lshl_b32 s3, s{S_WAVE}, 9")
        A(f"v_add3_u32 v{vT}, v{vT}, v{vXR}, s3")
        A(f"ds_read_b64_tr_b16 {v(PUB,2)}, v{vT} offset:{2*XP}")
        A(f"ds_read_b64_tr_b16 {v(PUB+2,2)}, v{vT} offset:{2*XP+64}")
    else:
        A(f"ds_read_b128 {v(PUB,4)}, v{vL16} offset:{L_VM + (cls-1)*XP}")

def kx_dma(A):
    t, t2 = 70, 71
    A(f"v_bfe_u32 v{t2}, v{vL16}, 8, 2")
    A(f"v_lshlrev_b32 v{t2}, 9, v{t2}")
    A(f"v_and_b32 v{t}, 0x70, v{vL16}")
    A(f"v_add_u32 v{t}, v{t}, v{t2}")
    A(f"v_and_b32 v{t2}, 0x80, v{vL16}")
    A(f"v_lshl_add_u32 v{t}, v{t2}, 1, v{t}")
    for kp in range(4):
        for xt in range(2):
            A(f"s_add_u32 s{sT}, s{sKVOFF}, {WS_K + kp*2048 + xt*128}")
            A(f"s_mov_b32 m0, {L_KX + (2*kp+xt)*1024}")
            A("s_nop 0")
            A(f"buffer_load_dwordx4 v{t}, {BUF}, s{sT} offen sc1 lds")

def vx_load(A):
    A(f"s_add_u32 s{sT}, s{sKVOFF}, {WS_V}")
    A(f"buffer_load_dwordx4 {v(VX,4)}, v{tVX}, {BUF}, s{sT} offen sc1")
    A(f"buffer_load_dwordx4 {v(VX+4,4)}, v{tVX}, {BUF}, s{sT} offen offset:256 sc1")

def st_preload(A):
    for k in range(2):
        o = LOC[('k', QK_LDS_KAPPA[k])][1]
        A(f"ds_read_b128 {v(ST+8*k,4)}, v{vRES} offset:{o}")
        A(f"ds_read_b128 {v(ST+8*k+4,4)}, v{vRES} offset:{o+1024}")

def pre_b1(A, cls):
    pub_read(A, cls)
    for i in range(6):
        A(f"v_mov_b64 {v(QACC+2*i,2)}, 0")
    A(f"v_and_b32 v{tVX}, 0xf0, v{vL16}")
    A(f"v_bfe_u32 v{tFV}, v{vL16}, 8, 2")
    A(f"v_lshl_add_u32 v{tFL}, v{tFV}, 9, s{sKXO}")
    A(f"v_add_u32 v{tVX}, v{tVX}, v{tFL}")
    A(f"v_lshlrev_b32 v{tWA}, 2, v{vL16}")
    if cls == 2:
        A(f"v_min_u32 v{tFL}, 1, v{vL16}")
        A(f"v_lshlrev_b32 v{tFL}, 30, v{tFL}")
        A(f"s_sub_i32 s3, s{sSTEP}, 1")
        A(f"v_mov_b32 v{tFV}, s3")

def delay(A, n):
    while n > 0:
        k = min(n, 4)
        A(f"s_nop {4*k-1}")
        n -= k

def smf(acc, af, w):
    return f"v_smfmac_f32_16x16x64_bf16 {v(acc,4)}, {v(af,4)}, {r(w,8)}, v{vIDX}"

def stamp(A, prof, i):
    if prof:
        A(f"s_memtime s[{80+2*i}:{81+2*i}]")

def mread(L, dst, k):
    return L.op(f"ds_read_b128 {v(dst,4)}, v{vMA} offset:{L_M + k*512}")

def vstep(A, L, tokA, kv):
    tok, reg = tokA[('v', kv)]
    L.wait(tok)
    A(smf(VACC, reg, wreg(LOC[('v', kv)][1])))

def vload(L, tokA, kv, reg):
    tokA[('v', kv)] = (mread(L, reg, kv), reg)

def qkv_stage(A, L, cls, prof, last):
    tokA = {}
    for k in range(3):
        tokA[k] = mread(L, AF + 4 * (k % 4), k)
    nslow = 0
    if 'noslow' not in OPT:
        A(f"buffer_store_dwordx4 {v(PUB,4)}, v{vL16}, {BUF}, s{sPUB} offen sc1"); nslow += 1
        if cls == 2:
            A(f"buffer_store_dword v{tFV}, v{tFL}, {BUF}, s{sFLAG} offen sc1"); nslow += 1
        if not last:
            A(f"s_add_u32 s{sT+1}, s{sKVOFF}, {2*32*8192}")
            A(f"s_min_u32 s{sT+1}, s{sT+1}, {63*32*8192}")
            warm(A, sT + 1, tWA); nslow += 1
    tokU = {QK_LDS_KAPPA[0]: 0, QK_LDS_KAPPA[1]: 0}
    pend = []
    for i, ku in enumerate(QK_LDS_KAPPA[2:]):
        o = LOC[('k', ku)][1]
        pend.append((ku - 3, ku, f"ds_read_b128 {v(ST+8*(i%2),4)}, v{vRES} offset:{o}"))
        pend.append((ku - 2, ku, f"ds_read_b128 {v(ST+8*(i%2)+4,4)}, v{vRES} offset:{o+1024}"))
    for k in range(18):
        L.wait(tokA[k])
        if k >= V_IN_QK:
            A(smf(VACC, AF + 4 * (k % 4), wreg(LOC[('v', k)][1])))
        A(smf(QACC, AF + 4 * (k % 4), wreg(LOC[('q', k)][1])))
        if k + 3 < 18:
            tokA[k + 3] = mread(L, AF + 4 * ((k + 3) % 4), k + 3)
        else:
            vload(L, tokA, k - 15, AF + 4 * ((k + 3) % 4))
        if LOC[('k', k)][0] == 'r':
            A(smf(KACC, AF + 4 * (k % 4), wreg(LOC[('k', k)][1])))
        else:
            L.wait(tokU[k])
            A(smf(KACC, AF + 4 * (k % 4), ST + 8 * (QK_LDS_KAPPA.index(k) % 2)))
        for (at, ku, txt) in pend:
            if at == k:
                tokU[ku] = L.op(txt)
        if k >= 16 and not last:
            kp = k - 16
            L.op(f"ds_read_b128 {v(KXF+8*(1-kp),4)}, v{vL16} offset:{L_KX + (2*kp)*1024}")
            tokA[('kx', kp)] = L.op(f"ds_read_b128 {v(KXF+8*(1-kp)+4,4)}, v{vL16} offset:{L_KX + (2*kp+1)*1024}")
    stamp(A, prof, 1)
    vload(L, tokA, 3, AF + 4)
    vstep(A, L, tokA, 0)
    A("s_nop 1")
    vstep(A, L, tokA, 1)
    vload(L, tokA, 6, VAF)
    A("s_nop 1")
    A(f"v_cvt_pk_bf16_f32 v{XPK}, v{QACC}, v{QACC+1}")
    A(f"v_cvt_pk_bf16_f32 v{XPK+1}, v{QACC+2}, v{QACC+3}")
    L.op(f"ds_write_b64 v{vXW}, {v(XPK,2)}")
    A(f"v_cvt_pk_bf16_f32 v{XPK+2}, v{KACC}, v{KACC+1}")
    A(f"v_cvt_pk_bf16_f32 v{XPK+3}, v{KACC+2}, v{KACC+3}")
    tw = L.op(f"ds_write_b64 v{vXW}, {v(XPK+2,2)} offset:{2*XP}")
    vload(L, tokA, 4, QACC)
    vload(L, tokA, 5, KACC)
    vstep(A, L, tokA, 2)
    vstep(A, L, tokA, 3)
    L.wait(tw)
    A("s_barrier")
    return tokA, nslow

def step(A, cls, tag, fail, cold, prof=False, stf=""):
    L = LgkmTracker(A)
    A("s_waitcnt lgkmcnt(0)")
    A("s_barrier")
    stamp(A, prof, 0)
    lskip = A.newlabel("skip")
    if 'nocomp' in OPT:
        A(f"s_add_u32 s{sSTEP}, s{sSTEP}, 1")
        A(f"s_mov_b32 s{sCNT}, 0")
        delay(A, 20)
        tg = (lambda x: f"v_or_b32 v{x}, 1, v{x}") if tag else (lambda x: f"v_and_b32 v{x}, -2, v{x}")
        A(tg(52)); A(tg(53))
        for rd in range(4 if cls == 0 else 5):
            delay(A, 4)
            A(f"buffer_store_dwordx2 v[52:53], v{vPST}, {BUF}, s{sPST+rd} offen {stf}")
        A(f"s_branch {lskip}")
        prof_c = None
    else:
        prof_c = prof
    prof_x, prof = prof, prof_c
    tokA, nslow = qkv_stage(A, L, cls, prof, False)
    stamp(A, prof, 2)
    tx = {}
    for kp in range(4):
        L.op(f"ds_read_b64_tr_b16 {v(XF+4*kp,2)}, v{vXR} offset:{kp*256}")
        tx[kp] = L.op(f"ds_read_b64_tr_b16 {v(XF+4*kp+2,2)}, v{vXR} offset:{kp*256+64}")
    vstep(A, L, tokA, 4)
    A(f"v_mov_b32 v{SM}, v{vMASK}")
    vstep(A, L, tokA, 5)
    A(f"v_mov_b32 v{SM+1}, v{vMASK}")
    vstep(A, L, tokA, 6)
    vload(L, tokA, 7, VAF)
    A(f"v_mov_b32 v{SM+2}, v{vMASK}")
    A(f"v_mov_b32 v{SM+3}, v{vMASK}")
    def sx(kp):
        kb = KXF + 8 * (1 - kp % 2)
        L.wait(max(tx[kp], tokA[('kx', kp)]))
        A(f"v_mfma_f32_16x16x32_bf16 {v(SX0,4)}, {v(kb,4)}, {v(XF+4*kp,4)}, {'0' if kp == 0 else v(SX0,4)}")
        A(f"v_mfma_f32_16x16x32_bf16 {v(SX1,4)}, {v(kb+4,4)}, {v(XF+4*kp,4)}, {'0' if kp == 0 else v(SX1,4)}")
        if kp < 2:
            L.op(f"ds_read_b128 {v(kb,4)}, v{vL16} offset:{L_KX + (2*kp+4)*1024}")
            tokA[('kx', kp + 2)] = L.op(f"ds_read_b128 {v(kb+4,4)}, v{vL16} offset:{L_KX + (2*kp+5)*1024}")
    sx(0); sx(1)
    for kp in range(4):
        L.wait(tx[kp])
        A(f"v_mfma_f32_16x16x32_bf16 {v(SM,4)}, {v(XF+4*kp,4)}, {v(XF+4*kp,4)}, {v(SM,4)}")
        if kp in (1, 2):
            vload(L, tokA, 7 + kp, XF + 4 * (kp - 1))
    sx(2); sx(3)
    ONES = 22
    vstep(A, L, tokA, 7)
    A(f"v_mov_b64 {v(30,2)}, 0")
    vstep(A, L, tokA, 8)
    A(f"v_mov_b64 {v(34,2)}, 0")
    A(f"v_mov_b64 {v(ONES,2)}, s[{sONE}:{sONE+1}]")
    A(f"v_mov_b64 {v(ONES+2,2)}, s[{sONE}:{sONE+1}]")
    stamp(A, prof, 3)
    m1, m2, m3, mt = 18, 19, 20, 21
    SC = [SX0 + i for i in range(8)] + [SM + i for i in range(4)]
    A(f"v_max3_f32 v{m1}, v{SM}, v{SM+1}, v{SM+2}")
    A(f"v_max3_f32 v{m1}, v{m1}, v{SM+3}, v{SX0}")
    A(f"v_max3_f32 v{m2}, v{SX0+1}, v{SX0+2}, v{SX0+3}")
    A(f"v_max3_f32 v{m3}, v{SX1}, v{SX1+1}, v{SX1+2}")
    A(f"v_max3_f32 v{m1}, v{m1}, v{m2}, v{SX1+3}")
    A(f"v_max_f32 v{mt}, v{m1}, v{m3}")
    A(f"v_max_f32 v{m1}, v{m1}, v{m3}")
    vstep(A, L, tokA, 9)
    A("s_nop 0")
    A(f"v_permlane16_swap_b32 v{m1}, v{mt}")
    A(f"v_max_f32 v{m2}, v{m1}, v{mt}")
    A(f"v_max_f32 v{m1}, v{m1}, v{mt}")
    A("s_nop 1")
    A(f"v_permlane32_swap_b32 v{m1}, v{m2}")
    A(f"v_max_f32 v{m1}, v{m1}, v{m2}")
    A(f"v_mul_f32 v{m1}, s{sC}, v{m1}")
    for i in range(6):
        A(f"v_pk_fma_f32 {v(SC[2*i],2)}, {v(SC[2*i],2)}, s[{sC}:{sC+1}], {v(m1,2)} op_sel_hi:[1,0,0] neg_lo:[0,0,1] neg_hi:[0,0,1]")
    PX, PM, LS, O0, VQ, O1 = 26, 32, 10, 14, 36, 66
    VP = VQ + 2
    A(f"v_cvt_pk_bf16_f32 v{VP}, v{VACC}, v{VACC+1}")
    A(f"v_cvt_pk_bf16_f32 v{VP+1}, v{VACC+2}, v{VACC+3}")
    L.op(f"ds_write_b64 v{vXW}, {v(VP,2)} offset:{4*XP}")
    A(f"v_mov_b64 {v(VQ,2)}, {v(VP,2)}")
    for i in range(8):
        A(f"v_exp_f32 v{SC[i]}, v{SC[i]}")
        if i == 1:
            A(f"v_permlane32_swap_b32 v{VQ}, v{VP}")
            A(f"v_permlane32_swap_b32 v{VQ+1}, v{VP+1}")
    A(f"v_exp_f32 v{SC[8]}, v{SC[8]}")
    for i in range(4):
        A(f"v_cvt_pk_bf16_f32 v{PX+i}, v{SC[2*i]}, v{SC[2*i+1]}")
    A(f"v_exp_f32 v{SC[9]}, v{SC[9]}")
    A(f"s_waitcnt vmcnt({nslow})")
    A(f"v_mfma_f32_16x16x32_bf16 {v(LS,4)}, {v(ONES,4)}, {v(PX,4)}, 0")
    A(f"v_exp_f32 v{SC[10]}, v{SC[10]}")
    A(f"v_mfma_f32_16x16x32_bf16 {v(O0,4)}, {v(VX,4)}, {v(PX,4)}, 0")
    A(f"v_exp_f32 v{SC[11]}, v{SC[11]}")
    A(f"v_mfma_f32_16x16x32_bf16 {v(O1,4)}, {v(VX+4,4)}, {v(PX,4)}, 0")
    A(f"v_cvt_pk_bf16_f32 v{PM}, v{SM}, v{SM+1}")
    A(f"v_cvt_pk_bf16_f32 v{PM+1}, v{SM+2}, v{SM+3}")
    A("s_nop 1")
    A(f"v_mfma_f32_16x16x32_bf16 {v(LS,4)}, {v(ONES,4)}, {v(PM,4)}, {v(LS,4)}")
    A(f"v_mfma_f32_16x16x32_bf16 {v(O0,4)}, {v(VQ,4)}, {v(PM,4)}, {v(O0,4)}")
    A(f"v_mfma_f32_16x16x32_bf16 {v(O1,4)}, {v(VQ,4)}, {v(PM-2,4)}, {v(O1,4)}")
    OACC, OF, WST, OPK = 52, 10, 26, 22
    nr = 4 if cls == 0 else 5
    lu = [('o', rd, k) for rd in range(nr) for k in range(4) if (rd, k) not in WO_REG]
    tu = {}
    vW4 = 51
    bufs = {0: 42, 1: 26, 2: 34}
    for i in range(3, 12):
        bufs[i] = bufs[i - 3]
    bufs[9], bufs[10], bufs[11] = 52, bufs[6], bufs[7]
    def fetch(i):
        u = lu[i]
        base, o = (vT, LOC[u][1] - WO_BASE) if u[1] < 4 else (vW4, LOC[u][1] - WO4_BASE)
        L.op(f"ds_read_b128 {v(bufs[i],4)}, v{base} offset:{o}")
        tu[i] = L.op(f"ds_read_b128 {v(bufs[i]+4,4)}, v{base} offset:{o+1024}")
    A(f"v_add_u32 v{vT}, {WO_BASE}, v{vRES}")
    if cls:
        A(f"v_add_u32 v{vW4}, {WO4_BASE}, v{vRES}")
    else:
        A("s_nop 0")
    fetch(0)
    A(f"v_mov_b64 {v(52,2)}, 0")
    A(f"v_mov_b64 {v(54,2)}, 0")
    A(f"v_rcp_f32 v{m1}, v{LS}")
    A(f"v_mov_b64 {v(56,2)}, 0")
    for i in range(2):
        A(f"v_pk_mul_f32 {v(O0+2*i,2)}, {v(O0+2*i,2)}, {v(m1,2)} op_sel_hi:[1,0]")
    for i in range(2):
        A(f"v_pk_mul_f32 {v(O1+2*i,2)}, {v(O1+2*i,2)}, {v(m1,2)} op_sel_hi:[1,0]")
    A(f"v_cvt_pk_bf16_f32 v{OPK}, v{O0}, v{O0+1}")
    A(f"v_cvt_pk_bf16_f32 v{OPK+1}, v{O0+2}, v{O0+3}")
    A(f"v_cvt_pk_bf16_f32 v{OPK+2}, v{O1}, v{O1+1}")
    A(f"v_cvt_pk_bf16_f32 v{OPK+3}, v{O1+2}, v{O1+3}")
    tw = L.op(f"ds_write_b128 v{vOW}, {v(OPK,4)}")
    fetch(1); fetch(2)
    A(f"s_add_u32 s{sSTEP}, s{sSTEP}, 1")
    for i in range(58, 52 + 4 * nr, 2):
        A(f"v_mov_b64 {v(i,2)}, 0")
    L.wait(tw)
    A("s_barrier")
    stamp(A, prof, 4)
    to = {}
    for k in range(4):
        to[k] = L.op(f"ds_read_b128 {v(OF+4*k,4)}, v{vMA} offset:{L_O + k*512}")
    tagop = (lambda x: f"v_or_b32 v{x}, 1, v{x}") if tag else (lambda x: f"v_and_b32 v{x}, -2, v{x}")
    def emit_out(rd):
        p = OACC + 4 * rd
        return [f"v_cvt_pk_bf16_f32 v{p}, v{p}, v{p+1}", f"v_cvt_pk_bf16_f32 v{p+1}, v{p+2}, v{p+3}",
                tagop(p), tagop(p + 1),
                f"buffer_store_dwordx2 {v(p,2)}, v{vPST}, {BUF}, s{sPST+rd} offen {stf}"]
    after = {i: i + 3 for i in range(6)}
    after.update({6: 10, 7: 11})
    for rd in range(nr):
        outq = emit_out(rd - 1) if rd else None
        for k in range(4):
            if rd == 0:
                L.wait(to[k])
            u = ('o', rd, k)
            fill = 0
            if LOC[u][0] == 'r':
                A(smf(OACC + 4 * rd, OF + 4 * k, wreg(LOC[u][1])))
                if (rd, k) == (3, 1) and len(lu) > 9:
                    fetch(9); fill = 2
            else:
                i = lu.index(u)
                L.wait(tu[i])
                A(smf(OACC + 4 * rd, OF + 4 * k, bufs[i]))
                if after.get(i, 99) < len(lu):
                    fetch(after[i]); fill = 2
            if outq and k < 2:
                A(f"s_nop {2 - fill}")
            if k == 2 and outq:
                A(outq[0]); A(outq[1])
            if k == 3 and outq:
                A(outq[2]); A(outq[3]); A(outq[4])
    A("s_nop 0")
    A(f"s_add_u32 s{sKVOFF}, s{sKVOFF}, {32*8192}")
    A(f"s_add_u32 s{sPUB}, s{sPUB}, {32*4096}")
    A(f"s_mov_b32 s{sCNT}, 0")
    A("s_nop 0")
    for x in emit_out(nr - 1): A(x)
    A.label(lskip)
    prof = prof_x
    if 'nocomp' not in OPT:
        stamp(A, prof, 5)
    chk = "0x80" if tag else "0xfe"
    def check(regs, nld, ck):
        for i in range(nld):
            yield i
            b = regs + 4 * i
            if i == 0:
                A(f"v_bitop3_b32 v{ck}, v{b}, v{b+1}, v{b+2} bitop3:{chk}")
                A(f"v_bitop3_b32 v{ck}, v{ck}, v{b+3}, v{b+3} bitop3:{chk}")
            else:
                A(f"v_bitop3_b32 v{ck}, v{ck}, v{b}, v{b+1} bitop3:{chk}")
                A(f"v_bitop3_b32 v{ck}, v{ck}, v{b+2}, v{b+3} bitop3:{chk}")
        A(f"v_and_b32 v{ck}, 1, v{ck}")
        A(f"v_cmp_ne_u32 vcc, {tag}, v{ck}")
    def reduce_piece():
        RD, SEL, RA, ck, vMST = 10, 26, 30, 34, 35
        lp, lp2 = A.newlabel("rpoll"), A.newlabel("rpoll2")
        delay(A, PAR['rdelay'])
        for i in range(4):
            A(f"buffer_load_dwordx4 {v(RD+4*i,4)}, v{vL16}, {BUF}, s{sRLD} offen offset:{i*1024} sc1")
        A(f"v_and_b32 v{ck}, 16, v{vL16}")
        A(f"v_mov_b32 v{RA}, 0x3f80")
        A(f"v_lshlrev_b32 v{RA}, v{ck}, v{RA}")
        A(f"v_bfe_u32 v{ck}, v{vL16}, 5, 3")
        for q in range(4):
            A(f"v_cmp_eq_u32 vcc, {q}, v{ck}")
            A("s_nop 1")
            A(f"v_cndmask_b32 v{SEL+q}, 0, v{RA}, vcc")
        A(f"v_and_b32 v{vMST}, 0xf0, v{vL16}")
        A(f"v_bfe_u32 v{ck}, v{vL16}, 8, 2")
        A(f"v_lshl_add_u32 v{vMST}, v{ck}, 2, v{vMST}")
        A(f"v_and_b32 v{ck}, 0x80, v{vL16}")
        A(f"v_lshl_add_u32 v{vMST}, v{ck}, 23, v{vMST}")
        pre_b1(A, cls)
        A.label(lp2)
        for i in check(RD, 4, ck):
            A(f"s_waitcnt vmcnt({3-i})")
            if 'nocomp' in OPT and i in (0, 3):
                stamp(A, prof, 2 if i == 0 else 3)
            A(f"v_mfma_f32_16x16x32_bf16 {v(RA,4)}, {v(RD+4*i,4)}, {v(SEL,4)}, {'0' if i == 0 else v(RA,4)}")
        A(f"s_cbranch_vccnz {lp}")
        A("s_nop 2")
        A(f"v_permlane32_swap_b32 v{RA}, v{RA+1}")
        A(f"v_permlane32_swap_b32 v{RA+2}, v{RA+3}")
        A(f"v_add_f32 v{RA}, v{RA}, v{RA+1}")
        A(f"v_add_f32 v{RA+2}, v{RA+2}, v{RA+3}")
        A(f"v_cvt_pk_bf16_f32 v{RA}, v{RA}, v{RA+2}")
        A(tagop(RA))
        A(f"buffer_store_dword v{RA}, v{vMST}, {BUF}, s{sMST} offen {stf}")
        def retry():
            A.label(lp)
            for i in range(4):
                A(f"buffer_load_dwordx4 {v(RD+4*i,4)}, v{vL16}, {BUF}, s{sRLD} offen offset:{i*1024} sc1")
            A(f"s_add_u32 s{sCNT}, s{sCNT}, 1")
            A(f"s_cmp_gt_u32 s{sCNT}, {SPIN_MAX}")
            A(f"s_cbranch_scc0 {lp2}")
            A(f"s_branch {fail}")
        cold.append(retry)
    A("s_barrier")
    if 'nocomp' in OPT:
        stamp(A, prof, 5)
    if cls == 0:
        reduce_piece()
    elif cls == 1:
        lnr, lj = A.newlabel("nored"), A.newlabel("redj")
        A(f"s_cmp_eq_u32 s{sISRED}, 0")
        A(f"s_cbranch_scc1 {lnr}")
        reduce_piece()
        A.label(lj)
        def nored():
            A.label(lnr)
            pre_b1(A, cls)
            A(f"s_branch {lj}")
        cold.append(nored)
    else:
        pre_b1(A, cls)
        delay(A, PAR['rdelay'])
        if 'nokx' not in OPT:
            kx_dma(A)
    if 'novx' not in OPT:
        vx_load(A)
    stamp(A, prof, 6)
    A("s_barrier")
    if cls == 2:
        st_preload(A)
        A("s_waitcnt vmcnt(2)")
    else:
        MP, ck, wa = 10, 22, 23
        lp, lp2 = A.newlabel("mpoll"), A.newlabel("mpoll2")
        delay(A, PAR['mdelay'])
        for i in range(3):
            A(f"buffer_load_dwordx4 {v(MP+4*i,4)}, v{vL16}, {BUF}, s{sMLD} offen offset:{i*1024} sc1")
        A(f"s_mul_i32 s3, s{S_WAVE}, 3072")
        A(f"v_add_u32 v{wa}, s3, v{vL16}")
        st_preload(A)
        A.label(lp2)
        for i in check(MP, 3, ck):
            A(f"s_waitcnt vmcnt({2-i})")
            if 'nocomp' in OPT and i == 0:
                stamp(A, prof, 4)
        A(f"s_cbranch_vccnz {lp}")
        for i in range(3):
            A(f"ds_write_b128 v{wa}, {v(MP+4*i,4)} offset:{L_M + i*1024}")
        def retry2():
            A.label(lp)
            for i in range(3):
                A(f"buffer_load_dwordx4 {v(MP+4*i,4)}, v{vL16}, {BUF}, s{sMLD} offen offset:{i*1024} sc1")
            A(f"s_add_u32 s{sCNT}, s{sCNT}, 256")
            A(f"s_cmp_gt_u32 s{sCNT}, {SPIN_MAX*256}")
            A(f"s_cbranch_scc0 {lp2}")
            A(f"s_branch {fail}")
        cold.append(retry2)
    stamp(A, prof, 7)

def last_step(A, cls):
    L = LgkmTracker(A)
    A("s_waitcnt lgkmcnt(0)")
    A("s_barrier")
    tokA, nslow = qkv_stage(A, L, cls, False, True)
    for kv in (7, 8, 9):
        vload(L, tokA, kv, AF + 4 * (kv - 7))
    for kv in range(4, 10):
        vstep(A, L, tokA, kv)
    A("s_nop 7")
    A(f"v_cvt_pk_bf16_f32 v40, v{VACC}, v{VACC+1}")
    A(f"v_cvt_pk_bf16_f32 v41, v{VACC+2}, v{VACC+3}")
    A(f"ds_write_b64 v{vXW}, v[40:41] offset:{4*XP}")
    A(f"s_add_u32 s{sPUB}, s{sPUB}, {32*4096}")
    A("s_waitcnt lgkmcnt(0)")
    A("s_barrier")
    pub_read(A, cls)
    A("s_waitcnt lgkmcnt(0)")
    A(f"buffer_store_dwordx4 {v(PUB,4)}, v{vL16}, {BUF}, s{sPUB} offen sc1")
    A("s_waitcnt vmcnt(0)")
    A("s_barrier")
    if cls == 2:
        A(f"v_min_u32 v{tFL}, 1, v{vL16}")
        A(f"v_lshlrev_b32 v{tFL}, 30, v{tFL}")
        A(f"v_mov_b32 v{tFV}, 64")
        A(f"buffer_store_dword v{tFV}, v{tFL}, {BUF}, s{sFLAG} offen sc1")

def run(A, fail, done, prof=None, stf=""):
    labs = [A.newlabel(f"cls{c}") for c in range(3)]
    A(f"s_mov_b32 s{sSTEP}, 0")
    A(f"s_cmp_eq_u32 s{S_WAVE}, 2")
    A(f"s_cbranch_scc1 {labs[1]}")
    A(f"s_cmp_eq_u32 s{S_WAVE}, 3")
    A(f"s_cbranch_scc1 {labs[2]}")
    for cls in range(3):
        A.label(labs[cls])
        cold = []
        pre_b1(A, cls)
        st_preload(A)
        if cls == 2:
            kx_dma(A)
        vx_load(A)
        A(f"s_add_u32 s{sT+1}, s{sKVOFF}, {32*8192}")
        warm(A, sT + 1, tWA)
        A("s_waitcnt vmcnt(0)")
        lo, la = A.newlabel("loop"), A.newlabel("last")
        A(".p2align 6")
        A.label(lo)
        step(A, cls, 0, fail, cold, prof, stf)
        if prof: prof(A)
        A(f"s_cmp_eq_u32 s{sSTEP}, 63")
        A(f"s_cbranch_scc1 {la}")
        step(A, cls, 1, fail, cold, prof, stf)
        if prof: prof(A)
        A(f"s_branch {lo}")
        for f in cold:
            f()
        A.label(la)
        last_step(A, cls)
        A(f"s_branch {done}")
```

```python
from asm import *

MB = 1 << 20
WS_K    = 0
WS_V    = 16 * MB
WS_Q    = 32 * MB
WS_KVM  = 48 * MB + 32 * 4096
WS_PART = 60 * MB
WS_M    = WS_PART + 72 * 4096
WS_FLAG = 62 * MB
WS_H1   = WS_FLAG + 64 * 128
WS_H2   = WS_FLAG + 72 * 128
WS_PROF = 63 * MB
WS_FFN  = 64 * MB
WS_EP   = 112 * MB
WS_SIZE = 268435456

S_WS, S_WQ, S_WK, S_WV, S_WO, S_X, S_W1, S_W2, S_OUT, S_TMPD = 4, 8, 12, 16, 20, 24, 28, 32, 36, 40
S_DBG = 44
S_WAVE, S_XCC, S_ROLE, S_LOCAL = 46, 47, 48, 49

WBYTES = 576 * 4096 * 2

class LgkmTracker:
    def __init__(self, A):
        self.A = A
        self.issued = 0
        self.done = 0
    def op(self, text):
        self.A(text)
        self.issued += 1
        return self.issued
    def wait(self, tok):
        if tok <= self.done:
            return
        n = self.issued - tok
        assert n <= 15, n
        self.A(f"s_waitcnt lgkmcnt({n})")
        self.done = tok
    def all(self):
        self.A("s_waitcnt lgkmcnt(0)")
        self.done = self.issued

def srd(A, d, ptr, nbytes):
    A(f"s_mov_b32 s{d}, s{ptr}")
    A(f"s_and_b32 s{d+1}, s{ptr+1}, 0xffff")
    A(f"s_mov_b32 s{d+2}, {nbytes}")
    A(f"s_mov_b32 s{d+3}, 0x20000")

def prologue(A, exit_label):
    A(f"s_cmp_ge_u32 s2, 256")
    A(f"s_cbranch_scc1 {exit_label}")
    A("s_load_dwordx16 s[52:67], s[0:1], 0")
    A("s_load_dwordx8 s[68:75], s[0:1], 64")
    A("s_load_dwordx2 s[76:77], s[0:1], 96")
    A(f"s_getreg_b32 s{S_XCC}, hwreg(HW_REG_XCC_ID, 0, 3)")
    A("v_lshrrev_b32 v1, 6, v0")
    A("v_and_b32 v0, 63, v0")
    A(f"v_readfirstlane_b32 s{S_WAVE}, v1")
    A("s_waitcnt lgkmcnt(0)")
    A(f"s_mov_b64 s[{S_DBG}:{S_DBG+1}], s[74:75]")
    srd(A, S_WS, 76, WS_SIZE)
    srd(A, S_WQ, 56, WBYTES)
    srd(A, S_WK, 58, WBYTES)
    srd(A, S_WV, 60, WBYTES)
    srd(A, S_WO, 62, WBYTES)
    srd(A, S_X, 52, 2048 * 576 * 2)
    srd(A, S_W1, 68, 576 * 4608 * 2)
    srd(A, S_W2, 70, 576 * 4608 * 2)
    srd(A, S_OUT, 72, 2048 * 576 * 2)
    srd(A, S_TMPD, 54, 8 * 576 * 2)


DBG_INIT = 240
def xcc_slot(A, dst, x):
    A(f"s_add_u32 s3, s{x}, 3")
    A("s_lshr_b32 s3, s3, 2")
    A(f"s_lshl_b32 s{dst}, s{x}, 2")
    A("s_lshl_b32 s3, s3, 6")
    A(f"s_add_u32 s{dst}, s{dst}, s3")
def xcc_slot_py(x):
    return ((x + 3) // 4) * 64 + 4 * x

def take_ticket(A):
    l = A.newlabel("tk")
    A(f"s_cmp_lg_u32 s{S_WAVE}, 0")
    A(f"s_cbranch_scc1 {l}")
    xcc_slot(A, 51, S_XCC)
    A(f"s_add_u32 s52, s{S_DBG}, s51")
    A(f"s_addc_u32 s53, s{S_DBG+1}, 0")
    A("s_mov_b32 s50, 1")
    A("s_atomic_add s50, s[52:53], 0 glc")
    A("s_waitcnt lgkmcnt(0)")
    A("v_mov_b32 v1, s50")
    A("v_mov_b32 v2, 0")
    A("ds_write_b32 v2, v1")
    A("s_waitcnt lgkmcnt(0)")
    A.label(l)
    A("s_barrier")
    A("v_mov_b32 v2, 0")
    A("ds_read_b32 v1, v2")
    A("s_waitcnt lgkmcnt(0)")
    A("v_readfirstlane_b32 s50, v1")
    A("s_barrier")

def init_shared(A):
    l = A.newlabel("ini")
    A(f"s_cmp_lg_u32 s{S_WAVE}, 1")
    A(f"s_cbranch_scc1 {l}")
    for i in range(4):
        A(f"v_mov_b32 v{4+i}, 1")
    A("v_mov_b32 v8, 0")
    A("v_lshlrev_b32 v1, 4, v0")
    A("v_lshlrev_b32 v2, 1, v0")
    A("s_mul_i32 s3, s2, 1200")
    A(f"s_add_u32 s3, s3, {WS_PART}")
    A(f"buffer_store_dwordx4 v[4:7], v1, s[{S_WS}:{S_WS+3}], s3 offen sc1")
    A(f"buffer_store_dwordx4 v[4:7], v1, s[{S_WS}:{S_WS+3}], s3 offen offset:1024 sc1")
    A("s_lshl_b32 s3, s2, 7")
    A(f"s_add_u32 s3, s3, {WS_FLAG}")
    A(f"buffer_store_short v8, v2, s[{S_WS}:{S_WS+3}], s3 offen sc1")
    A("s_waitcnt vmcnt(0)")
    A("s_mov_b32 s3, 1")
    A(f"s_atomic_add s3, s[{S_DBG}:{S_DBG+1}], {DBG_INIT}")
    A("s_waitcnt lgkmcnt(0)")
    A.label(l)

def read_counts(A, fail, vt):
    lp = A.newlabel("cnt")
    A("s_mov_b32 s51, 0")
    A.label(lp)
    A(f"global_load_dword v{vt+1}, v{vt}, s[{S_DBG}:{S_DBG+1}] sc1")
    A("s_add_u32 s51, s51, 1")
    A("s_cmp_gt_u32 s51, 100000")
    A(f"s_cbranch_scc1 {fail}")
    A("s_waitcnt vmcnt(0)")
    A(f"v_readlane_b32 s3, v{vt+1}, {DBG_INIT//4}")
    A("s_cmp_lt_u32 s3, 256")
    A(f"s_cbranch_scc1 {lp}")
    A("s_mov_b32 s60, 0")
    for x in range(8):
        A(f"v_readlane_b32 s{52+x}, v{vt+1}, {xcc_slot_py(x)//4}")
        A(f"s_add_u32 s60, s60, s{52+x}")
    A("s_cmp_lt_u32 s60, 256")
    A(f"s_cbranch_scc1 {lp}")
    A(f"s_mov_b32 s{S_LOCAL}, 1")
    for x in range(8):
        A(f"s_cmp_eq_u32 s{52+x}, 32")
        A(f"s_cselect_b32 s{S_LOCAL}, s{S_LOCAL}, 0")

def assign_roles(A, fail):
    l = A.newlabel("role")
    A(f"s_lshl_b32 s{S_ROLE}, s{S_XCC}, 5")
    A(f"s_add_u32 s{S_ROLE}, s{S_ROLE}, s50")
    A("s_cmp_lt_u32 s50, 32")
    A(f"s_cbranch_scc1 {l}")
    A.c("more than 32 workgroups on this XCC: take a role left vacant on another one")
    A("v_lshlrev_b32 v1, 2, v0")
    read_counts(A, fail, 1)
    A("s_sub_u32 s50, s50, 32")
    for x in range(8):
        A(f"s_sub_i32 s3, s{52+x}, 32")
        A("s_max_i32 s3, s3, 0")
        A(f"s_cmp_gt_u32 s{S_XCC}, {x}")
        A("s_cselect_b32 s3, s3, 0")
        A("s_add_u32 s50, s50, s3")
    A(f"s_mov_b32 s{S_ROLE}, 0")
    for x in range(8):
        A(f"s_sub_i32 s3, 32, s{52+x}")
        A("s_max_i32 s3, s3, 0")
        A(f"s_add_u32 s61, s{52+x}, s50")
        A(f"s_add_u32 s61, s61, {32*x}")
        A("s_cmp_lt_u32 s50, s3")
        A(f"s_cselect_b32 s{S_ROLE}, s61, s{S_ROLE}")
        A("s_sub_u32 s50, s50, s3")
    A.label(l)
```

```python
from common import *
from bulk import read_addr, FL_ALL, FL_GRP

BUF = f"s[{S_WS}:{S_WS+3}]"
L_QKV = 0
L_KVM = 49152
L_OX  = 53248
EPB = 36 * 32768
vL, vKM, vVM, vRA, vRF, vRO, vT1, vT2, vT3, vT4 = 240, 241, 242, 243, 244, 245, 246, 247, 248, 249
MASK = 0
QF, KF, KMF = 16, 48, 80
SX, SM = 112, 128
PX = 144
VF = 156
OA = 168
OF = 16
WA = 184
SELA, SELB = 216, 220
RD = 48
RACC, XR = 224, 228
sH, sG, sSEG, sK, sQB, sEPW, sEPR, sISR, sC, sCNT, sRBOK, sTAG, sU, sNT, sWB = 50, 51, 52, 53, 54, 55, 56, 57, 58, 60, 61, 62, 63, 64, 65
sT = 72
SPIN_MAX = 400000

def wo_reg(t, k):
    return 256 + 32 * t + 4 * k

def poll_ge(A, line_sgpr, val, fail, signed=False):
    lp = A.newlabel("pw")
    A(f"s_mov_b32 s{sCNT}, 0")
    A(f"v_mov_b32 v{vT1}, 0")
    A.label(lp)
    A(f"buffer_load_dword v{vT2}, v{vT1}, {BUF}, s{line_sgpr} offen sc1")
    A(f"s_add_u32 s{sCNT}, s{sCNT}, 1")
    A(f"s_cmp_gt_u32 s{sCNT}, {SPIN_MAX}")
    A(f"s_cbranch_scc1 {fail}")
    A("s_waitcnt vmcnt(0)")
    A(f"v_cmp_gt_i32 vcc, {val}, v{vT2}")
    lq = A.newlabel("pwok")
    A(f"s_cbranch_vccz {lq}")
    A("s_sleep 2")
    A(f"s_branch {lp}")
    A.label(lq)

def release(A):
    l = A.newlabel("rel")
    A(f"s_cmp_eq_u32 s{S_LOCAL}, 1")
    A(f"s_cbranch_scc1 {l}")
    A("s_waitcnt vmcnt(0)")
    A("buffer_wbl2 sc1")
    A("s_waitcnt vmcnt(0)")
    A.label(l)

def setup(A, fail):
    A.c("engine: setup")
    A(f"v_mov_b32 v{vL}, v246")
    A(f"s_and_b32 s{sH}, s{S_ROLE}, 31")
    A(f"s_lshr_b32 s{sG}, s{S_ROLE}, 5")
    A(f"s_mul_i32 s{sEPW}, s{sG}, {2*EPB}")
    A(f"s_lshl_b32 s3, s{sH}, 10")
    A(f"s_add_u32 s{sEPW}, s{sEPW}, s3")
    A(f"s_add_u32 s{sEPW}, s{sEPW}, {WS_EP}")
    for i in range(4):
        A(f"v_mov_b32 v{i}, 1")
    A(f"s_mul_i32 s{sT}, s{S_WAVE}, {18*32768}")
    A(f"s_add_u32 s{sT}, s{sT}, s{sEPW}")
    for i in range(18):
        A(f"buffer_store_dwordx4 v[0:3], v{vL}, {BUF}, s{sT} offen")
        A(f"s_add_u32 s{sT}, s{sT}, 32768")
    A(f"v_lshrrev_b32 v{vT4}, 4, v{vL}")
    A(f"v_bfe_u32 v{vT1}, v{vT4}, 3, 2")
    A(f"v_bfe_u32 v{vT3}, v{vT4}, 5, 1")
    A(f"v_lshl_add_u32 v{vT1}, v{vT3}, 3, v{vT1}")
    A(f"v_mul_u32_u24 v{vT1}, 1152, v{vT1}")
    A(f"v_bfe_u32 v{vT2}, v{vT4}, 4, 1")
    A(f"v_lshlrev_b32 v{vT2}, 2, v{vT2}")
    A(f"v_xor_b32 v{vT2}, v{vT2}, v{vT4}")
    A(f"v_and_b32 v{vT2}, 7, v{vT2}")
    A(f"v_lshl_add_u32 v{vT1}, v{vT2}, 4, v{vT1}")
    A(f"s_mul_i32 s{sWB}, s{sH}, {128*1152}")
    A(f"s_lshr_b32 s3, s{S_WAVE}, 1")
    A(f"s_mul_i32 s3, s3, {16*1152}")
    A(f"s_add_u32 s{sWB}, s{sWB}, s3")
    A(f"s_and_b32 s3, s{S_WAVE}, 1")
    A(f"s_mul_i32 s3, s3, {4*1152}")
    A(f"s_add_u32 s{sWB}, s{sWB}, s3")
    A(f"s_lshl_b32 s{sT+1}, s{S_WAVE}, 10")
    for i in range(36):
        A(f"s_add_u32 m0, s{sT+1}, {i*4096}")
        A(f"s_add_u32 s{sT}, s{sWB}, {(i & 3)*32*1152 + (i >> 2)*128}")
        A(f"buffer_load_dwordx4 v{vT1}, s[{S_WO}:{S_WO+3}], s{sT} offen lds")
    ln = vT4
    read_addr(A, vRA, ln, vT1, vT2)
    A(f"s_mul_i32 s{sU}, s{S_WAVE}, 5")
    A(f"s_cmp_eq_u32 s{S_WAVE}, 3")
    A(f"s_cselect_b32 s{sU}, 14, s{sU}")
    A(f"s_waitcnt vmcnt(0)")
    release(A)
    A("s_barrier")
    A(f"s_lshl_b32 s{sT}, s{sG}, 7")
    A(f"s_add_u32 s{sT}, s{sT}, {WS_FLAG + FL_GRP*128}")
    l = A.newlabel("gs")
    A(f"s_cmp_lg_u32 s{S_WAVE}, 0")
    A(f"s_cbranch_scc1 {l}")
    A(f"v_mov_b32 v{vT1}, 1")
    A(f"v_mov_b32 v{vT2}, 0")
    A("s_mov_b64 exec, 1")
    A(f"buffer_atomic_add v{vT1}, v{vT2}, {BUF}, s{sT} offen")
    A("s_mov_b64 exec, -1")
    A.label(l)
    for t in range(5):
        A(f"s_add_u32 s3, s{sU}, {t}")
        A(f"s_min_u32 s3, s3, 17")
        A(f"s_lshr_b32 s{sT+1}, s3, 1")
        A(f"s_lshl_b32 s{sT+1}, s{sT+1}, 14")
        A(f"s_and_b32 s3, s3, 1")
        A(f"s_lshl_b32 s3, s3, 6")
        A(f"v_xor_b32 v{vT1}, s3, v{vRA}")
        A(f"v_add_u32 v{vT1}, s{sT+1}, v{vT1}")
        for k in range(8):
            A(f"ds_read_b64_tr_b16 {r(wo_reg(t,k),2)}, v{vT1} offset:{k*2048}")
            A(f"ds_read_b64_tr_b16 {r(wo_reg(t,k)+2,2)}, v{vT1} offset:{k*2048+512}")
        A("s_waitcnt lgkmcnt(0)")
    A(f"v_and_b32 v{vT1}, 31, v{ln}")
    A(f"v_bfe_u32 v{vT2}, v{ln}, 5, 1")
    A(f"v_lshlrev_b32 v{vT2}, 2, v{vT2}")
    A(f"v_sub_u32 v{vT1}, v{vT1}, v{vT2}")
    A(f"v_mov_b32 v{vT2}, 0xff800000")
    for i in range(16):
        A(f"v_cmp_gt_i32 vcc, {8*(i>>2) + (i&3)}, v{vT1}")
        A("s_nop 1")
        A(f"v_cndmask_b32 v{MASK+i}, 0, v{vT2}, vcc")
    A(f"v_and_b32 v{vKM}, 0x70, v{vL}")
    A(f"v_bfe_u32 v{vT1}, v{ln}, 5, 1")
    A(f"v_lshl_add_u32 v{vKM}, v{vT1}, 8, v{vKM}")
    A(f"v_and_b32 v{vVM}, 31, v{ln}")
    A(f"s_lshl_b32 s3, s{S_WAVE}, 5")
    A(f"v_add_u32 v{vVM}, s3, v{vVM}")
    A(f"v_lshlrev_b32 v{vVM}, 3, v{vVM}")
    A(f"v_lshl_add_u32 v{vVM}, v{vT1}, 10, v{vVM}")
    A(f"s_lshl_b32 s{sNT}, s{sH}, 1")
    A(f"s_add_u32 s{sNT}, s{sNT}, s{S_WAVE}")
    A(f"s_add_u32 s3, s{sH}, 64")
    A(f"s_cmp_eq_u32 s{S_WAVE}, 2")
    A(f"s_cselect_b32 s{sNT}, s3, s{sNT}")
    A(f"s_cmp_lt_u32 s{sNT}, 72")
    A(f"s_cselect_b32 s{sISR}, 1, 0")
    A(f"s_cmp_eq_u32 s{S_WAVE}, 3")
    A(f"s_cselect_b32 s{sISR}, 0, s{sISR}")
    A(f"s_lshr_b32 s{sT}, s{sNT}, 1")
    A(f"s_lshl_b32 s{sEPR}, s{sT}, 15")
    A(f"s_and_b32 s3, s{sNT}, 1")
    A(f"s_lshl_b32 s3, s3, 8")
    A(f"s_add_u32 s{sEPR}, s{sEPR}, s3")
    A(f"s_mul_i32 s3, s{sG}, {2*EPB}")
    A(f"s_add_u32 s{sEPR}, s{sEPR}, s3")
    A(f"s_add_u32 s{sEPR}, s{sEPR}, {WS_EP}")
    A(f"v_and_b32 v{vRA}, 0xf0, v{vL}")
    A(f"v_lshrrev_b32 v{vT1}, 4, v{ln}")
    A(f"v_lshl_add_u32 v{vRA}, v{vT1}, 10, v{vRA}")
    A(f"v_lshrrev_b32 v{vT2}, 1, v{vT1}")
    A(f"v_lshl_add_u32 v{vRF}, v{vT2}, 30, v{vRA}")
    A(f"v_and_b32 v{vRO}, 15, v{ln}")
    A(f"s_and_b32 s3, s{sNT}, 1")
    A(f"s_lshl_b32 s3, s3, 4")
    A(f"v_add_u32 v{vRO}, s3, v{vRO}")
    A(f"v_mul_u32_u24 v{vRO}, 1152, v{vRO}")
    A(f"v_lshl_add_u32 v{vRO}, v{vT2}, 3, v{vRO}")
    A(f"v_and_b32 v{vT2}, 1, v{vT1}")
    A(f"v_lshl_add_u32 v{vRO}, v{vT2}, 4, v{vRO}")
    A(f"s_lshl_b32 s3, s{sT}, 5")
    A(f"v_add_u32 v{vRO}, s3, v{vRO}")
    A(f"v_and_b32 v{vT1}, 1, v{ln}")
    A(f"v_lshlrev_b32 v{vT1}, 4, v{vT1}")
    A(f"v_mov_b32 v{vT2}, 0x3f80")
    A(f"v_lshlrev_b32 v{vT2}, v{vT1}, v{vT2}")
    A(f"v_bfe_u32 v{vT1}, v{ln}, 1, 3")
    for q in range(8):
        A(f"v_cmp_eq_u32 vcc, {q}, v{vT1}")
        A("s_nop 1")
        A(f"v_cndmask_b32 v{SELA+q}, 0, v{vT2}, vcc")
    A(f"v_mov_b64 {v(PX+10,2)}, 0")
    A(f"v_mov_b64 {v(VF+10,2)}, 0")
    A(f"s_mov_b32 s{sC}, 0x3e029413")
    A(f"s_mov_b32 s{sC+1}, 0x3e029413")
    A(f"s_lshl_b32 s3, s{sU}, 16")
    A(f"s_add_u32 s{sEPW}, s{sEPW}, s3")
    A(f"s_lshl_b32 s{sT}, s{sG}, 7")
    A(f"s_add_u32 s{sT}, s{sT}, {WS_FLAG + FL_GRP*128}")
    poll_ge(A, sT, 32, fail)
    A("s_barrier")

def qkv_fetch(A, seg, bufsel, fail):
    l = A.newlabel("rbok")
    A(f"s_lshr_b32 s{sT}, s{seg}, 2")
    A(f"s_cmp_eq_u32 s{sT}, s{sRBOK}")
    A(f"s_cbranch_scc1 {l}")
    A(f"s_mov_b32 s{sRBOK}, s{sT}")
    A(f"s_lshl_b32 s{sT}, s{sT}, 7")
    A(f"s_add_u32 s{sT}, s{sT}, {WS_FLAG + FL_ALL*128}")
    poll_ge(A, sT, 14, fail)
    A.label(l)
    A(f"s_lshl_b32 s{sT}, s{seg}, 5")
    A(f"s_add_u32 s{sT}, s{sT}, s{sH}")
    A(f"s_lshl_b32 s{sT}, s{sT}, 13")
    A(f"s_lshl_b32 s3, s{S_WAVE}, 11")
    A(f"s_add_u32 s{sT}, s{sT}, s3")
    A(f"s_add_u32 s{sT+1}, s{bufsel}, s3")
    for m, base in enumerate((WS_Q, WS_K, WS_V)):
        A(f"s_add_u32 m0, s{sT+1}, {m*8192}")
        A(f"s_add_u32 s{sT+2}, s{sT}, {base}")
        A(f"buffer_load_dwordx4 v{vL}, {BUF}, s{sT+2} offen sc1 lds")
        A(f"buffer_load_dwordx4 v{vL}, {BUF}, s{sT+2} offen offset:1024 sc1 lds")

def segment(A, fail):
    L = LgkmTracker(A)
    A("s_waitcnt vmcnt(0)")
    A("s_barrier")
    A(f"v_add_u32 v{vT3}, s{sQB}, v{vL}")
    tq = {}
    for k in range(8):
        L.op(f"ds_read_b128 {v(QF+4*k,4)}, v{vT3} offset:{k*1024}")
        tq[k] = L.op(f"ds_read_b128 {v(KF+4*k,4)}, v{vT3} offset:{8192 + k*1024}")
        if k == 5:
            L.wait(tq[0])
    A(f"s_lshl_b32 s3, s{S_WAVE}, 11")
    A(f"v_add_u32 v{vT3}, s3, v{vT3}")
    for k in range(8):
        L.wait(tq[k])
        A(f"v_mfma_f32_32x32x16_bf16 {v(SX,16)}, {v(KF+4*k,4)}, {v(QF+4*k,4)}, {v(MASK,16) if k == 0 else v(SX,16)}")
    L.op(f"ds_read_b128 {v(VF,4)}, v{vT3} offset:{16384}")
    L.op(f"ds_read_b128 {v(VF+4,4)}, v{vT3} offset:{16384+1024}")
    ln = A.newlabel("nonext")
    A(f"s_add_u32 s{sT+6}, s{sSEG}, 7")
    A(f"s_xor_b32 s{sT+7}, s{sQB}, 24576")
    A(f"s_cmp_gt_u32 s{sT+6}, 63")
    A(f"s_cbranch_scc1 {ln}")
    qkv_fetch(A, sT + 6, sT + 7, fail)
    A.label(ln)
    lr = A.newlabel("nored0")
    A(f"s_cmp_eq_u32 s{sISR}, 0")
    A(f"s_cbranch_scc1 {lr}")
    A(f"s_mul_i32 s{sT}, s{sSEG}, {36*16384}")
    A(f"s_lshr_b32 s3, s{sNT}, 1")
    A(f"s_lshl_b32 s3, s3, 14")
    A(f"s_add_u32 s{sT}, s{sT}, s3")
    A(f"s_and_b32 s3, s{sNT}, 1")
    A(f"s_lshl_b32 s3, s3, 8")
    A(f"s_add_u32 s{sT}, s{sT}, s3")
    A(f"s_add_u32 s{sT}, s{sT}, {WS_FFN}")
    for u in range(4):
        for hf in range(2):
            A(f"buffer_load_dwordx4 {v(KMF+8*u+4*hf,4)}, v{vRA if u < 3 else vRF}, {BUF}, s{sT} offen offset:{hf*512} sc1")
        A(f"s_add_u32 s{sT}, s{sT}, 4096")
    A(f"s_mul_i32 s{sT}, s{sSEG}, {32*1152}")
    A(f"buffer_load_dwordx2 {v(XR,2)}, v{vRO}, s[{S_X}:{S_X+3}], s{sT} offen")
    A("s_waitcnt vmcnt(1)")
    for u in range(4):
        for hf in range(2):
            A(f"v_mfma_f32_16x16x32_bf16 {v(RACC,4)}, {v(SELA+4*hf,4)}, {v(KMF+8*u+4*hf,4)}, {'0' if u + hf == 0 else v(RACC,4)}")
    A.label(lr)
    A(f"s_lshl_b32 s{sT+3}, s{sH}, 7")
    A(f"s_add_u32 s{sT+3}, s{sT+3}, {WS_FLAG}")
    A(f"s_add_u32 s{sT+4}, s{sSEG}, 1")
    poll_ge(A, sT + 3, f"s{sT+4}", fail)
    A(f"s_lshl_b32 s{sT}, s{sSEG}, 5")
    A(f"s_add_u32 s{sT}, s{sT}, s{sH}")
    A(f"s_lshl_b32 s{sT}, s{sT}, 12")
    A(f"s_add_u32 s{sT}, s{sT}, {WS_KVM}")
    for k in range(8):
        A(f"buffer_load_dwordx4 {v(KMF+4*k,4)}, v{vKM}, {BUF}, s{sT} offen offset:{(k>>2)*1024 + (k&1)*512 + ((k>>1)&1)*128} sc1")
    A(f"buffer_load_dwordx2 {v(VF+8,2)}, v{vVM}, {BUF}, s{sT} offen offset:2048 sc1")
    for k in range(8):
        A(f"s_waitcnt vmcnt({8-k})")
        A(f"v_mfma_f32_32x32x16_bf16 {v(SM,16)}, {v(KMF+4*k,4)}, {v(QF+4*k,4)}, {'0' if k == 0 else v(SM,16)}")
    m1, m2, l1 = vT1, vT2, vT3
    A(f"v_max3_f32 v{m1}, v{SX}, v{SX+1}, v{SX+2}")
    for i in range(3, 15, 2):
        A(f"v_max3_f32 v{m1}, v{m1}, v{SX+i}, v{SX+i+1}")
    A(f"v_max_f32 v{m1}, v{m1}, v{SX+15}")
    A("s_nop 3")
    A(f"v_max3_f32 v{m1}, v{m1}, v{SM}, v{SM+1}")
    A(f"v_max3_f32 v{m2}, v{m1}, v{SM+2}, v{SM+3}")
    A(f"v_max3_f32 v{m1}, v{m1}, v{SM+2}, v{SM+3}")
    A("s_nop 1")
    A(f"v_permlane32_swap_b32 v{m1}, v{m2}")
    A(f"v_max_f32 v{m1}, v{m1}, v{m2}")
    A(f"v_mul_f32 v{m1}, s{sC}, v{m1}")
    for i in range(10):
        A(f"v_pk_fma_f32 {v(SX+2*i,2)}, {v(SX+2*i,2)}, s[{sC}:{sC+1}], {v(m1,2)} op_sel_hi:[1,0,0] neg_lo:[0,0,1] neg_hi:[0,0,1]")
    for i in range(20):
        A(f"v_exp_f32 v{SX+i}, v{SX+i}")
    for i in range(10):
        A(f"v_cvt_pk_bf16_f32 v{PX+i}, v{SX+2*i}, v{SX+2*i+1}")
    L.all()
    A("s_waitcnt vmcnt(0)")
    A(f"v_mfma_f32_32x32x16_bf16 {v(OA,16)}, {v(VF,4)}, {v(PX,4)}, 0")
    A(f"v_pk_add_f32 {v(SX,2)}, {v(SX,2)}, {v(SX+2,2)}")
    A(f"v_mfma_f32_32x32x16_bf16 {v(OA,16)}, {v(VF+4,4)}, {v(PX+4,4)}, {v(OA,16)}")
    A(f"v_mfma_f32_32x32x16_bf16 {v(OA,16)}, {v(VF+8,4)}, {v(PX+8,4)}, {v(OA,16)}")
    for i in range(2, 10):
        A(f"v_pk_add_f32 {v(SX,2)}, {v(SX,2)}, {v(SX+2*i,2)}")
    A(f"v_add_f32 v{m1}, v{SX}, v{SX+1}")
    A(f"v_add_f32 v{m2}, v{SX}, v{SX+1}")
    A("s_nop 1")
    A(f"v_permlane32_swap_b32 v{m1}, v{m2}")
    A(f"v_add_f32 v{m1}, v{m1}, v{m2}")
    A(f"v_rcp_f32 v{m1}, v{m1}")
    A("s_nop 0")
    for i in range(8):
        A(f"v_pk_mul_f32 {v(OA+2*i,2)}, {v(OA+2*i,2)}, {v(m1,2)} op_sel_hi:[1,0]")
    for i in range(8):
        A(f"v_cvt_pk_bf16_f32 v{PX+i}, v{OA+2*i}, v{OA+2*i+1}")
    A(f"s_lshl_b32 s3, s{S_WAVE}, 11")
    A(f"v_add_u32 v{vT3}, s3, v{vL}")
    A(f"ds_write_b128 v{vT3}, {v(PX,4)} offset:{L_OX}")
    A(f"ds_write_b128 v{vT3}, {v(PX+4,4)} offset:{L_OX+1024}")
    A("s_waitcnt lgkmcnt(0)")
    A("s_barrier")
    L = LgkmTracker(A)
    to = {k: L.op(f"ds_read_b128 {v(OF+4*k,4)}, v{vL} offset:{L_OX + k*1024}") for k in range(8)}
    A(f"s_and_b32 s3, s{sK}, 1")
    A(f"s_mul_i32 s{sT+5}, s3, {EPB}")
    A(f"s_add_u32 s{sT}, s{sEPW}, s{sT+5}")
    A(f"s_lshr_b32 s{sTAG}, s{sK}, 1")
    A(f"s_and_b32 s{sTAG}, s{sTAG}, 1")
    def epi(t):
        acc = WA + 16 * (t % 2)
        ops = []
        for half in range(2):
            for i in range(4):
                ops.append(f"v_cvt_pk_bf16_f32 v{acc+8*half+i}, v{acc+8*half+2*i}, v{acc+8*half+2*i+1}")
            for i in range(4):
                ops.append(f"v_and_or_b32 v{acc+8*half+i}, v{acc+8*half+i}, -2, s{sTAG}")
            ops.append(f"buffer_store_dwordx4 {v(acc+8*half,4)}, v{vL}, {BUF}, s{sT} offen")
            ops.append(f"s_add_u32 s{sT}, s{sT}, 32768")
        return ops
    l4, lj = A.newlabel("t4"), A.newlabel("tj")
    for t in range(5):
        if t == 4:
            A(f"s_cmp_ge_u32 s{S_WAVE}, 2")
            A(f"s_cbranch_scc1 {l4}")
        acc = WA + 16 * (t % 2)
        ops = epi(t - 1) if t else []
        for k in range(8):
            L.wait(to[k])
            A(f"v_mfma_f32_32x32x16_bf16 {v(acc,16)}, {r(wo_reg(t,k),4)}, {v(OF+4*k,4)}, {'0' if k == 0 else v(acc,16)}")
            if ops and k < 3:
                A("s_nop 3")
            if k >= 3:
                for x in ops[4*(k-3):4*(k-2)]:
                    A(x)
    A("s_nop 11")
    for x in epi(4): A(x)
    A(f"s_branch {lj}")
    A.label(l4)
    A("s_nop 11")
    for x in epi(3): A(x)
    A.label(lj)
    release(A)
    le = A.newlabel("segend")
    A(f"s_cmp_eq_u32 s{sISR}, 0")
    A(f"s_cbranch_scc1 {le}")
    A(f"s_mov_b32 s{sCNT}, 0")
    lp = A.newlabel("epoll")
    A.label(lp)
    A(f"s_add_u32 s{sT}, s{sEPR}, s{sT+5}")
    for u in range(8):
        for hf in range(2):
            A(f"buffer_load_dwordx4 {v(RD+8*u+4*hf,4)}, v{vRA}, {BUF}, s{sT} offen offset:{hf*512} sc1")
        A(f"s_add_u32 s{sT}, s{sT}, 4096")
    A(f"s_add_u32 s{sCNT}, s{sCNT}, 1")
    A(f"s_cmp_gt_u32 s{sCNT}, {SPIN_MAX}")
    A(f"s_cbranch_scc1 {fail}")
    a1, o1 = vT1, vT2
    for i in range(16):
        b = RD + 4 * i
        A(f"s_waitcnt vmcnt({15-i})")
        A(f"v_mfma_f32_16x16x32_bf16 {v(OA,4)}, {v(SELA+4*(i%2),4)}, {v(b,4)}, {v(RACC,4) if i == 0 else v(OA,4)}")
        if i == 0:
            A(f"v_bitop3_b32 v{a1}, v{b}, v{b+1}, v{b+2} bitop3:0x80")
            A(f"v_bitop3_b32 v{o1}, v{b}, v{b+1}, v{b+2} bitop3:0xfe")
            A(f"v_and_b32 v{a1}, v{a1}, v{b+3}")
            A(f"v_or_b32 v{o1}, v{o1}, v{b+3}")
        else:
            A(f"v_bitop3_b32 v{a1}, v{a1}, v{b}, v{b+1} bitop3:0x80")
            A(f"v_bitop3_b32 v{o1}, v{o1}, v{b}, v{b+1} bitop3:0xfe")
            A(f"v_bitop3_b32 v{a1}, v{a1}, v{b+2}, v{b+3} bitop3:0x80")
            A(f"v_bitop3_b32 v{o1}, v{o1}, v{b+2}, v{b+3} bitop3:0xfe")
    A(f"v_xor_b32 v{a1}, s{sTAG}, v{a1}")
    A(f"v_xor_b32 v{o1}, s{sTAG}, v{o1}")
    A(f"v_or_b32 v{a1}, v{a1}, v{o1}")
    A(f"v_and_b32 v{a1}, 1, v{a1}")
    A(f"v_cmp_ne_u32 vcc, 0, v{a1}")
    A(f"s_cbranch_vccnz {lp}")
    A(f"v_lshlrev_b32 v{vT1}, 16, v{XR}")
    A(f"v_and_b32 v{vT2}, 0xffff0000, v{XR}")
    A(f"v_lshlrev_b32 v{vT3}, 16, v{XR+1}")
    A(f"v_and_b32 v{vT4}, 0xffff0000, v{XR+1}")
    for i in range(4):
        A(f"v_add_f32 v{OA+i}, v{OA+i}, v{vT1+i}")
    A(f"v_cvt_pk_bf16_f32 v{OA}, v{OA}, v{OA+1}")
    A(f"v_cvt_pk_bf16_f32 v{OA+1}, v{OA+2}, v{OA+3}")
    A(f"s_mul_i32 s{sT}, s{sSEG}, {32*1152}")
    A(f"buffer_store_dwordx2 {v(OA,2)}, v{vRO}, s[{S_OUT}:{S_OUT+3}], s{sT} offen")
    A.label(le)

def run(A, fail, done, hook=None):
    setup(A, fail)
    if hook: hook()
    A(f"s_mov_b32 s{sSEG}, s{sG}")
    A(f"s_mov_b32 s{sK}, 0")
    A(f"s_mov_b32 s{sQB}, {L_QKV}")
    A(f"s_mov_b32 s{sRBOK}, -1")
    qkv_fetch(A, sSEG, sQB, fail)
    lp = A.newlabel("seg")
    A.label(lp)
    segment(A, fail)
    A(f"s_add_u32 s{sSEG}, s{sSEG}, 7")
    A(f"s_add_u32 s{sK}, s{sK}, 1")
    A(f"s_xor_b32 s{sQB}, s{sQB}, 24576")
    A(f"s_cmp_lt_u32 s{sSEG}, 64")
    A(f"s_cbranch_scc1 {lp}")
    A(f"s_branch {done}")
```

```python
import sys
from common import *
import chain, bulk, engine

KN = "parallel_sum__memory_aug_recurrent_mem_tr__dense_activation_silu__prompt_kernel"
REF = open("parallel_sum__memory_aug_recurrent_mem_tr__dense_activation_silu__prompt.s.ref").read()
COMMENT = REF[:REF.index("; Override launch geometry")]
HDR = COMMENT + f"""; @launch grid=(256,1,1) block=(256,1,1) lds=163840
.amdgcn_target "amdgcn-amd-amdhsa--gfx950"
.text
.globl {KN}
.p2align 8
.type {KN},@function
{KN}:
"""
FTR = f"""
.section .rodata,"a"
.p2align 6
.amdhsa_kernel {KN}
  .amdhsa_next_free_vgpr 512
  .amdhsa_next_free_sgpr 102
  .amdhsa_accum_offset 256
  .amdhsa_group_segment_fixed_size 0
  .amdhsa_kernarg_size 104
  .amdhsa_user_sgpr_count 2
  .amdhsa_user_sgpr_kernarg_segment_ptr 1
  .amdhsa_system_sgpr_workgroup_id_x 1
.end_amdhsa_kernel
"""

def tstamp(A, prof, i):
    if prof:
        A(f"s_memrealtime s[{i}:{i+1}]")

def wait_kv(A, fail):
    lp = A.newlabel("kvw")
    A(f"v_and_b32 v10, 0xf0, v{chain.vL16}")
    A("v_lshlrev_b32 v10, 3, v10")
    A(f"s_mov_b32 s{chain.sT}, {WS_FLAG + bulk.FL_KV*128}")
    A(f"s_mov_b32 s{chain.sCNT}, 0")
    A.label(lp)
    A(f"buffer_load_dword v11, v10, {chain.BUF}, s{chain.sT} offen sc1")
    A(f"s_add_u32 s{chain.sCNT}, s{chain.sCNT}, 1")
    A(f"s_cmp_gt_u32 s{chain.sCNT}, 400000")
    A(f"s_cbranch_scc1 {fail}")
    A("s_waitcnt vmcnt(0)")
    A("v_cmp_gt_u32 vcc, 14, v11")
    A(f"s_cbranch_vccnz {lp}")

def build(prof=False, force_nonlocal=False):
    A = Asm()
    tstamp(A, prof, 90)
    prologue(A, "L_exit")
    take_ticket(A)
    init_shared(A)
    assign_roles(A, "L_exit")
    A(f"s_cmp_ge_u32 s{S_ROLE}, 32")
    A("s_cbranch_scc1 L_bulk")
    chain.setup(A)
    chain.load_weights(A)
    chain.load_mem0(A)
    A("v_lshrrev_b32 v10, 2, v0")
    read_counts(A, "L_exit", 10)
    if force_nonlocal:
        A(f"s_mov_b32 s{S_LOCAL}, 0")
    chain.setup_scalars(A)
    tstamp(A, prof, 92)
    wait_kv(A, "L_exit")
    tstamp(A, prof, 94)
    A(f"s_cmp_eq_u32 s{S_LOCAL}, 0")
    A("s_cbranch_scc1 L_chain_far")
    chain.run(A, "L_exit0", "L_done0")
    A.label("L_exit0")
    A("s_endpgm")
    A.label("L_done0")
    A("s_branch L_done1")
    A.label("L_chain_far")
    chain.run(A, "L_exit1", "L_done1", None, "sc1")
    A.label("L_exit")
    A.label("L_exit1")
    A("s_endpgm")
    A.label("L_done1")
    A("s_branch L_done")
    A.label("L_bulk")
    A(f"s_sub_u32 s{S_ROLE}, s{S_ROLE}, 32")
    bulk.run(A, "L_exit2")
    if force_nonlocal:
        A(f"s_mov_b32 s{S_LOCAL}, 0")
    tstamp(A, prof, 92)
    engine.run(A, "L_exit2", "L_done2", (lambda: tstamp(A, prof, 94)))
    A.label("L_done2")
    A(f"s_add_u32 s{S_ROLE}, s{S_ROLE}, 32")
    A.label("L_done")
    if prof:
        tstamp(A, prof, 96)
        A("s_waitcnt lgkmcnt(0)")
        for i in range(4):
            A(f"v_mov_b32 v{16+i}, s{90+2*i}")
        A(f"s_lshl_b32 s3, s{S_ROLE}, 2")
        A(f"s_add_u32 s3, s3, s{S_WAVE}")
        A("s_lshl_b32 s3, s3, 4")
        A(f"s_add_u32 s3, s3, {WS_PROF}")
        A("v_mov_b32 v20, 0")
        A(f"buffer_store_dwordx4 v[16:19], v20, s[{S_WS}:{S_WS+3}], s3 offen")
    A.label("L_exit2")
    A("s_endpgm")
    return HDR + A.text() + FTR

if __name__ == "__main__":
    chain.PAR.update(rdelay=10, mdelay=10)
    open("parallel_sum__memory_aug_recurrent_mem_tr__dense_activation_silu__prompt.s", "w").write(build())
    open("full_prof.s", "w").write(build(True))
    open("full_far.s", "w").write(build(True, True))
```

```python
from common import *

BUF = f"s[{S_WS}:{S_WS+3}]"
SLAB = 73728
FL_KV, FL_ALL, FL_GRP = 32, 48, 96

def ranges():
    nF = [6, 6] + [5] * 12
    nKV = [9, 9, 10, 10] + [9] * 10
    nQ = [3, 3, 4, 4] + [5] * 10
    out, a, b, c = [], 0, 0, 0
    for j in range(14):
        out.append((a, nKV[j], b, nQ[j], c, nF[j]))
        a += nKV[j]; b += nQ[j]; c += nF[j]
    assert (a, b, c) == (128, 64, 72)
    return out

XN = 0
ACC0, ACC1 = 144, 160
FR = 176
HP = 192
OUTV = 208
vA = 240
vD1, vD2, vL, vT1, vT2, vT3, vT4, vD1F = 244, 245, 246, 247, 248, 249, 250, 251
sRB, sJ, sI, sN, sSRC, sOUT, sPOUT, sLB, sSEG = 50, 51, 52, 53, 54, 55, 56, 57, 58
sKV0, sNKV, sQ0, sNQ, sF0, sNF, sTYP, sNTYP, sRS32, sLOG = 59, 60, 61, 62, 63, 64, 65, 66, 67, 68
sSIG, sP0R, sP0U, sSAV = 69, 70, 71, 90
sT = 72
PAR = dict(d0=0, ds=1)
S_CUR = S_TMPD

def out_tile(dt):
    return 256 + 16 * dt if dt < 16 else OUTV + 16 * (dt - 16)

def setup(A):
    A.c("bulk: indices")
    A(f"s_and_b32 s{sRB}, s{S_ROLE}, 15")
    A(f"s_lshr_b32 s{sJ}, s{S_ROLE}, 4")
    for j, rg in enumerate(ranges()):
        A(f"s_cmp_eq_u32 s{sJ}, {j}")
        pk1 = rg[0] | rg[1] << 8 | rg[2] << 16 | rg[3] << 24
        pk2 = rg[4] | rg[5] << 8
        A(f"s_cselect_b32 s{sT}, {pk1}, s{sT}" if j else f"s_mov_b32 s{sT}, {pk1}")
        A(f"s_cselect_b32 s{sT+1}, {pk2}, s{sT+1}" if j else f"s_mov_b32 s{sT+1}, {pk2}")
    A(f"s_and_b32 s{sKV0}, s{sT}, 255")
    A(f"s_bfe_u32 s{sNKV}, s{sT}, 0x80008")
    A(f"s_bfe_u32 s{sQ0}, s{sT}, 0x80010")
    A(f"s_lshr_b32 s{sNQ}, s{sT}, 24")
    A(f"s_and_b32 s{sF0}, s{sT+1}, 255")
    A(f"s_lshr_b32 s{sNF}, s{sT+1}, 8")
    A(f"s_lshl_b32 s{sSEG}, s{sRB}, 2")
    A(f"s_add_u32 s{sSEG}, s{sSEG}, s{S_WAVE}")
    A(f"s_mov_b32 s{sLOG}, 0xbfb8aa3b")
    A(f"v_mov_b32 v{vL}, v0")
    A(f"v_lshrrev_b32 v{vT1}, 3, v{vL}")
    A(f"v_bfe_u32 v{vT2}, v{vL}, 4, 1")
    A(f"v_lshlrev_b32 v{vT2}, 2, v{vT2}")
    A(f"v_xor_b32 v{vT2}, v{vT2}, v{vL}")
    A(f"v_and_b32 v{vT2}, 7, v{vT2}")
    A(f"v_lshlrev_b32 v{vT2}, 4, v{vT2}")
    A(f"v_lshl_add_u32 v{vD1}, v{vT1}, 13, v{vT2}")
    A(f"v_mul_u32_u24 v{vD1F}, 9216, v{vT1}")
    A(f"v_add_u32 v{vD1F}, v{vD1F}, v{vT2}")
    A(f"v_bfe_u32 v{vT3}, v{vL}, 5, 1")
    A(f"v_and_b32 v{vT1}, 3, v{vT1}")
    A(f"v_lshl_add_u32 v{vT1}, v{vT3}, 3, v{vT1}")
    A(f"v_mul_u32_u24 v{vD2}, 1152, v{vT1}")
    A(f"v_add_u32 v{vD2}, v{vD2}, v{vT2}")
    read_addr(A, vA, vL, vT1, vT2)
    A(f"v_xor_b32 v{vA+2}, 64, v{vA}")
    A(f"v_add_u32 v{vA+1}, {18*2048}, v{vA}")
    A(f"v_add_u32 v{vA+3}, {18*2048}, v{vA+2}")
    A(f"v_lshlrev_b32 v{vL}, 4, v{vL}")

def read_addr(A, dst, ln, t1, t2):
    A(f"v_bfe_u32 v{t1}, v{ln}, 2, 2")
    A(f"v_bfe_u32 v{t2}, v{ln}, 5, 1")
    A(f"v_lshl_add_u32 v{t1}, v{t2}, 3, v{t1}")
    A(f"v_lshlrev_b32 v{dst}, 7, v{t1}")
    A(f"v_bfe_u32 v{t2}, v{ln}, 3, 1")
    A(f"v_lshl_add_u32 v{dst}, v{t2}, 6, v{dst}")
    A(f"v_bfe_u32 v{t2}, v{ln}, 4, 1")
    A(f"v_lshl_add_u32 v{dst}, v{t2}, 5, v{dst}")
    A(f"v_and_b32 v{t2}, 3, v{ln}")
    A(f"v_lshl_add_u32 v{dst}, v{t2}, 3, v{dst}")

def copy_srd(A, src):
    for i in range(4):
        A(f"s_mov_b32 s{S_CUR+i}, s{src+i}")

def params_qkv(A, idx):
    la, lb, le = A.newlabel("pq"), A.newlabel("pv"), A.newlabel("pe")
    A(f"s_cmp_ge_u32 s{idx}, s{sNKV}")
    A(f"s_cbranch_scc1 {la}")
    A(f"s_add_u32 s{sT}, s{sKV0}, s{idx}")
    A(f"s_cmp_ge_u32 s{sT}, 64")
    A(f"s_cbranch_scc1 {lb}")
    copy_srd(A, S_WK)
    A(f"s_mov_b32 s{sT+1}, {WS_K}")
    A(f"s_mov_b32 s{sNTYP}, 0")
    A(f"s_branch {le}")
    A.label(lb)
    A(f"s_sub_u32 s{sT}, s{sT}, 64")
    copy_srd(A, S_WV)
    A(f"s_mov_b32 s{sT+1}, {WS_V}")
    A(f"s_mov_b32 s{sNTYP}, 1")
    A(f"s_branch {le}")
    A.label(la)
    A(f"s_sub_u32 s{sT}, s{idx}, s{sNKV}")
    A(f"s_add_u32 s{sT}, s{sT}, s{sQ0}")
    copy_srd(A, S_WQ)
    A(f"s_mov_b32 s{sT+1}, {WS_Q}")
    A(f"s_mov_b32 s{sNTYP}, 0")
    A.label(le)
    A(f"s_lshl_b32 s{sSRC}, s{sT}, 7")
    A(f"s_lshl_b32 s3, s{S_WAVE}, 16")
    A(f"s_add_u32 s{sSRC}, s{sSRC}, s3")
    A(f"s_lshl_b32 s{sT+2}, s{sT}, 12")
    A(f"s_lshl_b32 s3, s{sSEG}, 18")
    A(f"s_add_u32 s{sT+2}, s{sT+2}, s3")
    A(f"s_add_u32 s{sT+2}, s{sT+2}, s{sT+1}")
    A(f"s_mov_b32 s{sRS32}, {32*8192}")

def params_w1(A, unit):
    copy_srd(A, S_W1)
    A(f"s_lshl_b32 s{sSRC}, s{unit}, 7")
    A(f"s_mul_i32 s3, s{S_WAVE}, {8*9216}")
    A(f"s_add_u32 s{sSRC}, s{sSRC}, s3")
    A(f"s_mov_b32 s{sRS32}, {32*9216}")

def params_w2(A, unit):
    copy_srd(A, S_W2)
    A(f"s_mul_i32 s{sSRC}, s{unit}, {64*1152}")
    A(f"s_lshr_b32 s3, s{S_WAVE}, 1")
    A(f"s_mul_i32 s3, s3, {16*1152}")
    A(f"s_add_u32 s{sSRC}, s{sSRC}, s3")
    A(f"s_and_b32 s3, s{S_WAVE}, 1")
    A(f"s_mul_i32 s3, s3, {4*1152}")
    A(f"s_add_u32 s{sSRC}, s{sSRC}, s3")

def dma_ops(kind, vo):
    ops = []
    for i in range(18):
        g = [f"s_add_u32 m0, s{sLB}, {i*4096}"]
        if kind == 2:
            g.append(f"s_add_u32 s{sT+3}, s{sSRC}, {(i & 1)*32*1152 + (i >> 1)*128}")
            g.append(f"buffer_load_dwordx4 v{vo}, s[{S_CUR}:{S_CUR+3}], s{sT+3} offen lds")
        else:
            g.append("s_nop 0")
            g.append(f"buffer_load_dwordx4 v{vo}, s[{S_CUR}:{S_CUR+3}], s{sSRC} offen lds")
            g.append(f"s_add_u32 s{sSRC}, s{sSRC}, s{sRS32}")
        ops.append(g)
    return ops

def flip(A, younger=0):
    A(f"s_waitcnt vmcnt({younger}) lgkmcnt(0)")
    A("s_barrier")
    A(f"s_lshl_b32 s3, s{S_WAVE}, 10")
    A(f"s_sub_u32 s{sT+4}, s{sLB}, s3")
    A(f"s_sub_u32 s{sT+5}, {SLAB}, s{sT+4}")
    A(f"s_add_u32 s{sLB}, s{sT+5}, s3")
    A(f"s_sub_u32 s{sT+4}, s{sT+4}, s{sT+5}")
    for i in range(4):
        A(f"v_add_u32 v{vA+i}, s{sT+4}, v{vA+i}")

def store_epi(acc, soff, hp):
    ops = [f"v_cvt_pk_bf16_f32 v{hp+i}, v{acc+2*i}, v{acc+2*i+1}" for i in range(8)]
    return ops[:4] + [f"buffer_store_dwordx4 {v(hp,4)}, v{vL}, {BUF}, s{soff[0]} offen offset:{soff[1]} sc1"] + \
           ops[4:] + [f"buffer_store_dwordx4 {v(hp+4,4)}, v{vL}, {BUF}, s{soff[0]} offen offset:{soff[1]+1024} sc1"]

def silu_epi(acc, hp):
    ops = []
    for i in range(8):
        a0, a1 = acc + 2 * i, acc + 2 * i + 1
        t0, t1 = (vT1, vT2) if i % 2 == 0 else (vT3, vT4)
        ops += [f"v_mul_f32 v{t0}, s{sLOG}, v{a0}", f"v_mul_f32 v{t1}, s{sLOG}, v{a1}",
                f"v_exp_f32 v{t0}, v{t0}", f"v_exp_f32 v{t1}, v{t1}",
                f"v_add_f32 v{t0}, 1.0, v{t0}", f"v_add_f32 v{t1}, 1.0, v{t1}",
                f"v_rcp_f32 v{t0}, v{t0}", f"v_rcp_f32 v{t1}, v{t1}",
                f"v_mul_f32 v{a0}, v{a0}, v{t0}", f"v_mul_f32 v{a1}, v{a1}, v{t1}",
                f"v_cvt_pk_bf16_f32 v{hp+i}, v{a0}, v{a1}"]
    return ops

def mfma_stream(A, steps, fillers):
    L = LgkmTracker(A)
    tok = {}
    def rd(n):
        ad, off, _ = steps[n]
        f = FR + 4 * (n % 4)
        L.op(f"ds_read_b64_tr_b16 {v(f,2)}, v{ad} offset:{off}")
        tok[n] = L.op(f"ds_read_b64_tr_b16 {v(f+2,2)}, v{ad} offset:{off+512}")
    for n in range(3):
        rd(n)
    for n in range(len(steps)):
        L.wait(tok[n])
        A(steps[n][2](FR + 4 * (n % 4)))
        if n + 3 < len(steps):
            rd(n + 3)
        for t in fillers.get(n, []):
            A(t)

def spread(fillers, ops, start, per):
    n = start
    for i in range(0, len(ops), per):
        fillers.setdefault(n, []).extend(ops[i:i + per])
        n += 1
    return n

def proj_steps(vtype):
    steps = []
    for ct in range(2):
        acc = ACC0 if ct == 0 else ACC1
        for k in range(36):
            def f(fr, acc=acc, k=k):
                c = "0" if k == 0 else v(acc, 16)
                x, w = v(XN + 4 * k, 4), v(fr, 4)
                a_, b_ = (x, w) if vtype else (w, x)
                return f"v_mfma_f32_32x32x16_bf16 {v(acc,16)}, {a_}, {b_}, {c}"
            steps.append((vA + 2 * ct + k // 18, (k % 18) * 2048, f))
    return steps

def stage_proj(A, vtype, epi_prev, epi0, dma):
    fill = {}
    for i, g in enumerate(dma):
        fill.setdefault(PAR['d0'] + PAR['ds'] * i, []).extend(g)
    per = 2 if len(epi0) < 20 else 4
    spread(fill, epi_prev, 30, 2)
    spread(fill, epi0, 40, per)
    mfma_stream(A, proj_steps(vtype), fill)

def stage_ffn2(A, epi1, dma):
    steps = []
    for k in range(4):
        for dt in range(18):
            def f(fr, dt=dt, k=k):
                o = r(out_tile(dt), 16)
                return f"v_mfma_f32_32x32x16_bf16 {o}, {v(fr,4)}, {v(HP+4*k,4)}, {o}"
            blk = 4 * (dt >> 1) + k
            steps.append((vA + 2 * (dt & 1) + blk // 18, (blk % 18) * 2048, f))
    fill = {}
    for i, g in enumerate(dma):
        fill.setdefault(PAR['d0'] + PAR['ds'] * i, []).extend(g)
    spread(fill, epi1, 4, 4)
    mfma_stream(A, steps, fill)

def layernorm(A):
    A.c("bulk: load x rows as MFMA fragments and normalise them")
    A(f"v_bfe_u32 v{vT1}, v{vL}, 4, 5")
    A(f"s_lshl_b32 s3, s{sSEG}, 5")
    A(f"v_add_u32 v{vT1}, s3, v{vT1}")
    A(f"v_mul_u32_u24 v{vT1}, 1152, v{vT1}")
    A(f"v_bfe_u32 v{vT2}, v{vL}, 9, 1")
    A(f"v_lshl_add_u32 v{vT1}, v{vT2}, 4, v{vT1}")
    for k in range(36):
        A(f"buffer_load_dwordx4 {v(XN+4*k,4)}, v{vT1}, s[{S_X}:{S_X+3}], 0 offen offset:{32*k}")

def layernorm2(A, dma=()):
    dma = list(dma)
    s1, s2, one = ACC0, ACC0 + 4, ACC0 + 8
    for i in range(8):
        A(f"v_mov_b32 v{ACC0+i}, 0")
    A(f"v_mov_b32 v{one}, 0x3f803f80")
    for k in range(36):
        if k % 4 == 0:
            A(f"s_waitcnt vmcnt({32 - k})")
        for i in range(4):
            A(f"v_dot2c_f32_bf16 v{s1+i}, v{XN+4*k+i}, v{one}")
            A(f"v_dot2c_f32_bf16 v{s2+i}, v{XN+4*k+i}, v{XN+4*k+i}")
    A("s_nop 2")
    for b in (s1, s2):
        A(f"v_add_f32 v{b}, v{b}, v{b+1}")
        A(f"v_add_f32 v{b+2}, v{b+2}, v{b+3}")
        A(f"v_add_f32 v{b}, v{b}, v{b+2}")
        A(f"v_mov_b32 v{b+1}, v{b}")
    A("s_nop 1")
    A(f"v_permlane32_swap_b32 v{s1}, v{s1+1}")
    A(f"v_permlane32_swap_b32 v{s2}, v{s2+1}")
    A(f"v_add_f32 v{s1}, v{s1}, v{s1+1}")
    A(f"v_add_f32 v{s2}, v{s2}, v{s2+1}")
    A(f"v_mul_f32 v{s1}, 0x3ae38e39, v{s1}")
    A(f"v_mul_f32 v{s2}, 0x3ae38e39, v{s2}")
    A(f"v_fma_f32 v{s2}, -v{s1}, v{s1}, v{s2}")
    A(f"v_max_f32 v{s2}, 0, v{s2}")
    A(f"v_cvt_pk_bf16_f32 v{s1+1}, v{s2}, v{s1}")
    A(f"v_lshlrev_b32 v{s2}, 16, v{s1+1}")
    A(f"v_and_b32 v{s1}, 0xffff0000, v{s1+1}")
    A(f"v_add_f32 v{s2}, 0x3727c5ac, v{s2}")
    A(f"v_cvt_pk_bf16_f32 v{s2}, v{s2}, v{s2}")
    A(f"v_lshlrev_b32 v{s2}, 16, v{s2}")
    A(f"v_sqrt_f32 v{s2}, v{s2}")
    A("s_nop 0")
    A(f"v_cvt_pk_bf16_f32 v{s2}, v{s2}, v{s2}")
    A(f"v_lshlrev_b32 v{s2}, 16, v{s2}")
    A(f"v_rcp_f32 v{s2}, v{s2}")
    A("s_nop 0")
    A(f"v_mul_f32 v{s1}, v{s1}, v{s2}")
    A(f"s_mov_b32 s{sT+6}, 0xffff0000")
    for i in range(144):
        t = ACC1 + 2 * (i % 4)
        A(f"v_lshlrev_b32 v{t}, 16, v{XN+i}")
        A(f"v_and_b32 v{t+1}, s{sT+6}, v{XN+i}")
        A(f"v_pk_fma_f32 {v(t,2)}, {v(t,2)}, {v(s2,2)}, {v(s1,2)} op_sel_hi:[1,0,0] neg_lo:[0,0,1] neg_hi:[0,0,1]")
        A(f"v_cvt_pk_bf16_f32 v{XN+i}, v{t}, v{t+1}")
        if i % 4 == 0 and dma:
            for x in dma.pop(0): A(x)

def signal(A, line_sgpr, amount=1):
    l = A.newlabel("sig")
    A(f"s_cmp_lg_u32 s{S_WAVE}, 0")
    A(f"s_cbranch_scc1 {l}")
    A(f"v_mov_b32 v{vT1}, {amount}")
    A(f"v_mov_b32 v{vT2}, 0")
    A("s_mov_b64 exec, 1")
    A(f"buffer_atomic_add v{vT1}, v{vT2}, {BUF}, s{line_sgpr} offen")
    A("s_mov_b64 exec, -1")
    A.label(l)

NP0 = 3
KV_FULL = 448

def two_types(A, epi_prev, epi0, dma):
    lv, lj = A.newlabel("projv"), A.newlabel("projj")
    A(f"s_cmp_eq_u32 s{sTYP}, 1")
    A(f"s_cbranch_scc1 {lv}")
    for vt in range(2):
        if vt:
            A.label(lv)
        stage_proj(A, vt, epi_prev, epi0, dma)
        if not vt:
            A(f"s_branch {lj}")
    A.label(lj)

def counts(A, fail):
    A(f"v_lshrrev_b32 v{vT1}, 2, v{vL}")
    for i in range(10):
        A(f"s_mov_b32 s{80+i}, s{51+i}")
    read_counts(A, fail, vT1)
    for i in range(10):
        A(f"s_mov_b32 s{51+i}, s{80+i}")

def run(A, fail, hook=None):
    setup(A)
    lmain, lskip, lown = A.newlabel("main"), A.newlabel("nop0"), A.newlabel("own")
    A(f"s_lshl_b32 s{sLB}, s{S_WAVE}, 10")
    for i in range(4):
        A(f"v_add_u32 v{vA+i}, {SLAB}, v{vA+i}")
    A(f"s_mov_b32 s{sSIG}, s{sNKV}")
    A.c("bulk: first the K/V projections of the leading row blocks")
    A(f"s_mov_b32 s{sP0R}, s{sRB}")
    A(f"s_mov_b32 s{sP0U}, s{sJ}")
    A(f"s_cmp_lt_u32 s{sRB}, {NP0}")
    A(f"s_cselect_b32 s{sNKV}, 0, s{sNKV}")
    A(f"s_cselect_b32 s{sSIG}, -2, s{sSIG}")
    A(f"s_cbranch_scc1 {lown}")
    A(f"s_mul_i32 s3, s{sJ}, {16 - NP0}")
    A(f"s_add_u32 s3, s3, s{sRB}")
    A(f"s_sub_u32 s3, s3, {NP0}")
    A(f"s_cmp_ge_u32 s3, {50 * NP0}")
    A(f"s_cbranch_scc1 {lskip}")
    A(f"s_mul_i32 s{sP0U}, s3, 171")
    A(f"s_lshr_b32 s{sP0U}, s{sP0U}, 9")
    A(f"s_mul_i32 s{sP0R}, s{sP0U}, 3")
    A(f"s_sub_u32 s{sP0R}, s3, s{sP0R}")
    A(f"s_add_u32 s{sP0U}, s{sP0U}, 14")
    A.label(lown)
    A(f"s_mov_b32 s{sSAV}, s{sKV0}")
    A(f"s_mov_b32 s{sSAV+1}, s{sNKV}")
    A(f"s_lshl_b32 s{sKV0}, s{sP0U}, 1")
    A(f"s_mov_b32 s{sNKV}, 2")
    A(f"s_lshl_b32 s{sSEG}, s{sP0R}, 2")
    A(f"s_add_u32 s{sSEG}, s{sSEG}, s{S_WAVE}")
    layernorm(A)
    A(f"s_mov_b32 s{sI}, 0")
    params_qkv(A, sI)
    layernorm2(A, dma_ops(1, vD1))
    counts(A, fail)
    if hook: hook(0)
    flip(A)
    A(f"s_mov_b32 s{sOUT}, s{sT+2}")
    A(f"s_mov_b32 s{sTYP}, s{sNTYP}")
    A(f"s_mov_b32 s{sI}, 1")
    params_qkv(A, sI)
    two_types(A, [], store_epi(ACC0, (sOUT, 0), HP + 8), dma_ops(1, vD1))
    A(f"s_mov_b32 s{sPOUT}, s{sOUT}")
    flip(A, 2)
    A(f"s_mov_b32 s{sOUT}, s{sT+2}")
    A(f"s_mov_b32 s{sKV0}, s{sSAV}")
    A(f"s_mov_b32 s{sNKV}, s{sSAV+1}")
    A(f"s_lshl_b32 s{sSEG}, s{sRB}, 2")
    A(f"s_add_u32 s{sSEG}, s{sSEG}, s{S_WAVE}")
    A(f"s_mov_b32 s{sI}, 0")
    params_qkv(A, sI)
    two_types(A, store_epi(ACC1, (sPOUT, 2048), HP), store_epi(ACC0, (sOUT, 0), HP + 8), dma_ops(1, vD1))
    A("s_nop 7")
    A("s_nop 3")
    for t in store_epi(ACC1, (sOUT, 2048), HP):
        A(t)
    lnl = A.newlabel("noln")
    A(f"s_cmp_lt_u32 s{sRB}, {NP0}")
    A(f"s_cbranch_scc1 {lnl}")
    layernorm(A)
    A("s_waitcnt vmcnt(36)")
    A("s_barrier")
    A(f"s_lshl_b32 s{sT}, s{sP0R}, 7")
    A(f"s_add_u32 s{sT}, s{sT}, {WS_FLAG + FL_KV*128}")
    signal(A, sT, 7)
    layernorm2(A)
    A(f"s_branch {lmain}")
    A.label(lnl)
    A("s_waitcnt vmcnt(0)")
    A("s_barrier")
    A(f"s_lshl_b32 s{sT}, s{sP0R}, 7")
    A(f"s_add_u32 s{sT}, s{sT}, {WS_FLAG + FL_KV*128}")
    signal(A, sT, 7)
    A(f"s_branch {lmain}")
    A.label(lskip)
    layernorm(A)
    A(f"s_mov_b32 s{sI}, 0")
    params_qkv(A, sI)
    layernorm2(A, dma_ops(1, vD1))
    counts(A, fail)
    if hook: hook(0)
    A.label(lmain)
    A("s_waitcnt vmcnt(0)")
    A(f"s_add_u32 s{sN}, s{sNKV}, s{sNQ}")
    A(f"s_mov_b32 s{sPOUT}, 0x40000000")
    lp, lnx, lnx2, lns = (A.newlabel(x) for x in ("proj", "nx", "nx2", "nosig"))
    A.label(lp)
    flip(A, 4)
    A(f"s_mov_b32 s{sOUT}, s{sT+2}")
    A(f"s_mov_b32 s{sTYP}, s{sNTYP}")
    A(f"s_sub_u32 s3, s{sI}, 1")
    A(f"s_cmp_lg_u32 s3, s{sSIG}")
    A(f"s_cbranch_scc1 {lns}")
    A("s_waitcnt vmcnt(2)")
    A("s_barrier")
    if hook: hook(1)
    A(f"s_lshl_b32 s{sT}, s{sRB}, 7")
    A(f"s_add_u32 s{sT}, s{sT}, {WS_FLAG + FL_KV*128}")
    signal(A, sT, 32)
    A.label(lns)
    A(f"s_add_u32 s{sI}, s{sI}, 1")
    A(f"s_cmp_eq_u32 s{sI}, s{sN}")
    A(f"s_cbranch_scc1 {lnx}")
    params_qkv(A, sI)
    A(f"v_mov_b32 v{vT4+2}, v{vD1}")
    A(f"s_branch {lnx2}")
    A.label(lnx)
    params_w1(A, sF0)
    A(f"v_mov_b32 v{vT4+2}, v{vD1F}")
    A.label(lnx2)
    two_types(A, store_epi(ACC1, (sPOUT, 2048), HP), store_epi(ACC0, (sOUT, 0), HP + 8), dma_ops(1, vT4 + 2))
    A(f"s_mov_b32 s{sPOUT}, s{sOUT}")
    A(f"s_cmp_lt_u32 s{sI}, s{sN}")
    A(f"s_cbranch_scc1 {lp}")
    A("s_nop 7")
    A("s_nop 3")
    for t in store_epi(ACC1, (sPOUT, 2048), HP):
        A(t)
    A.c("bulk: fused FFN over this range of hidden units")
    for i in range(256):
        A(f"v_accvgpr_write_b32 a{i}, 0")
    for i in range(0, 32, 2):
        A(f"v_mov_b64 {v(OUTV+i,2)}, 0")
    A(f"s_mov_b32 s{sI}, 0")
    lf, lf2, lf3 = A.newlabel("ffn"), A.newlabel("ffnl"), A.newlabel("ffnj")
    A.label(lf)
    flip(A)
    A(f"s_add_u32 s{sT+6}, s{sF0}, s{sI}")
    params_w2(A, sT + 6)
    stage_proj(A, 0, [], silu_epi(ACC0, HP), dma_ops(2, vD2))
    flip(A)
    A(f"s_add_u32 s{sI}, s{sI}, 1")
    A(f"s_add_u32 s{sT+6}, s{sF0}, s{sI}")
    A(f"s_min_u32 s{sT+6}, s{sT+6}, 71")
    params_w1(A, sT + 6)
    stage_ffn2(A, silu_epi(ACC1, HP + 8), dma_ops(1, vD1F))
    A(f"s_cmp_lt_u32 s{sI}, s{sNF}")
    A(f"s_cbranch_scc1 {lf}")
    A.c("bulk: FFN partial -> workspace")
    A(f"s_mul_i32 s{sOUT}, s{sSEG}, {36*16384}")
    A(f"s_lshl_b32 s3, s{sJ}, 10")
    A(f"s_add_u32 s{sOUT}, s{sOUT}, s3")
    A(f"s_add_u32 s{sOUT}, s{sOUT}, {WS_FFN}")
    A("s_nop 7")
    for dt in range(18):
        for half in range(2):
            b = 2 * dt + half
            hp = HP + 4 * (b % 4)
            for i in range(4):
                o = out_tile(dt) + 8 * half + 2 * i
                if dt < 16:
                    A(f"v_accvgpr_read_b32 v{vT1}, a{o-256}")
                    A(f"v_accvgpr_read_b32 v{vT2}, a{o-255}")
                    A(f"v_cvt_pk_bf16_f32 v{hp+i}, v{vT1}, v{vT2}")
                else:
                    A(f"v_cvt_pk_bf16_f32 v{hp+i}, v{o}, v{o+1}")
            A(f"buffer_store_dwordx4 {v(hp,4)}, v{vL}, {BUF}, s{sOUT} offen sc1")
            A(f"s_add_u32 s{sOUT}, s{sOUT}, 16384")
    A("s_waitcnt vmcnt(0)")
    A("s_barrier")
    A(f"s_lshl_b32 s{sT}, s{sRB}, 7")
    A(f"s_add_u32 s{sT}, s{sT}, {WS_FLAG + FL_ALL*128}")
    signal(A, sT)
```

```python
from common import *

L_M   = 0
L_O   = 0
XP    = 1088
L_X   = 9216
L_VM  = L_X + 4 * XP
L_KX  = L_VM + 2 * XP
L_JUNK= L_KX + 8192
L_RES = 24576
assert L_JUNK + 512 <= L_RES and L_KX % 16 == 0

vL16, vIDX, vMASK, vRES, vMA, vXW, vXR, vOW, vPST, vT = range(10)
WV0 = 72
def wreg(i):
    return WV0 + 8 * i

QK_LDS_KAPPA = [3, 5, 6, 7, 8, 9, 10, 11, 12, 13, 14, 15]
WO_REG = [(rd, k) for rd in range(4) for k in range(4) if (rd, k) not in ((2, 2), (3, 0), (3, 2))]

def unit_tables():
    loc = {}
    n = 0
    for k in range(18):
        loc[('q', k)] = ('r', n); n += 1
        if k not in QK_LDS_KAPPA:
            loc[('k', k)] = ('r', n); n += 1
    for k in range(18):
        loc[('v', k)] = ('r', n); n += 1
    for u in WO_REG:
        loc[('o',) + u] = ('r', n); n += 1
    assert n == 55
    off = 0
    for k in QK_LDS_KAPPA:
        loc[('k', k)] = ('l', off); off += 8192
    for rd in range(4):
        for k in range(4):
            if (rd, k) not in WO_REG:
                loc[('o', rd, k)] = ('l', off); off += 8192
    for k in range(4):
        loc[('o', 4, k)] = ('l', off - 4096); off += 4096
    assert off == 17 * 8192
    return loc
LOC = unit_tables()
WO_BASE = 12 * 8192
STB = [26, 34, 62]

sH = S_ROLE
sSTEP, sCNT, sKVOFF, sRHO, sISRED = 50, 51, 52, 53, 54
sPST = 55
sRLD, sMST, sC, sMLD, sPUB, sFLAG, sKXO, sWARM = 60, 61, 62, 64, 65, 66, 67, 68
sONE = 76
sQKVB, sWOB = 69, 70
sH1W, sH1R, sH2W, sH2R = 69, 70, 71, 75
sT = 72
SPIN_MAX = 20000
OPT = set()
KVGATE = 0
BUF = f"s[{S_WS}:{S_WS+3}]"

def setup(A):
    A.c("chain: lane constants (v0 = lane id on entry)")
    n, g, t1, t2, ln = 10, 11, 12, 13, 14
    A(f"v_mov_b32 v{ln}, v0")
    A(f"v_and_b32 v{n}, 15, v{ln}")
    A(f"v_lshrrev_b32 v{g}, 4, v{ln}")
    A(f"v_mov_b32 v{vIDX}, 0x44444444")
    A(f"v_mov_b32 v{t1}, 0xeeeeeeee")
    A(f"v_cmp_lt_u32 vcc, 7, v{n}")
    A("s_nop 1")
    A(f"v_cndmask_b32 v{vIDX}, v{vIDX}, v{t1}, vcc")
    A(f"v_mov_b32 v{vMASK}, 0")
    A(f"v_mov_b32 v{t1}, 0xff800000")
    A(f"v_cmp_gt_u32 vcc, 32, v{ln}")
    A("s_nop 1")
    A(f"v_cndmask_b32 v{vMASK}, v{vMASK}, v{t1}, vcc")
    A(f"v_lshlrev_b32 v{vL16}, 4, v{ln}")
    A(f"s_lshl_b32 s3, s{S_WAVE}, 11")
    A(f"s_add_u32 s3, s3, {L_RES}")
    A(f"v_add_u32 v{vRES}, s3, v{vL16}")
    A(f"v_and_b32 v{t1}, 7, v{ln}")
    A(f"v_lshl_add_u32 v{t1}, v{g}, 3, v{t1}")
    A(f"v_lshlrev_b32 v{vMA}, 4, v{t1}")
    A(f"v_and_b32 v{t1}, 1, v{g}")
    A(f"v_mul_u32_u24 v{t1}, {XP}, v{t1}")
    A(f"v_lshrrev_b32 v{t2}, 1, v{g}")
    A(f"v_lshl_add_u32 v{t2}, v{t2}, 4, v{n}")
    A(f"s_lshl_b32 s3, s{S_WAVE}, 5")
    A(f"v_add_u32 v{t2}, s3, v{t2}")
    A(f"v_lshl_add_u32 v{vXW}, v{t2}, 3, v{t1}")
    A(f"v_add_u32 v{vXW}, {L_X}, v{vXW}")
    A(f"v_and_b32 v{t1}, 3, v{n}")
    A(f"v_mul_u32_u24 v{t1}, {XP}, v{t1}")
    A(f"v_lshrrev_b32 v{t2}, 1, v{g}")
    A(f"v_lshlrev_b32 v{t2}, 4, v{t2}")
    A(f"v_and_b32 v{vXR}, 1, v{g}")
    A(f"v_lshl_add_u32 v{t2}, v{vXR}, 2, v{t2}")
    A(f"v_lshrrev_b32 v{vXR}, 2, v{n}")
    A(f"v_add_u32 v{t2}, v{t2}, v{vXR}")
    A(f"v_lshl_add_u32 v{vXR}, v{t2}, 3, v{t1}")
    A(f"v_add_u32 v{vXR}, {L_X}, v{vXR}")
    A(f"s_lshl_b32 s3, s{S_WAVE}, 9")
    A(f"s_add_u32 s3, s3, {L_O}")
    A(f"v_mov_b32 v{t1}, s3")
    A(f"v_mov_b32 v{t2}, {L_JUNK}")
    A(f"v_cmp_lt_u32 vcc, 7, v{n}")
    A("s_nop 1")
    A(f"v_cndmask_b32 v{t1}, v{t1}, v{t2}, vcc")
    A(f"v_add_u32 v{vOW}, v{t1}, v{vMA}")
    A(f"v_and_b32 v{t1}, 2, v{g}")
    A(f"v_lshrrev_b32 v{vPST}, 3, v{n}")
    A(f"v_add_u32 v{t1}, v{t1}, v{vPST}")
    A(f"v_lshlrev_b32 v{t1}, 12, v{t1}")
    A(f"v_and_b32 v{t2}, 1, v{g}")
    A(f"v_lshl_add_u32 v{t1}, v{t2}, 3, v{t1}")
    A(f"v_and_b32 v{vPST}, 7, v{n}")
    A(f"v_lshl_add_u32 v{vPST}, v{vPST}, 4, v{t1}")

def setup_scalars(A):
    A.c("chain: scalar constants")
    A(f"s_lshl_b32 s3, s{sH}, 7")
    A(f"s_lshl_b32 s{sT}, s{S_WAVE}, 14")
    A(f"s_add_u32 s3, s3, s{sT}")
    A(f"s_add_u32 s{sPST}, s3, {WS_PART}")
    for rd in range(1, 4):
        A(f"s_add_u32 s{sPST+rd}, s{sPST}, {rd*65536}")
    A(f"s_add_u32 s{sPST+4}, s{sPST}, {4*65536 - 2*16384}")
    if 'map32' in OPT:
        A(f"s_lshl_b32 s{sRHO}, s{S_WAVE}, 5")
        A(f"s_add_u32 s{sRHO}, s{sRHO}, s{sH}")
    else:
        A(f"s_lshl_b32 s{sRHO}, s{sH}, 1")
        A(f"s_add_u32 s{sRHO}, s{sRHO}, s{S_WAVE}")
        A(f"s_add_u32 s3, s{sH}, 64")
        A(f"s_cmp_eq_u32 s{S_WAVE}, 2")
        A(f"s_cselect_b32 s{sRHO}, s3, s{sRHO}")
    A(f"s_cmp_lt_u32 s{sRHO}, 72")
    A(f"s_cselect_b32 s{sISRED}, 1, 0")
    A(f"s_cmp_eq_u32 s{S_WAVE}, 3")
    A(f"s_cselect_b32 s{sISRED}, 0, s{sISRED}")
    A(f"s_lshl_b32 s{sRLD}, s{sRHO}, 12")
    A(f"s_add_u32 s{sRLD}, s{sRLD}, {WS_PART}")
    A(f"s_lshl_b32 s{sMST}, s{sRHO}, 7")
    A(f"s_add_u32 s{sMST}, s{sMST}, {WS_M}")
    A(f"s_mul_i32 s{sMLD}, s{S_WAVE}, 3072")
    A(f"s_add_u32 s{sMLD}, s{sMLD}, {WS_M}")
    A(f"s_mov_b32 s{sC}, 0x3e029413")
    A(f"s_lshl_b32 s{sKVOFF}, s{sH}, 13")
    A(f"s_lshl_b32 s{sPUB}, s{sH}, 12")
    A(f"s_lshl_b32 s3, s{S_WAVE}, 10")
    A(f"s_add_u32 s{sPUB}, s{sPUB}, s3")
    A(f"s_add_u32 s{sPUB}, s{sPUB}, {WS_KVM - 32*4096}")
    A(f"s_lshl_b32 s{sFLAG}, s{sH}, 7")
    A(f"s_add_u32 s{sFLAG}, s{sFLAG}, {WS_FLAG}")
    A(f"s_lshl_b32 s{sKXO}, s{S_WAVE}, 11")
    A(f"s_mov_b32 s{sONE}, 0x3f803f80")
    A(f"s_mov_b32 s{sONE+1}, 0x3f803f80")
    A(f"s_mov_b32 s{sC+1}, s{sC}")
    A(f"s_lshr_b32 s{sWARM}, s{S_WAVE}, 1")
    A(f"s_mul_i32 s{sWARM}, s{sWARM}, {WS_V - WS_K}")
    A(f"s_and_b32 s3, s{S_WAVE}, 1")
    A(f"s_lshl_b32 s3, s3, 12")
    A(f"s_add_u32 s{sWARM}, s{sWARM}, s3")

def load_weights(A):
    A.c("chain: weight load")
    ln, vQ, vO, vO4, vTR, vTR4, t1, t2, t3 = 14, 15, 16, 17, 18, 19, 20, 21, 22
    CV = 24
    A(f"v_lshrrev_b32 v{t1}, 4, v{ln}")
    A(f"v_lshlrev_b32 v{t2}, 2, v{t1}")
    A(f"v_xor_b32 v{t2}, v{t2}, v{ln}")
    A(f"v_and_b32 v{t2}, 15, v{t2}")
    A(f"v_lshlrev_b32 v{t2}, 4, v{t2}")
    A(f"v_and_b32 v{t3}, 1, v{t1}")
    A(f"v_lshlrev_b32 v{t3}, 1, v{t3}")
    A(f"v_lshrrev_b32 v{vQ}, 1, v{t1}")
    A(f"v_add_u32 v{t3}, v{t3}, v{vQ}")
    A(f"v_lshl_add_u32 v{vQ}, v{t3}, 13, v{t2}")
    A(f"v_lshrrev_b32 v{t3}, 1, v{t1}")
    A(f"v_lshlrev_b32 v{t3}, 4, v{t3}")
    A(f"v_and_b32 v{vO}, 1, v{t1}")
    A(f"v_add_u32 v{t3}, v{t3}, v{vO}")
    A(f"v_mul_u32_u24 v{t3}, 1152, v{t3}")
    A(f"v_add_u32 v{vO}, v{t3}, v{t2}")
    A(f"v_lshrrev_b32 v{t1}, 3, v{ln}")
    A(f"v_bfe_u32 v{t2}, v{t1}, 1, 1")
    A(f"v_lshlrev_b32 v{t3}, 4, v{t2}")
    A(f"v_lshlrev_b32 v{t2}, 2, v{t2}")
    A(f"v_xor_b32 v{t2}, v{t2}, v{ln}")
    A(f"v_and_b32 v{t2}, 7, v{t2}")
    A(f"v_lshlrev_b32 v{t2}, 4, v{t2}")
    A(f"v_and_b32 v{vO4}, 1, v{t1}")
    A(f"v_add_u32 v{t3}, v{t3}, v{vO4}")
    A(f"v_bfe_u32 v{vO4}, v{t1}, 2, 1")
    A(f"v_lshl_add_u32 v{t3}, v{vO4}, 1, v{t3}")
    A(f"v_mul_u32_u24 v{t3}, 1152, v{t3}")
    A(f"v_add_u32 v{vO4}, v{t3}, v{t2}")
    A(f"v_bfe_u32 v{t1}, v{ln}, 4, 1")
    A(f"v_bfe_u32 v{t2}, v{ln}, 2, 1")
    A(f"v_lshl_add_u32 v{t1}, v{t1}, 1, v{t2}")
    A(f"v_bfe_u32 v{t2}, v{ln}, 5, 1")
    A(f"v_lshl_add_u32 v{t2}, v{t2}, 3, v{t1}")
    A(f"v_bfe_u32 v{t3}, v{ln}, 3, 1")
    A(f"v_lshlrev_b32 v{t3}, 5, v{t3}")
    A(f"v_and_b32 v{vTR}, 3, v{ln}")
    A(f"v_lshl_add_u32 v{t3}, v{vTR}, 3, v{t3}")
    A(f"v_xor_b32 v{vTR}, s{S_WAVE}, v{t1}")
    A(f"v_lshl_add_u32 v{vTR}, v{vTR}, 6, v{t3}")
    A(f"v_lshl_add_u32 v{vTR}, v{t2}, 8, v{vTR}")
    A(f"v_add_u32 v{vTR}, {L_RES}, v{vTR}")
    A(f"v_lshrrev_b32 v{t1}, 1, v{t1}")
    A(f"s_and_b32 s3, s{S_WAVE}, 1")
    A(f"v_xor_b32 v{vTR4}, s3, v{t1}")
    A(f"v_lshl_add_u32 v{vTR4}, v{vTR4}, 6, v{t3}")
    A(f"v_lshl_add_u32 v{vTR4}, v{t2}, 7, v{vTR4}")
    A(f"v_add_u32 v{vTR4}, {L_RES + 15*8192}, v{vTR4}")
    vTRb = [vTR, 40, 41]
    A(f"v_add_u32 v40, {7*8192}, v{vTR}")
    A(f"v_add_u32 v41, {14*8192}, v{vTR}")
    vRb = [vRES, 42, 43]
    A(f"v_add_u32 v42, {7*8192}, v{vRES}")
    A(f"v_add_u32 v43, {14*8192}, v{vRES}")
    A(f"s_lshl_b32 s{sQKVB}, s{sH}, 8")
    A(f"s_lshl_b32 s3, s{S_WAVE}, 16")
    A(f"s_add_u32 s{sQKVB}, s{sQKVB}, s3")
    A(f"s_mul_i32 s{sWOB}, s{sH}, {128*1152}")
    A(f"s_mul_i32 s3, s{S_WAVE}, {4*1152}")
    A(f"s_add_u32 s{sWOB}, s{sWOB}, s3")
    A(f"s_lshl_b32 s{sT+1}, s{S_WAVE}, 11")
    A(f"s_add_u32 s{sT+1}, s{sT+1}, {L_RES}")
    A(f"s_lshl_b32 s{sT+2}, s{S_WAVE}, 10")
    A(f"s_add_u32 s{sT+2}, s{sT+2}, {L_RES + 15*8192}")

    regu = sorted([u for u in LOC if LOC[u][0] == 'r'], key=lambda u: LOC[u][1])
    resu = sorted([u for u in LOC if LOC[u][0] == 'l' and not (u[0] == 'o' and u[1] == 4)], key=lambda u: LOC[u][1])
    NR = 15
    seq = regu + resu
    first = (-len(regu)) % NR
    slot = lambda i: (first + i) % NR
    def issue(i):
        u = seq[i]
        for q in range(2):
            if u[0] == 'o':
                A(f"s_add_u32 s{sT}, s{sWOB}, {(u[2]*32 + 2*q)*1152 + u[1]*256}")
                d, vo = S_WO, vO
            else:
                A(f"s_add_u32 s{sT}, s{sQKVB}, {(u[1]*32 + 4*q)*8192}")
                d, vo = {'q': S_WQ, 'k': S_WK, 'v': S_WV}[u[0]], vQ
            A(f"s_add_u32 m0, s{sT+1}, {slot(i)*8192 + q*1024}")
            A("s_nop 0")
            A(f"buffer_load_dwordx4 v{vo}, s[{d}:{d+3}], s{sT} offen lds")
    def trread(dst, sl):
        for u4 in range(4):
            A(f"ds_read_b64_tr_b16 {r(dst+2*u4,2)}, v{vTRb[sl//7]} offset:{(sl%7)*8192 + 4096*(u4>>1) + 1024*(u4&1)}")
    for k in range(4):
        A(f"s_add_u32 s{sT}, s{sWOB}, {k*32*1152 + 1024}")
        A(f"s_add_u32 m0, s{sT+2}, {k*4096}")
        A("s_nop 0")
        A(f"buffer_load_dwordx4 v{vO4}, s[{S_WO}:{S_WO+3}], s{sT} offen lds")
    issued = 0
    while issued < NR:
        issue(issued); issued += 1
    G = 2
    i = 0
    pending_w = []
    while i < len(seq):
        grp = list(range(i, min(i + G, len(seq))))
        if i < len(regu) < grp[-1] + 1:
            grp = list(range(i, len(regu)))
        A(f"s_waitcnt vmcnt({2*(issued - (grp[-1] + 1))})")
        if i == 0:
            init_done(A)
        A("s_barrier")
        for t in pending_w:
            A(t)
        pending_w = []
        while issued < min(len(seq), i + NR):
            issue(issued); issued += 1
        for j, b in enumerate(grp):
            if b < len(regu):
                trread(wreg(LOC[seq[b]][1]), slot(b))
            else:
                assert slot(b) * 8192 == LOC[seq[b]][1]
                cv = CV + 8 * j
                if j == 0:
                    A("s_waitcnt lgkmcnt(0)")
                trread(cv, slot(b))
                sl = slot(b)
                pending_w += [f"ds_write_b128 v{vRb[sl//7]}, {v(cv,4)} offset:{(sl%7)*8192}",
                              f"ds_write_b128 v{vRb[sl//7]}, {v(cv+4,4)} offset:{(sl%7)*8192+1024}"]
        A("s_waitcnt lgkmcnt(0)")
        i = grp[-1] + 1
    HB = 40
    for k in range(4):
        for u4 in range(4):
            A(f"ds_read_b64_tr_b16 {v(HB+8*k+2*u4,2)}, v{vTR4} offset:{k*4096 + 2048*(u4>>1) + 512*(u4&1)}")
    A(f"v_add_u32 v{t1}, {14*8192}, v{vRES}")
    pending_w = [x.replace("v43,", f"v{t1},").replace("v42,", f"v{t2},") for x in pending_w]
    A(f"v_add_u32 v{t2}, {7*8192}, v{vRES}")
    A("s_waitcnt lgkmcnt(0)")
    A("s_barrier")
    for t in pending_w:
        A(t)
    l = A.newlabel("hb")
    A(f"s_cmp_lt_u32 s{S_WAVE}, 2")
    A(f"s_cbranch_scc1 {l}")
    for k in range(4):
        A(f"ds_write_b128 v{t1}, {v(HB+8*k,4)} offset:{4096 + k*4096}")
        A(f"ds_write_b128 v{t1}, {v(HB+8*k+4,4)} offset:{4096 + k*4096 + 1024}")
    A.label(l)
    A("s_waitcnt lgkmcnt(0)")

def load_mem0(A):
    A.c("chain: mem0 -> LDS fragment image")
    q, t1, ad, D = 10, 11, 12, 14
    A(f"s_lshl_b32 s3, s{S_WAVE}, 6")
    A(f"v_lshrrev_b32 v{q}, 4, v{vL16}")
    A(f"v_add_u32 v{q}, s3, v{q}")
    A(f"v_bfe_u32 v{t1}, v{q}, 2, 3")
    A(f"v_mul_u32_u24 v{ad}, 1152, v{t1}")
    A(f"v_lshrrev_b32 v{t1}, 5, v{q}")
    A(f"v_lshl_add_u32 v{ad}, v{t1}, 4, v{ad}")
    A(f"v_and_b32 v{t1}, 1, v{q}")
    A(f"v_lshl_add_u32 v{ad}, v{t1}, 3, v{ad}")
    A(f"v_bfe_u32 v{t1}, v{q}, 1, 1")
    A(f"v_lshl_add_u32 v{ad}, v{t1}, 1, v{ad}")
    for it in range(9):
        A(f"buffer_load_ushort v{D+2*it}, v{ad}, s[{S_TMPD}:{S_TMPD+3}], 0 offen offset:{it*128}")
        A(f"buffer_load_ushort v{D+2*it+1}, v{ad}, s[{S_TMPD}:{S_TMPD+3}], 0 offen offset:{it*128+4}")
    A(f"v_lshlrev_b32 v{q}, 2, v{q}")
    A("s_waitcnt vmcnt(0)")
    for it in range(9):
        A(f"v_lshl_or_b32 v{D+2*it}, v{D+2*it+1}, 16, v{D+2*it}")
        A(f"ds_write_b32 v{q}, v{D+2*it} offset:{L_M + it*1024}")
    A("s_waitcnt lgkmcnt(0)")

AF, ST = 10, 26
QACC, KACC, VACC, VX, PUB = 42, 46, 50, 54, 62
tVX, tFL, tFV, tWA, tKX = 66, 67, 68, 69, 70
XPK = 62
XF, KXF = 10, 26
SX0, SX1, SM = 42, 46, 62
VAF = 66
PAR = dict(rdelay=10, mdelay=10, kx=0, x2=20, m2=0, sp=10, pa=8, pb=8)
sMK = 24
V_IN_QK = 6

def warm(A, seg_off_sgpr, va):
    A(f"s_add_u32 s{sT}, s{seg_off_sgpr}, s{sWARM}")
    A(f"s_mov_b32 m0, {L_JUNK}")
    A("s_nop 0")
    A(f"buffer_load_dword v{va}, {BUF}, s{sT} offen sc1 lds")

def pub_read(A, cls):
    if cls == 0:
        A(f"v_bfe_u32 v{vT}, v{vL16}, 5, 1")
        A(f"v_mul_i32_i24 v{vT}, {256 - 2*XP}, v{vT}")
        A(f"s_lshl_b32 s3, s{S_WAVE}, 9")
        A(f"v_add3_u32 v{vT}, v{vT}, v{vXR}, s3")
        A(f"ds_read_b64_tr_b16 {v(PUB,2)}, v{vT} offset:{2*XP}")
        A(f"ds_read_b64_tr_b16 {v(PUB+2,2)}, v{vT} offset:{2*XP+64}")
    else:
        A(f"ds_read_b128 {v(PUB,4)}, v{vL16} offset:{L_VM + (cls-1)*XP}")

def kx_addr(A, t, t2):
    A(f"v_bfe_u32 v{t2}, v{vL16}, 8, 2")
    A(f"v_lshlrev_b32 v{t2}, 9, v{t2}")
    A(f"v_and_b32 v{t}, 0x70, v{vL16}")
    A(f"v_add_u32 v{t}, v{t}, v{t2}")
    A(f"v_and_b32 v{t2}, 0x80, v{vL16}")
    A(f"v_lshl_add_u32 v{t}, v{t2}, 1, v{t}")

def kx_dma(A, w, t, ahead):
    for xt in range(2):
        A(f"s_mov_b32 m0, {L_KX + (2*w+xt)*1024}")
        A(f"s_add_u32 s{sT}, s{sKVOFF}, {WS_K + ahead*32*8192 + w*2048 + xt*128}")
        A(f"buffer_load_dwordx4 v{t}, {BUF}, s{sT} offen sc1 lds")

def vx_load(A):
    A(f"s_add_u32 s{sT}, s{sKVOFF}, {WS_V}")
    A(f"buffer_load_dwordx4 {v(VX,4)}, v{tVX}, {BUF}, s{sT} offen sc1")
    A(f"buffer_load_dwordx4 {v(VX+4,4)}, v{tVX}, {BUF}, s{sT} offen offset:256 sc1")

def vx_addr(A):
    A(f"v_and_b32 v{tVX}, 0xf0, v{vL16}")
    A(f"v_bfe_u32 v71, v{vL16}, 8, 2")
    A(f"v_lshl_add_u32 v71, v71, 9, s{sKXO}")
    A(f"v_add_u32 v{tVX}, v{tVX}, v71")

def st_preload(A):
    for k in range(2):
        o = LOC[('k', QK_LDS_KAPPA[k])][1]
        A(f"ds_read_b128 {v(ST+8*k,4)}, v{vRES} offset:{o}")
        A(f"ds_read_b128 {v(ST+8*k+4,4)}, v{vRES} offset:{o+1024}")

def pre_b1(A, cls):
    pub_read(A, cls)
    for i in range(6):
        A(f"v_mov_b64 {v(QACC+2*i,2)}, 0")
    if 'kv1' not in OPT:
        vx_addr(A)
    A(f"v_lshlrev_b32 v{tWA}, 2, v{vL16}")
    A(f"v_add_u32 v{vT}, {7*8192}, v{vRES}")
    if cls == 2 and 'kv1' not in OPT:
        kx_addr(A, tKX, 71)
    if cls == 2:
        A(f"v_min_u32 v{tFL}, 1, v{vL16}")
        A(f"v_lshlrev_b32 v{tFL}, 30, v{tFL}")
        A(f"s_sub_i32 s3, s{sSTEP}, 1")
        A(f"v_mov_b32 v{tFV}, s3")

def delay(A, n):
    while n > 0:
        k = min(n, 4)
        A(f"s_nop {4*k-1}")
        n -= k

def smf(acc, af, w):
    return f"v_smfmac_f32_16x16x64_bf16 {v(acc,4)}, {v(af,4)}, {r(w,8)}, v{vIDX}"

STAMPS = {'al': (1, 2, 4, 6, 7), 'wo': (1, 2, 6, 7), 'sm': (1, 5, 6, 7)}
def stamp(A, prof, i, mode=None):
    cur = [m for m in STAMPS if m in OPT]
    taken = STAMPS[cur[0]] if cur else ()
    if mode is True:
        mode = 'al'
    if prof and ((mode is None and i not in taken) or (mode in cur and i in taken)):
        A(f"{'s_memrealtime' if (mode == 'al' and i == 1) else 's_memtime'} s[{80+2*i}:{81+2*i}]")

def mread(L, dst, k):
    return L.op(f"ds_read_b128 {v(dst,4)}, v{vMA} offset:{L_M + k*512}")

def vstep(A, L, tokA, kv):
    tok, reg = tokA[('v', kv)]
    L.wait(tok)
    A(smf(VACC, reg, wreg(LOC[('v', kv)][1])))

def vload(L, tokA, kv, reg):
    tokA[('v', kv)] = (mread(L, reg, kv), reg)

def qkv_stage(A, L, w, prof, last):
    tokA = {}
    for k in range(3):
        tokA[k] = mread(L, AF + 4 * (k % 4), k)
    nslow = 0
    if 'vxq' in OPT and not last:
        vx_load(A)
    mem = {}
    at = (lambda k: k) if 'vxq' in OPT else (lambda k: -1)
    mem.setdefault(at(0), []).append(f"buffer_store_dwordx4 {v(PUB,4)}, v{vL16}, {BUF}, s{sPUB} offen sc1"); nslow += 1
    if not last:
        mem.setdefault(at(1), []).extend([f"s_add_u32 s{sT+1}, s{sKVOFF}, {2*32*8192}", f"s_min_u32 s{sT+1}, s{sT+1}, {63*32*8192}",
                  f"s_mov_b32 m0, {L_JUNK}", f"s_add_u32 s{sT}, s{sT+1}, s{sWARM}",
                  f"buffer_load_dword v{tWA}, {BUF}, s{sT} offen sc1 lds"])
        nslow += 1
    if w == 3:
        mem.setdefault(at(2), []).append(f"buffer_store_dword v{tFV}, v{tFL}, {BUF}, s{sFLAG} offen sc1"); nslow += 1
    for t in mem.pop(-1, []):
        A(t)
    t0 = 0
    if 'ms2' in OPT and w < 3:
        A(f"s_waitcnt vmcnt({(0 if last else 2) if 'vxq' in OPT else nslow})")
        for j in range(2):
            o = LOC[('k', QK_LDS_KAPPA[j])][1]
            L.op(f"ds_read_b128 {v(ST+8*j,4)}, v{vRES} offset:{o}")
            t0 = L.op(f"ds_read_b128 {v(ST+8*j+4,4)}, v{vRES} offset:{o+1024}")
    tokU = {QK_LDS_KAPPA[0]: t0, QK_LDS_KAPPA[1]: t0}
    pend = {}
    for j in range(2, len(QK_LDS_KAPPA)):
        o = LOC[('k', QK_LDS_KAPPA[j])][1]
        base, o = (vRES, o) if o < 7 * 8192 else (vT, o - 7 * 8192)
        at = (2 if 'vxq' in OPT else 0) if j == 2 else QK_LDS_KAPPA[j - 3]
        pend[at] = (QK_LDS_KAPPA[j], f"ds_read_b128 {v(STB[j%3],4)}, v{base} offset:{o}", f"ds_read_b128 {v(STB[j%3]+4,4)}, v{base} offset:{o+1024}")
    second = None
    for k in range(18):
        L.wait(tokA[k])
        if k >= V_IN_QK:
            A(smf(VACC, AF + 4 * (k % 4), wreg(LOC[('v', k)][1])))
            if second:
                tokU[second[0]] = L.op(second[1]); second = None
        A(smf(QACC, AF + 4 * (k % 4), wreg(LOC[('q', k)][1])))
        if second:
            tokU[second[0]] = L.op(second[1]); second = None
        if k + 3 < 18:
            tokA[k + 3] = mread(L, AF + 4 * ((k + 3) % 4), k + 3)
        else:
            vload(L, tokA, k - 15, AF + 4 * ((k + 3) % 4))
        if LOC[('k', k)][0] == 'r':
            A(smf(KACC, AF + 4 * (k % 4), wreg(LOC[('k', k)][1])))
        else:
            L.wait(tokU[k])
            A(smf(KACC, AF + 4 * (k % 4), STB[QK_LDS_KAPPA.index(k) % 3]))
        for t in mem.get(k, []):
            A(t)
        if k in pend:
            L.op(pend[k][1]); second = (pend[k][0], pend[k][2])
        if k >= 16 and not last:
            for kp in ((2, 3) if k == 16 else (0, 1)):
                tokA[('kx', kp)] = L.op(f"ds_read_b128 {v(KXF+4*kp,4)}, v{vL16} offset:{L_KX + 2*kp*1024}")
    stamp(A, prof, 1)
    vload(L, tokA, 3, AF + 4)
    vstep(A, L, tokA, 0)
    A("s_nop 1")
    vstep(A, L, tokA, 1)
    A("s_nop 2")
    A(f"v_cvt_pk_bf16_f32 v{XPK}, v{QACC}, v{QACC+1}")
    A(f"v_cvt_pk_bf16_f32 v{XPK+1}, v{QACC+2}, v{QACC+3}")
    L.op(f"ds_write_b64 v{vXW}, {v(XPK,2)}")
    A(f"v_cvt_pk_bf16_f32 v{XPK+2}, v{KACC}, v{KACC+1}")
    A(f"v_cvt_pk_bf16_f32 v{XPK+3}, v{KACC+2}, v{KACC+3}")
    tw = L.op(f"ds_write_b64 v{vXW}, {v(XPK+2,2)} offset:{2*XP}")
    vload(L, tokA, 4, QACC)
    vload(L, tokA, 5, KACC)
    vstep(A, L, tokA, 2)
    vstep(A, L, tokA, 3)
    L.wait(tw)
    A("s_barrier")
    return tokA, nslow

def step(A, w, tag, fail, cold, prof=False, stf=""):
    cls = max(w - 1, 0)
    L = LgkmTracker(A)
    A("s_waitcnt lgkmcnt(0)")
    A("s_barrier")
    stamp(A, prof, 0)
    stamp(A, prof, 1, True)
    tokA, nslow = qkv_stage(A, L, w, prof, False)
    stamp(A, prof, 2)
    tx = {}
    def xread(kp):
        L.op(f"ds_read_b64_tr_b16 {v(XF+4*kp,2)}, v{vXR} offset:{kp*256}")
        tx[kp] = L.op(f"ds_read_b64_tr_b16 {v(XF+4*kp+2,2)}, v{vXR} offset:{kp*256+64}")
    xread(0); xread(1)
    vstep(A, L, tokA, 4)
    xread(2); xread(3)
    vstep(A, L, tokA, 5)
    m1, m2, m3, mt = 70, 71, 20, 21
    ONES, PX, PM, LS, O0, VQ, O1 = 22, 26, 32, 10, 14, 66, 36
    VP = VQ + 2
    SC = [SX0 + i for i in range(8)] + [SM + i for i in range(4)]
    mf = lambda d, a_, b_, c: A(f"v_mfma_f32_16x16x32_bf16 {v(d,4)}, {v(a_,4)}, {v(b_,4)}, {c}")
    for kp in range(4):
        L.wait(max(tx[kp], tokA[('kx', kp)]))
        mf(SX0, KXF + 4 * kp, XF + 4 * kp, "0" if kp == 0 else v(SX0, 4))
        tokA[('kx1', kp)] = L.op(f"ds_read_b128 {v(KXF+4*kp,4)}, v{vL16} offset:{L_KX + (2*kp+1)*1024}")
        if kp < 2:
            A(f"v_mov_b32 v{SM+2*kp}, v{vMASK}")
            A(f"v_mov_b32 v{SM+2*kp+1}, v{vMASK}")
    fill = {0: [f"v_cvt_pk_bf16_f32 v{VP}, v{VACC}, v{VACC+1}", f"v_cvt_pk_bf16_f32 v{VP+1}, v{VACC+2}, v{VACC+3}"],
            1: [None, f"v_mov_b64 {v(VQ,2)}, {v(VP,2)}"],
            2: ["s_nop 0", f"v_max3_f32 v{m1}, v{SX0}, v{SX0+1}, v{SX0+2}"],
            3: [f"v_permlane32_swap_b32 v{VQ}, v{VP}", f"v_permlane32_swap_b32 v{VQ+1}, v{VP+1}"]}
    for kp in range(4):
        mf(SM, XF + 4 * kp, XF + 4 * kp, v(SM, 4))
        for t in fill[kp]:
            if t is None:
                L.op(f"ds_write_b64 v{vXW}, {v(VP,2)} offset:{4*XP}")
            else:
                A(t)
    for kp in range(4):
        L.wait(tokA[('kx1', kp)])
        mf(SX1, KXF + 4 * kp, XF + 4 * kp, "0" if kp == 0 else v(SX1, 4))
        if kp < 2:
            A("s_nop 1")
        if kp == 2:
            A("s_nop 0")
            A(f"v_max3_f32 v{m1}, v{m1}, v{SX0+3}, v{SM}")
    A(f"v_max3_f32 v{m2}, v{SM+1}, v{SM+2}, v{SM+3}")
    A(f"v_mov_b64 {v(30,2)}, 0")
    A(f"v_mov_b64 {v(34,2)}, 0")
    A(f"v_mov_b64 {v(ONES,2)}, s[{sONE}:{sONE+1}]")
    A(f"v_mov_b64 {v(ONES+2,2)}, s[{sONE}:{sONE+1}]")
    A(f"v_max_f32 v{m1}, v{m1}, v{m2}")
    A("s_nop 1")
    stamp(A, prof, 1, 'sm')
    A(f"v_max3_f32 v{m1}, v{m1}, v{SX1}, v{SX1+1}")
    A(f"v_max3_f32 v{mt}, v{m1}, v{SX1+2}, v{SX1+3}")
    A(f"v_max3_f32 v{m1}, v{m1}, v{SX1+2}, v{SX1+3}")
    A("s_nop 1")
    A(f"v_permlane16_swap_b32 v{m1}, v{mt}")
    A(f"v_max_f32 v{m2}, v{m1}, v{mt}")
    A(f"v_max_f32 v{m1}, v{m1}, v{mt}")
    A("s_nop 1")
    A(f"v_permlane32_swap_b32 v{m1}, v{m2}")
    A(f"v_max_f32 v{m1}, v{m1}, v{m2}")
    A(f"v_mul_f32 v{m1}, s{sC}, v{m1}")
    for i in range(6):
        A(f"v_pk_fma_f32 {v(SC[2*i],2)}, {v(SC[2*i],2)}, s[{sC}:{sC+1}], {v(m1,2)} op_sel_hi:[1,0,0] neg_lo:[0,0,1] neg_hi:[0,0,1]")
    stamp(A, prof, 5, 'sm')
    for i in range(8):
        A(f"v_exp_f32 v{SC[i]}, v{SC[i]}")
    A(f"v_exp_f32 v{SC[8]}, v{SC[8]}")
    for i in range(4):
        A(f"v_cvt_pk_bf16_f32 v{PX+i}, v{SC[2*i]}, v{SC[2*i+1]}")
    A(f"v_exp_f32 v{SC[9]}, v{SC[9]}")
    A(f"s_waitcnt vmcnt({nslow})")
    A(f"v_mfma_f32_16x16x32_bf16 {v(LS,4)}, {v(ONES,4)}, {v(PX,4)}, 0")
    A(f"v_exp_f32 v{SC[10]}, v{SC[10]}")
    A(f"v_mfma_f32_16x16x32_bf16 {v(O0,4)}, {v(VX,4)}, {v(PX,4)}, 0")
    A(f"v_exp_f32 v{SC[11]}, v{SC[11]}")
    A(f"v_mfma_f32_16x16x32_bf16 {v(O1,4)}, {v(VX+4,4)}, {v(PX,4)}, 0")
    A(f"v_cvt_pk_bf16_f32 v{PM}, v{SM}, v{SM+1}")
    A(f"v_cvt_pk_bf16_f32 v{PM+1}, v{SM+2}, v{SM+3}")
    A("s_nop 1")
    A(f"v_mfma_f32_16x16x32_bf16 {v(LS,4)}, {v(ONES,4)}, {v(PM,4)}, {v(LS,4)}")
    A(f"v_mfma_f32_16x16x32_bf16 {v(O0,4)}, {v(VQ,4)}, {v(PM,4)}, {v(O0,4)}")
    A(f"v_mfma_f32_16x16x32_bf16 {v(O1,4)}, {v(VQ,4)}, {v(PM-2,4)}, {v(O1,4)}")
    stamp(A, prof, 6, 'sm')
    OACC, OF, WST, OPK = 52, 10, 26, 22
    nr = 4 if cls == 0 else 5
    lu = [('o', rd, k) for rd in range(nr) for k in range(4) if (rd, k) not in WO_REG]
    tu = {}
    bufs = {0: 26, 1: 34, 2: 42, 3: 26, 4: 34, 5: 42, 6: 52}
    def fetch(i):
        o = LOC[lu[i]][1] - WO_BASE
        L.op(f"ds_read_b128 {v(bufs[i],4)}, v{vT} offset:{o}")
        tu[i] = L.op(f"ds_read_b128 {v(bufs[i]+4,4)}, v{vT} offset:{o+1024}")
    A(f"v_add_u32 v{vT}, {WO_BASE}, v{vRES}")
    for i in range(52, 60, 2):
        A(f"v_mov_b64 {v(i,2)}, 0")
    A("s_nop 0")
    m1 = 18
    A(f"v_rcp_f32 v{m1}, v{LS}")
    A(f"v_mov_b64 {v(60,2)}, 0")
    for i in range(2):
        A(f"v_pk_mul_f32 {v(O0+2*i,2)}, {v(O0+2*i,2)}, {v(m1,2)} op_sel_hi:[1,0]")
    for i in range(2):
        A(f"v_pk_mul_f32 {v(O1+2*i,2)}, {v(O1+2*i,2)}, {v(m1,2)} op_sel_hi:[1,0]")
    A(f"v_cvt_pk_bf16_f32 v{OPK}, v{O0}, v{O0+1}")
    A(f"v_cvt_pk_bf16_f32 v{OPK+1}, v{O0+2}, v{O0+3}")
    A(f"v_cvt_pk_bf16_f32 v{OPK+2}, v{O1}, v{O1+1}")
    A(f"v_cvt_pk_bf16_f32 v{OPK+3}, v{O1+2}, v{O1+3}")
    tw = L.op(f"ds_write_b128 v{vOW}, {v(OPK,4)}")
    stamp(A, prof, 7, 'sm')
    A(f"s_add_u32 s{sSTEP}, s{sSTEP}, 1")
    for i in range(62, 52 + 4 * nr, 2):
        A(f"v_mov_b64 {v(i,2)}, 0")
    L.wait(tw)
    A("s_barrier")
    stamp(A, prof, 4)
    to = {}
    for k in range(4):
        to[k] = L.op(f"ds_read_b128 {v(OF+4*k,4)}, v{vMA} offset:{L_O + k*512}")
    tagop = (lambda x: f"v_or_b32 v{x}, 1, v{x}") if tag else (lambda x: f"v_and_b32 v{x}, -2, v{x}")
    def emit_out(rd):
        p = OACC + 4 * rd
        return [f"v_cvt_pk_bf16_f32 v{p}, v{p}, v{p+1}", f"v_cvt_pk_bf16_f32 v{p+1}, v{p+2}, v{p+3}", tagop(p),
                f"buffer_store_dwordx2 {v(p,2)}, v{vPST}, {BUF}, s{sPST+rd} offen {stf}"]
    after = {0: 3, 1: 4, 2: 5}
    early = {1: 0, 3: 1, 5: 2, 15: 6}
    sched = {}
    for rd in range(nr - 1):
        o = emit_out(rd)
        b = 4 * rd + 3
        so = [3, 4, 1, 2][w] if 'nostag' not in OPT else 0
        sched.setdefault(b + 3, []).append(o[0]); sched.setdefault(b + 4, []).append(o[1])
        sched.setdefault(b + 5, []).append(o[2]); sched.setdefault(b + 5 + so, []).append(o[3])
    tail = []
    for x in sorted(sched):
        if x >= 4 * nr:
            tail += sched[x]
    for rd in range(nr):
        for k in range(4):
            slot = 4 * rd + k
            if rd == 0:
                L.wait(to[k])
            u = ('o', rd, k)
            fill = 0
            if LOC[u][0] == 'r':
                A(smf(OACC + 4 * rd, OF + 4 * k, wreg(LOC[u][1])))
                if early.get(slot, 99) < len(lu):
                    fetch(early[slot]); fill = 2
            else:
                i = lu.index(u)
                L.wait(tu[i])
                A(smf(OACC + 4 * rd, OF + 4 * k, bufs[i]))
                if after.get(i, 99) < len(lu):
                    fetch(after[i]); fill = 2
            fill += len(sched.get(slot, []))
            if rd and k < 2 and fill < 3:
                A(f"s_nop {2 - fill}")
            for t in sorted(sched.get(slot, []), key=lambda x: (x.startswith("v_"), 0) if so else (0, 0)):
                if not ('nost' in OPT and t.startswith("buffer_store") and rd < 9 and False):
                    A(t)
            if slot in (0, 3, 7, 11):
                stamp(A, prof, {0: 1, 3: 2, 7: 6, 11: 7}[slot], 'wo')
    for t in tail:
        A(t)
    A(f"s_add_u32 s{sKVOFF}, s{sKVOFF}, {32*8192}")
    A(f"s_add_u32 s{sPUB}, s{sPUB}, {32*4096}")
    A(f"s_mov_b32 s{sCNT}, 0")
    A("s_nop 1")
    for x in emit_out(nr - 1): A(x)
    stamp(A, prof, 5)
    chk = "0x80" if tag else "0xfe"
    def tagcheck(regs, n, ck, step_):
        out, first = [], True
        for i in range(n):
            d = [regs + 4 * i + j for j in range(0, 4, step_)]
            ops = []
            if first and step_ == 1:
                ops.append(f"v_bitop3_b32 v{ck}, v{d[0]}, v{d[1]}, v{d[2]} bitop3:{chk}")
                ops.append(f"v_bitop3_b32 v{ck}, v{ck}, v{d[3]}, v{d[3]} bitop3:{chk}")
            elif first:
                ops.append(f"v_bitop3_b32 v{ck}, v{d[0]}, v{d[1]}, v{d[1]} bitop3:{chk}")
            else:
                for j in range(0, len(d), 2):
                    ops.append(f"v_bitop3_b32 v{ck}, v{ck}, v{d[j]}, v{d[j+1]} bitop3:{chk}")
            first = False
            out.append(ops)
        out[-1] += [f"v_and_b32 v{ck}, 1, v{ck}", f"v_cmp_ne_u32 vcc, {tag}, v{ck}"]
        return out
    def gather(n, regs, soff, ck, use, shadow, cnt, use_first, extra=0):
        def loads():
            for i in range(n):
                A(f"buffer_load_dwordx4 {v(regs+4*i,4)}, v{vL16}, {BUF}, s{soff} offen offset:{i*1024} sc1")
        lp, lr = A.newlabel("chk"), A.newlabel("again")
        stamp(A, prof, 2 if n == 4 else 4, True)
        loads()
        shadow()
        A.label(lp)
        sl = tagcheck(regs, n, ck, 2 if n == 4 else 1)
        for i in range(n):
            A(f"s_waitcnt vmcnt({n-1-i+extra})")
            if use_first: use(i)
            for t in sl[i]: A(t)
        A(f"s_cbranch_vccnz {lr}")
        if n == 3:
            stamp(A, prof, 7, True)
        if not use_first:
            for i in range(n): use(i)
        def again():
            A.label(lr)
            loads()
            A(f"s_add_u32 s{sCNT}, s{sCNT}, {cnt}")
            A(f"s_cmp_gt_u32 s{sCNT}, {SPIN_MAX*cnt}")
            A("s_waitcnt vmcnt(0)")
            A(f"s_cbranch_scc0 {lp}")
            A(f"s_branch {fail}")
        cold.append(again)
    def reduce_piece(early=None):
        RD, SEL, RA, ck, vMST = 10, 26, 30, 34, 35
        def shadow():
            A(f"v_and_b32 v{ck}, 16, v{vL16}")
            A(f"v_mov_b32 v{RA}, 0x3f80")
            A(f"v_lshlrev_b32 v{RA}, v{ck}, v{RA}")
            A(f"v_bfe_u32 v{ck}, v{vL16}, 5, 3")
            for q in range(4):
                A(f"v_cmp_eq_u32 vcc, {q}, v{ck}")
                A("s_nop 1")
                A(f"v_cndmask_b32 v{SEL+q}, 0, v{RA}, vcc")
            A(f"v_and_b32 v{vMST}, 0xf0, v{vL16}")
            A(f"v_bfe_u32 v{ck}, v{vL16}, 8, 2")
            A(f"v_lshl_add_u32 v{vMST}, v{ck}, 2, v{vMST}")
            A(f"v_and_b32 v{ck}, 0x80, v{vL16}")
            A(f"v_lshl_add_u32 v{vMST}, v{ck}, 23, v{vMST}")
            if early is not None and early[1]:
                A("s_barrier")
            pre_b1(A, cls)
        if early is not None and not early[1]:
            A("s_barrier")
        delay(A, PAR['rdelay'] if early is None else early[0])
        gather(4, RD, sRLD, ck,
               lambda i: A(f"v_mfma_f32_16x16x32_bf16 {v(RA,4)}, {v(RD+4*i,4)}, {v(SEL,4)}, {'0' if i == 0 else v(RA,4)}"),
               shadow, 1, True)
        A("s_nop 3")
        A(f"v_permlane32_swap_b32 v{RA}, v{RA+1}")
        A(f"v_permlane32_swap_b32 v{RA+2}, v{RA+3}")
        A(f"v_add_f32 v{RA}, v{RA}, v{RA+1}")
        A(f"v_add_f32 v{RA+2}, v{RA+2}, v{RA+3}")
        A(f"v_cvt_pk_bf16_f32 v{RA}, v{RA}, v{RA+2}")
        A(tagop(RA))
        A(f"buffer_store_dword v{RA}, v{vMST}, {BUF}, s{sMST} offen {stf}")
        stamp(A, prof, 6, True)
    kv1 = False
    if 'early' not in OPT or w >= 2:
        A("s_barrier")
    if w < 2 and 'early' not in OPT:
        reduce_piece()
    elif w == 0:
        reduce_piece((PAR['pa'], False))
    elif w == 1:
        lo1, lj1 = A.newlabel("low"), A.newlabel("lowj")
        A(f"s_cmp_lt_u32 s{sH}, 8")
        A(f"s_cbranch_scc1 {lo1}")
        reduce_piece((PAR['rdelay'], False))
        A.label(lj1)
        def low():
            A.label(lo1)
            reduce_piece((PAR['pb'], False))
            A(f"s_branch {lj1}")
        cold.append(low)
    elif w == 2:
        lo, lj = A.newlabel("nored"), A.newlabel("redj")
        A(f"s_cmp_ge_u32 s{sH}, 8")
        A(f"s_cbranch_scc1 {lo}")
        reduce_piece()
        A.label(lj)
        def nored():
            A.label(lo)
            pre_b1(A, cls)
            delay(A, PAR['rdelay'] + PAR['x2'])
            A(f"s_branch {lj}")
        cold.append(nored)
    else:
        pre_b1(A, cls)
        if KVGATE and tag == 0:
            lg, lb = A.newlabel("kvgate"), A.newlabel("kvback")
            A(f"s_cmp_eq_u32 s{sSTEP}, {KVGATE}")
            A(f"s_cbranch_scc1 {lg}")
            A.label(lb)
            def kvgate():
                A.label(lg)
                wait_kv(A, fail, 16, 10)
                A(f"s_branch {lb}")
            cold.append(kvgate)
        if not kv1:
            delay(A, PAR['rdelay'] + PAR['kx'])
            for q in range(4):
                kx_dma(A, q, tKX, 0)
    if not kv1 and 'vxq' not in OPT:
        vx_load(A)
    stamp(A, prof, 6)
    A("s_barrier")
    if w == 3:
        st_preload(A)
        A(f"s_waitcnt vmcnt({0 if kv1 or 'vxq' in OPT else 2})")
    else:
        MP, ck, wa = 10, 22, 23
        wr = lambda b: (lambda i: A(f"ds_write_b128 v{wa}, {v(b+4*i,4)} offset:{L_M + i*1024}"))
        delay(A, PAR['mdelay'] + (PAR['m2'] if w == 2 else 0))
        if 'ms2' in OPT:
            MQ = ST
            ld = lambda b: [A(f"buffer_load_dwordx4 {v(b+4*i,4)}, v{vL16}, {BUF}, s{sMLD} offen offset:{i*1024} sc1") for i in range(3)]
            l2, lmok = A.newlabel("second"), A.newlabel("mok")
            stamp(A, prof, 4, True)
            ld(MP)
            A(f"v_add_u32 v{wa}, {3072*w}, v{vL16}")
            delay(A, PAR['sp'])
            ld(MQ)
            for i, ops in enumerate(tagcheck(MP, 3, ck, 1)):
                A(f"s_waitcnt vmcnt({5-i})")
                for t in ops: A(t)
            A(f"s_cbranch_vccnz {l2}")
            stamp(A, prof, 7, True)
            for i in range(3): wr(MP)(i)
            A.label(lmok)
            def second():
                lp, lr = A.newlabel("chk2"), A.newlabel("again2")
                A.label(l2)
                A(f"s_add_u32 s{sCNT}, s{sCNT}, 256")
                A.label(lp)
                for i, ops in enumerate(tagcheck(MQ, 3, ck, 1)):
                    A(f"s_waitcnt vmcnt({2-i})")
                    for t in ops: A(t)
                A(f"s_cbranch_vccnz {lr}")
                stamp(A, prof, 7, True)
                for i in range(3): wr(MQ)(i)
                A(f"s_branch {lmok}")
                A.label(lr)
                ld(MQ)
                A(f"s_add_u32 s{sCNT}, s{sCNT}, 4096")
                A(f"s_cmp_gt_u32 s{sCNT}, {SPIN_MAX*4096}")
                A(f"s_cbranch_scc0 {lp}")
                A(f"s_branch {fail}")
            cold.append(second)
        else:
            def shadow2():
                A(f"v_add_u32 v{wa}, {3072*w}, v{vL16}")
                st_preload(A)
            gather(3, MP, sMLD, ck, wr(MP), shadow2, 256, 'spec' in OPT)
    stamp(A, prof, 7)

def wait_kv(A, fail, nrb, vt):
    lp = A.newlabel("kvw")
    A(f"v_and_b32 v{vt}, 0xf0, v{vL16}")
    A(f"v_min_u32 v{vt}, {16*(nrb-1)}, v{vt}")
    A(f"v_lshlrev_b32 v{vt}, 3, v{vt}")
    A(f"s_mov_b32 s{sT}, {WS_FLAG + 32*128}")
    A(f"s_mov_b32 s{sT+1}, 0")
    A.label(lp)
    A(f"buffer_load_dword v{vt+1}, v{vt}, {BUF}, s{sT} offen sc1")
    A(f"s_add_u32 s{sT+1}, s{sT+1}, 1")
    A(f"s_cmp_gt_u32 s{sT+1}, 200000")
    A(f"s_cbranch_scc1 {fail}")
    A("s_waitcnt vmcnt(0)")
    A(f"v_cmp_gt_u32 vcc, 0x1c0, v{vt+1}")
    A(f"s_cbranch_vccnz {lp}")

def last_step(A, w):
    cls = max(w - 1, 0)
    L = LgkmTracker(A)
    A("s_waitcnt lgkmcnt(0)")
    A("s_barrier")
    tokA, nslow = qkv_stage(A, L, w, False, True)
    for kv in (4, 5):
        vstep(A, L, tokA, kv)
    A("s_nop 7")
    A(f"v_cvt_pk_bf16_f32 v40, v{VACC}, v{VACC+1}")
    A(f"v_cvt_pk_bf16_f32 v41, v{VACC+2}, v{VACC+3}")
    A(f"ds_write_b64 v{vXW}, v[40:41] offset:{4*XP}")
    A(f"s_add_u32 s{sPUB}, s{sPUB}, {32*4096}")
    A("s_waitcnt lgkmcnt(0)")
    A("s_barrier")
    pub_read(A, cls)
    A("s_waitcnt lgkmcnt(0)")
    A(f"buffer_store_dwordx4 {v(PUB,4)}, v{vL16}, {BUF}, s{sPUB} offen sc1")
    A("s_waitcnt vmcnt(0)")
    A("s_barrier")
    if cls == 2:
        A(f"v_min_u32 v{tFL}, 1, v{vL16}")
        A(f"v_lshlrev_b32 v{tFL}, 30, v{tFL}")
        A(f"v_mov_b32 v{tFV}, 64")
        A(f"buffer_store_dword v{tFV}, v{tFL}, {BUF}, s{sFLAG} offen sc1")

def run(A, fail, done, prof=None, stf=""):
    labs = [A.newlabel(f"wave{c}") for c in range(4)]
    A(f"s_mov_b32 s{sSTEP}, 0")
    for c in range(1, 4):
        A(f"s_cmp_eq_u32 s{S_WAVE}, {c}")
        A(f"s_cbranch_scc1 {labs[c]}")
    for w in range(4):
        cls = max(w - 1, 0)
        A.label(labs[w])
        cold = []
        pre_b1(A, cls)
        st_preload(A)
        vx_addr(A); kx_addr(A, tKX, 71)
        kx_dma(A, w, tKX, 0)
        vx_load(A)
        A(f"s_add_u32 s{sT+1}, s{sKVOFF}, {32*8192}")
        warm(A, sT + 1, tWA)
        A("s_waitcnt vmcnt(0)")
        lo, la = A.newlabel("loop"), A.newlabel("last")
        A(".p2align 6")
        A.label(lo)
        step(A, w, 0, fail, cold, prof, stf)
        if prof: prof(A)
        A(f"s_cmp_eq_u32 s{sSTEP}, 63")
        A(f"s_cbranch_scc1 {la}")
        step(A, w, 1, fail, cold, prof, stf)
        if prof: prof(A)
        A(f"s_branch {lo}")
        i = 0
        while i < len(cold):
            cold[i](); i += 1
        A.label(la)
        last_step(A, w)
        A(f"s_branch {done}")
```

```python
from asm import *

MB = 1 << 20
WS_K    = 0
WS_V    = 16 * MB
WS_Q    = 32 * MB
WS_KVM  = 48 * MB + 32 * 4096
WS_PART = 60 * MB
WS_M    = WS_PART + 72 * 4096
WS_FLAG = 62 * MB
WS_H1   = WS_FLAG + 128 * 128
WS_H2   = WS_FLAG + 144 * 128
WS_PROF = 63 * MB
WS_FFN  = 64 * MB
WS_EP   = 112 * MB
WS_SIZE = 268435456

S_WS, S_WQ, S_WK, S_WV, S_WO, S_X, S_W1, S_W2, S_OUT, S_TMPD = 4, 8, 12, 16, 20, 24, 28, 32, 36, 40
S_DBG = 44
S_WAVE, S_XCC, S_ROLE, S_LOCAL = 46, 47, 48, 49

WBYTES = 576 * 4096 * 2

class LgkmTracker:
    def __init__(self, A):
        self.A = A
        self.issued = 0
        self.done = 0
    def op(self, text):
        self.A(text)
        self.issued += 1
        return self.issued
    def wait(self, tok):
        if tok <= self.done:
            return
        n = self.issued - tok
        assert n <= 15, n
        self.A(f"s_waitcnt lgkmcnt({n})")
        self.done = tok
    def all(self):
        self.A("s_waitcnt lgkmcnt(0)")
        self.done = self.issued

def srd(A, d, ptr, nbytes):
    A(f"s_mov_b32 s{d}, s{ptr}")
    A(f"s_and_b32 s{d+1}, s{ptr+1}, 0xffff")
    A(f"s_mov_b32 s{d+2}, {nbytes}")
    A(f"s_mov_b32 s{d+3}, 0x20000")

def prologue(A, exit_label):
    A(f"s_cmp_ge_u32 s2, 256")
    A(f"s_cbranch_scc1 {exit_label}")
    A("s_load_dwordx16 s[52:67], s[0:1], 0")
    A("s_load_dwordx8 s[68:75], s[0:1], 64")
    A("s_load_dwordx2 s[76:77], s[0:1], 96")
    A(f"s_getreg_b32 s{S_XCC}, hwreg(HW_REG_XCC_ID, 0, 3)")
    A("v_lshrrev_b32 v1, 6, v0")
    A("v_and_b32 v0, 63, v0")
    A(f"v_readfirstlane_b32 s{S_WAVE}, v1")
    A("s_waitcnt lgkmcnt(0)")
    A(f"s_mov_b64 s[{S_DBG}:{S_DBG+1}], s[74:75]")
    srd(A, S_WS, 76, WS_SIZE)
    srd(A, S_WQ, 56, WBYTES)
    srd(A, S_WK, 58, WBYTES)
    srd(A, S_WV, 60, WBYTES)
    srd(A, S_WO, 62, WBYTES)
    srd(A, S_X, 52, 2048 * 576 * 2)
    srd(A, S_W1, 68, 576 * 4608 * 2)
    srd(A, S_W2, 70, 576 * 4608 * 2)
    srd(A, S_OUT, 72, 2048 * 576 * 2)
    srd(A, S_TMPD, 54, 8 * 576 * 2)


DBG_INIT = 240
def xcc_slot(A, dst, x):
    A(f"s_add_u32 s3, s{x}, 3")
    A("s_lshr_b32 s3, s3, 2")
    A(f"s_lshl_b32 s{dst}, s{x}, 2")
    A("s_lshl_b32 s3, s3, 6")
    A(f"s_add_u32 s{dst}, s{dst}, s3")
def xcc_slot_py(x):
    return ((x + 3) // 4) * 64 + 4 * x

def take_ticket(A):
    l = A.newlabel("tk")
    A(f"s_cmp_lg_u32 s{S_WAVE}, 0")
    A(f"s_cbranch_scc1 {l}")
    xcc_slot(A, 51, S_XCC)
    A(f"s_add_u32 s52, s{S_DBG}, s51")
    A(f"s_addc_u32 s53, s{S_DBG+1}, 0")
    A("s_mov_b32 s50, 1")
    A("s_atomic_add s50, s[52:53], 0 glc")
    A("s_waitcnt lgkmcnt(0)")
    A("v_mov_b32 v1, s50")
    A("v_mov_b32 v2, 0")
    A("ds_write_b32 v2, v1")
    A("s_waitcnt lgkmcnt(0)")
    A.label(l)
    A("s_barrier")
    A("v_mov_b32 v2, 0")
    A("ds_read_b32 v1, v2")
    A("s_waitcnt lgkmcnt(0)")
    A("v_readfirstlane_b32 s50, v1")
    A("s_barrier")

def init_shared(A):
    l, l2 = A.newlabel("ini"), A.newlabel("ini2")
    A(f"s_cmp_lg_u32 s{S_WAVE}, 1")
    A(f"s_cbranch_scc1 {l}")
    for i in range(4):
        A(f"v_mov_b32 v{20+i}, 1")
    A("v_mov_b32 v24, 0")
    A("v_lshlrev_b32 v25, 4, v0")
    A("v_lshlrev_b32 v26, 7, v0")
    A(f"s_mul_i32 s3, s{S_ROLE}, 10240")
    A(f"s_add_u32 s3, s3, {WS_PART}")
    for i in range(10):
        A(f"buffer_store_dwordx4 v[20:23], v25, s[{S_WS}:{S_WS+3}], s3 offen sc1")
        A("s_add_u32 s3, s3, 1024")
    A(f"s_cmp_lg_u32 s{S_ROLE}, 0")
    A(f"s_cbranch_scc1 {l}")
    A(f"s_mov_b32 s3, {WS_FLAG}")
    A(f"buffer_store_dword v24, v26, s[{S_WS}:{S_WS+3}], s3 offen sc1")
    A(f"s_mov_b32 s3, {WS_FLAG + 8192}")
    A(f"buffer_store_dword v24, v26, s[{S_WS}:{S_WS+3}], s3 offen sc1")
    A.label(l)

def init_done(A):
    l = A.newlabel("inid")
    A(f"s_cmp_lg_u32 s{S_WAVE}, 1")
    A(f"s_cbranch_scc1 {l}")
    A("s_mov_b32 s3, 1")
    A(f"s_atomic_add s3, s[{S_DBG}:{S_DBG+1}], {DBG_INIT}")
    A.label(l)

def read_counts(A, fail, vt, need_init=True):
    lp = A.newlabel("cnt")
    A("s_mov_b32 s51, 0")
    A.label(lp)
    A(f"global_load_dword v{vt+1}, v{vt}, s[{S_DBG}:{S_DBG+1}] sc1")
    A("s_add_u32 s51, s51, 1")
    A("s_cmp_gt_u32 s51, 100000")
    A(f"s_cbranch_scc1 {fail}")
    A("s_waitcnt vmcnt(0)")
    A(f"v_readlane_b32 s3, v{vt+1}, {DBG_INIT//4}")
    if need_init:
        A("s_cmp_lt_u32 s3, 32")
        A(f"s_cbranch_scc1 {lp}")
    A("s_mov_b32 s60, 0")
    for x in range(8):
        A(f"v_readlane_b32 s{52+x}, v{vt+1}, {xcc_slot_py(x)//4}")
        A(f"s_add_u32 s60, s60, s{52+x}")
    A("s_cmp_lt_u32 s60, 256")
    A(f"s_cbranch_scc1 {lp}")
    A(f"s_mov_b32 s{S_LOCAL}, 1")
    for x in range(8):
        A(f"s_cmp_eq_u32 s{52+x}, 32")
        A(f"s_cselect_b32 s{S_LOCAL}, s{S_LOCAL}, 0")

def assign_roles(A, fail):
    l = A.newlabel("role")
    A(f"s_lshl_b32 s{S_ROLE}, s{S_XCC}, 5")
    A(f"s_add_u32 s{S_ROLE}, s{S_ROLE}, s50")
    A("s_cmp_lt_u32 s50, 32")
    A(f"s_cbranch_scc1 {l}")
    A.c("more than 32 workgroups on this XCC: take a role left vacant on another one")
    A("v_lshlrev_b32 v1, 2, v0")
    read_counts(A, fail, 1, False)
    A("s_sub_u32 s50, s50, 32")
    for x in range(8):
        A(f"s_sub_i32 s3, s{52+x}, 32")
        A("s_max_i32 s3, s3, 0")
        A(f"s_cmp_gt_u32 s{S_XCC}, {x}")
        A("s_cselect_b32 s3, s3, 0")
        A("s_add_u32 s50, s50, s3")
    A(f"s_mov_b32 s{S_ROLE}, 0")
    for x in range(8):
        A(f"s_sub_i32 s3, 32, s{52+x}")
        A("s_max_i32 s3, s3, 0")
        A(f"s_add_u32 s61, s{52+x}, s50")
        A(f"s_add_u32 s61, s61, {32*x}")
        A("s_cmp_lt_u32 s50, s3")
        A(f"s_cselect_b32 s{S_ROLE}, s61, s{S_ROLE}")
        A("s_sub_u32 s50, s50, s3")
    A.label(l)
```

```python
import sys
from common import *
import chain, bulk, engine

KN = "parallel_sum__memory_aug_recurrent_mem_tr__dense_activation_silu__prompt_kernel"
REF = open("parallel_sum__memory_aug_recurrent_mem_tr__dense_activation_silu__prompt.s.ref").read()
COMMENT = REF[:REF.index("; Override launch geometry")]
HDR = COMMENT + f"""; @launch grid=(256,1,1) block=(256,1,1) lds=163840
.amdgcn_target "amdgcn-amd-amdhsa--gfx950"
.text
.globl {KN}
.p2align 8
.type {KN},@function
{KN}:
"""
FTR = f"""
.section .rodata,"a"
.p2align 6
.amdhsa_kernel {KN}
  .amdhsa_next_free_vgpr 512
  .amdhsa_next_free_sgpr 102
  .amdhsa_accum_offset 256
  .amdhsa_group_segment_fixed_size 0
  .amdhsa_kernarg_size 104
  .amdhsa_user_sgpr_count 2
  .amdhsa_user_sgpr_kernarg_segment_ptr 1
  .amdhsa_system_sgpr_workgroup_id_x 1
.end_amdhsa_kernel
"""

def tstamp(A, prof, i):
    if prof:
        A(f"s_memrealtime s[{i}:{i+1}]")

def build(prof=False, force_nonlocal=False):
    A = Asm()
    tstamp(A, prof, 22)
    if prof:
        A("s_waitcnt lgkmcnt(0)")
        A("s_mov_b32 s101, s22")
    prologue(A, "L_exit")
    take_ticket(A)
    assign_roles(A, "L_exit")
    A(f"s_cmp_ge_u32 s{S_ROLE}, 32")
    A("s_cbranch_scc1 L_bulk")
    init_shared(A)
    chain.setup(A)
    chain.load_weights(A)
    chain.load_mem0(A)
    A("v_lshrrev_b32 v10, 2, v0")
    read_counts(A, "L_exit", 10)
    if force_nonlocal:
        A(f"s_mov_b32 s{S_LOCAL}, 0")
    chain.setup_scalars(A)
    tstamp(A, prof, 92)
    chain.wait_kv(A, "L_exit", bulk.NP0, 10)
    tstamp(A, prof, 94)
    A(f"s_cmp_eq_u32 s{S_LOCAL}, 0")
    A("s_cbranch_scc1 L_chain_far")
    chain.run(A, "L_exit0", "L_done0")
    A.label("L_exit0")
    A("s_endpgm")
    A.label("L_done0")
    A("s_branch L_done1")
    A.label("L_chain_far")
    chain.run(A, "L_exit1", "L_done1", None, "sc1")
    A.label("L_exit")
    A.label("L_exit1")
    A("s_endpgm")
    A.label("L_done1")
    A("s_branch L_done")
    A.label("L_bulk")
    A(f"s_sub_u32 s{S_ROLE}, s{S_ROLE}, 32")
    bulk.run(A, "L_exit2", (lambda i: tstamp(A, prof, 98) if i else (tstamp(A, prof, 94), prof and (A('s_waitcnt lgkmcnt(0)'), A('s_mov_b32 s100, s94')))))
    if force_nonlocal:
        A(f"s_mov_b32 s{S_LOCAL}, 0")
    tstamp(A, prof, 92)
    engine.run(A, "L_exit2", "L_done2", (lambda: tstamp(A, prof, 94)))
    A.label("L_done2")
    A(f"s_add_u32 s{S_ROLE}, s{S_ROLE}, 32")
    A.label("L_done")
    if prof:
        tstamp(A, prof, 96)
        A("s_waitcnt lgkmcnt(0)")
        for i in range(4):
            A(f"v_mov_b32 v{16+i}, s{(101, 92, 94, 96)[i]}")
        A(f"s_lshl_b32 s3, s{S_ROLE}, 2")
        A(f"s_add_u32 s3, s3, s{S_WAVE}")
        A("s_lshl_b32 s3, s3, 4")
        A(f"s_add_u32 s3, s3, {WS_PROF}")
        A("v_mov_b32 v20, 0")
        A(f"buffer_store_dwordx4 v[16:19], v20, s[{S_WS}:{S_WS+3}], s3 offen")
        A("v_mov_b32 v16, s100")
        A("v_mov_b32 v17, s98")
        A(f"s_add_u32 s3, s3, 16384")
        A(f"buffer_store_dwordx4 v[16:19], v20, s[{S_WS}:{S_WS+3}], s3 offen")
    A.label("L_exit2")
    A("s_endpgm")
    return HDR + A.text() + FTR

if __name__ == "__main__":
    chain.OPT = {'vxq', 'ms2'}
    chain.KVGATE = 9
    chain.PAR.update(rdelay=16, mdelay=6)
    open("parallel_sum__memory_aug_recurrent_mem_tr__dense_activation_silu__prompt.s", "w").write(build())
    open("full_prof.s", "w").write(build(True))
    open("full_far.s", "w").write(build(True, True))
    for x in sys.argv[1:]:
        kv = dict(p.split("=") for p in x.split(","))
        for k_, v_ in kv.items():
            (bulk.PAR if k_ in bulk.PAR else chain.PAR)[k_] = int(v_)
        open("v_" + x.replace("=", "").replace(",", "_") + "_prof.s", "w").write(build(True))
```

```python
from common import *

BUF = f"s[{S_WS}:{S_WS+3}]"
SLAB = 73728
FL_KV, FL_ALL, FL_GRP = 32, 48, 96

def ranges():
    nF = [6, 6] + [5] * 12
    nKV = [9, 9, 10, 10] + [9] * 10
    nQ = [3, 3, 4, 4] + [5] * 10
    out, a, b, c = [], 0, 0, 0
    for j in range(14):
        out.append((a, nKV[j], b, nQ[j], c, nF[j]))
        a += nKV[j]; b += nQ[j]; c += nF[j]
    assert (a, b, c) == (128, 64, 72)
    return out

XN = 0
ACC0, ACC1 = 144, 160
FR = 176
HP = 192
OUTV = 208
vA = 240
vD1, vD2, vL, vT1, vT2, vT3, vT4, vD1F = 244, 245, 246, 247, 248, 249, 250, 251
sRB, sJ, sI, sN, sSRC, sOUT, sPOUT, sLB, sSEG = 50, 51, 52, 53, 54, 55, 56, 57, 58
sKV0, sNKV, sQ0, sNQ, sF0, sNF, sTYP, sNTYP, sRS32, sLOG = 59, 60, 61, 62, 63, 64, 65, 66, 67, 68
sSIG, sP0R, sP0U, sSAV = 69, 70, 71, 90
sT = 72
PAR = dict(d0=0, ds=1)
S_CUR = S_TMPD

def out_tile(dt):
    return 256 + 16 * dt if dt < 16 else OUTV + 16 * (dt - 16)

def setup(A):
    A.c("bulk: indices")
    A(f"s_and_b32 s{sRB}, s{S_ROLE}, 15")
    A(f"s_lshr_b32 s{sJ}, s{S_ROLE}, 4")
    for j, rg in enumerate(ranges()):
        A(f"s_cmp_eq_u32 s{sJ}, {j}")
        pk1 = rg[0] | rg[1] << 8 | rg[2] << 16 | rg[3] << 24
        pk2 = rg[4] | rg[5] << 8
        A(f"s_cselect_b32 s{sT}, {pk1}, s{sT}" if j else f"s_mov_b32 s{sT}, {pk1}")
        A(f"s_cselect_b32 s{sT+1}, {pk2}, s{sT+1}" if j else f"s_mov_b32 s{sT+1}, {pk2}")
    A(f"s_and_b32 s{sKV0}, s{sT}, 255")
    A(f"s_bfe_u32 s{sNKV}, s{sT}, 0x80008")
    A(f"s_bfe_u32 s{sQ0}, s{sT}, 0x80010")
    A(f"s_lshr_b32 s{sNQ}, s{sT}, 24")
    A(f"s_and_b32 s{sF0}, s{sT+1}, 255")
    A(f"s_lshr_b32 s{sNF}, s{sT+1}, 8")
    A(f"s_lshl_b32 s{sSEG}, s{sRB}, 2")
    A(f"s_add_u32 s{sSEG}, s{sSEG}, s{S_WAVE}")
    A(f"s_mov_b32 s{sLOG}, 0xbfb8aa3b")
    A(f"v_mov_b32 v{vL}, v0")
    A(f"v_lshrrev_b32 v{vT1}, 3, v{vL}")
    A(f"v_bfe_u32 v{vT2}, v{vL}, 4, 1")
    A(f"v_lshlrev_b32 v{vT2}, 2, v{vT2}")
    A(f"v_xor_b32 v{vT2}, v{vT2}, v{vL}")
    A(f"v_and_b32 v{vT2}, 7, v{vT2}")
    A(f"v_lshlrev_b32 v{vT2}, 4, v{vT2}")
    A(f"v_lshl_add_u32 v{vD1}, v{vT1}, 13, v{vT2}")
    A(f"v_mul_u32_u24 v{vD1F}, 9216, v{vT1}")
    A(f"v_add_u32 v{vD1F}, v{vD1F}, v{vT2}")
    A(f"v_bfe_u32 v{vT3}, v{vL}, 5, 1")
    A(f"v_and_b32 v{vT1}, 3, v{vT1}")
    A(f"v_lshl_add_u32 v{vT1}, v{vT3}, 3, v{vT1}")
    A(f"v_mul_u32_u24 v{vD2}, 1152, v{vT1}")
    A(f"v_add_u32 v{vD2}, v{vD2}, v{vT2}")
    read_addr(A, vA, vL, vT1, vT2)
    A(f"v_xor_b32 v{vA+2}, 64, v{vA}")
    A(f"v_add_u32 v{vA+1}, {18*2048}, v{vA}")
    A(f"v_add_u32 v{vA+3}, {18*2048}, v{vA+2}")
    A(f"v_lshlrev_b32 v{vL}, 4, v{vL}")

def read_addr(A, dst, ln, t1, t2):
    A(f"v_bfe_u32 v{t1}, v{ln}, 2, 2")
    A(f"v_bfe_u32 v{t2}, v{ln}, 5, 1")
    A(f"v_lshl_add_u32 v{t1}, v{t2}, 3, v{t1}")
    A(f"v_lshlrev_b32 v{dst}, 7, v{t1}")
    A(f"v_bfe_u32 v{t2}, v{ln}, 3, 1")
    A(f"v_lshl_add_u32 v{dst}, v{t2}, 6, v{dst}")
    A(f"v_bfe_u32 v{t2}, v{ln}, 4, 1")
    A(f"v_lshl_add_u32 v{dst}, v{t2}, 5, v{dst}")
    A(f"v_and_b32 v{t2}, 3, v{ln}")
    A(f"v_lshl_add_u32 v{dst}, v{t2}, 3, v{dst}")

def copy_srd(A, src):
    for i in range(4):
        A(f"s_mov_b32 s{S_CUR+i}, s{src+i}")

def params_qkv(A, idx):
    la, lb, le = A.newlabel("pq"), A.newlabel("pv"), A.newlabel("pe")
    A(f"s_cmp_ge_u32 s{idx}, s{sNKV}")
    A(f"s_cbranch_scc1 {la}")
    A(f"s_add_u32 s{sT}, s{sKV0}, s{idx}")
    A(f"s_cmp_ge_u32 s{sT}, 64")
    A(f"s_cbranch_scc1 {lb}")
    copy_srd(A, S_WK)
    A(f"s_mov_b32 s{sT+1}, {WS_K}")
    A(f"s_mov_b32 s{sNTYP}, 0")
    A(f"s_branch {le}")
    A.label(lb)
    A(f"s_sub_u32 s{sT}, s{sT}, 64")
    copy_srd(A, S_WV)
    A(f"s_mov_b32 s{sT+1}, {WS_V}")
    A(f"s_mov_b32 s{sNTYP}, 1")
    A(f"s_branch {le}")
    A.label(la)
    A(f"s_sub_u32 s{sT}, s{idx}, s{sNKV}")
    A(f"s_add_u32 s{sT}, s{sT}, s{sQ0}")
    copy_srd(A, S_WQ)
    A(f"s_mov_b32 s{sT+1}, {WS_Q}")
    A(f"s_mov_b32 s{sNTYP}, 0")
    A.label(le)
    A(f"s_lshl_b32 s{sSRC}, s{sT}, 7")
    A(f"s_lshl_b32 s3, s{S_WAVE}, 16")
    A(f"s_add_u32 s{sSRC}, s{sSRC}, s3")
    A(f"s_lshl_b32 s{sT+2}, s{sT}, 12")
    A(f"s_lshl_b32 s3, s{sSEG}, 18")
    A(f"s_add_u32 s{sT+2}, s{sT+2}, s3")
    A(f"s_add_u32 s{sT+2}, s{sT+2}, s{sT+1}")
    A(f"s_mov_b32 s{sRS32}, {32*8192}")

def params_w1(A, unit):
    copy_srd(A, S_W1)
    A(f"s_lshl_b32 s{sSRC}, s{unit}, 7")
    A(f"s_mul_i32 s3, s{S_WAVE}, {8*9216}")
    A(f"s_add_u32 s{sSRC}, s{sSRC}, s3")
    A(f"s_mov_b32 s{sRS32}, {32*9216}")

def params_w2(A, unit):
    copy_srd(A, S_W2)
    A(f"s_mul_i32 s{sSRC}, s{unit}, {64*1152}")
    A(f"s_lshr_b32 s3, s{S_WAVE}, 1")
    A(f"s_mul_i32 s3, s3, {16*1152}")
    A(f"s_add_u32 s{sSRC}, s{sSRC}, s3")
    A(f"s_and_b32 s3, s{S_WAVE}, 1")
    A(f"s_mul_i32 s3, s3, {4*1152}")
    A(f"s_add_u32 s{sSRC}, s{sSRC}, s3")

def dma_ops(kind, vo):
    ops = []
    for i in range(18):
        g = [f"s_add_u32 m0, s{sLB}, {i*4096}"]
        if kind == 2:
            g.append(f"s_add_u32 s{sT+3}, s{sSRC}, {(i & 1)*32*1152 + (i >> 1)*128}")
            g.append(f"buffer_load_dwordx4 v{vo}, s[{S_CUR}:{S_CUR+3}], s{sT+3} offen lds")
        else:
            g.append("s_nop 0")
            g.append(f"buffer_load_dwordx4 v{vo}, s[{S_CUR}:{S_CUR+3}], s{sSRC} offen lds")
            g.append(f"s_add_u32 s{sSRC}, s{sSRC}, s{sRS32}")
        ops.append(g)
    return ops

def flip(A, younger=0):
    A(f"s_waitcnt vmcnt({younger}) lgkmcnt(0)")
    A("s_barrier")
    A(f"s_lshl_b32 s3, s{S_WAVE}, 10")
    A(f"s_sub_u32 s{sT+4}, s{sLB}, s3")
    A(f"s_sub_u32 s{sT+5}, {SLAB}, s{sT+4}")
    A(f"s_add_u32 s{sLB}, s{sT+5}, s3")
    A(f"s_sub_u32 s{sT+4}, s{sT+4}, s{sT+5}")
    for i in range(4):
        A(f"v_add_u32 v{vA+i}, s{sT+4}, v{vA+i}")

def store_epi(acc, soff, hp):
    ops = [f"v_cvt_pk_bf16_f32 v{hp+i}, v{acc+2*i}, v{acc+2*i+1}" for i in range(8)]
    return ops[:4] + [f"buffer_store_dwordx4 {v(hp,4)}, v{vL}, {BUF}, s{soff[0]} offen offset:{soff[1]} sc1"] + \
           ops[4:] + [f"buffer_store_dwordx4 {v(hp+4,4)}, v{vL}, {BUF}, s{soff[0]} offen offset:{soff[1]+1024} sc1"]

def silu_epi(acc, hp):
    ops = []
    for i in range(8):
        a0, a1 = acc + 2 * i, acc + 2 * i + 1
        t0, t1 = (vT1, vT2) if i % 2 == 0 else (vT3, vT4)
        ops += [f"v_mul_f32 v{t0}, s{sLOG}, v{a0}", f"v_mul_f32 v{t1}, s{sLOG}, v{a1}",
                f"v_exp_f32 v{t0}, v{t0}", f"v_exp_f32 v{t1}, v{t1}",
                f"v_add_f32 v{t0}, 1.0, v{t0}", f"v_add_f32 v{t1}, 1.0, v{t1}",
                f"v_rcp_f32 v{t0}, v{t0}", f"v_rcp_f32 v{t1}, v{t1}",
                f"v_mul_f32 v{a0}, v{a0}, v{t0}", f"v_mul_f32 v{a1}, v{a1}, v{t1}",
                f"v_cvt_pk_bf16_f32 v{hp+i}, v{a0}, v{a1}"]
    return ops

def mfma_stream(A, steps, fillers):
    L = LgkmTracker(A)
    tok = {}
    def rd(n):
        ad, off, _ = steps[n]
        f = FR + 4 * (n % 4)
        L.op(f"ds_read_b64_tr_b16 {v(f,2)}, v{ad} offset:{off}")
        tok[n] = L.op(f"ds_read_b64_tr_b16 {v(f+2,2)}, v{ad} offset:{off+512}")
    for n in range(3):
        rd(n)
    for n in range(len(steps)):
        L.wait(tok[n])
        A(steps[n][2](FR + 4 * (n % 4)))
        if n + 3 < len(steps):
            rd(n + 3)
        for t in fillers.get(n, []):
            A(t)

def spread(fillers, ops, start, per):
    n = start
    for i in range(0, len(ops), per):
        fillers.setdefault(n, []).extend(ops[i:i + per])
        n += 1
    return n

def proj_steps(vtype):
    steps = []
    for ct in range(2):
        acc = ACC0 if ct == 0 else ACC1
        for k in range(36):
            def f(fr, acc=acc, k=k):
                c = "0" if k == 0 else v(acc, 16)
                x, w = v(XN + 4 * k, 4), v(fr, 4)
                a_, b_ = (x, w) if vtype else (w, x)
                return f"v_mfma_f32_32x32x16_bf16 {v(acc,16)}, {a_}, {b_}, {c}"
            steps.append((vA + 2 * ct + k // 18, (k % 18) * 2048, f))
    return steps

def stage_proj(A, vtype, epi_prev, epi0, dma, extra=()):
    fill = {}
    for i, g in enumerate(dma):
        fill.setdefault(PAR['d0'] + PAR['ds'] * i, []).extend(g)
    per = 2 if len(epi0) < 20 else 4
    spread(fill, epi_prev, 30, 2)
    spread(fill, epi0, 40, per)
    for i, t in enumerate(extra):
        fill.setdefault(20 + (3 * i) // 2, []).append(t)
    mfma_stream(A, proj_steps(vtype), fill)

def stage_ffn2(A, epi1, dma):
    steps = []
    for k in range(4):
        for dt in range(18):
            def f(fr, dt=dt, k=k):
                o = r(out_tile(dt), 16)
                return f"v_mfma_f32_32x32x16_bf16 {o}, {v(fr,4)}, {v(HP+4*k,4)}, {o}"
            blk = 4 * (dt >> 1) + k
            steps.append((vA + 2 * (dt & 1) + blk // 18, (blk % 18) * 2048, f))
    fill = {}
    for i, g in enumerate(dma):
        fill.setdefault(PAR['d0'] + PAR['ds'] * i, []).extend(g)
    spread(fill, epi1, 4, 4)
    mfma_stream(A, steps, fill)

def x_loads(A, seg, dst, addr):
    A(f"v_bfe_u32 v{addr}, v{vL}, 4, 5")
    A(f"s_lshl_b32 s3, s{seg}, 5")
    A(f"v_add_u32 v{addr}, s3, v{addr}")
    A(f"v_mul_u32_u24 v{addr}, 1152, v{addr}")
    A(f"v_bfe_u32 v{vT2}, v{vL}, 9, 1")
    A(f"v_lshl_add_u32 v{addr}, v{vT2}, 4, v{addr}")
    return [f"buffer_load_dwordx4 {r(dst+4*k,4)}, v{addr}, s[{S_X}:{S_X+3}], 0 offen offset:{32*k}" for k in range(36)]

def layernorm(A):
    A.c("bulk: load x rows as MFMA fragments and normalise them")
    for t in x_loads(A, sSEG, XN, vT1):
        A(t)

def layernorm2(A, dma=(), from_acc=False):
    dma = list(dma)
    s1, s2, one = ACC0, ACC0 + 4, ACC0 + 8
    for i in range(8):
        A(f"v_mov_b32 v{ACC0+i}, 0")
    A(f"v_mov_b32 v{one}, 0x3f803f80")
    for k in range(36):
        if from_acc:
            for i in range(4):
                A(f"v_accvgpr_read_b32 v{XN+4*k+i}, a{4*k+i}")
        elif k % 4 == 0:
            A(f"s_waitcnt vmcnt({32 - k})")
        for i in range(4):
            A(f"v_dot2c_f32_bf16 v{s1+i}, v{XN+4*k+i}, v{one}")
            A(f"v_dot2c_f32_bf16 v{s2+i}, v{XN+4*k+i}, v{XN+4*k+i}")
    A("s_nop 2")
    for b in (s1, s2):
        A(f"v_add_f32 v{b}, v{b}, v{b+1}")
        A(f"v_add_f32 v{b+2}, v{b+2}, v{b+3}")
        A(f"v_add_f32 v{b}, v{b}, v{b+2}")
        A(f"v_mov_b32 v{b+1}, v{b}")
    A("s_nop 1")
    A(f"v_permlane32_swap_b32 v{s1}, v{s1+1}")
    A(f"v_permlane32_swap_b32 v{s2}, v{s2+1}")
    A(f"v_add_f32 v{s1}, v{s1}, v{s1+1}")
    A(f"v_add_f32 v{s2}, v{s2}, v{s2+1}")
    A(f"v_mul_f32 v{s1}, 0x3ae38e39, v{s1}")
    A(f"v_mul_f32 v{s2}, 0x3ae38e39, v{s2}")
    A(f"v_fma_f32 v{s2}, -v{s1}, v{s1}, v{s2}")
    A(f"v_max_f32 v{s2}, 0, v{s2}")
    A(f"v_cvt_pk_bf16_f32 v{s1+1}, v{s2}, v{s1}")
    A(f"v_lshlrev_b32 v{s2}, 16, v{s1+1}")
    A(f"v_and_b32 v{s1}, 0xffff0000, v{s1+1}")
    A(f"v_add_f32 v{s2}, 0x3727c5ac, v{s2}")
    A(f"v_cvt_pk_bf16_f32 v{s2}, v{s2}, v{s2}")
    A(f"v_lshlrev_b32 v{s2}, 16, v{s2}")
    A(f"v_sqrt_f32 v{s2}, v{s2}")
    A("s_nop 0")
    A(f"v_cvt_pk_bf16_f32 v{s2}, v{s2}, v{s2}")
    A(f"v_lshlrev_b32 v{s2}, 16, v{s2}")
    A(f"v_rcp_f32 v{s2}, v{s2}")
    A("s_nop 0")
    A(f"v_mul_f32 v{s1}, v{s1}, v{s2}")
    A(f"s_mov_b32 s{sT+6}, 0xffff0000")
    for i in range(144):
        t = ACC1 + 2 * (i % 4)
        A(f"v_lshlrev_b32 v{t}, 16, v{XN+i}")
        A(f"v_and_b32 v{t+1}, s{sT+6}, v{XN+i}")
        A(f"v_pk_fma_f32 {v(t,2)}, {v(t,2)}, {v(s2,2)}, {v(s1,2)} op_sel_hi:[1,0,0] neg_lo:[0,0,1] neg_hi:[0,0,1]")
        A(f"v_cvt_pk_bf16_f32 v{XN+i}, v{t}, v{t+1}")
        if i % 4 == 0 and dma:
            for x in dma.pop(0): A(x)

def signal(A, line_sgpr, amount=1):
    l = A.newlabel("sig")
    A(f"s_cmp_lg_u32 s{S_WAVE}, 0")
    A(f"s_cbranch_scc1 {l}")
    A(f"v_mov_b32 v{vT1}, {amount}")
    A(f"v_mov_b32 v{vT2}, 0")
    A("s_mov_b64 exec, 1")
    A(f"buffer_atomic_add v{vT1}, v{vT2}, {BUF}, s{line_sgpr} offen")
    A("s_mov_b64 exec, -1")
    A.label(l)

FINE = None
XO = set()
NP0 = 3
KV_FULL = 448

def two_types(A, epi_prev, epi0, dma, extra=()):
    lv, lj = A.newlabel("projv"), A.newlabel("projj")
    A(f"s_cmp_eq_u32 s{sTYP}, 1")
    A(f"s_cbranch_scc1 {lv}")
    for vt in range(2):
        if vt:
            A.label(lv)
        stage_proj(A, vt, epi_prev, epi0, dma, extra)
        if not vt:
            A(f"s_branch {lj}")
    A.label(lj)

def counts(A, fail):
    A(f"v_lshrrev_b32 v{vT1}, 2, v{vL}")
    read_counts(A, fail, vT1, True, 80)

def run(A, fail, hook=None):
    setup(A)
    lmain, lskip, lown = A.newlabel("main"), A.newlabel("nop0"), A.newlabel("own")
    A(f"s_lshl_b32 s{sLB}, s{S_WAVE}, 10")
    for i in range(4):
        A(f"v_add_u32 v{vA+i}, {SLAB}, v{vA+i}")
    A(f"s_mov_b32 s{sSIG}, s{sNKV}")
    A.c("bulk: first the K/V projections of the leading row blocks")
    A(f"s_mov_b32 s{sP0R}, s{sRB}")
    A(f"s_mov_b32 s{sP0U}, s{sJ}")
    A(f"s_cmp_lt_u32 s{sRB}, {NP0}")
    A(f"s_cselect_b32 s{sNKV}, 0, s{sNKV}")
    A(f"s_cselect_b32 s{sSIG}, -2, s{sSIG}")
    A(f"s_cbranch_scc1 {lown}")
    A(f"s_mul_i32 s3, s{sJ}, {16 - NP0}")
    A(f"s_add_u32 s3, s3, s{sRB}")
    A(f"s_sub_u32 s3, s3, {NP0}")
    A(f"s_cmp_ge_u32 s3, {50 * NP0}")
    A(f"s_cbranch_scc1 {lskip}")
    A(f"s_mul_i32 s{sP0U}, s3, 171")
    A(f"s_lshr_b32 s{sP0U}, s{sP0U}, 9")
    A(f"s_mul_i32 s{sP0R}, s{sP0U}, 3")
    A(f"s_sub_u32 s{sP0R}, s3, s{sP0R}")
    A(f"s_add_u32 s{sP0U}, s{sP0U}, 14")
    A.label(lown)
    A(f"s_mov_b32 s{sSAV}, s{sKV0}")
    A(f"s_mov_b32 s{sSAV+1}, s{sNKV}")
    A(f"s_lshl_b32 s{sKV0}, s{sP0U}, 1")
    A(f"s_mov_b32 s{sNKV}, 2")
    A(f"s_lshl_b32 s{sSEG}, s{sP0R}, 2")
    A(f"s_add_u32 s{sSEG}, s{sSEG}, s{S_WAVE}")
    layernorm(A)
    A(f"s_mov_b32 s{sI}, 0")
    params_qkv(A, sI)
    layernorm2(A, dma_ops(1, vD1))
    if hook: hook(0)
    A(f"s_lshl_b32 s{sT+7}, s{sRB}, 2")
    A(f"s_add_u32 s{sT+7}, s{sT+7}, s{S_WAVE}")
    x2 = x_loads(A, sT + 7, 256, vT4 + 2)
    flip(A)
    if FINE: FINE(A, 0)
    A(f"s_mov_b32 s{sOUT}, s{sT+2}")
    A(f"s_mov_b32 s{sTYP}, s{sNTYP}")
    A(f"s_mov_b32 s{sI}, 1")
    params_qkv(A, sI)
    if 'x2' not in XO:
        x2 = []
    two_types(A, [], store_epi(ACC0, (sOUT, 0), HP + 8), dma_ops(1, vD1), x2[:34])
    for t in x2[34:]:
        A(t)
    A(f"s_mov_b32 s{sPOUT}, s{sOUT}")
    if FINE: FINE(A, 1)
    flip(A, 38 if 'x2' in XO else 2)
    if FINE: FINE(A, 2)
    A(f"s_mov_b32 s{sOUT}, s{sT+2}")
    A(f"s_mov_b32 s{sKV0}, s{sSAV}")
    A(f"s_mov_b32 s{sNKV}, s{sSAV+1}")
    A(f"s_lshl_b32 s{sSEG}, s{sRB}, 2")
    A(f"s_add_u32 s{sSEG}, s{sSEG}, s{S_WAVE}")
    A(f"s_mov_b32 s{sI}, 0")
    params_qkv(A, sI)
    two_types(A, store_epi(ACC1, (sPOUT, 2048), HP), store_epi(ACC0, (sOUT, 0), HP + 8), dma_ops(1, vD1))
    A("s_nop 7")
    A("s_nop 3")
    for t in store_epi(ACC1, (sOUT, 2048), HP):
        A(t)
    if FINE: FINE(A, 3)
    counts(A, fail)
    A("s_barrier")
    A(f"s_lshl_b32 s{sT}, s{sP0R}, 7")
    A(f"s_add_u32 s{sT}, s{sT}, {WS_FLAG + FL_KV*128}")
    signal(A, sT, 7)
    if hook: hook(2)
    A(f"s_cmp_lt_u32 s{sRB}, {NP0}")
    A(f"s_cbranch_scc1 {lmain}")
    if 'x2' not in XO:
        layernorm(A)
    layernorm2(A, (), 'x2' in XO)
    A(f"s_branch {lmain}")
    A.label(lskip)
    layernorm(A)
    A(f"s_mov_b32 s{sI}, 0")
    params_qkv(A, sI)
    layernorm2(A, dma_ops(1, vD1))
    counts(A, fail)
    if hook: hook(0)
    A.label(lmain)
    A("s_waitcnt vmcnt(0)")
    A(f"s_add_u32 s{sN}, s{sNKV}, s{sNQ}")
    A(f"s_mov_b32 s{sPOUT}, 0x40000000")
    lp, lnx, lnx2, lns = (A.newlabel(x) for x in ("proj", "nx", "nx2", "nosig"))
    A.label(lp)
    flip(A, 4)
    A(f"s_mov_b32 s{sOUT}, s{sT+2}")
    A(f"s_mov_b32 s{sTYP}, s{sNTYP}")
    A(f"s_sub_u32 s3, s{sI}, 1")
    A(f"s_cmp_lg_u32 s3, s{sSIG}")
    A(f"s_cbranch_scc1 {lns}")
    A("s_waitcnt vmcnt(2)")
    A("s_barrier")
    if hook: hook(1)
    A(f"s_lshl_b32 s{sT}, s{sRB}, 7")
    A(f"s_add_u32 s{sT}, s{sT}, {WS_FLAG + FL_KV*128}")
    signal(A, sT, 32)
    A.label(lns)
    A(f"s_add_u32 s{sI}, s{sI}, 1")
    A(f"s_cmp_eq_u32 s{sI}, s{sN}")
    A(f"s_cbranch_scc1 {lnx}")
    params_qkv(A, sI)
    A(f"v_mov_b32 v{vT4+2}, v{vD1}")
    A(f"s_branch {lnx2}")
    A.label(lnx)
    params_w1(A, sF0)
    A(f"v_mov_b32 v{vT4+2}, v{vD1F}")
    A.label(lnx2)
    two_types(A, store_epi(ACC1, (sPOUT, 2048), HP), store_epi(ACC0, (sOUT, 0), HP + 8), dma_ops(1, vT4 + 2))
    A(f"s_mov_b32 s{sPOUT}, s{sOUT}")
    A(f"s_cmp_lt_u32 s{sI}, s{sN}")
    A(f"s_cbranch_scc1 {lp}")
    A("s_nop 7")
    A("s_nop 3")
    for t in store_epi(ACC1, (sPOUT, 2048), HP):
        A(t)
    A.c("bulk: fused FFN over this range of hidden units")
    for i in range(256):
        A(f"v_accvgpr_write_b32 a{i}, 0")
    for i in range(0, 32, 2):
        A(f"v_mov_b64 {v(OUTV+i,2)}, 0")
    A(f"s_mov_b32 s{sI}, 0")
    lf, lf2, lf3 = A.newlabel("ffn"), A.newlabel("ffnl"), A.newlabel("ffnj")
    A.label(lf)
    flip(A)
    A(f"s_add_u32 s{sT+6}, s{sF0}, s{sI}")
    params_w2(A, sT + 6)
    stage_proj(A, 0, [], silu_epi(ACC0, HP), dma_ops(2, vD2))
    flip(A)
    A(f"s_add_u32 s{sI}, s{sI}, 1")
    A(f"s_add_u32 s{sT+6}, s{sF0}, s{sI}")
    A(f"s_min_u32 s{sT+6}, s{sT+6}, 71")
    params_w1(A, sT + 6)
    stage_ffn2(A, silu_epi(ACC1, HP + 8), dma_ops(1, vD1F))
    A(f"s_cmp_lt_u32 s{sI}, s{sNF}")
    A(f"s_cbranch_scc1 {lf}")
    A.c("bulk: FFN partial -> workspace")
    A(f"s_mul_i32 s{sOUT}, s{sSEG}, {36*16384}")
    A(f"s_lshl_b32 s3, s{sJ}, 10")
    A(f"s_add_u32 s{sOUT}, s{sOUT}, s3")
    A(f"s_add_u32 s{sOUT}, s{sOUT}, {WS_FFN}")
    A("s_nop 7")
    for dt in range(18):
        for half in range(2):
            b = 2 * dt + half
            hp = HP + 4 * (b % 4)
            for i in range(4):
                o = out_tile(dt) + 8 * half + 2 * i
                if dt < 16:
                    A(f"v_accvgpr_read_b32 v{vT1}, a{o-256}")
                    A(f"v_accvgpr_read_b32 v{vT2}, a{o-255}")
                    A(f"v_cvt_pk_bf16_f32 v{hp+i}, v{vT1}, v{vT2}")
                else:
                    A(f"v_cvt_pk_bf16_f32 v{hp+i}, v{o}, v{o+1}")
            A(f"buffer_store_dwordx4 {v(hp,4)}, v{vL}, {BUF}, s{sOUT} offen sc1")
            A(f"s_add_u32 s{sOUT}, s{sOUT}, 16384")
    A("s_waitcnt vmcnt(0)")
    A("s_barrier")
    A(f"s_lshl_b32 s{sT}, s{sRB}, 7")
    A(f"s_add_u32 s{sT}, s{sT}, {WS_FLAG + FL_ALL*128}")
    signal(A, sT)
```

```python
from common import *

L_M   = 0
L_O   = 0
XP    = 1088
L_X   = 9216
L_VM  = L_X + 4 * XP
L_KX  = L_VM + 2 * XP
L_JUNK= L_KX + 8192
L_RES = 24576
assert L_JUNK + 512 <= L_RES and L_KX % 16 == 0

vL16, vIDX, vMASK, vRES, vMA, vXW, vXR, vOW, vPST, vT = range(10)
WV0 = 72
def wreg(i):
    return WV0 + 8 * i

QK_LDS_KAPPA = [3, 5, 6, 7, 8, 9, 10, 11, 12, 13, 14, 15]
WO_REG = [(rd, k) for rd in range(4) for k in range(4) if (rd, k) not in ((2, 2), (3, 0), (3, 2))]

def unit_tables():
    loc = {}
    n = 0
    for k in range(18):
        loc[('q', k)] = ('r', n); n += 1
        if k not in QK_LDS_KAPPA:
            loc[('k', k)] = ('r', n); n += 1
    for k in range(18):
        loc[('v', k)] = ('r', n); n += 1
    for u in WO_REG:
        loc[('o',) + u] = ('r', n); n += 1
    assert n == 55
    off = 0
    for k in QK_LDS_KAPPA:
        loc[('k', k)] = ('l', off); off += 8192
    for rd in range(4):
        for k in range(4):
            if (rd, k) not in WO_REG:
                loc[('o', rd, k)] = ('l', off); off += 8192
    for k in range(4):
        loc[('o', 4, k)] = ('l', off - 4096); off += 4096
    assert off == 17 * 8192
    return loc
LOC = unit_tables()
WO_BASE = 12 * 8192
STB = [26, 34, 62]

sH = S_ROLE
sSTEP, sCNT, sKVOFF, sRHO, sISRED = 50, 51, 52, 53, 54
sPST = 55
sRLD, sMST, sC, sMLD, sPUB, sFLAG, sKXO, sWARM = 60, 61, 62, 64, 65, 66, 67, 68
sONE = 76
sQKVB, sWOB = 69, 70
sH1W, sH1R, sH2W, sH2R = 69, 70, 71, 75
sT = 72
SPIN_MAX = 20000
OPT = set()
AFTER = None
LDST = None
KVGATE = 0
BUF = f"s[{S_WS}:{S_WS+3}]"

def setup(A):
    A.c("chain: lane constants (v0 = lane id on entry)")
    n, g, t1, t2, ln = 10, 11, 12, 13, 14
    A(f"v_mov_b32 v{ln}, v0")
    A(f"v_and_b32 v{n}, 15, v{ln}")
    A(f"v_lshrrev_b32 v{g}, 4, v{ln}")
    A(f"v_mov_b32 v{vIDX}, 0x44444444")
    A(f"v_mov_b32 v{t1}, 0xeeeeeeee")
    A(f"v_cmp_lt_u32 vcc, 7, v{n}")
    A("s_nop 1")
    A(f"v_cndmask_b32 v{vIDX}, v{vIDX}, v{t1}, vcc")
    A(f"v_mov_b32 v{vMASK}, 0")
    A(f"v_mov_b32 v{t1}, 0xff800000")
    A(f"v_cmp_gt_u32 vcc, 32, v{ln}")
    A("s_nop 1")
    A(f"v_cndmask_b32 v{vMASK}, v{vMASK}, v{t1}, vcc")
    A(f"v_lshlrev_b32 v{vL16}, 4, v{ln}")
    A(f"s_lshl_b32 s3, s{S_WAVE}, 11")
    A(f"s_add_u32 s3, s3, {L_RES}")
    A(f"v_add_u32 v{vRES}, s3, v{vL16}")
    A(f"v_and_b32 v{t1}, 7, v{ln}")
    A(f"v_lshl_add_u32 v{t1}, v{g}, 3, v{t1}")
    A(f"v_lshlrev_b32 v{vMA}, 4, v{t1}")
    A(f"v_and_b32 v{t1}, 1, v{g}")
    A(f"v_mul_u32_u24 v{t1}, {XP}, v{t1}")
    A(f"v_lshrrev_b32 v{t2}, 1, v{g}")
    A(f"v_lshl_add_u32 v{t2}, v{t2}, 4, v{n}")
    A(f"s_lshl_b32 s3, s{S_WAVE}, 5")
    A(f"v_add_u32 v{t2}, s3, v{t2}")
    A(f"v_lshl_add_u32 v{vXW}, v{t2}, 3, v{t1}")
    A(f"v_add_u32 v{vXW}, {L_X}, v{vXW}")
    A(f"v_and_b32 v{t1}, 3, v{n}")
    A(f"v_mul_u32_u24 v{t1}, {XP}, v{t1}")
    A(f"v_lshrrev_b32 v{t2}, 1, v{g}")
    A(f"v_lshlrev_b32 v{t2}, 4, v{t2}")
    A(f"v_and_b32 v{vXR}, 1, v{g}")
    A(f"v_lshl_add_u32 v{t2}, v{vXR}, 2, v{t2}")
    A(f"v_lshrrev_b32 v{vXR}, 2, v{n}")
    A(f"v_add_u32 v{t2}, v{t2}, v{vXR}")
    A(f"v_lshl_add_u32 v{vXR}, v{t2}, 3, v{t1}")
    A(f"v_add_u32 v{vXR}, {L_X}, v{vXR}")
    A(f"s_lshl_b32 s3, s{S_WAVE}, 9")
    A(f"s_add_u32 s3, s3, {L_O}")
    A(f"v_mov_b32 v{t1}, s3")
    A(f"v_mov_b32 v{t2}, {L_JUNK}")
    A(f"v_cmp_lt_u32 vcc, 7, v{n}")
    A("s_nop 1")
    A(f"v_cndmask_b32 v{t1}, v{t1}, v{t2}, vcc")
    A(f"v_add_u32 v{vOW}, v{t1}, v{vMA}")
    A(f"v_and_b32 v{t1}, 2, v{g}")
    A(f"v_lshrrev_b32 v{vPST}, 3, v{n}")
    A(f"v_add_u32 v{t1}, v{t1}, v{vPST}")
    A(f"v_lshlrev_b32 v{t1}, 12, v{t1}")
    A(f"v_and_b32 v{t2}, 1, v{g}")
    A(f"v_lshl_add_u32 v{t1}, v{t2}, 3, v{t1}")
    A(f"v_and_b32 v{vPST}, 7, v{n}")
    A(f"v_lshl_add_u32 v{vPST}, v{vPST}, 4, v{t1}")

def setup_scalars(A):
    A.c("chain: scalar constants")
    A(f"s_lshl_b32 s3, s{sH}, 7")
    A(f"s_lshl_b32 s{sT}, s{S_WAVE}, 14")
    A(f"s_add_u32 s3, s3, s{sT}")
    A(f"s_add_u32 s{sPST}, s3, {WS_PART}")
    for rd in range(1, 4):
        A(f"s_add_u32 s{sPST+rd}, s{sPST}, {rd*65536}")
    A(f"s_add_u32 s{sPST+4}, s{sPST}, {4*65536 - 2*16384}")
    if 'map32' in OPT:
        A(f"s_lshl_b32 s{sRHO}, s{S_WAVE}, 5")
        A(f"s_add_u32 s{sRHO}, s{sRHO}, s{sH}")
    else:
        A(f"s_lshl_b32 s{sRHO}, s{sH}, 1")
        A(f"s_add_u32 s{sRHO}, s{sRHO}, s{S_WAVE}")
        A(f"s_add_u32 s3, s{sH}, 64")
        A(f"s_cmp_eq_u32 s{S_WAVE}, 2")
        A(f"s_cselect_b32 s{sRHO}, s3, s{sRHO}")
    A(f"s_cmp_lt_u32 s{sRHO}, 72")
    A(f"s_cselect_b32 s{sISRED}, 1, 0")
    A(f"s_cmp_eq_u32 s{S_WAVE}, 3")
    A(f"s_cselect_b32 s{sISRED}, 0, s{sISRED}")
    A(f"s_lshl_b32 s{sRLD}, s{sRHO}, 12")
    A(f"s_add_u32 s{sRLD}, s{sRLD}, {WS_PART}")
    A(f"s_lshl_b32 s{sMST}, s{sRHO}, 7")
    A(f"s_add_u32 s{sMST}, s{sMST}, {WS_M}")
    A(f"s_mul_i32 s{sMLD}, s{S_WAVE}, 3072")
    A(f"s_add_u32 s{sMLD}, s{sMLD}, {WS_M}")
    A(f"s_mov_b32 s{sC}, 0x3e029413")
    A(f"s_lshl_b32 s{sKVOFF}, s{sH}, 13")
    A(f"s_lshl_b32 s{sPUB}, s{sH}, 12")
    A(f"s_lshl_b32 s3, s{S_WAVE}, 10")
    A(f"s_add_u32 s{sPUB}, s{sPUB}, s3")
    A(f"s_add_u32 s{sPUB}, s{sPUB}, {WS_KVM - 32*4096}")
    A(f"s_lshl_b32 s{sFLAG}, s{sH}, 7")
    A(f"s_add_u32 s{sFLAG}, s{sFLAG}, {WS_FLAG}")
    A(f"s_lshl_b32 s{sKXO}, s{S_WAVE}, 11")
    A(f"s_mov_b32 s{sONE}, 0x3f803f80")
    A(f"s_mov_b32 s{sONE+1}, 0x3f803f80")
    A(f"s_mov_b32 s{sC+1}, s{sC}")
    A(f"s_lshr_b32 s{sWARM}, s{S_WAVE}, 1")
    A(f"s_mul_i32 s{sWARM}, s{sWARM}, {WS_V - WS_K}")
    A(f"s_and_b32 s3, s{S_WAVE}, 1")
    A(f"s_lshl_b32 s3, s3, 12")
    A(f"s_add_u32 s{sWARM}, s{sWARM}, s3")

def load_weights(A, fail, nrb):
    A.c("chain: weight load")
    ln, vQ, vO, vO4, vTR, vTR4, t1, t2, t3 = 14, 15, 16, 17, 18, 19, 20, 21, 22
    CV = 24
    A(f"v_lshrrev_b32 v{t1}, 4, v{ln}")
    A(f"v_lshlrev_b32 v{t2}, 2, v{t1}")
    A(f"v_xor_b32 v{t2}, v{t2}, v{ln}")
    A(f"v_and_b32 v{t2}, 15, v{t2}")
    A(f"v_lshlrev_b32 v{t2}, 4, v{t2}")
    A(f"v_and_b32 v{t3}, 1, v{t1}")
    A(f"v_lshlrev_b32 v{t3}, 1, v{t3}")
    A(f"v_lshrrev_b32 v{vQ}, 1, v{t1}")
    A(f"v_add_u32 v{t3}, v{t3}, v{vQ}")
    A(f"v_lshl_add_u32 v{vQ}, v{t3}, 13, v{t2}")
    A(f"v_lshrrev_b32 v{t3}, 1, v{t1}")
    A(f"v_lshlrev_b32 v{t3}, 4, v{t3}")
    A(f"v_and_b32 v{vO}, 1, v{t1}")
    A(f"v_add_u32 v{t3}, v{t3}, v{vO}")
    A(f"v_mul_u32_u24 v{t3}, 1152, v{t3}")
    A(f"v_add_u32 v{vO}, v{t3}, v{t2}")
    A(f"v_lshrrev_b32 v{t1}, 3, v{ln}")
    A(f"v_bfe_u32 v{t2}, v{t1}, 1, 1")
    A(f"v_lshlrev_b32 v{t3}, 4, v{t2}")
    A(f"v_lshlrev_b32 v{t2}, 2, v{t2}")
    A(f"v_xor_b32 v{t2}, v{t2}, v{ln}")
    A(f"v_and_b32 v{t2}, 7, v{t2}")
    A(f"v_lshlrev_b32 v{t2}, 4, v{t2}")
    A(f"v_and_b32 v{vO4}, 1, v{t1}")
    A(f"v_add_u32 v{t3}, v{t3}, v{vO4}")
    A(f"v_bfe_u32 v{vO4}, v{t1}, 2, 1")
    A(f"v_lshl_add_u32 v{t3}, v{vO4}, 1, v{t3}")
    A(f"v_mul_u32_u24 v{t3}, 1152, v{t3}")
    A(f"v_add_u32 v{vO4}, v{t3}, v{t2}")
    A(f"v_bfe_u32 v{t1}, v{ln}, 4, 1")
    A(f"v_bfe_u32 v{t2}, v{ln}, 2, 1")
    A(f"v_lshl_add_u32 v{t1}, v{t1}, 1, v{t2}")
    A(f"v_bfe_u32 v{t2}, v{ln}, 5, 1")
    A(f"v_lshl_add_u32 v{t2}, v{t2}, 3, v{t1}")
    A(f"v_bfe_u32 v{t3}, v{ln}, 3, 1")
    A(f"v_lshlrev_b32 v{t3}, 5, v{t3}")
    A(f"v_and_b32 v{vTR}, 3, v{ln}")
    A(f"v_lshl_add_u32 v{t3}, v{vTR}, 3, v{t3}")
    A(f"v_xor_b32 v{vTR}, s{S_WAVE}, v{t1}")
    A(f"v_lshl_add_u32 v{vTR}, v{vTR}, 6, v{t3}")
    A(f"v_lshl_add_u32 v{vTR}, v{t2}, 8, v{vTR}")
    A(f"v_add_u32 v{vTR}, {L_RES}, v{vTR}")
    A(f"v_lshrrev_b32 v{t1}, 1, v{t1}")
    A(f"s_and_b32 s3, s{S_WAVE}, 1")
    A(f"v_xor_b32 v{vTR4}, s3, v{t1}")
    A(f"v_lshl_add_u32 v{vTR4}, v{vTR4}, 6, v{t3}")
    A(f"v_lshl_add_u32 v{vTR4}, v{t2}, 7, v{vTR4}")
    A(f"v_add_u32 v{vTR4}, {L_RES + 15*8192}, v{vTR4}")
    vTRb = [vTR, 10, 11]
    A(f"v_add_u32 v10, {7*8192}, v{vTR}")
    A(f"v_add_u32 v11, {14*8192}, v{vTR}")
    vRb = [vRES, 12, 13]
    A(f"v_add_u32 v12, {7*8192}, v{vRES}")
    A(f"v_add_u32 v13, {14*8192}, v{vRES}")
    A(f"s_lshl_b32 s{sQKVB}, s{sH}, 8")
    A(f"s_lshl_b32 s3, s{S_WAVE}, 16")
    A(f"s_add_u32 s{sQKVB}, s{sQKVB}, s3")
    A(f"s_mul_i32 s{sWOB}, s{sH}, {128*1152}")
    A(f"s_mul_i32 s3, s{S_WAVE}, {4*1152}")
    A(f"s_add_u32 s{sWOB}, s{sWOB}, s3")
    A(f"s_lshl_b32 s{sT+1}, s{S_WAVE}, 11")
    A(f"s_add_u32 s{sT+1}, s{sT+1}, {L_RES}")
    A(f"s_lshl_b32 s{sT+2}, s{S_WAVE}, 10")
    A(f"s_add_u32 s{sT+2}, s{sT+2}, {L_RES + 15*8192}")

    regu = sorted([u for u in LOC if LOC[u][0] == 'r'], key=lambda u: LOC[u][1])
    resu = sorted([u for u in LOC if LOC[u][0] == 'l' and not (u[0] == 'o' and u[1] == 4)], key=lambda u: LOC[u][1])
    NR = 15
    seq = regu + resu
    first = (-len(regu)) % NR
    slot = lambda i: (first + i) % NR
    def issue(i):
        u = seq[i]
        for q in range(2):
            if u[0] == 'o':
                A(f"s_add_u32 s{sT}, s{sWOB}, {(u[2]*32 + 2*q)*1152 + u[1]*256}")
                d, vo = S_WO, vO
            else:
                A(f"s_add_u32 s{sT}, s{sQKVB}, {(u[1]*32 + 4*q)*8192}")
                d, vo = {'q': S_WQ, 'k': S_WK, 'v': S_WV}[u[0]], vQ
            A(f"s_add_u32 m0, s{sT+1}, {slot(i)*8192 + q*1024}")
            A("s_nop 0")
            A(f"buffer_load_dwordx4 v{vo}, s[{d}:{d+3}], s{sT} offen lds")
    def trread(dst, sl):
        for u4 in range(4):
            A(f"ds_read_b64_tr_b16 {r(dst+2*u4,2)}, v{vTRb[sl//7]} offset:{(sl%7)*8192 + 4096*(u4>>1) + 1024*(u4&1)}")
    order = []
    def issue_blk(i):
        issue(i); order.extend([i, i])
    vWR = 23
    A(f"v_and_b32 v{vWR}, 0xf0, v{vL16}")
    A(f"v_lshlrev_b32 v{vWR}, 3, v{vWR}")
    A(f"v_lshrrev_b32 v{t1}, 8, v{vL16}")
    A(f"v_min_u32 v{t1}, 1, v{t1}")
    A(f"v_lshl_or_b32 v{vWR}, v{t1}, 30, v{vWR}")
    A(f"s_lshl_b32 s{sT+3}, s{sH}, 13")
    A(f"s_lshl_b32 s3, s{S_WAVE}, 11")
    A(f"s_add_u32 s{sT+3}, s{sT+3}, s3")
    warmed = [NR]
    def warm_to(n):
        while warmed[0] < min(n, len(seq)):
            u = seq[warmed[0]]; warmed[0] += 1
            if u[0] != 'o' and PAR['wd']:
                d = {'q': S_WQ, 'k': S_WK, 'v': S_WV}[u[0]]
                A(f"s_mov_b32 m0, {L_JUNK}")
                A(f"s_add_u32 s{sT}, s{sT+3}, {u[1]*32*8192}")
                A(f"buffer_load_dword v{vWR}, s[{d}:{d+3}], s{sT} offen lds")
                order.append(None)
    issued = 0
    while issued < PAR['fill']:
        issue_blk(issued); issued += 1
    G = PAR['G']
    i = 0
    gi = 0
    pending_w = []
    HB = 40
    GA, GB = PAR['ga'], 28
    while i < len(seq):
        grp = list(range(i, min(i + G, len(seq))))
        if i < len(regu) < grp[-1] + 1:
            grp = list(range(i, len(regu)))
        last = max(p for p, b in enumerate(order) if b == grp[-1])
        assert len(order) - 1 - last < 60
        A(f"s_waitcnt vmcnt({len(order) - 1 - last})")
        if LDST and gi in LDST:
            A(f"s_memrealtime s[{LDST[gi]}:{LDST[gi]+1}]")
        if gi == 0:
            init_done(A)
        if gi == 19:
            assert m0pos < last
            mem0_write(A)
        if gi == GB:
            assert pollpos < last
            lr, lb = A.newlabel("notyet"), A.newlabel("ready")
            if AFTER:
                A("s_memrealtime s[98:99]")
                A("s_mov_b32 s100, 0")
            eval_counts(A, 41, lr, True, 80)
            A(f"v_cmp_gt_u32 vcc, {0x1c0 if nrb else 0}, v43")
            A(f"s_cbranch_vccz {lb}")
            A.label(lr)
            A("s_mov_b32 s100, 1")
            read_counts(A, fail, 40, True, 80)
            if nrb:
                wait_kv(A, fail, nrb, 42)
            A.label(lb)
        A("s_barrier")
        if gi == 10:
            l = A.newlabel("hb")
            A(f"s_cmp_lt_u32 s{S_WAVE}, 2")
            A(f"s_cbranch_scc1 {l}")
            for k in range(4):
                A(f"ds_write_b128 v13, {v(HB+8*k,4)} offset:{4096 + k*4096}")
                A(f"ds_write_b128 v13, {v(HB+8*k+4,4)} offset:{4096 + k*4096 + 1024}")
            A.label(l)
        for t in pending_w:
            A(t)
        pending_w = []
        lim = issued + PAR['step']
        while issued < min(len(seq), i + NR, lim):
            issue_blk(issued); issued += 1
        if gi == 0:
            for k in range(4):
                A(f"s_add_u32 s{sT}, s{sWOB}, {k*32*1152 + 1024}")
                A(f"s_add_u32 m0, s{sT+2}, {k*4096}")
                A("s_nop 0")
                A(f"buffer_load_dwordx4 v{vO4}, s[{S_WO}:{S_WO+3}], s{sT} offen lds")
            order.extend([None] * 4); hbpos = len(order) - 1
        if gi == 11:
            mem0_issue(A)
            order.extend([None] * 18); m0pos = len(order) - 1
        warm_to(issued + PAR['wd'])
        if gi == GA:
            A(f"v_lshrrev_b32 v40, 2, v{vL16}")
            A(f"global_load_dword v41, v40, s[{S_DBG}:{S_DBG+1}] sc1")
            kv_addr(A, nrb, 42)
            A(f"buffer_load_dword v43, v42, {BUF}, s{sT} offen sc1")
            order.extend([None, None]); pollpos = len(order) - 1
        if gi == GB:
            assert issued == len(seq)
            vx_addr(A); kx_addr(A, tKX, 71)
            A(f"s_lshl_b32 s3, s{S_WAVE}, 11")
            for xt in range(2):
                A(f"s_add_u32 m0, s3, {L_KX + xt*1024}")
                A(f"s_add_u32 s{sT}, s3, {WS_K + xt*128}")
                A(f"s_add_u32 s{sT}, s{sT}, s{sKVOFF}")
                A(f"buffer_load_dwordx4 v{tKX}, {BUF}, s{sT} offen sc1 lds")
            vx_load(A)
            A(f"v_lshlrev_b32 v{tWA}, 2, v{vL16}")
            A(f"s_add_u32 s{sT+2}, s{sKVOFF}, {32*8192}")
            warm(A, sT + 2, tWA)
            order.extend([None] * 5)
        if gi == 9:
            assert hbpos < last
            for k in range(4):
                for u4 in range(4):
                    A(f"ds_read_b64_tr_b16 {v(HB+8*k+2*u4,2)}, v{vTR4} offset:{k*4096 + 2048*(u4>>1) + 512*(u4&1)}")
            A("s_waitcnt lgkmcnt(0)")
        for j, b in enumerate(grp):
            if b < len(regu):
                trread(wreg(LOC[seq[b]][1]), slot(b))
            else:
                assert slot(b) * 8192 == LOC[seq[b]][1]
                cv = CV + 8 * j
                if j == 0:
                    A("s_waitcnt lgkmcnt(0)")
                trread(cv, slot(b))
                sl = slot(b)
                pending_w += [f"ds_write_b128 v{vRb[sl//7]}, {v(cv,4)} offset:{(sl%7)*8192}",
                              f"ds_write_b128 v{vRb[sl//7]}, {v(cv+4,4)} offset:{(sl%7)*8192+1024}"]
        A("s_waitcnt lgkmcnt(0)")
        i = grp[-1] + 1
        gi += 1
    A("s_barrier")
    for t in pending_w:
        A(t)
    A("s_waitcnt lgkmcnt(0)")

def mem0_issue(A):
    A.c("chain: mem0 -> LDS fragment image")
    q, t1, ad, D = 62, 63, 64, 44
    A(f"s_lshl_b32 s3, s{S_WAVE}, 6")
    A(f"v_lshrrev_b32 v{q}, 4, v{vL16}")
    A(f"v_add_u32 v{q}, s3, v{q}")
    A(f"v_bfe_u32 v{t1}, v{q}, 2, 3")
    A(f"v_mul_u32_u24 v{ad}, 1152, v{t1}")
    A(f"v_lshrrev_b32 v{t1}, 5, v{q}")
    A(f"v_lshl_add_u32 v{ad}, v{t1}, 4, v{ad}")
    A(f"v_and_b32 v{t1}, 1, v{q}")
    A(f"v_lshl_add_u32 v{ad}, v{t1}, 3, v{ad}")
    A(f"v_bfe_u32 v{t1}, v{q}, 1, 1")
    A(f"v_lshl_add_u32 v{ad}, v{t1}, 1, v{ad}")
    for it in range(9):
        A(f"buffer_load_ushort v{D+2*it}, v{ad}, s[{S_TMPD}:{S_TMPD+3}], 0 offen offset:{it*128}")
        A(f"buffer_load_ushort v{D+2*it+1}, v{ad}, s[{S_TMPD}:{S_TMPD+3}], 0 offen offset:{it*128+4}")
    A(f"v_lshlrev_b32 v{q}, 2, v{q}")

def mem0_write(A):
    q, D = 62, 44
    for it in range(9):
        A(f"v_lshl_or_b32 v{D+2*it}, v{D+2*it+1}, 16, v{D+2*it}")
        A(f"ds_write_b32 v{q}, v{D+2*it} offset:{L_M + it*1024}")

AF, ST = 10, 26
QACC, KACC, VACC, VX, PUB = 42, 46, 50, 54, 62
tVX, tFL, tFV, tWA, tKX = 66, 67, 68, 69, 70
XPK = 62
XF, KXF = 10, 26
SX0, SX1, SM = 42, 46, 62
VAF = 66
PAR = dict(rdelay=10, mdelay=10, kx=0, x2=20, m2=0, sp=10, pa=8, pb=8, ga=20, wd=0, G=2, fill=6, step=4)
sMK = 24
V_IN_QK = 6

def warm(A, seg_off_sgpr, va):
    A(f"s_add_u32 s{sT}, s{seg_off_sgpr}, s{sWARM}")
    A(f"s_mov_b32 m0, {L_JUNK}")
    A("s_nop 0")
    A(f"buffer_load_dword v{va}, {BUF}, s{sT} offen sc1 lds")

def pub_read(A, cls):
    if cls == 0:
        A(f"v_bfe_u32 v{vT}, v{vL16}, 5, 1")
        A(f"v_mul_i32_i24 v{vT}, {256 - 2*XP}, v{vT}")
        A(f"s_lshl_b32 s3, s{S_WAVE}, 9")
        A(f"v_add3_u32 v{vT}, v{vT}, v{vXR}, s3")
        A(f"ds_read_b64_tr_b16 {v(PUB,2)}, v{vT} offset:{2*XP}")
        A(f"ds_read_b64_tr_b16 {v(PUB+2,2)}, v{vT} offset:{2*XP+64}")
    else:
        A(f"ds_read_b128 {v(PUB,4)}, v{vL16} offset:{L_VM + (cls-1)*XP}")

def kx_addr(A, t, t2):
    A(f"v_bfe_u32 v{t2}, v{vL16}, 8, 2")
    A(f"v_lshlrev_b32 v{t2}, 9, v{t2}")
    A(f"v_and_b32 v{t}, 0x70, v{vL16}")
    A(f"v_add_u32 v{t}, v{t}, v{t2}")
    A(f"v_and_b32 v{t2}, 0x80, v{vL16}")
    A(f"v_lshl_add_u32 v{t}, v{t2}, 1, v{t}")

def kx_dma(A, w, t, ahead):
    for xt in range(2):
        A(f"s_mov_b32 m0, {L_KX + (2*w+xt)*1024}")
        A(f"s_add_u32 s{sT}, s{sKVOFF}, {WS_K + ahead*32*8192 + w*2048 + xt*128}")
        A(f"buffer_load_dwordx4 v{t}, {BUF}, s{sT} offen sc1 lds")

def vx_load(A):
    A(f"s_add_u32 s{sT}, s{sKVOFF}, {WS_V}")
    A(f"buffer_load_dwordx4 {v(VX,4)}, v{tVX}, {BUF}, s{sT} offen sc1")
    A(f"buffer_load_dwordx4 {v(VX+4,4)}, v{tVX}, {BUF}, s{sT} offen offset:256 sc1")

def vx_addr(A):
    A(f"v_and_b32 v{tVX}, 0xf0, v{vL16}")
    A(f"v_bfe_u32 v71, v{vL16}, 8, 2")
    A(f"v_lshl_add_u32 v71, v71, 9, s{sKXO}")
    A(f"v_add_u32 v{tVX}, v{tVX}, v71")

def st_preload(A):
    for k in range(2):
        o = LOC[('k', QK_LDS_KAPPA[k])][1]
        A(f"ds_read_b128 {v(ST+8*k,4)}, v{vRES} offset:{o}")
        A(f"ds_read_b128 {v(ST+8*k+4,4)}, v{vRES} offset:{o+1024}")

def pre_b1(A, cls):
    pub_read(A, cls)
    for i in range(6):
        A(f"v_mov_b64 {v(QACC+2*i,2)}, 0")
    if 'kv1' not in OPT:
        vx_addr(A)
    A(f"v_lshlrev_b32 v{tWA}, 2, v{vL16}")
    A(f"v_add_u32 v{vT}, {7*8192}, v{vRES}")
    if cls == 2 and 'kv1' not in OPT:
        kx_addr(A, tKX, 71)
    if cls == 2:
        A(f"v_min_u32 v{tFL}, 1, v{vL16}")
        A(f"v_lshlrev_b32 v{tFL}, 30, v{tFL}")
        A(f"s_sub_i32 s3, s{sSTEP}, 1")
        A(f"v_mov_b32 v{tFV}, s3")

def delay(A, n):
    while n > 0:
        k = min(n, 4)
        A(f"s_nop {4*k-1}")
        n -= k

def smf(acc, af, w):
    return f"v_smfmac_f32_16x16x64_bf16 {v(acc,4)}, {v(af,4)}, {r(w,8)}, v{vIDX}"

STAMPS = {'al': (1, 2, 4, 6, 7), 'wo': (1, 2, 6, 7), 'sm': (1, 5, 6, 7)}
def stamp(A, prof, i, mode=None):
    cur = [m for m in STAMPS if m in OPT]
    taken = STAMPS[cur[0]] if cur else ()
    if mode is True:
        mode = 'al'
    if prof and ((mode is None and i not in taken) or (mode in cur and i in taken)):
        A(f"{'s_memrealtime' if (mode == 'al' and i == 1) else 's_memtime'} s[{80+2*i}:{81+2*i}]")

def mread(L, dst, k):
    return L.op(f"ds_read_b128 {v(dst,4)}, v{vMA} offset:{L_M + k*512}")

def vstep(A, L, tokA, kv):
    tok, reg = tokA[('v', kv)]
    L.wait(tok)
    A(smf(VACC, reg, wreg(LOC[('v', kv)][1])))

def vload(L, tokA, kv, reg):
    tokA[('v', kv)] = (mread(L, reg, kv), reg)

def qkv_stage(A, L, w, prof, last):
    tokA = {}
    for k in range(3):
        tokA[k] = mread(L, AF + 4 * (k % 4), k)
    nslow = 0
    if 'vxq' in OPT and not last:
        vx_load(A)
    mem = {}
    at = (lambda k: k) if 'vxq' in OPT else (lambda k: -1)
    mem.setdefault(at(0), []).append(f"buffer_store_dwordx4 {v(PUB,4)}, v{vL16}, {BUF}, s{sPUB} offen sc1"); nslow += 1
    if not last:
        mem.setdefault(at(1), []).extend([f"s_add_u32 s{sT+1}, s{sKVOFF}, {2*32*8192}", f"s_min_u32 s{sT+1}, s{sT+1}, {63*32*8192}",
                  f"s_mov_b32 m0, {L_JUNK}", f"s_add_u32 s{sT}, s{sT+1}, s{sWARM}",
                  f"buffer_load_dword v{tWA}, {BUF}, s{sT} offen sc1 lds"])
        nslow += 1
    if w == 3:
        mem.setdefault(at(2), []).append(f"buffer_store_dword v{tFV}, v{tFL}, {BUF}, s{sFLAG} offen sc1"); nslow += 1
    for t in mem.pop(-1, []):
        A(t)
    t0 = 0
    if 'ms2' in OPT and w < 3:
        A(f"s_waitcnt vmcnt({(0 if last else 2) if 'vxq' in OPT else nslow})")
        for j in range(2):
            o = LOC[('k', QK_LDS_KAPPA[j])][1]
            L.op(f"ds_read_b128 {v(ST+8*j,4)}, v{vRES} offset:{o}")
            t0 = L.op(f"ds_read_b128 {v(ST+8*j+4,4)}, v{vRES} offset:{o+1024}")
    tokU = {QK_LDS_KAPPA[0]: t0, QK_LDS_KAPPA[1]: t0}
    pend = {}
    for j in range(2, len(QK_LDS_KAPPA)):
        o = LOC[('k', QK_LDS_KAPPA[j])][1]
        base, o = (vRES, o) if o < 7 * 8192 else (vT, o - 7 * 8192)
        at = (2 if 'vxq' in OPT else 0) if j == 2 else QK_LDS_KAPPA[j - 3]
        pend[at] = (QK_LDS_KAPPA[j], f"ds_read_b128 {v(STB[j%3],4)}, v{base} offset:{o}", f"ds_read_b128 {v(STB[j%3]+4,4)}, v{base} offset:{o+1024}")
    second = None
    for k in range(18):
        L.wait(tokA[k])
        if k >= V_IN_QK:
            A(smf(VACC, AF + 4 * (k % 4), wreg(LOC[('v', k)][1])))
            if second:
                tokU[second[0]] = L.op(second[1]); second = None
        A(smf(QACC, AF + 4 * (k % 4), wreg(LOC[('q', k)][1])))
        if second:
            tokU[second[0]] = L.op(second[1]); second = None
        if k + 3 < 18:
            tokA[k + 3] = mread(L, AF + 4 * ((k + 3) % 4), k + 3)
        else:
            vload(L, tokA, k - 15, AF + 4 * ((k + 3) % 4))
        if LOC[('k', k)][0] == 'r':
            A(smf(KACC, AF + 4 * (k % 4), wreg(LOC[('k', k)][1])))
        else:
            L.wait(tokU[k])
            A(smf(KACC, AF + 4 * (k % 4), STB[QK_LDS_KAPPA.index(k) % 3]))
        for t in mem.get(k, []):
            A(t)
        if k in pend:
            L.op(pend[k][1]); second = (pend[k][0], pend[k][2])
        if k >= 16 and not last:
            for kp in ((2, 3) if k == 16 else (0, 1)):
                tokA[('kx', kp)] = L.op(f"ds_read_b128 {v(KXF+4*kp,4)}, v{vL16} offset:{L_KX + 2*kp*1024}")
    stamp(A, prof, 1)
    vload(L, tokA, 3, AF + 4)
    vstep(A, L, tokA, 0)
    A("s_nop 1")
    vstep(A, L, tokA, 1)
    A("s_nop 2")
    A(f"v_cvt_pk_bf16_f32 v{XPK}, v{QACC}, v{QACC+1}")
    A(f"v_cvt_pk_bf16_f32 v{XPK+1}, v{QACC+2}, v{QACC+3}")
    L.op(f"ds_write_b64 v{vXW}, {v(XPK,2)}")
    A(f"v_cvt_pk_bf16_f32 v{XPK+2}, v{KACC}, v{KACC+1}")
    A(f"v_cvt_pk_bf16_f32 v{XPK+3}, v{KACC+2}, v{KACC+3}")
    tw = L.op(f"ds_write_b64 v{vXW}, {v(XPK+2,2)} offset:{2*XP}")
    vload(L, tokA, 4, QACC)
    vload(L, tokA, 5, KACC)
    vstep(A, L, tokA, 2)
    vstep(A, L, tokA, 3)
    L.wait(tw)
    A("s_barrier")
    return tokA, nslow

def step(A, w, tag, fail, cold, prof=False, stf=""):
    cls = max(w - 1, 0)
    L = LgkmTracker(A)
    A("s_waitcnt lgkmcnt(0)")
    A("s_barrier")
    stamp(A, prof, 0)
    stamp(A, prof, 1, True)
    tokA, nslow = qkv_stage(A, L, w, prof, False)
    stamp(A, prof, 2)
    tx = {}
    def xread(kp):
        L.op(f"ds_read_b64_tr_b16 {v(XF+4*kp,2)}, v{vXR} offset:{kp*256}")
        tx[kp] = L.op(f"ds_read_b64_tr_b16 {v(XF+4*kp+2,2)}, v{vXR} offset:{kp*256+64}")
    xread(0); xread(1)
    vstep(A, L, tokA, 4)
    xread(2); xread(3)
    vstep(A, L, tokA, 5)
    m1, m2, m3, mt = 70, 71, 20, 21
    ONES, PX, PM, LS, O0, VQ, O1 = 22, 26, 32, 10, 14, 66, 36
    VP = VQ + 2
    SC = [SX0 + i for i in range(8)] + [SM + i for i in range(4)]
    mf = lambda d, a_, b_, c: A(f"v_mfma_f32_16x16x32_bf16 {v(d,4)}, {v(a_,4)}, {v(b_,4)}, {c}")
    for kp in range(4):
        L.wait(max(tx[kp], tokA[('kx', kp)]))
        mf(SX0, KXF + 4 * kp, XF + 4 * kp, "0" if kp == 0 else v(SX0, 4))
        tokA[('kx1', kp)] = L.op(f"ds_read_b128 {v(KXF+4*kp,4)}, v{vL16} offset:{L_KX + (2*kp+1)*1024}")
        if kp < 2:
            A(f"v_mov_b32 v{SM+2*kp}, v{vMASK}")
            A(f"v_mov_b32 v{SM+2*kp+1}, v{vMASK}")
    fill = {0: [f"v_cvt_pk_bf16_f32 v{VP}, v{VACC}, v{VACC+1}", f"v_cvt_pk_bf16_f32 v{VP+1}, v{VACC+2}, v{VACC+3}"],
            1: [None, f"v_mov_b64 {v(VQ,2)}, {v(VP,2)}"],
            2: ["s_nop 0", f"v_max3_f32 v{m1}, v{SX0}, v{SX0+1}, v{SX0+2}"],
            3: [f"v_permlane32_swap_b32 v{VQ}, v{VP}", f"v_permlane32_swap_b32 v{VQ+1}, v{VP+1}"]}
    for kp in range(4):
        mf(SM, XF + 4 * kp, XF + 4 * kp, v(SM, 4))
        for t in fill[kp]:
            if t is None:
                L.op(f"ds_write_b64 v{vXW}, {v(VP,2)} offset:{4*XP}")
            else:
                A(t)
    for kp in range(4):
        L.wait(tokA[('kx1', kp)])
        mf(SX1, KXF + 4 * kp, XF + 4 * kp, "0" if kp == 0 else v(SX1, 4))
        if kp < 2:
            A("s_nop 1")
        if kp == 2:
            A("s_nop 0")
            A(f"v_max3_f32 v{m1}, v{m1}, v{SX0+3}, v{SM}")
    A(f"v_max3_f32 v{m2}, v{SM+1}, v{SM+2}, v{SM+3}")
    A(f"v_mov_b64 {v(30,2)}, 0")
    A(f"v_mov_b64 {v(34,2)}, 0")
    A(f"v_mov_b64 {v(ONES,2)}, s[{sONE}:{sONE+1}]")
    A(f"v_mov_b64 {v(ONES+2,2)}, s[{sONE}:{sONE+1}]")
    A(f"v_max_f32 v{m1}, v{m1}, v{m2}")
    A("s_nop 1")
    stamp(A, prof, 1, 'sm')
    A(f"v_max3_f32 v{m1}, v{m1}, v{SX1}, v{SX1+1}")
    A(f"v_max3_f32 v{mt}, v{m1}, v{SX1+2}, v{SX1+3}")
    A(f"v_max3_f32 v{m1}, v{m1}, v{SX1+2}, v{SX1+3}")
    A("s_nop 1")
    A(f"v_permlane16_swap_b32 v{m1}, v{mt}")
    A(f"v_max_f32 v{m2}, v{m1}, v{mt}")
    A(f"v_max_f32 v{m1}, v{m1}, v{mt}")
    A("s_nop 1")
    A(f"v_permlane32_swap_b32 v{m1}, v{m2}")
    A(f"v_max_f32 v{m1}, v{m1}, v{m2}")
    A(f"v_mul_f32 v{m1}, s{sC}, v{m1}")
    for i in range(6):
        A(f"v_pk_fma_f32 {v(SC[2*i],2)}, {v(SC[2*i],2)}, s[{sC}:{sC+1}], {v(m1,2)} op_sel_hi:[1,0,0] neg_lo:[0,0,1] neg_hi:[0,0,1]")
    stamp(A, prof, 5, 'sm')
    for i in range(8):
        A(f"v_exp_f32 v{SC[i]}, v{SC[i]}")
    A(f"v_exp_f32 v{SC[8]}, v{SC[8]}")
    for i in range(4):
        A(f"v_cvt_pk_bf16_f32 v{PX+i}, v{SC[2*i]}, v{SC[2*i+1]}")
    A(f"v_exp_f32 v{SC[9]}, v{SC[9]}")
    A(f"s_waitcnt vmcnt({nslow})")
    A(f"v_mfma_f32_16x16x32_bf16 {v(LS,4)}, {v(ONES,4)}, {v(PX,4)}, 0")
    A(f"v_exp_f32 v{SC[10]}, v{SC[10]}")
    A(f"v_mfma_f32_16x16x32_bf16 {v(O0,4)}, {v(VX,4)}, {v(PX,4)}, 0")
    A(f"v_exp_f32 v{SC[11]}, v{SC[11]}")
    A(f"v_mfma_f32_16x16x32_bf16 {v(O1,4)}, {v(VX+4,4)}, {v(PX,4)}, 0")
    A(f"v_cvt_pk_bf16_f32 v{PM}, v{SM}, v{SM+1}")
    A(f"v_cvt_pk_bf16_f32 v{PM+1}, v{SM+2}, v{SM+3}")
    A("s_nop 1")
    A(f"v_mfma_f32_16x16x32_bf16 {v(LS,4)}, {v(ONES,4)}, {v(PM,4)}, {v(LS,4)}")
    A(f"v_mfma_f32_16x16x32_bf16 {v(O0,4)}, {v(VQ,4)}, {v(PM,4)}, {v(O0,4)}")
    A(f"v_mfma_f32_16x16x32_bf16 {v(O1,4)}, {v(VQ,4)}, {v(PM-2,4)}, {v(O1,4)}")
    stamp(A, prof, 6, 'sm')
    OACC, OF, WST, OPK = 52, 10, 26, 22
    nr = 4 if cls == 0 else 5
    lu = [('o', rd, k) for rd in range(nr) for k in range(4) if (rd, k) not in WO_REG]
    tu = {}
    bufs = {0: 26, 1: 34, 2: 42, 3: 26, 4: 34, 5: 42, 6: 52}
    def fetch(i):
        o = LOC[lu[i]][1] - WO_BASE
        L.op(f"ds_read_b128 {v(bufs[i],4)}, v{vT} offset:{o}")
        tu[i] = L.op(f"ds_read_b128 {v(bufs[i]+4,4)}, v{vT} offset:{o+1024}")
    A(f"v_add_u32 v{vT}, {WO_BASE}, v{vRES}")
    for i in range(52, 60, 2):
        A(f"v_mov_b64 {v(i,2)}, 0")
    A("s_nop 0")
    m1 = 18
    A(f"v_rcp_f32 v{m1}, v{LS}")
    A(f"v_mov_b64 {v(60,2)}, 0")
    for i in range(2):
        A(f"v_pk_mul_f32 {v(O0+2*i,2)}, {v(O0+2*i,2)}, {v(m1,2)} op_sel_hi:[1,0]")
    for i in range(2):
        A(f"v_pk_mul_f32 {v(O1+2*i,2)}, {v(O1+2*i,2)}, {v(m1,2)} op_sel_hi:[1,0]")
    A(f"v_cvt_pk_bf16_f32 v{OPK}, v{O0}, v{O0+1}")
    A(f"v_cvt_pk_bf16_f32 v{OPK+1}, v{O0+2}, v{O0+3}")
    A(f"v_cvt_pk_bf16_f32 v{OPK+2}, v{O1}, v{O1+1}")
    A(f"v_cvt_pk_bf16_f32 v{OPK+3}, v{O1+2}, v{O1+3}")
    tw = L.op(f"ds_write_b128 v{vOW}, {v(OPK,4)}")
    stamp(A, prof, 7, 'sm')
    A(f"s_add_u32 s{sSTEP}, s{sSTEP}, 1")
    for i in range(62, 52 + 4 * nr, 2):
        A(f"v_mov_b64 {v(i,2)}, 0")
    L.wait(tw)
    A("s_barrier")
    stamp(A, prof, 4)
    to = {}
    for k in range(4):
        to[k] = L.op(f"ds_read_b128 {v(OF+4*k,4)}, v{vMA} offset:{L_O + k*512}")
    tagop = (lambda x: f"v_or_b32 v{x}, 1, v{x}") if tag else (lambda x: f"v_and_b32 v{x}, -2, v{x}")
    def emit_out(rd):
        p = OACC + 4 * rd
        return [f"v_cvt_pk_bf16_f32 v{p}, v{p}, v{p+1}", f"v_cvt_pk_bf16_f32 v{p+1}, v{p+2}, v{p+3}", tagop(p),
                f"buffer_store_dwordx2 {v(p,2)}, v{vPST}, {BUF}, s{sPST+rd} offen {stf}"]
    after = {0: 3, 1: 4, 2: 5}
    early = {1: 0, 3: 1, 5: 2, 15: 6}
    sched = {}
    for rd in range(nr - 1):
        o = emit_out(rd)
        b = 4 * rd + 3
        so = [3, 4, 1, 2][w] if 'nostag' not in OPT else 0
        sched.setdefault(b + 3, []).append(o[0]); sched.setdefault(b + 4, []).append(o[1])
        sched.setdefault(b + 5, []).append(o[2]); sched.setdefault(b + 5 + so, []).append(o[3])
    tail = []
    for x in sorted(sched):
        if x >= 4 * nr:
            tail += sched[x]
    for rd in range(nr):
        for k in range(4):
            slot = 4 * rd + k
            if rd == 0:
                L.wait(to[k])
            u = ('o', rd, k)
            fill = 0
            if LOC[u][0] == 'r':
                A(smf(OACC + 4 * rd, OF + 4 * k, wreg(LOC[u][1])))
                if early.get(slot, 99) < len(lu):
                    fetch(early[slot]); fill = 2
            else:
                i = lu.index(u)
                L.wait(tu[i])
                A(smf(OACC + 4 * rd, OF + 4 * k, bufs[i]))
                if after.get(i, 99) < len(lu):
                    fetch(after[i]); fill = 2
            fill += len(sched.get(slot, []))
            if rd and k < 2 and fill < 3:
                A(f"s_nop {2 - fill}")
            for t in sorted(sched.get(slot, []), key=lambda x: (x.startswith("v_"), 0) if so else (0, 0)):
                if not ('nost' in OPT and t.startswith("buffer_store") and rd < 9 and False):
                    A(t)
            if slot in (0, 3, 7, 11):
                stamp(A, prof, {0: 1, 3: 2, 7: 6, 11: 7}[slot], 'wo')
    for t in tail:
        A(t)
    A(f"s_add_u32 s{sKVOFF}, s{sKVOFF}, {32*8192}")
    A(f"s_add_u32 s{sPUB}, s{sPUB}, {32*4096}")
    A(f"s_mov_b32 s{sCNT}, 0")
    A("s_nop 1")
    for x in emit_out(nr - 1): A(x)
    stamp(A, prof, 5)
    chk = "0x80" if tag else "0xfe"
    def tagcheck(regs, n, ck, step_):
        out, first = [], True
        for i in range(n):
            d = [regs + 4 * i + j for j in range(0, 4, step_)]
            ops = []
            if first and step_ == 1:
                ops.append(f"v_bitop3_b32 v{ck}, v{d[0]}, v{d[1]}, v{d[2]} bitop3:{chk}")
                ops.append(f"v_bitop3_b32 v{ck}, v{ck}, v{d[3]}, v{d[3]} bitop3:{chk}")
            elif first:
                ops.append(f"v_bitop3_b32 v{ck}, v{d[0]}, v{d[1]}, v{d[1]} bitop3:{chk}")
            else:
                for j in range(0, len(d), 2):
                    ops.append(f"v_bitop3_b32 v{ck}, v{ck}, v{d[j]}, v{d[j+1]} bitop3:{chk}")
            first = False
            out.append(ops)
        out[-1] += [f"v_and_b32 v{ck}, 1, v{ck}", f"v_cmp_ne_u32 vcc, {tag}, v{ck}"]
        return out
    def gather(n, regs, soff, ck, use, shadow, cnt, use_first, extra=0):
        def loads():
            for i in range(n):
                A(f"buffer_load_dwordx4 {v(regs+4*i,4)}, v{vL16}, {BUF}, s{soff} offen offset:{i*1024} sc1")
        lp, lr = A.newlabel("chk"), A.newlabel("again")
        stamp(A, prof, 2 if n == 4 else 4, True)
        loads()
        shadow()
        A.label(lp)
        sl = tagcheck(regs, n, ck, 2 if n == 4 else 1)
        for i in range(n):
            A(f"s_waitcnt vmcnt({n-1-i+extra})")
            if use_first: use(i)
            for t in sl[i]: A(t)
        A(f"s_cbranch_vccnz {lr}")
        if n == 3:
            stamp(A, prof, 7, True)
        if not use_first:
            for i in range(n): use(i)
        def again():
            A.label(lr)
            loads()
            A(f"s_add_u32 s{sCNT}, s{sCNT}, {cnt}")
            A(f"s_cmp_gt_u32 s{sCNT}, {SPIN_MAX*cnt}")
            A("s_waitcnt vmcnt(0)")
            A(f"s_cbranch_scc0 {lp}")
            A(f"s_branch {fail}")
        cold.append(again)
    def reduce_piece(early=None):
        RD, SEL, RA, ck, vMST = 10, 26, 30, 34, 35
        def shadow():
            A(f"v_and_b32 v{ck}, 16, v{vL16}")
            A(f"v_mov_b32 v{RA}, 0x3f80")
            A(f"v_lshlrev_b32 v{RA}, v{ck}, v{RA}")
            A(f"v_bfe_u32 v{ck}, v{vL16}, 5, 3")
            for q in range(4):
                A(f"v_cmp_eq_u32 vcc, {q}, v{ck}")
                A("s_nop 1")
                A(f"v_cndmask_b32 v{SEL+q}, 0, v{RA}, vcc")
            A(f"v_and_b32 v{vMST}, 0xf0, v{vL16}")
            A(f"v_bfe_u32 v{ck}, v{vL16}, 8, 2")
            A(f"v_lshl_add_u32 v{vMST}, v{ck}, 2, v{vMST}")
            A(f"v_and_b32 v{ck}, 0x80, v{vL16}")
            A(f"v_lshl_add_u32 v{vMST}, v{ck}, 23, v{vMST}")
            if early is not None and early[1]:
                A("s_barrier")
            pre_b1(A, cls)
        if early is not None and not early[1]:
            A("s_barrier")
        delay(A, PAR['rdelay'] if early is None else early[0])
        gather(4, RD, sRLD, ck,
               lambda i: A(f"v_mfma_f32_16x16x32_bf16 {v(RA,4)}, {v(RD+4*i,4)}, {v(SEL,4)}, {'0' if i == 0 else v(RA,4)}"),
               shadow, 1, True)
        A("s_nop 3")
        A(f"v_permlane32_swap_b32 v{RA}, v{RA+1}")
        A(f"v_permlane32_swap_b32 v{RA+2}, v{RA+3}")
        A(f"v_add_f32 v{RA}, v{RA}, v{RA+1}")
        A(f"v_add_f32 v{RA+2}, v{RA+2}, v{RA+3}")
        A(f"v_cvt_pk_bf16_f32 v{RA}, v{RA}, v{RA+2}")
        A(tagop(RA))
        A(f"buffer_store_dword v{RA}, v{vMST}, {BUF}, s{sMST} offen {stf}")
        stamp(A, prof, 6, True)
    kv1 = False
    if 'early' not in OPT or w >= 2:
        A("s_barrier")
    if w < 2 and 'early' not in OPT:
        reduce_piece()
    elif w == 0:
        reduce_piece((PAR['pa'], False))
    elif w == 1:
        lo1, lj1 = A.newlabel("low"), A.newlabel("lowj")
        A(f"s_cmp_lt_u32 s{sH}, 8")
        A(f"s_cbranch_scc1 {lo1}")
        reduce_piece((PAR['rdelay'], False))
        A.label(lj1)
        def low():
            A.label(lo1)
            reduce_piece((PAR['pb'], False))
            A(f"s_branch {lj1}")
        cold.append(low)
    elif w == 2:
        lo, lj = A.newlabel("nored"), A.newlabel("redj")
        A(f"s_cmp_ge_u32 s{sH}, 8")
        A(f"s_cbranch_scc1 {lo}")
        reduce_piece()
        A.label(lj)
        def nored():
            A.label(lo)
            pre_b1(A, cls)
            delay(A, PAR['rdelay'] + PAR['x2'])
            A(f"s_branch {lj}")
        cold.append(nored)
    else:
        pre_b1(A, cls)
        if KVGATE and tag == 0:
            lg, lb = A.newlabel("kvgate"), A.newlabel("kvback")
            A(f"s_cmp_eq_u32 s{sSTEP}, {KVGATE}")
            A(f"s_cbranch_scc1 {lg}")
            A.label(lb)
            def kvgate():
                A.label(lg)
                wait_kv(A, fail, 16, 10)
                A(f"s_branch {lb}")
            cold.append(kvgate)
        if not kv1:
            delay(A, PAR['rdelay'] + PAR['kx'])
            for q in range(4):
                kx_dma(A, q, tKX, 0)
    if not kv1 and 'vxq' not in OPT:
        vx_load(A)
    stamp(A, prof, 6)
    A("s_barrier")
    if w == 3:
        if AFTER: AFTER(A)
        st_preload(A)
        A(f"s_waitcnt vmcnt({0 if kv1 or 'vxq' in OPT else 2})")
    else:
        MP, ck, wa = 10, 22, 23
        wr = lambda b: (lambda i: A(f"ds_write_b128 v{wa}, {v(b+4*i,4)} offset:{L_M + i*1024}"))
        delay(A, PAR['mdelay'] + (PAR['m2'] if w == 2 else 0))
        if 'ms2' in OPT:
            MQ = ST
            ld = lambda b: [A(f"buffer_load_dwordx4 {v(b+4*i,4)}, v{vL16}, {BUF}, s{sMLD} offen offset:{i*1024} sc1") for i in range(3)]
            l2, lmok = A.newlabel("second"), A.newlabel("mok")
            stamp(A, prof, 4, True)
            ld(MP)
            A(f"v_add_u32 v{wa}, {3072*w}, v{vL16}")
            delay(A, PAR['sp'])
            ld(MQ)
            for i, ops in enumerate(tagcheck(MP, 3, ck, 1)):
                A(f"s_waitcnt vmcnt({5-i})")
                for t in ops: A(t)
            A(f"s_cbranch_vccnz {l2}")
            stamp(A, prof, 7, True)
            for i in range(3): wr(MP)(i)
            A.label(lmok)
            def second():
                lp, lr = A.newlabel("chk2"), A.newlabel("again2")
                A.label(l2)
                A(f"s_add_u32 s{sCNT}, s{sCNT}, 256")
                A.label(lp)
                for i, ops in enumerate(tagcheck(MQ, 3, ck, 1)):
                    A(f"s_waitcnt vmcnt({2-i})")
                    for t in ops: A(t)
                A(f"s_cbranch_vccnz {lr}")
                stamp(A, prof, 7, True)
                for i in range(3): wr(MQ)(i)
                A(f"s_branch {lmok}")
                A.label(lr)
                ld(MQ)
                A(f"s_add_u32 s{sCNT}, s{sCNT}, 4096")
                A(f"s_cmp_gt_u32 s{sCNT}, {SPIN_MAX*4096}")
                A(f"s_cbranch_scc0 {lp}")
                A(f"s_branch {fail}")
            cold.append(second)
        else:
            def shadow2():
                A(f"v_add_u32 v{wa}, {3072*w}, v{vL16}")
                st_preload(A)
            gather(3, MP, sMLD, ck, wr(MP), shadow2, 256, 'spec' in OPT)
    stamp(A, prof, 7)

def kv_addr(A, nrb, vt):
    A(f"v_and_b32 v{vt}, 0xf0, v{vL16}")
    A(f"v_min_u32 v{vt}, {16*max(nrb-1, 0)}, v{vt}")
    A(f"v_lshlrev_b32 v{vt}, 3, v{vt}")
    A(f"s_mov_b32 s{sT}, {WS_FLAG + 32*128}")

def wait_kv(A, fail, nrb, vt):
    lp = A.newlabel("kvw")
    kv_addr(A, nrb, vt)
    A(f"s_mov_b32 s3, 0")
    A.label(lp)
    A(f"buffer_load_dword v{vt+1}, v{vt}, {BUF}, s{sT} offen sc1")
    A(f"s_add_u32 s3, s3, 1")
    A(f"s_cmp_gt_u32 s3, 200000")
    A(f"s_cbranch_scc1 {fail}")
    A("s_waitcnt vmcnt(0)")
    A(f"v_cmp_gt_u32 vcc, 0x1c0, v{vt+1}")
    A(f"s_cbranch_vccnz {lp}")

def last_step(A, w):
    cls = max(w - 1, 0)
    L = LgkmTracker(A)
    A("s_waitcnt lgkmcnt(0)")
    A("s_barrier")
    tokA, nslow = qkv_stage(A, L, w, False, True)
    for kv in (4, 5):
        vstep(A, L, tokA, kv)
    A("s_nop 7")
    A(f"v_cvt_pk_bf16_f32 v40, v{VACC}, v{VACC+1}")
    A(f"v_cvt_pk_bf16_f32 v41, v{VACC+2}, v{VACC+3}")
    A(f"ds_write_b64 v{vXW}, v[40:41] offset:{4*XP}")
    A(f"s_add_u32 s{sPUB}, s{sPUB}, {32*4096}")
    A("s_waitcnt lgkmcnt(0)")
    A("s_barrier")
    pub_read(A, cls)
    A("s_waitcnt lgkmcnt(0)")
    A(f"buffer_store_dwordx4 {v(PUB,4)}, v{vL16}, {BUF}, s{sPUB} offen sc1")
    A("s_waitcnt vmcnt(0)")
    A("s_barrier")
    if cls == 2:
        A(f"v_min_u32 v{tFL}, 1, v{vL16}")
        A(f"v_lshlrev_b32 v{tFL}, 30, v{tFL}")
        A(f"v_mov_b32 v{tFV}, 64")
        A(f"buffer_store_dword v{tFV}, v{tFL}, {BUF}, s{sFLAG} offen sc1")

def run(A, fail, done, prof=None, stf=""):
    labs = [A.newlabel(f"wave{c}") for c in range(4)]
    A(f"s_mov_b32 s{sSTEP}, 0")
    for c in range(1, 4):
        A(f"s_cmp_eq_u32 s{S_WAVE}, {c}")
        A(f"s_cbranch_scc1 {labs[c]}")
    for w in range(4):
        cls = max(w - 1, 0)
        A.label(labs[w])
        cold = []
        pre_b1(A, cls)
        st_preload(A)
        A("s_waitcnt vmcnt(0)")
        lo, la = A.newlabel("loop"), A.newlabel("last")
        A(".p2align 6")
        A.label(lo)
        step(A, w, 0, fail, cold, prof, stf)
        if prof: prof(A)
        A(f"s_cmp_eq_u32 s{sSTEP}, 63")
        A(f"s_cbranch_scc1 {la}")
        step(A, w, 1, fail, cold, prof, stf)
        if prof: prof(A)
        A(f"s_branch {lo}")
        i = 0
        while i < len(cold):
            cold[i](); i += 1
        A.label(la)
        last_step(A, w)
        A(f"s_branch {done}")
```

```python
from asm import *

MB = 1 << 20
WS_K    = 0
WS_V    = 16 * MB
WS_Q    = 32 * MB
WS_KVM  = 48 * MB + 32 * 4096
WS_PART = 60 * MB
WS_M    = WS_PART + 72 * 4096
WS_FLAG = 62 * MB
WS_H1   = WS_FLAG + 128 * 128
WS_H2   = WS_FLAG + 144 * 128
WS_PROF = 63 * MB
WS_FFN  = 64 * MB
WS_EP   = 112 * MB
WS_SIZE = 268435456

S_WS, S_WQ, S_WK, S_WV, S_WO, S_X, S_W1, S_W2, S_OUT, S_TMPD = 4, 8, 12, 16, 20, 24, 28, 32, 36, 40
S_DBG = 44
S_WAVE, S_XCC, S_ROLE, S_LOCAL = 46, 47, 48, 49

WBYTES = 576 * 4096 * 2

class LgkmTracker:
    def __init__(self, A):
        self.A = A
        self.issued = 0
        self.done = 0
    def op(self, text):
        self.A(text)
        self.issued += 1
        return self.issued
    def wait(self, tok):
        if tok <= self.done:
            return
        n = self.issued - tok
        assert n <= 15, n
        self.A(f"s_waitcnt lgkmcnt({n})")
        self.done = tok
    def all(self):
        self.A("s_waitcnt lgkmcnt(0)")
        self.done = self.issued

def srd(A, d, ptr, nbytes):
    A(f"s_mov_b32 s{d}, s{ptr}")
    A(f"s_and_b32 s{d+1}, s{ptr+1}, 0xffff")
    A(f"s_mov_b32 s{d+2}, {nbytes}")
    A(f"s_mov_b32 s{d+3}, 0x20000")

def prologue(A, exit_label):
    A(f"s_cmp_ge_u32 s2, 256")
    A(f"s_cbranch_scc1 {exit_label}")
    A("s_load_dwordx16 s[52:67], s[0:1], 0")
    A("s_load_dwordx8 s[68:75], s[0:1], 64")
    A("s_load_dwordx2 s[76:77], s[0:1], 96")
    A(f"s_getreg_b32 s{S_XCC}, hwreg(HW_REG_XCC_ID, 0, 3)")
    A("v_lshrrev_b32 v1, 6, v0")
    A("v_and_b32 v0, 63, v0")
    A(f"v_readfirstlane_b32 s{S_WAVE}, v1")
    A("s_waitcnt lgkmcnt(0)")
    A(f"s_mov_b64 s[{S_DBG}:{S_DBG+1}], s[74:75]")
    srd(A, S_WS, 76, WS_SIZE)
    srd(A, S_WQ, 56, WBYTES)
    srd(A, S_WK, 58, WBYTES)
    srd(A, S_WV, 60, WBYTES)
    srd(A, S_WO, 62, WBYTES)
    srd(A, S_X, 52, 2048 * 576 * 2)
    srd(A, S_W1, 68, 576 * 4608 * 2)
    srd(A, S_W2, 70, 576 * 4608 * 2)
    srd(A, S_OUT, 72, 2048 * 576 * 2)
    srd(A, S_TMPD, 54, 8 * 576 * 2)


DBG_INIT = 240
def xcc_slot(A, dst, x):
    A(f"s_lshr_b32 s3, s{x}, 1")
    A(f"s_lshl_b32 s{dst}, s{x}, 2")
    A("s_lshl_b32 s3, s3, 6")
    A(f"s_add_u32 s{dst}, s{dst}, s3")
def xcc_slot_py(x):
    return (x // 2) * 64 + 4 * x

def prefetch_code(A, start, end):
    A("s_getpc_b64 s[52:53]")
    l = A.newlabel("pc")
    A.label(l)
    A(f"s_sub_u32 s52, s52, {l} - {start}")
    A("s_subb_u32 s53, s53, 0")
    A("s_and_b32 s53, s53, 0xffff")
    A(f"s_mov_b32 s54, {end} - {start}")
    A("s_mov_b32 s55, 0x20000")
    A("s_lshr_b32 s3, s2, 3")
    A("s_and_b32 s3, s3, 7")
    A("s_lshl_b32 s3, s3, 2")
    A(f"s_add_u32 s3, s3, s{S_WAVE}")
    A("s_lshl_b32 s3, s3, 13")
    A("v_lshlrev_b32 v3, 7, v0")
    A("s_mov_b32 m0, 1024")
    A("s_nop 0")
    A("buffer_load_dword v3, s[52:55], s3 offen lds")

def warm_weights(A):
    l = A.newlabel("nowarm")
    A(f"s_cmp_lg_u32 s{S_XCC}, 0")
    A(f"s_cbranch_scc1 {l}")
    A("s_lshr_b32 s3, s2, 3")
    A("s_lshl_b32 s3, s3, 2")
    A(f"s_add_u32 s3, s3, s{S_WAVE}")
    A("s_lshl_b32 s3, s3, 13")
    A(f"buffer_load_dword v3, s[{S_WQ}:{S_WQ+3}], s3 offen lds")
    A(f"buffer_load_dword v3, s[{S_WK}:{S_WK+3}], s3 offen lds")
    A.label(l)

def take_ticket(A):
    l = A.newlabel("tk")
    A(f"s_cmp_lg_u32 s{S_WAVE}, 0")
    A(f"s_cbranch_scc1 {l}")
    xcc_slot(A, 51, S_XCC)
    A(f"s_add_u32 s52, s{S_DBG}, s51")
    A(f"s_addc_u32 s53, s{S_DBG+1}, 0")
    A("s_mov_b32 s50, 1")
    A("s_atomic_add s50, s[52:53], 0 glc")
    A("s_waitcnt lgkmcnt(0)")
    A("v_mov_b32 v1, s50")
    A("v_mov_b32 v2, 0")
    A("ds_write_b32 v2, v1")
    A("s_waitcnt lgkmcnt(0)")
    A.label(l)
    A("s_barrier")
    A("v_mov_b32 v2, 0")
    A("ds_read_b32 v1, v2")
    A("s_waitcnt lgkmcnt(0)")
    A("v_readfirstlane_b32 s50, v1")
    A("s_barrier")

def init_shared(A):
    l, l2 = A.newlabel("ini"), A.newlabel("ini2")
    A(f"s_cmp_lg_u32 s{S_WAVE}, 1")
    A(f"s_cbranch_scc1 {l}")
    for i in range(4):
        A(f"v_mov_b32 v{20+i}, 1")
    A("v_mov_b32 v24, 0")
    A("v_lshlrev_b32 v25, 4, v0")
    A("v_lshlrev_b32 v26, 7, v0")
    A(f"s_mul_i32 s3, s{S_ROLE}, 10240")
    A(f"s_add_u32 s3, s3, {WS_PART}")
    for i in range(10):
        A(f"buffer_store_dwordx4 v[20:23], v25, s[{S_WS}:{S_WS+3}], s3 offen sc1")
        A("s_add_u32 s3, s3, 1024")
    A(f"s_cmp_lg_u32 s{S_ROLE}, 0")
    A(f"s_cbranch_scc1 {l}")
    A(f"s_mov_b32 s3, {WS_FLAG}")
    A(f"buffer_store_dword v24, v26, s[{S_WS}:{S_WS+3}], s3 offen sc1")
    A(f"s_mov_b32 s3, {WS_FLAG + 8192}")
    A(f"buffer_store_dword v24, v26, s[{S_WS}:{S_WS+3}], s3 offen sc1")
    A.label(l)

def init_done(A):
    l = A.newlabel("inid")
    A(f"s_cmp_lg_u32 s{S_WAVE}, 1")
    A(f"s_cbranch_scc1 {l}")
    A("s_mov_b32 s3, 1")
    A(f"s_atomic_add s3, s[{S_DBG}:{S_DBG+1}], {DBG_INIT}")
    A.label(l)

def eval_counts(A, vr, again, need_init=True, sb=52):
    if need_init:
        A(f"v_readlane_b32 s3, v{vr}, {DBG_INIT//4}")
        A("s_cmp_lt_u32 s3, 32")
        A(f"s_cbranch_scc1 {again}")
    A("s_mov_b32 s3, 0")
    for x in range(8):
        A(f"v_readlane_b32 s{sb+x}, v{vr}, {xcc_slot_py(x)//4}")
        A(f"s_add_u32 s3, s3, s{sb+x}")
    A("s_cmp_lt_u32 s3, 256")
    A(f"s_cbranch_scc1 {again}")
    A(f"s_mov_b32 s{S_LOCAL}, 1")
    for x in range(8):
        A(f"s_cmp_eq_u32 s{sb+x}, 32")
        A(f"s_cselect_b32 s{S_LOCAL}, s{S_LOCAL}, 0")

def read_counts(A, fail, vt, need_init=True, sb=52):
    lp = A.newlabel("cnt")
    A(f"s_mov_b32 s{sb+8}, 0")
    A.label(lp)
    A(f"global_load_dword v{vt+1}, v{vt}, s[{S_DBG}:{S_DBG+1}] sc1")
    A(f"s_add_u32 s{sb+8}, s{sb+8}, 1")
    A(f"s_cmp_gt_u32 s{sb+8}, 100000")
    A(f"s_cbranch_scc1 {fail}")
    A("s_waitcnt vmcnt(0)")
    eval_counts(A, vt + 1, lp, need_init, sb)

def assign_roles(A, fail):
    l = A.newlabel("role")
    A(f"s_lshl_b32 s{S_ROLE}, s{S_XCC}, 5")
    A(f"s_add_u32 s{S_ROLE}, s{S_ROLE}, s50")
    A("s_cmp_lt_u32 s50, 32")
    A(f"s_cbranch_scc1 {l}")
    A.c("more than 32 workgroups on this XCC: take a role left vacant on another one")
    A("v_lshlrev_b32 v1, 2, v0")
    read_counts(A, fail, 1, False)
    A("s_sub_u32 s50, s50, 32")
    for x in range(8):
        A(f"s_sub_i32 s3, s{52+x}, 32")
        A("s_max_i32 s3, s3, 0")
        A(f"s_cmp_gt_u32 s{S_XCC}, {x}")
        A("s_cselect_b32 s3, s3, 0")
        A("s_add_u32 s50, s50, s3")
    A(f"s_mov_b32 s{S_ROLE}, 0")
    for x in range(8):
        A(f"s_sub_i32 s3, 32, s{52+x}")
        A("s_max_i32 s3, s3, 0")
        A(f"s_add_u32 s61, s{52+x}, s50")
        A(f"s_add_u32 s61, s61, {32*x}")
        A("s_cmp_lt_u32 s50, s3")
        A(f"s_cselect_b32 s{S_ROLE}, s61, s{S_ROLE}")
        A("s_sub_u32 s50, s50, s3")
    A.label(l)
```

```python
from common import *
from bulk import read_addr, FL_ALL, FL_GRP

BUF = f"s[{S_WS}:{S_WS+3}]"
L_QKV = 0
L_KVM = 49152
L_OX  = 53248
EPB = 36 * 32768
vL, vKM, vVM, vRA, vRF, vRO, vT1, vT2, vT3, vT4 = 240, 241, 242, 243, 244, 245, 246, 247, 248, 249
MASK = 0
QF, KF, KMF = 16, 48, 80
SX, SM = 112, 128
PX = 144
VF = 156
OA = 168
OF = 16
WA = 184
SELA, SELB = 216, 220
RD = 48
RACC, XR = 224, 228
sH, sG, sSEG, sK, sQB, sEPW, sEPR, sISR, sC, sCNT, sRBOK, sTAG, sU, sNT, sWB = 50, 51, 52, 53, 54, 55, 56, 57, 58, 60, 61, 62, 63, 64, 65
sT = 72
SPIN_MAX = 400000
XO = set()

def wo_reg(t, k):
    return 256 + 32 * t + 4 * k

def poll_ge(A, line_sgpr, val, fail, signed=False):
    lp = A.newlabel("pw")
    A(f"s_mov_b32 s{sCNT}, 0")
    A(f"v_mov_b32 v{vT1}, 0")
    A.label(lp)
    A(f"buffer_load_dword v{vT2}, v{vT1}, {BUF}, s{line_sgpr} offen sc1")
    A(f"s_add_u32 s{sCNT}, s{sCNT}, 1")
    A(f"s_cmp_gt_u32 s{sCNT}, {SPIN_MAX}")
    A(f"s_cbranch_scc1 {fail}")
    A("s_waitcnt vmcnt(0)")
    A(f"v_cmp_gt_i32 vcc, {val}, v{vT2}")
    lq = A.newlabel("pwok")
    A(f"s_cbranch_vccz {lq}")
    A("s_sleep 2")
    A(f"s_branch {lp}")
    A.label(lq)

def release(A):
    l = A.newlabel("rel")
    A(f"s_cmp_eq_u32 s{S_LOCAL}, 1")
    A(f"s_cbranch_scc1 {l}")
    A("s_waitcnt vmcnt(0)")
    A("buffer_wbl2 sc1")
    A("s_waitcnt vmcnt(0)")
    A.label(l)

def setup(A, fail):
    A.c("engine: setup")
    A(f"v_mov_b32 v{vL}, v246")
    A(f"s_and_b32 s{sH}, s{S_ROLE}, 31")
    A(f"s_lshr_b32 s{sG}, s{S_ROLE}, 5")
    A(f"s_mul_i32 s{sEPW}, s{sG}, {2*EPB}")
    A(f"s_lshl_b32 s3, s{sH}, 10")
    A(f"s_add_u32 s{sEPW}, s{sEPW}, s3")
    A(f"s_add_u32 s{sEPW}, s{sEPW}, {WS_EP}")
    for i in range(4):
        A(f"v_mov_b32 v{i}, 1")
    A(f"s_mul_i32 s{sT}, s{S_WAVE}, {18*32768}")
    A(f"s_add_u32 s{sT}, s{sT}, s{sEPW}")
    for i in range(18):
        A(f"buffer_store_dwordx4 v[0:3], v{vL}, {BUF}, s{sT} offen")
        A(f"s_add_u32 s{sT}, s{sT}, 32768")
    A(f"v_lshrrev_b32 v{vT4}, 4, v{vL}")
    A(f"v_bfe_u32 v{vT1}, v{vT4}, 3, 2")
    A(f"v_bfe_u32 v{vT3}, v{vT4}, 5, 1")
    A(f"v_lshl_add_u32 v{vT1}, v{vT3}, 3, v{vT1}")
    A(f"v_mul_u32_u24 v{vT1}, 1152, v{vT1}")
    A(f"v_bfe_u32 v{vT2}, v{vT4}, 4, 1")
    A(f"v_lshlrev_b32 v{vT2}, 2, v{vT2}")
    A(f"v_xor_b32 v{vT2}, v{vT2}, v{vT4}")
    A(f"v_and_b32 v{vT2}, 7, v{vT2}")
    A(f"v_lshl_add_u32 v{vT1}, v{vT2}, 4, v{vT1}")
    A(f"s_mul_i32 s{sWB}, s{sH}, {128*1152}")
    A(f"s_lshr_b32 s3, s{S_WAVE}, 1")
    A(f"s_mul_i32 s3, s3, {16*1152}")
    A(f"s_add_u32 s{sWB}, s{sWB}, s3")
    A(f"s_and_b32 s3, s{S_WAVE}, 1")
    A(f"s_mul_i32 s3, s3, {4*1152}")
    A(f"s_add_u32 s{sWB}, s{sWB}, s3")
    A(f"s_lshl_b32 s{sT+1}, s{S_WAVE}, 10")
    for i in range(36):
        A(f"s_add_u32 m0, s{sT+1}, {i*4096}")
        A(f"s_add_u32 s{sT}, s{sWB}, {(i & 3)*32*1152 + (i >> 2)*128}")
        A(f"buffer_load_dwordx4 v{vT1}, s[{S_WO}:{S_WO+3}], s{sT} offen lds")
    ln = vT4
    read_addr(A, vRA, ln, vT1, vT2)
    A(f"s_mul_i32 s{sU}, s{S_WAVE}, 5")
    A(f"s_cmp_eq_u32 s{S_WAVE}, 3")
    A(f"s_cselect_b32 s{sU}, 14, s{sU}")
    A(f"s_waitcnt vmcnt(0)")
    release(A)
    A("s_barrier")
    A(f"s_lshl_b32 s{sT}, s{sG}, 7")
    A(f"s_add_u32 s{sT}, s{sT}, {WS_FLAG + FL_GRP*128}")
    l = A.newlabel("gs")
    A(f"s_cmp_lg_u32 s{S_WAVE}, 0")
    A(f"s_cbranch_scc1 {l}")
    A(f"v_mov_b32 v{vT1}, 1")
    A(f"v_mov_b32 v{vT2}, 0")
    A("s_mov_b64 exec, 1")
    A(f"buffer_atomic_add v{vT1}, v{vT2}, {BUF}, s{sT} offen")
    A("s_mov_b64 exec, -1")
    A.label(l)
    for t in range(5):
        A(f"s_add_u32 s3, s{sU}, {t}")
        A(f"s_min_u32 s3, s3, 17")
        A(f"s_lshr_b32 s{sT+1}, s3, 1")
        A(f"s_lshl_b32 s{sT+1}, s{sT+1}, 14")
        A(f"s_and_b32 s3, s3, 1")
        A(f"s_lshl_b32 s3, s3, 6")
        A(f"v_xor_b32 v{vT1}, s3, v{vRA}")
        A(f"v_add_u32 v{vT1}, s{sT+1}, v{vT1}")
        for k in range(8):
            A(f"ds_read_b64_tr_b16 {r(wo_reg(t,k),2)}, v{vT1} offset:{k*2048}")
            A(f"ds_read_b64_tr_b16 {r(wo_reg(t,k)+2,2)}, v{vT1} offset:{k*2048+512}")
        A("s_waitcnt lgkmcnt(0)")
    A(f"v_and_b32 v{vT1}, 31, v{ln}")
    A(f"v_bfe_u32 v{vT2}, v{ln}, 5, 1")
    A(f"v_lshlrev_b32 v{vT2}, 2, v{vT2}")
    A(f"v_sub_u32 v{vT1}, v{vT1}, v{vT2}")
    A(f"v_mov_b32 v{vT2}, 0xff800000")
    for i in range(16):
        A(f"v_cmp_gt_i32 vcc, {8*(i>>2) + (i&3)}, v{vT1}")
        A("s_nop 1")
        A(f"v_cndmask_b32 v{MASK+i}, 0, v{vT2}, vcc")
    A(f"v_and_b32 v{vKM}, 0x70, v{vL}")
    A(f"v_bfe_u32 v{vT1}, v{ln}, 5, 1")
    A(f"v_lshl_add_u32 v{vKM}, v{vT1}, 8, v{vKM}")
    A(f"v_and_b32 v{vVM}, 31, v{ln}")
    A(f"s_lshl_b32 s3, s{S_WAVE}, 5")
    A(f"v_add_u32 v{vVM}, s3, v{vVM}")
    A(f"v_lshlrev_b32 v{vVM}, 3, v{vVM}")
    A(f"v_lshl_add_u32 v{vVM}, v{vT1}, 10, v{vVM}")
    A(f"s_lshl_b32 s{sNT}, s{sH}, 1")
    A(f"s_add_u32 s{sNT}, s{sNT}, s{S_WAVE}")
    A(f"s_add_u32 s3, s{sH}, 64")
    A(f"s_cmp_eq_u32 s{S_WAVE}, 2")
    A(f"s_cselect_b32 s{sNT}, s3, s{sNT}")
    A(f"s_cmp_lt_u32 s{sNT}, 72")
    A(f"s_cselect_b32 s{sISR}, 1, 0")
    A(f"s_cmp_eq_u32 s{S_WAVE}, 3")
    A(f"s_cselect_b32 s{sISR}, 0, s{sISR}")
    A(f"s_lshr_b32 s{sT}, s{sNT}, 1")
    A(f"s_lshl_b32 s{sEPR}, s{sT}, 15")
    A(f"s_and_b32 s3, s{sNT}, 1")
    A(f"s_lshl_b32 s3, s3, 8")
    A(f"s_add_u32 s{sEPR}, s{sEPR}, s3")
    A(f"s_mul_i32 s3, s{sG}, {2*EPB}")
    A(f"s_add_u32 s{sEPR}, s{sEPR}, s3")
    A(f"s_add_u32 s{sEPR}, s{sEPR}, {WS_EP}")
    A(f"v_and_b32 v{vRA}, 0xf0, v{vL}")
    A(f"v_lshrrev_b32 v{vT1}, 4, v{ln}")
    A(f"v_lshl_add_u32 v{vRA}, v{vT1}, 10, v{vRA}")
    A(f"v_lshrrev_b32 v{vT2}, 1, v{vT1}")
    A(f"v_lshl_add_u32 v{vRF}, v{vT2}, 30, v{vRA}")
    A(f"v_and_b32 v{vRO}, 15, v{ln}")
    A(f"s_and_b32 s3, s{sNT}, 1")
    A(f"s_lshl_b32 s3, s3, 4")
    A(f"v_add_u32 v{vRO}, s3, v{vRO}")
    A(f"v_mul_u32_u24 v{vRO}, 1152, v{vRO}")
    A(f"v_lshl_add_u32 v{vRO}, v{vT2}, 3, v{vRO}")
    A(f"v_and_b32 v{vT2}, 1, v{vT1}")
    A(f"v_lshl_add_u32 v{vRO}, v{vT2}, 4, v{vRO}")
    A(f"s_lshl_b32 s3, s{sT}, 5")
    A(f"v_add_u32 v{vRO}, s3, v{vRO}")
    A(f"v_and_b32 v{vT1}, 1, v{ln}")
    A(f"v_lshlrev_b32 v{vT1}, 4, v{vT1}")
    A(f"v_mov_b32 v{vT2}, 0x3f80")
    A(f"v_lshlrev_b32 v{vT2}, v{vT1}, v{vT2}")
    A(f"v_bfe_u32 v{vT1}, v{ln}, 1, 3")
    for q in range(8):
        A(f"v_cmp_eq_u32 vcc, {q}, v{vT1}")
        A("s_nop 1")
        A(f"v_cndmask_b32 v{SELA+q}, 0, v{vT2}, vcc")
    A(f"v_mov_b64 {v(PX+10,2)}, 0")
    A(f"v_mov_b64 {v(VF+10,2)}, 0")
    A(f"s_mov_b32 s{sC}, 0x3e029413")
    A(f"s_mov_b32 s{sC+1}, 0x3e029413")
    A(f"s_lshl_b32 s3, s{sU}, 16")
    A(f"s_add_u32 s{sEPW}, s{sEPW}, s3")
    A(f"s_lshl_b32 s{sT}, s{sG}, 7")
    A(f"s_add_u32 s{sT}, s{sT}, {WS_FLAG + FL_GRP*128}")
    poll_ge(A, sT, 32, fail)
    A("s_barrier")

def qkv_fetch(A, seg, bufsel, fail):
    l = A.newlabel("rbok")
    A(f"s_lshr_b32 s{sT}, s{seg}, 2")
    A(f"s_cmp_eq_u32 s{sT}, s{sRBOK}")
    A(f"s_cbranch_scc1 {l}")
    A(f"s_mov_b32 s{sRBOK}, s{sT}")
    A(f"s_lshl_b32 s{sT}, s{sT}, 7")
    A(f"s_add_u32 s{sT}, s{sT}, {WS_FLAG + FL_ALL*128}")
    poll_ge(A, sT, 14, fail)
    A.label(l)
    A(f"s_lshl_b32 s{sT}, s{seg}, 5")
    A(f"s_add_u32 s{sT}, s{sT}, s{sH}")
    A(f"s_lshl_b32 s{sT}, s{sT}, 13")
    A(f"s_lshl_b32 s3, s{S_WAVE}, 11")
    A(f"s_add_u32 s{sT}, s{sT}, s3")
    A(f"s_add_u32 s{sT+1}, s{bufsel}, s3")
    for m, base in enumerate((WS_Q, WS_K, WS_V)):
        A(f"s_add_u32 m0, s{sT+1}, {m*8192}")
        A(f"s_add_u32 s{sT+2}, s{sT}, {base}")
        A(f"buffer_load_dwordx4 v{vL}, {BUF}, s{sT+2} offen sc1 lds")
        A(f"buffer_load_dwordx4 v{vL}, {BUF}, s{sT+2} offen offset:1024 sc1 lds")

def segment(A, fail):
    L = LgkmTracker(A)
    A("s_waitcnt vmcnt(0)")
    A("s_barrier")
    A(f"v_add_u32 v{vT3}, s{sQB}, v{vL}")
    tq = {}
    for k in range(8):
        L.op(f"ds_read_b128 {v(QF+4*k,4)}, v{vT3} offset:{k*1024}")
        tq[k] = L.op(f"ds_read_b128 {v(KF+4*k,4)}, v{vT3} offset:{8192 + k*1024}")
        if k == 5:
            L.wait(tq[0])
    A(f"s_lshl_b32 s3, s{S_WAVE}, 11")
    A(f"v_add_u32 v{vT3}, s3, v{vT3}")
    for k in range(8):
        L.wait(tq[k])
        A(f"v_mfma_f32_32x32x16_bf16 {v(SX,16)}, {v(KF+4*k,4)}, {v(QF+4*k,4)}, {v(MASK,16) if k == 0 else v(SX,16)}")
    L.op(f"ds_read_b128 {v(VF,4)}, v{vT3} offset:{16384}")
    L.op(f"ds_read_b128 {v(VF+4,4)}, v{vT3} offset:{16384+1024}")
    ln = A.newlabel("nonext")
    A(f"s_add_u32 s{sT+6}, s{sSEG}, 7")
    A(f"s_xor_b32 s{sT+7}, s{sQB}, 24576")
    A(f"s_cmp_gt_u32 s{sT+6}, 63")
    A(f"s_cbranch_scc1 {ln}")
    qkv_fetch(A, sT + 6, sT + 7, fail)
    A.label(ln)
    lr = A.newlabel("nored0")
    A(f"s_cmp_eq_u32 s{sISR}, 0")
    A(f"s_cbranch_scc1 {lr}")
    A(f"s_mul_i32 s{sT}, s{sSEG}, {36*16384}")
    A(f"s_lshr_b32 s3, s{sNT}, 1")
    A(f"s_lshl_b32 s3, s3, 14")
    A(f"s_add_u32 s{sT}, s{sT}, s3")
    A(f"s_and_b32 s3, s{sNT}, 1")
    A(f"s_lshl_b32 s3, s3, 8")
    A(f"s_add_u32 s{sT}, s{sT}, s3")
    A(f"s_add_u32 s{sT}, s{sT}, {WS_FFN}")
    for u in range(4):
        for hf in range(2):
            A(f"buffer_load_dwordx4 {v(KMF+8*u+4*hf,4)}, v{vRA if u < 3 else vRF}, {BUF}, s{sT} offen offset:{hf*512} sc1")
        A(f"s_add_u32 s{sT}, s{sT}, 4096")
    A(f"s_mul_i32 s{sT}, s{sSEG}, {32*1152}")
    A(f"buffer_load_dwordx2 {v(XR,2)}, v{vRO}, s[{S_X}:{S_X+3}], s{sT} offen")
    A("s_waitcnt vmcnt(1)")
    for u in range(4):
        for hf in range(2):
            A(f"v_mfma_f32_16x16x32_bf16 {v(RACC,4)}, {v(SELA+4*hf,4)}, {v(KMF+8*u+4*hf,4)}, {'0' if u + hf == 0 else v(RACC,4)}")
    A.label(lr)
    if 'wbe' in XO:
        lw = A.newlabel("nowb")
        A(f"s_cmp_lt_u32 s{sSEG}, 57")
        A(f"s_cbranch_scc1 {lw}")
        A(f"s_or_b32 s3, s{S_WAVE}, s{sH}")
        A(f"s_cmp_lg_u32 s3, 0")
        A(f"s_cbranch_scc1 {lw}")
        A("buffer_wbl2 sc1")
        A.label(lw)
    A(f"s_lshl_b32 s{sT+3}, s{sH}, 7")
    A(f"s_add_u32 s{sT+3}, s{sT+3}, {WS_FLAG}")
    A(f"s_add_u32 s{sT+4}, s{sSEG}, 1")
    poll_ge(A, sT + 3, f"s{sT+4}", fail)
    A(f"s_lshl_b32 s{sT}, s{sSEG}, 5")
    A(f"s_add_u32 s{sT}, s{sT}, s{sH}")
    A(f"s_lshl_b32 s{sT}, s{sT}, 12")
    A(f"s_add_u32 s{sT}, s{sT}, {WS_KVM}")
    for k in range(8):
        A(f"buffer_load_dwordx4 {v(KMF+4*k,4)}, v{vKM}, {BUF}, s{sT} offen offset:{(k>>2)*1024 + (k&1)*512 + ((k>>1)&1)*128} sc1")
    A(f"buffer_load_dwordx2 {v(VF+8,2)}, v{vVM}, {BUF}, s{sT} offen offset:2048 sc1")
    for k in range(8):
        A(f"s_waitcnt vmcnt({8-k})")
        A(f"v_mfma_f32_32x32x16_bf16 {v(SM,16)}, {v(KMF+4*k,4)}, {v(QF+4*k,4)}, {'0' if k == 0 else v(SM,16)}")
    m1, m2, l1 = vT1, vT2, vT3
    A(f"v_max3_f32 v{m1}, v{SX}, v{SX+1}, v{SX+2}")
    for i in range(3, 15, 2):
        A(f"v_max3_f32 v{m1}, v{m1}, v{SX+i}, v{SX+i+1}")
    A(f"v_max_f32 v{m1}, v{m1}, v{SX+15}")
    A("s_nop 3")
    A(f"v_max3_f32 v{m1}, v{m1}, v{SM}, v{SM+1}")
    A(f"v_max3_f32 v{m2}, v{m1}, v{SM+2}, v{SM+3}")
    A(f"v_max3_f32 v{m1}, v{m1}, v{SM+2}, v{SM+3}")
    A("s_nop 1")
    A(f"v_permlane32_swap_b32 v{m1}, v{m2}")
    A(f"v_max_f32 v{m1}, v{m1}, v{m2}")
    A(f"v_mul_f32 v{m1}, s{sC}, v{m1}")
    for i in range(10):
        A(f"v_pk_fma_f32 {v(SX+2*i,2)}, {v(SX+2*i,2)}, s[{sC}:{sC+1}], {v(m1,2)} op_sel_hi:[1,0,0] neg_lo:[0,0,1] neg_hi:[0,0,1]")
    for i in range(20):
        A(f"v_exp_f32 v{SX+i}, v{SX+i}")
    for i in range(10):
        A(f"v_cvt_pk_bf16_f32 v{PX+i}, v{SX+2*i}, v{SX+2*i+1}")
    L.all()
    A("s_waitcnt vmcnt(0)")
    A(f"v_mfma_f32_32x32x16_bf16 {v(OA,16)}, {v(VF,4)}, {v(PX,4)}, 0")
    A(f"v_pk_add_f32 {v(SX,2)}, {v(SX,2)}, {v(SX+2,2)}")
    A(f"v_mfma_f32_32x32x16_bf16 {v(OA,16)}, {v(VF+4,4)}, {v(PX+4,4)}, {v(OA,16)}")
    A(f"v_mfma_f32_32x32x16_bf16 {v(OA,16)}, {v(VF+8,4)}, {v(PX+8,4)}, {v(OA,16)}")
    for i in range(2, 10):
        A(f"v_pk_add_f32 {v(SX,2)}, {v(SX,2)}, {v(SX+2*i,2)}")
    A(f"v_add_f32 v{m1}, v{SX}, v{SX+1}")
    A(f"v_add_f32 v{m2}, v{SX}, v{SX+1}")
    A("s_nop 1")
    A(f"v_permlane32_swap_b32 v{m1}, v{m2}")
    A(f"v_add_f32 v{m1}, v{m1}, v{m2}")
    A(f"v_rcp_f32 v{m1}, v{m1}")
    A("s_nop 0")
    for i in range(8):
        A(f"v_pk_mul_f32 {v(OA+2*i,2)}, {v(OA+2*i,2)}, {v(m1,2)} op_sel_hi:[1,0]")
    for i in range(8):
        A(f"v_cvt_pk_bf16_f32 v{PX+i}, v{OA+2*i}, v{OA+2*i+1}")
    A(f"s_lshl_b32 s3, s{S_WAVE}, 11")
    A(f"v_add_u32 v{vT3}, s3, v{vL}")
    A(f"ds_write_b128 v{vT3}, {v(PX,4)} offset:{L_OX}")
    A(f"ds_write_b128 v{vT3}, {v(PX+4,4)} offset:{L_OX+1024}")
    A("s_waitcnt lgkmcnt(0)")
    A("s_barrier")
    L = LgkmTracker(A)
    to = {k: L.op(f"ds_read_b128 {v(OF+4*k,4)}, v{vL} offset:{L_OX + k*1024}") for k in range(8)}
    A(f"s_and_b32 s3, s{sK}, 1")
    A(f"s_mul_i32 s{sT+5}, s3, {EPB}")
    A(f"s_add_u32 s{sT}, s{sEPW}, s{sT+5}")
    A(f"s_lshr_b32 s{sTAG}, s{sK}, 1")
    A(f"s_and_b32 s{sTAG}, s{sTAG}, 1")
    def epi(t):
        acc = WA + 16 * (t % 2)
        ops = []
        for half in range(2):
            for i in range(4):
                ops.append(f"v_cvt_pk_bf16_f32 v{acc+8*half+i}, v{acc+8*half+2*i}, v{acc+8*half+2*i+1}")
            for i in range(4):
                ops.append(f"v_and_or_b32 v{acc+8*half+i}, v{acc+8*half+i}, -2, s{sTAG}")
            ops.append(f"buffer_store_dwordx4 {v(acc+8*half,4)}, v{vL}, {BUF}, s{sT} offen")
            ops.append(f"s_add_u32 s{sT}, s{sT}, 32768")
        return ops
    l4, lj = A.newlabel("t4"), A.newlabel("tj")
    for t in range(5):
        if t == 4:
            A(f"s_cmp_ge_u32 s{S_WAVE}, 2")
            A(f"s_cbranch_scc1 {l4}")
        acc = WA + 16 * (t % 2)
        ops = epi(t - 1) if t else []
        for k in range(8):
            L.wait(to[k])
            A(f"v_mfma_f32_32x32x16_bf16 {v(acc,16)}, {r(wo_reg(t,k),4)}, {v(OF+4*k,4)}, {'0' if k == 0 else v(acc,16)}")
            if ops and k < 3:
                A("s_nop 3")
            if k >= 3:
                for x in ops[4*(k-3):4*(k-2)]:
                    A(x)
    A("s_nop 11")
    for x in epi(4): A(x)
    A(f"s_branch {lj}")
    A.label(l4)
    A("s_nop 11")
    for x in epi(3): A(x)
    A.label(lj)
    release(A)
    le = A.newlabel("segend")
    A(f"s_cmp_eq_u32 s{sISR}, 0")
    A(f"s_cbranch_scc1 {le}")
    A(f"s_mov_b32 s{sCNT}, 0")
    lp = A.newlabel("epoll")
    A.label(lp)
    A(f"s_add_u32 s{sT}, s{sEPR}, s{sT+5}")
    for u in range(8):
        for hf in range(2):
            A(f"buffer_load_dwordx4 {v(RD+8*u+4*hf,4)}, v{vRA}, {BUF}, s{sT} offen offset:{hf*512} sc1")
        A(f"s_add_u32 s{sT}, s{sT}, 4096")
    A(f"s_add_u32 s{sCNT}, s{sCNT}, 1")
    A(f"s_cmp_gt_u32 s{sCNT}, {SPIN_MAX}")
    A(f"s_cbranch_scc1 {fail}")
    a1, o1 = vT1, vT2
    for i in range(16):
        b = RD + 4 * i
        A(f"s_waitcnt vmcnt({15-i})")
        A(f"v_mfma_f32_16x16x32_bf16 {v(OA,4)}, {v(SELA+4*(i%2),4)}, {v(b,4)}, {v(RACC,4) if i == 0 else v(OA,4)}")
        if i == 0:
            A(f"v_bitop3_b32 v{a1}, v{b}, v{b+1}, v{b+2} bitop3:0x80")
            A(f"v_bitop3_b32 v{o1}, v{b}, v{b+1}, v{b+2} bitop3:0xfe")
            A(f"v_and_b32 v{a1}, v{a1}, v{b+3}")
            A(f"v_or_b32 v{o1}, v{o1}, v{b+3}")
        else:
            A(f"v_bitop3_b32 v{a1}, v{a1}, v{b}, v{b+1} bitop3:0x80")
            A(f"v_bitop3_b32 v{o1}, v{o1}, v{b}, v{b+1} bitop3:0xfe")
            A(f"v_bitop3_b32 v{a1}, v{a1}, v{b+2}, v{b+3} bitop3:0x80")
            A(f"v_bitop3_b32 v{o1}, v{o1}, v{b+2}, v{b+3} bitop3:0xfe")
    A(f"v_xor_b32 v{a1}, s{sTAG}, v{a1}")
    A(f"v_xor_b32 v{o1}, s{sTAG}, v{o1}")
    A(f"v_or_b32 v{a1}, v{a1}, v{o1}")
    A(f"v_and_b32 v{a1}, 1, v{a1}")
    A(f"v_cmp_ne_u32 vcc, 0, v{a1}")
    A(f"s_cbranch_vccnz {lp}")
    A(f"v_lshlrev_b32 v{vT1}, 16, v{XR}")
    A(f"v_and_b32 v{vT2}, 0xffff0000, v{XR}")
    A(f"v_lshlrev_b32 v{vT3}, 16, v{XR+1}")
    A(f"v_and_b32 v{vT4}, 0xffff0000, v{XR+1}")
    for i in range(4):
        A(f"v_add_f32 v{OA+i}, v{OA+i}, v{vT1+i}")
    A(f"v_cvt_pk_bf16_f32 v{OA}, v{OA}, v{OA+1}")
    A(f"v_cvt_pk_bf16_f32 v{OA+1}, v{OA+2}, v{OA+3}")
    A(f"s_mul_i32 s{sT}, s{sSEG}, {32*1152}")
    A(f"buffer_store_dwordx2 {v(OA,2)}, v{vRO}, s[{S_OUT}:{S_OUT+3}], s{sT} offen")
    A.label(le)

def run(A, fail, done, hook=None):
    setup(A, fail)
    if hook: hook()
    A(f"s_mov_b32 s{sSEG}, s{sG}")
    A(f"s_mov_b32 s{sK}, 0")
    A(f"s_mov_b32 s{sQB}, {L_QKV}")
    A(f"s_mov_b32 s{sRBOK}, -1")
    qkv_fetch(A, sSEG, sQB, fail)
    lp = A.newlabel("seg")
    A.label(lp)
    segment(A, fail)
    A(f"s_add_u32 s{sSEG}, s{sSEG}, 7")
    A(f"s_add_u32 s{sK}, s{sK}, 1")
    A(f"s_xor_b32 s{sQB}, s{sQB}, 24576")
    A(f"s_cmp_lt_u32 s{sSEG}, 64")
    A(f"s_cbranch_scc1 {lp}")
    A(f"s_branch {done}")
```

```python
import sys
from common import *
import chain, bulk, engine

KN = "parallel_sum__memory_aug_recurrent_mem_tr__dense_activation_silu__prompt_kernel"
REF = open("parallel_sum__memory_aug_recurrent_mem_tr__dense_activation_silu__prompt.s.ref").read()
COMMENT = REF[:REF.index("; Override launch geometry")]
HDR = COMMENT + f"""; @launch grid=(256,1,1) block=(256,1,1) lds=163840
.amdgcn_target "amdgcn-amd-amdhsa--gfx950"
.text
.globl {KN}
.p2align 8
.type {KN},@function
{KN}:
"""
FTR = f"""
.section .rodata,"a"
.p2align 6
.amdhsa_kernel {KN}
  .amdhsa_next_free_vgpr 512
  .amdhsa_next_free_sgpr 102
  .amdhsa_accum_offset 256
  .amdhsa_group_segment_fixed_size 0
  .amdhsa_kernarg_size 104
  .amdhsa_user_sgpr_count 2
  .amdhsa_user_sgpr_kernarg_segment_ptr 1
  .amdhsa_system_sgpr_workgroup_id_x 1
.end_amdhsa_kernel
"""

XO = set()
def tstamp(A, prof, i):
    if prof:
        A(f"s_memrealtime s[{i}:{i+1}]")

def steplog(A):
    A("s_memrealtime s[80:81]")
    A(f"s_lshl_b32 s3, s{chain.sSTEP}, 5")
    A(f"s_add_u32 s3, s3, s{S_ROLE}")
    A("s_lshl_b32 s3, s3, 2")
    A(f"s_add_u32 s3, s3, {WS_PROF + 65536}")
    A("s_waitcnt lgkmcnt(0)")
    A("v_mov_b32 v10, s80")
    A("v_mov_b32 v11, 0")
    A(f"buffer_store_dword v10, v11, s[{S_WS}:{S_WS+3}], s3 offen")

def fine(A, i):
    A("s_memrealtime s[96:97]")
    A(f"s_lshl_b32 s3, s{S_ROLE}, 4")
    A(f"s_add_u32 s3, s3, {WS_PROF + 131072 + 4*i}")
    A("s_waitcnt lgkmcnt(0)")
    A("v_mov_b32 v253, s96")
    A("v_mov_b32 v254, 0")
    A(f"buffer_store_dword v253, v254, s[{S_WS}:{S_WS+3}], s3 offen")
    A("s_waitcnt vmcnt(63)")

def build(prof=False, force_nonlocal=False):
    A = Asm()
    tstamp(A, prof, 22)
    if prof:
        A("s_waitcnt lgkmcnt(0)")
        A("s_mov_b32 s101, s22")
    prologue(A, "L_exit")
    if 'nopf' not in XO:
        prefetch_code(A, KN, "L_codeend")
    take_ticket(A)
    assign_roles(A, "L_exit")
    A(f"s_cmp_ge_u32 s{S_ROLE}, 32")
    A("s_cbranch_scc1 L_bulk")
    chain.AFTER = (lambda A_: steplog(A_)) if prof else None
    init_shared(A)
    chain.setup(A)
    chain.setup_scalars(A)
    chain.load_weights(A, "L_exit", bulk.NP0)
    if force_nonlocal:
        A(f"s_mov_b32 s{S_LOCAL}, 0")
    tstamp(A, prof, 92)
    tstamp(A, prof, 94)
    A(f"s_cmp_eq_u32 s{S_LOCAL}, 0")
    A("s_cbranch_scc1 L_chain_far")
    chain.run(A, "L_exit0", "L_done0")
    chain.AFTER = None
    A.label("L_exit0")
    A("s_endpgm")
    A.label("L_done0")
    A("s_branch L_done1")
    A.label("L_chain_far")
    chain.run(A, "L_exit1", "L_done1", None, "sc1")
    A.label("L_exit")
    A.label("L_exit1")
    A("s_endpgm")
    A.label("L_done1")
    A("s_branch L_done")
    A.label("L_bulk")
    A(f"s_sub_u32 s{S_ROLE}, s{S_ROLE}, 32")
    bulk.run(A, "L_exit2", (lambda i: (tstamp(A, prof, 96), prof and (A('s_waitcnt lgkmcnt(0)'), A('s_mov_b32 s99, s96'))) if i == 2 else tstamp(A, prof, 92) if i == 3 else (tstamp(A, prof, 96), prof and (A('s_waitcnt lgkmcnt(0)'), A('s_mov_b32 s98, s96'))) if i else (tstamp(A, prof, 94), prof and (A('s_waitcnt lgkmcnt(0)'), A('s_mov_b32 s100, s94')))))
    if force_nonlocal:
        A(f"s_mov_b32 s{S_LOCAL}, 0")
    tstamp(A, prof, 92)
    engine.run(A, "L_exit2", "L_done2", (lambda: tstamp(A, prof, 94)))
    A.label("L_done2")
    if 'wb' in XO:
        A(f"s_cmp_lg_u32 s{S_WAVE}, 0")
        A("s_cbranch_scc1 L_nowb")
        A("s_waitcnt vmcnt(0)")
        A("buffer_wbl2 sc1")
        A.label("L_nowb")
    A(f"s_add_u32 s{S_ROLE}, s{S_ROLE}, 32")
    A.label("L_done")
    if prof:
        tstamp(A, prof, 96)
        A("s_waitcnt lgkmcnt(0)")
        for i in range(4):
            A(f"v_mov_b32 v{16+i}, s{(101, 92, 94, 96)[i]}")
        A(f"s_lshl_b32 s3, s{S_ROLE}, 2")
        A(f"s_add_u32 s3, s3, s{S_WAVE}")
        A("s_lshl_b32 s3, s3, 4")
        A(f"s_add_u32 s3, s3, {WS_PROF}")
        A("v_mov_b32 v20, 0")
        A(f"buffer_store_dwordx4 v[16:19], v20, s[{S_WS}:{S_WS+3}], s3 offen")
        A("v_mov_b32 v16, s100")
        A("v_mov_b32 v17, s98")
        A("v_mov_b32 v18, s99")
        A(f"s_add_u32 s3, s3, 16384")
        A(f"buffer_store_dwordx4 v[16:19], v20, s[{S_WS}:{S_WS+3}], s3 offen")
    A.label("L_exit2")
    A("s_endpgm")
    A.label("L_codeend")
    return HDR + A.text() + FTR

if __name__ == "__main__":
    chain.OPT = {'vxq', 'ms2'}
    chain.KVGATE = 9
    chain.PAR.update(rdelay=16, mdelay=6)
    open("parallel_sum__memory_aug_recurrent_mem_tr__dense_activation_silu__prompt.s", "w").write(build())
    open("full_prof.s", "w").write(build(True))
    open("full_far.s", "w").write(build(True, True))
    P0 = dict(chain.PAR)
    for x in sys.argv[1:]:
        XO.clear(); XO.update(x.split("+"))
        engine.XO = XO; bulk.XO = XO
        chain.PAR.update(P0)
        for y in XO:
            if '=' in y: chain.PAR[y.split('=')[0]] = int(y.split('=')[1])
        bulk.FINE = fine if 'fine' in XO else None
        open(f"v_{x}.s", "w").write(build('prof' in XO))
```

```python
from common import *

BUF = f"s[{S_WS}:{S_WS+3}]"
SLAB = 73728
FL_KV, FL_ALL, FL_GRP = 32, 48, 96

def ranges():
    nF = [6, 6] + [5] * 12
    nKV = [9, 9, 10, 10] + [9] * 10
    nQ = [3, 3, 4, 4] + [5] * 10
    out, a, b, c = [], 0, 0, 0
    for j in range(14):
        out.append((a, nKV[j], b, nQ[j], c, nF[j]))
        a += nKV[j]; b += nQ[j]; c += nF[j]
    assert (a, b, c) == (128, 64, 72)
    return out

XN = 0
ACC0, ACC1 = 144, 160
FR = 176
HP = 192
OUTV = 208
vA = 240
vD1, vD2, vL, vT1, vT2, vT3, vT4, vD1F = 244, 245, 246, 247, 248, 249, 250, 251
sRB, sJ, sI, sN, sSRC, sOUT, sPOUT, sLB, sSEG = 50, 51, 52, 53, 54, 55, 56, 57, 58
sKV0, sNKV, sQ0, sNQ, sF0, sNF, sTYP, sNTYP, sRS32, sLOG = 59, 60, 61, 62, 63, 64, 65, 66, 67, 68
sSIG, sP0R, sP0U, sSAV = 69, 70, 71, 90
sT = 72
PAR = dict(d0=0, ds=1)
S_CUR = S_TMPD

def out_tile(dt):
    return 256 + 16 * dt if dt < 16 else OUTV + 16 * (dt - 16)

def setup(A):
    A.c("bulk: indices")
    A(f"s_and_b32 s{sRB}, s{S_ROLE}, 15")
    A(f"s_lshr_b32 s{sJ}, s{S_ROLE}, 4")
    for j, rg in enumerate(ranges()):
        A(f"s_cmp_eq_u32 s{sJ}, {j}")
        pk1 = rg[0] | rg[1] << 8 | rg[2] << 16 | rg[3] << 24
        pk2 = rg[4] | rg[5] << 8
        A(f"s_cselect_b32 s{sT}, {pk1}, s{sT}" if j else f"s_mov_b32 s{sT}, {pk1}")
        A(f"s_cselect_b32 s{sT+1}, {pk2}, s{sT+1}" if j else f"s_mov_b32 s{sT+1}, {pk2}")
    A(f"s_and_b32 s{sKV0}, s{sT}, 255")
    A(f"s_bfe_u32 s{sNKV}, s{sT}, 0x80008")
    A(f"s_bfe_u32 s{sQ0}, s{sT}, 0x80010")
    A(f"s_lshr_b32 s{sNQ}, s{sT}, 24")
    A(f"s_and_b32 s{sF0}, s{sT+1}, 255")
    A(f"s_lshr_b32 s{sNF}, s{sT+1}, 8")
    A(f"s_lshl_b32 s{sSEG}, s{sRB}, 2")
    A(f"s_add_u32 s{sSEG}, s{sSEG}, s{S_WAVE}")
    A(f"s_mov_b32 s{sLOG}, 0xbfb8aa3b")
    A(f"v_mov_b32 v{vL}, v0")
    A(f"v_lshrrev_b32 v{vT1}, 3, v{vL}")
    A(f"v_bfe_u32 v{vT2}, v{vL}, 4, 1")
    A(f"v_lshlrev_b32 v{vT2}, 2, v{vT2}")
    A(f"v_xor_b32 v{vT2}, v{vT2}, v{vL}")
    A(f"v_and_b32 v{vT2}, 7, v{vT2}")
    A(f"v_lshlrev_b32 v{vT2}, 4, v{vT2}")
    A(f"v_lshl_add_u32 v{vD1}, v{vT1}, 13, v{vT2}")
    A(f"v_mul_u32_u24 v{vD1F}, 9216, v{vT1}")
    A(f"v_add_u32 v{vD1F}, v{vD1F}, v{vT2}")
    A(f"v_bfe_u32 v{vT3}, v{vL}, 5, 1")
    A(f"v_and_b32 v{vT1}, 3, v{vT1}")
    A(f"v_lshl_add_u32 v{vT1}, v{vT3}, 3, v{vT1}")
    A(f"v_mul_u32_u24 v{vD2}, 1152, v{vT1}")
    A(f"v_add_u32 v{vD2}, v{vD2}, v{vT2}")
    read_addr(A, vA, vL, vT1, vT2)
    A(f"v_xor_b32 v{vA+2}, 64, v{vA}")
    A(f"v_add_u32 v{vA+1}, {18*2048}, v{vA}")
    A(f"v_add_u32 v{vA+3}, {18*2048}, v{vA+2}")
    A(f"v_lshlrev_b32 v{vL}, 4, v{vL}")

def read_addr(A, dst, ln, t1, t2):
    A(f"v_bfe_u32 v{t1}, v{ln}, 2, 2")
    A(f"v_bfe_u32 v{t2}, v{ln}, 5, 1")
    A(f"v_lshl_add_u32 v{t1}, v{t2}, 3, v{t1}")
    A(f"v_lshlrev_b32 v{dst}, 7, v{t1}")
    A(f"v_bfe_u32 v{t2}, v{ln}, 3, 1")
    A(f"v_lshl_add_u32 v{dst}, v{t2}, 6, v{dst}")
    A(f"v_bfe_u32 v{t2}, v{ln}, 4, 1")
    A(f"v_lshl_add_u32 v{dst}, v{t2}, 5, v{dst}")
    A(f"v_and_b32 v{t2}, 3, v{ln}")
    A(f"v_lshl_add_u32 v{dst}, v{t2}, 3, v{dst}")

def copy_srd(A, src):
    for i in range(4):
        A(f"s_mov_b32 s{S_CUR+i}, s{src+i}")

def params_qkv(A, idx):
    la, lb, le = A.newlabel("pq"), A.newlabel("pv"), A.newlabel("pe")
    A(f"s_cmp_ge_u32 s{idx}, s{sNKV}")
    A(f"s_cbranch_scc1 {la}")
    A(f"s_add_u32 s{sT}, s{sKV0}, s{idx}")
    A(f"s_cmp_ge_u32 s{sT}, 64")
    A(f"s_cbranch_scc1 {lb}")
    copy_srd(A, S_WK)
    A(f"s_mov_b32 s{sT+1}, {WS_K}")
    A(f"s_mov_b32 s{sNTYP}, 0")
    A(f"s_branch {le}")
    A.label(lb)
    A(f"s_sub_u32 s{sT}, s{sT}, 64")
    copy_srd(A, S_WV)
    A(f"s_mov_b32 s{sT+1}, {WS_V}")
    A(f"s_mov_b32 s{sNTYP}, 1")
    A(f"s_branch {le}")
    A.label(la)
    A(f"s_sub_u32 s{sT}, s{idx}, s{sNKV}")
    A(f"s_add_u32 s{sT}, s{sT}, s{sQ0}")
    copy_srd(A, S_WQ)
    A(f"s_mov_b32 s{sT+1}, {WS_Q}")
    A(f"s_mov_b32 s{sNTYP}, 0")
    A.label(le)
    A(f"s_lshl_b32 s{sSRC}, s{sT}, 7")
    A(f"s_lshl_b32 s3, s{S_WAVE}, 16")
    A(f"s_add_u32 s{sSRC}, s{sSRC}, s3")
    A(f"s_lshl_b32 s{sT+2}, s{sT}, 12")
    A(f"s_lshl_b32 s3, s{sSEG}, 18")
    A(f"s_add_u32 s{sT+2}, s{sT+2}, s3")
    A(f"s_add_u32 s{sT+2}, s{sT+2}, s{sT+1}")
    A(f"s_mov_b32 s{sRS32}, {32*8192}")

def params_w1(A, unit):
    copy_srd(A, S_W1)
    A(f"s_lshl_b32 s{sSRC}, s{unit}, 7")
    A(f"s_mul_i32 s3, s{S_WAVE}, {8*9216}")
    A(f"s_add_u32 s{sSRC}, s{sSRC}, s3")
    A(f"s_mov_b32 s{sRS32}, {32*9216}")

def params_w2(A, unit):
    copy_srd(A, S_W2)
    A(f"s_mul_i32 s{sSRC}, s{unit}, {64*1152}")
    A(f"s_lshr_b32 s3, s{S_WAVE}, 1")
    A(f"s_mul_i32 s3, s3, {16*1152}")
    A(f"s_add_u32 s{sSRC}, s{sSRC}, s3")
    A(f"s_and_b32 s3, s{S_WAVE}, 1")
    A(f"s_mul_i32 s3, s3, {4*1152}")
    A(f"s_add_u32 s{sSRC}, s{sSRC}, s3")

def dma_ops(kind, vo):
    ops = []
    for i in range(18):
        g = [f"s_add_u32 m0, s{sLB}, {i*4096}"]
        if kind == 2:
            g.append(f"s_add_u32 s{sT+3}, s{sSRC}, {(i & 1)*32*1152 + (i >> 1)*128}")
            g.append(f"buffer_load_dwordx4 v{vo}, s[{S_CUR}:{S_CUR+3}], s{sT+3} offen lds")
        else:
            g.append("s_nop 0")
            g.append(f"buffer_load_dwordx4 v{vo}, s[{S_CUR}:{S_CUR+3}], s{sSRC} offen lds")
            g.append(f"s_add_u32 s{sSRC}, s{sSRC}, s{sRS32}")
        ops.append(g)
    return ops

def flip(A, younger=0):
    A(f"s_waitcnt vmcnt({younger}) lgkmcnt(0)")
    A("s_barrier")
    A(f"s_lshl_b32 s3, s{S_WAVE}, 10")
    A(f"s_sub_u32 s{sT+4}, s{sLB}, s3")
    A(f"s_sub_u32 s{sT+5}, {SLAB}, s{sT+4}")
    A(f"s_add_u32 s{sLB}, s{sT+5}, s3")
    A(f"s_sub_u32 s{sT+4}, s{sT+4}, s{sT+5}")
    for i in range(4):
        A(f"v_add_u32 v{vA+i}, s{sT+4}, v{vA+i}")

def store_epi(acc, soff, hp):
    ops = [f"v_cvt_pk_bf16_f32 v{hp+i}, v{acc+2*i}, v{acc+2*i+1}" for i in range(8)]
    return ops[:4] + [f"buffer_store_dwordx4 {v(hp,4)}, v{vL}, {BUF}, s{soff[0]} offen offset:{soff[1]} sc1"] + \
           ops[4:] + [f"buffer_store_dwordx4 {v(hp+4,4)}, v{vL}, {BUF}, s{soff[0]} offen offset:{soff[1]+1024} sc1"]

def silu_epi(acc, hp):
    ops = []
    for i in range(8):
        a0, a1 = acc + 2 * i, acc + 2 * i + 1
        t0, t1 = (vT1, vT2) if i % 2 == 0 else (vT3, vT4)
        ops += [f"v_mul_f32 v{t0}, s{sLOG}, v{a0}", f"v_mul_f32 v{t1}, s{sLOG}, v{a1}",
                f"v_exp_f32 v{t0}, v{t0}", f"v_exp_f32 v{t1}, v{t1}",
                f"v_add_f32 v{t0}, 1.0, v{t0}", f"v_add_f32 v{t1}, 1.0, v{t1}",
                f"v_rcp_f32 v{t0}, v{t0}", f"v_rcp_f32 v{t1}, v{t1}",
                f"v_mul_f32 v{a0}, v{a0}, v{t0}", f"v_mul_f32 v{a1}, v{a1}, v{t1}",
                f"v_cvt_pk_bf16_f32 v{hp+i}, v{a0}, v{a1}"]
    return ops

def mfma_stream(A, steps, fillers):
    L = LgkmTracker(A)
    tok = {}
    def rd(n):
        ad, off, _ = steps[n]
        f = FR + 4 * (n % 4)
        L.op(f"ds_read_b64_tr_b16 {v(f,2)}, v{ad} offset:{off}")
        tok[n] = L.op(f"ds_read_b64_tr_b16 {v(f+2,2)}, v{ad} offset:{off+512}")
    for n in range(3):
        rd(n)
    for n in range(len(steps)):
        L.wait(tok[n])
        A(steps[n][2](FR + 4 * (n % 4)))
        if n + 3 < len(steps):
            rd(n + 3)
        for t in fillers.get(n, []):
            A(t)

def spread(fillers, ops, start, per):
    n = start
    for i in range(0, len(ops), per):
        fillers.setdefault(n, []).extend(ops[i:i + per])
        n += 1
    return n

def proj_steps(vtype):
    steps = []
    for ct in range(2):
        acc = ACC0 if ct == 0 else ACC1
        for k in range(36):
            def f(fr, acc=acc, k=k):
                c = "0" if k == 0 else v(acc, 16)
                x, w = v(XN + 4 * k, 4), v(fr, 4)
                a_, b_ = (x, w) if vtype else (w, x)
                return f"v_mfma_f32_32x32x16_bf16 {v(acc,16)}, {a_}, {b_}, {c}"
            steps.append((vA + 2 * ct + k // 18, (k % 18) * 2048, f))
    return steps

def stage_proj(A, vtype, epi_prev, epi0, dma, extra=()):
    fill = {}
    for i, g in enumerate(dma):
        fill.setdefault(PAR['d0'] + PAR['ds'] * i, []).extend(g)
    per = 2 if len(epi0) < 20 else 4
    spread(fill, epi_prev, 30, 2)
    spread(fill, epi0, 40, per)
    for i, t in enumerate(extra):
        fill.setdefault(20 + (3 * i) // 2, []).append(t)
    mfma_stream(A, proj_steps(vtype), fill)

def stage_ffn2(A, epi1, dma):
    steps = []
    for k in range(4):
        for dt in range(18):
            def f(fr, dt=dt, k=k):
                o = r(out_tile(dt), 16)
                return f"v_mfma_f32_32x32x16_bf16 {o}, {v(fr,4)}, {v(HP+4*k,4)}, {o}"
            blk = 4 * (dt >> 1) + k
            steps.append((vA + 2 * (dt & 1) + blk // 18, (blk % 18) * 2048, f))
    fill = {}
    for i, g in enumerate(dma):
        fill.setdefault(PAR['d0'] + PAR['ds'] * i, []).extend(g)
    spread(fill, epi1, 4, 4)
    mfma_stream(A, steps, fill)

def x_loads(A, seg, dst, addr):
    A(f"v_bfe_u32 v{addr}, v{vL}, 4, 5")
    A(f"s_lshl_b32 s3, s{seg}, 5")
    A(f"v_add_u32 v{addr}, s3, v{addr}")
    A(f"v_mul_u32_u24 v{addr}, 1152, v{addr}")
    A(f"v_bfe_u32 v{vT2}, v{vL}, 9, 1")
    A(f"v_lshl_add_u32 v{addr}, v{vT2}, 4, v{addr}")
    return [f"buffer_load_dwordx4 {r(dst+4*k,4)}, v{addr}, s[{S_X}:{S_X+3}], 0 offen offset:{32*k}" for k in range(36)]

def layernorm(A):
    A.c("bulk: load x rows as MFMA fragments and normalise them")
    for t in x_loads(A, sSEG, XN, vT1):
        A(t)

def layernorm2(A, dma=(), from_acc=False):
    dma = list(dma)
    s1, s2, one = ACC0, ACC0 + 4, ACC0 + 8
    for i in range(8):
        A(f"v_mov_b32 v{ACC0+i}, 0")
    A(f"v_mov_b32 v{one}, 0x3f803f80")
    for k in range(36):
        if from_acc:
            for i in range(4):
                A(f"v_accvgpr_read_b32 v{XN+4*k+i}, a{4*k+i}")
        elif k % 4 == 0:
            A(f"s_waitcnt vmcnt({32 - k})")
        for i in range(4):
            A(f"v_dot2c_f32_bf16 v{s1+i}, v{XN+4*k+i}, v{one}")
            A(f"v_dot2c_f32_bf16 v{s2+i}, v{XN+4*k+i}, v{XN+4*k+i}")
    A("s_nop 2")
    for b in (s1, s2):
        A(f"v_add_f32 v{b}, v{b}, v{b+1}")
        A(f"v_add_f32 v{b+2}, v{b+2}, v{b+3}")
        A(f"v_add_f32 v{b}, v{b}, v{b+2}")
        A(f"v_mov_b32 v{b+1}, v{b}")
    A("s_nop 1")
    A(f"v_permlane32_swap_b32 v{s1}, v{s1+1}")
    A(f"v_permlane32_swap_b32 v{s2}, v{s2+1}")
    A(f"v_add_f32 v{s1}, v{s1}, v{s1+1}")
    A(f"v_add_f32 v{s2}, v{s2}, v{s2+1}")
    A(f"v_mul_f32 v{s1}, 0x3ae38e39, v{s1}")
    A(f"v_mul_f32 v{s2}, 0x3ae38e39, v{s2}")
    A(f"v_fma_f32 v{s2}, -v{s1}, v{s1}, v{s2}")
    A(f"v_max_f32 v{s2}, 0, v{s2}")
    A(f"v_cvt_pk_bf16_f32 v{s1+1}, v{s2}, v{s1}")
    A(f"v_lshlrev_b32 v{s2}, 16, v{s1+1}")
    A(f"v_and_b32 v{s1}, 0xffff0000, v{s1+1}")
    A(f"v_add_f32 v{s2}, 0x3727c5ac, v{s2}")
    A(f"v_cvt_pk_bf16_f32 v{s2}, v{s2}, v{s2}")
    A(f"v_lshlrev_b32 v{s2}, 16, v{s2}")
    A(f"v_sqrt_f32 v{s2}, v{s2}")
    A("s_nop 0")
    A(f"v_cvt_pk_bf16_f32 v{s2}, v{s2}, v{s2}")
    A(f"v_lshlrev_b32 v{s2}, 16, v{s2}")
    A(f"v_rcp_f32 v{s2}, v{s2}")
    A("s_nop 0")
    A(f"v_mul_f32 v{s1}, v{s1}, v{s2}")
    A(f"s_mov_b32 s{sT+6}, 0xffff0000")
    for i in range(144):
        t = ACC1 + 2 * (i % 4)
        A(f"v_lshlrev_b32 v{t}, 16, v{XN+i}")
        A(f"v_and_b32 v{t+1}, s{sT+6}, v{XN+i}")
        A(f"v_pk_fma_f32 {v(t,2)}, {v(t,2)}, {v(s2,2)}, {v(s1,2)} op_sel_hi:[1,0,0] neg_lo:[0,0,1] neg_hi:[0,0,1]")
        A(f"v_cvt_pk_bf16_f32 v{XN+i}, v{t}, v{t+1}")
        if i % 4 == 0 and dma:
            for x in dma.pop(0): A(x)

def signal(A, line_sgpr, amount=1):
    l = A.newlabel("sig")
    A(f"s_cmp_lg_u32 s{S_WAVE}, 0")
    A(f"s_cbranch_scc1 {l}")
    A(f"v_mov_b32 v{vT1}, {amount}")
    A(f"v_mov_b32 v{vT2}, 0")
    A("s_mov_b64 exec, 1")
    A(f"buffer_atomic_add v{vT1}, v{vT2}, {BUF}, s{line_sgpr} offen")
    A("s_mov_b64 exec, -1")
    A.label(l)

FINE = None
XO = set()
NP0 = 3
KV_FULL = 448

def two_types(A, epi_prev, epi0, dma, extra=()):
    lv, lj = A.newlabel("projv"), A.newlabel("projj")
    A(f"s_cmp_eq_u32 s{sTYP}, 1")
    A(f"s_cbranch_scc1 {lv}")
    for vt in range(2):
        if vt:
            A.label(lv)
        stage_proj(A, vt, epi_prev, epi0, dma, extra)
        if not vt:
            A(f"s_branch {lj}")
    A.label(lj)

def counts(A, fail):
    A(f"v_lshrrev_b32 v{vT1}, 2, v{vL}")
    read_counts(A, fail, vT1, True, 80)

def run(A, fail, hook=None):
    setup(A)
    lmain, lskip, lown = A.newlabel("main"), A.newlabel("nop0"), A.newlabel("own")
    A(f"s_lshl_b32 s{sLB}, s{S_WAVE}, 10")
    for i in range(4):
        A(f"v_add_u32 v{vA+i}, {SLAB}, v{vA+i}")
    A(f"s_mov_b32 s{sSIG}, s{sNKV}")
    A.c("bulk: first the K/V projections of the leading row blocks")
    A(f"s_mov_b32 s{sP0R}, s{sRB}")
    A(f"s_mov_b32 s{sP0U}, s{sJ}")
    A(f"s_cmp_lt_u32 s{sRB}, {NP0}")
    A(f"s_cselect_b32 s{sNKV}, 0, s{sNKV}")
    A(f"s_cselect_b32 s{sSIG}, -2, s{sSIG}")
    A(f"s_cbranch_scc1 {lown}")
    A(f"s_cmp_lt_u32 s{sRB}, {NP0 + 2}")
    A(f"s_cbranch_scc1 {lskip}")
    A(f"s_mul_i32 s3, s{sJ}, {14 - NP0}")
    A(f"s_add_u32 s3, s3, s{sRB}")
    A(f"s_sub_u32 s3, s3, {NP0 + 2}")
    A(f"s_cmp_ge_u32 s3, {50 * NP0}")
    A(f"s_cbranch_scc1 {lskip}")
    A(f"s_mul_i32 s{sP0U}, s3, 171")
    A(f"s_lshr_b32 s{sP0U}, s{sP0U}, 9")
    A(f"s_mul_i32 s{sP0R}, s{sP0U}, 3")
    A(f"s_sub_u32 s{sP0R}, s3, s{sP0R}")
    A(f"s_add_u32 s{sP0U}, s{sP0U}, 14")
    A.label(lown)
    A(f"s_mov_b32 s{sSAV}, s{sKV0}")
    A(f"s_mov_b32 s{sSAV+1}, s{sNKV}")
    A(f"s_lshl_b32 s{sKV0}, s{sP0U}, 1")
    A(f"s_mov_b32 s{sNKV}, 2")
    A(f"s_lshl_b32 s{sSEG}, s{sP0R}, 2")
    A(f"s_add_u32 s{sSEG}, s{sSEG}, s{S_WAVE}")
    layernorm(A)
    A(f"s_mov_b32 s{sI}, 0")
    params_qkv(A, sI)
    layernorm2(A, dma_ops(1, vD1))
    if hook: hook(0)
    A(f"s_lshl_b32 s{sT+7}, s{sRB}, 2")
    A(f"s_add_u32 s{sT+7}, s{sT+7}, s{S_WAVE}")
    x2 = x_loads(A, sT + 7, 256, vT4 + 2)
    flip(A)
    if FINE: FINE(A, 0)
    A(f"s_mov_b32 s{sOUT}, s{sT+2}")
    A(f"s_mov_b32 s{sTYP}, s{sNTYP}")
    A(f"s_mov_b32 s{sI}, 1")
    params_qkv(A, sI)
    if 'x2' not in XO:
        x2 = []
    two_types(A, [], store_epi(ACC0, (sOUT, 0), HP + 8), dma_ops(1, vD1), x2[:34])
    for t in x2[34:]:
        A(t)
    A(f"s_mov_b32 s{sPOUT}, s{sOUT}")
    if FINE: FINE(A, 1)
    flip(A, 38 if 'x2' in XO else 2)
    if FINE: FINE(A, 2)
    A(f"s_mov_b32 s{sOUT}, s{sT+2}")
    A(f"s_mov_b32 s{sKV0}, s{sSAV}")
    A(f"s_mov_b32 s{sNKV}, s{sSAV+1}")
    A(f"s_lshl_b32 s{sSEG}, s{sRB}, 2")
    A(f"s_add_u32 s{sSEG}, s{sSEG}, s{S_WAVE}")
    A(f"s_mov_b32 s{sI}, 0")
    params_qkv(A, sI)
    two_types(A, store_epi(ACC1, (sPOUT, 2048), HP), store_epi(ACC0, (sOUT, 0), HP + 8), dma_ops(1, vD1))
    A("s_nop 7")
    A("s_nop 3")
    for t in store_epi(ACC1, (sOUT, 2048), HP):
        A(t)
    if FINE: FINE(A, 3)
    counts(A, fail)
    A("s_barrier")
    A(f"s_lshl_b32 s{sT}, s{sP0R}, 7")
    A(f"s_add_u32 s{sT}, s{sT}, {WS_FLAG + FL_KV*128}")
    signal(A, sT, 7)
    if hook: hook(2)
    A(f"s_cmp_lt_u32 s{sRB}, {NP0}")
    A(f"s_cbranch_scc1 {lmain}")
    if 'x2' not in XO:
        layernorm(A)
    layernorm2(A, (), 'x2' in XO)
    A(f"s_branch {lmain}")
    A.label(lskip)
    layernorm(A)
    A(f"s_mov_b32 s{sI}, 0")
    params_qkv(A, sI)
    layernorm2(A, dma_ops(1, vD1))
    counts(A, fail)
    if hook: hook(0)
    A.label(lmain)
    A("s_waitcnt vmcnt(0)")
    A(f"s_add_u32 s{sN}, s{sNKV}, s{sNQ}")
    A(f"s_mov_b32 s{sPOUT}, 0x40000000")
    lp, lnx, lnx2, lns = (A.newlabel(x) for x in ("proj", "nx", "nx2", "nosig"))
    A.label(lp)
    flip(A, 4)
    A(f"s_mov_b32 s{sOUT}, s{sT+2}")
    A(f"s_mov_b32 s{sTYP}, s{sNTYP}")
    A(f"s_sub_u32 s3, s{sI}, 1")
    A(f"s_cmp_lg_u32 s3, s{sSIG}")
    A(f"s_cbranch_scc1 {lns}")
    A("s_waitcnt vmcnt(2)")
    A("s_barrier")
    if hook: hook(1)
    A(f"s_lshl_b32 s{sT}, s{sRB}, 7")
    A(f"s_add_u32 s{sT}, s{sT}, {WS_FLAG + FL_KV*128}")
    signal(A, sT, 32)
    A.label(lns)
    A(f"s_add_u32 s{sI}, s{sI}, 1")
    A(f"s_cmp_eq_u32 s{sI}, s{sN}")
    A(f"s_cbranch_scc1 {lnx}")
    params_qkv(A, sI)
    A(f"v_mov_b32 v{vT4+2}, v{vD1}")
    A(f"s_branch {lnx2}")
    A.label(lnx)
    params_w1(A, sF0)
    A(f"v_mov_b32 v{vT4+2}, v{vD1F}")
    A.label(lnx2)
    two_types(A, store_epi(ACC1, (sPOUT, 2048), HP), store_epi(ACC0, (sOUT, 0), HP + 8), dma_ops(1, vT4 + 2))
    A(f"s_mov_b32 s{sPOUT}, s{sOUT}")
    A(f"s_cmp_lt_u32 s{sI}, s{sN}")
    A(f"s_cbranch_scc1 {lp}")
    A("s_nop 7")
    A("s_nop 3")
    for t in store_epi(ACC1, (sPOUT, 2048), HP):
        A(t)
    A.c("bulk: fused FFN over this range of hidden units")
    for i in range(256):
        A(f"v_accvgpr_write_b32 a{i}, 0")
    for i in range(0, 32, 2):
        A(f"v_mov_b64 {v(OUTV+i,2)}, 0")
    A(f"s_mov_b32 s{sI}, 0")
    lf, lf2, lf3 = A.newlabel("ffn"), A.newlabel("ffnl"), A.newlabel("ffnj")
    A.label(lf)
    flip(A)
    A(f"s_add_u32 s{sT+6}, s{sF0}, s{sI}")
    params_w2(A, sT + 6)
    stage_proj(A, 0, [], silu_epi(ACC0, HP), dma_ops(2, vD2))
    flip(A)
    A(f"s_add_u32 s{sI}, s{sI}, 1")
    A(f"s_add_u32 s{sT+6}, s{sF0}, s{sI}")
    A(f"s_min_u32 s{sT+6}, s{sT+6}, 71")
    params_w1(A, sT + 6)
    stage_ffn2(A, silu_epi(ACC1, HP + 8), dma_ops(1, vD1F))
    A(f"s_cmp_lt_u32 s{sI}, s{sNF}")
    A(f"s_cbranch_scc1 {lf}")
    A.c("bulk: FFN partial -> workspace")
    A(f"s_mul_i32 s{sOUT}, s{sSEG}, {36*16384}")
    A(f"s_lshl_b32 s3, s{sJ}, 10")
    A(f"s_add_u32 s{sOUT}, s{sOUT}, s3")
    A(f"s_add_u32 s{sOUT}, s{sOUT}, {WS_FFN}")
    A("s_nop 7")
    for dt in range(18):
        for half in range(2):
            b = 2 * dt + half
            hp = HP + 4 * (b % 4)
            for i in range(4):
                o = out_tile(dt) + 8 * half + 2 * i
                if dt < 16:
                    A(f"v_accvgpr_read_b32 v{vT1}, a{o-256}")
                    A(f"v_accvgpr_read_b32 v{vT2}, a{o-255}")
                    A(f"v_cvt_pk_bf16_f32 v{hp+i}, v{vT1}, v{vT2}")
                else:
                    A(f"v_cvt_pk_bf16_f32 v{hp+i}, v{o}, v{o+1}")
            A(f"buffer_store_dwordx4 {v(hp,4)}, v{vL}, {BUF}, s{sOUT} offen sc1")
            A(f"s_add_u32 s{sOUT}, s{sOUT}, 16384")
    A("s_waitcnt vmcnt(0)")
    A("s_barrier")
    A(f"s_lshl_b32 s{sT}, s{sRB}, 7")
    A(f"s_add_u32 s{sT}, s{sT}, {WS_FLAG + FL_ALL*128}")
    signal(A, sT)
```

```python
from common import *

L_M   = 0
L_O   = 0
XP    = 1088
L_X   = 9216
L_VM  = L_X + 4 * XP
L_KX  = L_VM + 2 * XP
L_JUNK= L_KX + 8192
L_KVC = L_JUNK + 512
L_RES = 24576
assert L_JUNK + 512 <= L_RES and L_KX % 16 == 0

vL16, vIDX, vMASK, vRES, vMA, vXW, vXR, vOW, vPST, vT = range(10)
WV0 = 72
def wreg(i):
    return WV0 + 8 * i

import os
W6 = os.environ.get('W6') == '1'
QK_LDS_KAPPA = [1, 2, 3, 6, 7, 10, 11, 14, 15] if W6 else [1, 2, 3, 4, 5, 7, 8, 10, 11, 13, 14, 15]
WO_REG = [(rd, k) for rd in range(4) for k in range(4) if (rd, k) not in (((1, 2), (2, 0), (2, 2), (3, 0), (3, 2), (3, 3)) if W6 else ((2, 2), (3, 0), (3, 2)))]

def unit_tables():
    loc = {}
    n = 0
    for k in range(18):
        loc[('q', k)] = ('r', n); n += 1
        if k not in QK_LDS_KAPPA:
            loc[('k', k)] = ('r', n); n += 1
    for k in range(18):
        loc[('v', k)] = ('r', n); n += 1
    for u in WO_REG:
        loc[('o',) + u] = ('r', n); n += 1
    assert n == 55
    off = 0
    for k in QK_LDS_KAPPA:
        loc[('k', k)] = ('l', off); off += 8192
    for rd in range(4):
        for k in range(4):
            if (rd, k) not in WO_REG:
                loc[('o', rd, k)] = ('l', off); off += 8192
    for k in range(4):
        loc[('o', 4, k)] = ('l', off - 4096); off += 4096
    assert off == 17 * 8192
    return loc
LOC = unit_tables()
WO_BASE = len(QK_LDS_KAPPA) * 8192
STB = [26, 34, 62]

sH = S_ROLE
sSTEP, sCNT, sKVOFF, sRHO, sISRED = 50, 51, 52, 53, 54
sPST = 55
sRLD, sMST, sC, sFV, sPUB, sFLAG, sKXO, sWARM = 60, 61, 62, 64, 65, 66, 67, 68
sMLD, sGATE, sEXM = 24, 27, 28
sONE = 76
sQKVB, sWOB = 69, 70
sH1W, sH1R, sH2W, sH2R = 69, 70, 71, 75
sT = 72
SPIN_MAX = 20000
OPT = set()
AFTER = None
LDST = None
KVGATE = 0
BUF = f"s[{S_WS}:{S_WS+3}]"

def setup(A):
    A.c("chain: lane constants (v0 = lane id on entry)")
    n, g, t1, t2, ln = 10, 11, 12, 13, 14
    A(f"v_mov_b32 v{ln}, v0")
    A(f"v_and_b32 v{n}, 15, v{ln}")
    A(f"v_lshrrev_b32 v{g}, 4, v{ln}")
    A(f"v_mov_b32 v{vIDX}, 0x44444444")
    A(f"v_mov_b32 v{t1}, 0xeeeeeeee")
    A(f"v_cmp_lt_u32 vcc, 7, v{n}")
    A("s_nop 1")
    A(f"v_cndmask_b32 v{vIDX}, v{vIDX}, v{t1}, vcc")
    A(f"v_mov_b32 v{vMASK}, 0")
    A(f"v_mov_b32 v{t1}, 0xff800000")
    A(f"v_cmp_gt_u32 vcc, 32, v{ln}")
    A("s_nop 1")
    A(f"v_cndmask_b32 v{vMASK}, v{vMASK}, v{t1}, vcc")
    A(f"v_lshlrev_b32 v{vL16}, 4, v{ln}")
    A(f"s_lshl_b32 s3, s{S_WAVE}, 11")
    A(f"s_add_u32 s3, s3, {L_RES}")
    A(f"v_add_u32 v{vRES}, s3, v{vL16}")
    A(f"v_and_b32 v{t1}, 7, v{ln}")
    A(f"v_lshl_add_u32 v{t1}, v{g}, 3, v{t1}")
    A(f"v_lshlrev_b32 v{vMA}, 4, v{t1}")
    A(f"v_and_b32 v{t1}, 1, v{g}")
    A(f"v_mul_u32_u24 v{t1}, {XP}, v{t1}")
    A(f"v_lshrrev_b32 v{t2}, 1, v{g}")
    A(f"v_lshl_add_u32 v{t2}, v{t2}, 4, v{n}")
    A(f"s_lshl_b32 s3, s{S_WAVE}, 5")
    A(f"v_add_u32 v{t2}, s3, v{t2}")
    A(f"v_lshl_add_u32 v{vXW}, v{t2}, 3, v{t1}")
    A(f"v_add_u32 v{vXW}, {L_X}, v{vXW}")
    A(f"v_and_b32 v{t1}, 3, v{n}")
    A(f"v_mul_u32_u24 v{t1}, {XP}, v{t1}")
    A(f"v_lshrrev_b32 v{t2}, 1, v{g}")
    A(f"v_lshlrev_b32 v{t2}, 4, v{t2}")
    A(f"v_and_b32 v{vXR}, 1, v{g}")
    A(f"v_lshl_add_u32 v{t2}, v{vXR}, 2, v{t2}")
    A(f"v_lshrrev_b32 v{vXR}, 2, v{n}")
    A(f"v_add_u32 v{t2}, v{t2}, v{vXR}")
    A(f"v_lshl_add_u32 v{vXR}, v{t2}, 3, v{t1}")
    A(f"v_add_u32 v{vXR}, {L_X}, v{vXR}")
    A(f"s_lshl_b32 s3, s{S_WAVE}, 9")
    A(f"s_add_u32 s3, s3, {L_O}")
    A(f"v_mov_b32 v{t1}, s3")
    A(f"v_mov_b32 v{t2}, {L_JUNK}")
    A(f"v_cmp_lt_u32 vcc, 7, v{n}")
    A("s_nop 1")
    A(f"v_cndmask_b32 v{t1}, v{t1}, v{t2}, vcc")
    A(f"v_add_u32 v{vOW}, v{t1}, v{vMA}")
    A(f"v_and_b32 v{t1}, 2, v{g}")
    A(f"v_lshrrev_b32 v{vPST}, 3, v{n}")
    A(f"v_add_u32 v{t1}, v{t1}, v{vPST}")
    A(f"v_lshlrev_b32 v{t1}, 12, v{t1}")
    A(f"v_and_b32 v{t2}, 1, v{g}")
    A(f"v_lshl_add_u32 v{t1}, v{t2}, 3, v{t1}")
    A(f"v_and_b32 v{vPST}, 7, v{n}")
    A(f"v_lshl_add_u32 v{vPST}, v{vPST}, 4, v{t1}")

def setup_scalars(A):
    A.c("chain: scalar constants")
    A(f"s_lshl_b32 s3, s{sH}, 7")
    A(f"s_lshl_b32 s{sT}, s{S_WAVE}, 14")
    A(f"s_add_u32 s3, s3, s{sT}")
    A(f"s_add_u32 s{sPST}, s3, {WS_PART}")
    for rd in range(1, 4):
        A(f"s_add_u32 s{sPST+rd}, s{sPST}, {rd*65536}")
    A(f"s_add_u32 s{sPST+4}, s{sPST}, {4*65536 - 2*16384}")
    A(f"s_lshl_b32 s{sRHO}, s{S_WAVE}, 5")
    A(f"s_add_u32 s{sRHO}, s{sRHO}, s{sH}")
    A(f"s_cmp_lt_u32 s{sRHO}, 72")
    A(f"s_cselect_b32 s{sISRED}, 1, 0")
    A(f"s_cmp_eq_u32 s{S_WAVE}, 3")
    A(f"s_cselect_b32 s{sISRED}, 0, s{sISRED}")
    A(f"s_lshl_b32 s{sRLD}, s{sRHO}, 12")
    A(f"s_add_u32 s{sRLD}, s{sRLD}, {WS_PART}")
    A(f"s_lshl_b32 s{sMST}, s{sRHO}, 7")
    A(f"s_add_u32 s{sMST}, s{sMST}, {WS_M}")
    for i in range(3):
        A(f"s_mov_b32 s{sMLD+i}, {WS_M + 4096*i}")
    A(f"s_mov_b32 s{sC}, 0x3e029413")
    A(f"s_lshl_b32 s{sKVOFF}, s{sH}, 13")
    A(f"s_lshl_b32 s{sPUB}, s{sH}, 12")
    A(f"s_add_u32 s3, s{S_WAVE}, 1")
    A(f"s_cmp_eq_u32 s{S_WAVE}, 3")
    A(f"s_cselect_b32 s3, 1, s3")
    A(f"s_cmp_eq_u32 s{S_WAVE}, 0")
    A(f"s_cselect_b32 s3, 0, s3")
    A(f"s_lshl_b32 s3, s3, 10")
    A(f"s_add_u32 s{sPUB}, s{sPUB}, s3")
    A(f"s_add_u32 s{sPUB}, s{sPUB}, {WS_KVM - 32*4096}")
    A(f"s_lshl_b32 s{sFLAG}, s{sH}, 7")
    A(f"s_add_u32 s{sFLAG}, s{sFLAG}, {WS_FLAG}")
    A(f"s_lshl_b32 s{sKXO}, s{S_WAVE}, 11")
    A(f"s_mov_b32 s{sONE}, 0x3f803f80")
    A(f"s_mov_b32 s{sONE+1}, 0x3f803f80")
    A(f"s_mov_b32 s{sC+1}, s{sC}")
    A(f"s_lshr_b32 s{sWARM}, s{S_WAVE}, 1")
    A(f"s_mul_i32 s{sWARM}, s{sWARM}, {WS_V - WS_K}")
    A(f"s_and_b32 s3, s{S_WAVE}, 1")
    A(f"s_lshl_b32 s3, s3, 12")
    A(f"s_add_u32 s{sWARM}, s{sWARM}, s3")

def load_weights(A, fail, nrb):
    A.c("chain: weight load")
    ln, vQ, vO, vO4, vTR, vTR4, t1, t2, t3 = 14, 15, 16, 17, 18, 19, 20, 21, 22
    CV = 24
    A(f"v_lshrrev_b32 v{t1}, 4, v{ln}")
    A(f"v_lshlrev_b32 v{t2}, 2, v{t1}")
    A(f"v_xor_b32 v{t2}, v{t2}, v{ln}")
    A(f"v_and_b32 v{t2}, 15, v{t2}")
    A(f"v_lshlrev_b32 v{t2}, 4, v{t2}")
    A(f"v_and_b32 v{t3}, 1, v{t1}")
    A(f"v_lshlrev_b32 v{t3}, 1, v{t3}")
    A(f"v_lshrrev_b32 v{vQ}, 1, v{t1}")
    A(f"v_add_u32 v{t3}, v{t3}, v{vQ}")
    A(f"v_lshl_add_u32 v{vQ}, v{t3}, 13, v{t2}")
    A(f"v_lshrrev_b32 v{t3}, 1, v{t1}")
    A(f"v_lshlrev_b32 v{t3}, 4, v{t3}")
    A(f"v_and_b32 v{vO}, 1, v{t1}")
    A(f"v_add_u32 v{t3}, v{t3}, v{vO}")
    A(f"v_mul_u32_u24 v{t3}, 1152, v{t3}")
    A(f"v_add_u32 v{vO}, v{t3}, v{t2}")
    A(f"v_lshrrev_b32 v{t1}, 3, v{ln}")
    A(f"v_bfe_u32 v{t2}, v{t1}, 1, 1")
    A(f"v_lshlrev_b32 v{t3}, 4, v{t2}")
    A(f"v_lshlrev_b32 v{t2}, 2, v{t2}")
    A(f"v_xor_b32 v{t2}, v{t2}, v{ln}")
    A(f"v_and_b32 v{t2}, 7, v{t2}")
    A(f"v_lshlrev_b32 v{t2}, 4, v{t2}")
    A(f"v_and_b32 v{vO4}, 1, v{t1}")
    A(f"v_add_u32 v{t3}, v{t3}, v{vO4}")
    A(f"v_bfe_u32 v{vO4}, v{t1}, 2, 1")
    A(f"v_lshl_add_u32 v{t3}, v{vO4}, 1, v{t3}")
    A(f"v_mul_u32_u24 v{t3}, 1152, v{t3}")
    A(f"v_add_u32 v{vO4}, v{t3}, v{t2}")
    A(f"v_bfe_u32 v{t1}, v{ln}, 4, 1")
    A(f"v_bfe_u32 v{t2}, v{ln}, 2, 1")
    A(f"v_lshl_add_u32 v{t1}, v{t1}, 1, v{t2}")
    A(f"v_bfe_u32 v{t2}, v{ln}, 5, 1")
    A(f"v_lshl_add_u32 v{t2}, v{t2}, 3, v{t1}")
    A(f"v_bfe_u32 v{t3}, v{ln}, 3, 1")
    A(f"v_lshlrev_b32 v{t3}, 5, v{t3}")
    A(f"v_and_b32 v{vTR}, 3, v{ln}")
    A(f"v_lshl_add_u32 v{t3}, v{vTR}, 3, v{t3}")
    A(f"v_xor_b32 v{vTR}, s{S_WAVE}, v{t1}")
    A(f"v_lshl_add_u32 v{vTR}, v{vTR}, 6, v{t3}")
    A(f"v_lshl_add_u32 v{vTR}, v{t2}, 8, v{vTR}")
    A(f"v_add_u32 v{vTR}, {L_RES}, v{vTR}")
    A(f"v_lshrrev_b32 v{t1}, 1, v{t1}")
    A(f"s_and_b32 s3, s{S_WAVE}, 1")
    A(f"v_xor_b32 v{vTR4}, s3, v{t1}")
    A(f"v_lshl_add_u32 v{vTR4}, v{vTR4}, 6, v{t3}")
    A(f"v_lshl_add_u32 v{vTR4}, v{t2}, 7, v{vTR4}")
    A(f"v_add_u32 v{vTR4}, {L_RES + 15*8192}, v{vTR4}")
    vTRb = [vTR, 10, 11]
    A(f"v_add_u32 v10, {7*8192}, v{vTR}")
    A(f"v_add_u32 v11, {14*8192}, v{vTR}")
    vRb = [vRES, 12, 13]
    A(f"v_add_u32 v12, {7*8192}, v{vRES}")
    A(f"v_add_u32 v13, {14*8192}, v{vRES}")
    A(f"s_lshl_b32 s{sQKVB}, s{sH}, 8")
    A(f"s_lshl_b32 s3, s{S_WAVE}, 16")
    A(f"s_add_u32 s{sQKVB}, s{sQKVB}, s3")
    A(f"s_mul_i32 s{sWOB}, s{sH}, {128*1152}")
    A(f"s_mul_i32 s3, s{S_WAVE}, {4*1152}")
    A(f"s_add_u32 s{sWOB}, s{sWOB}, s3")
    A(f"s_lshl_b32 s{sT+1}, s{S_WAVE}, 11")
    A(f"s_add_u32 s{sT+1}, s{sT+1}, {L_RES}")
    A(f"s_lshl_b32 s{sT+2}, s{S_WAVE}, 10")
    A(f"s_add_u32 s{sT+2}, s{sT+2}, {L_RES + 15*8192}")

    regu = sorted([u for u in LOC if LOC[u][0] == 'r'], key=lambda u: LOC[u][1])
    resu = sorted([u for u in LOC if LOC[u][0] == 'l' and not (u[0] == 'o' and u[1] == 4)], key=lambda u: LOC[u][1])
    NR = 15
    seq = regu + resu
    first = (-len(regu)) % NR
    slot = lambda i: (first + i) % NR
    def issue(i):
        u = seq[i]
        for q in range(2):
            if u[0] == 'o':
                A(f"s_add_u32 s{sT}, s{sWOB}, {(u[2]*32 + 2*q)*1152 + u[1]*256}")
                d, vo = S_WO, vO
            else:
                A(f"s_add_u32 s{sT}, s{sQKVB}, {(u[1]*32 + 4*q)*8192}")
                d, vo = {'q': S_WQ, 'k': S_WK, 'v': S_WV}[u[0]], vQ
            A(f"s_add_u32 m0, s{sT+1}, {slot(i)*8192 + q*1024}")
            A("s_nop 0")
            A(f"buffer_load_dwordx4 v{vo}, s[{d}:{d+3}], s{sT} offen lds")
    def trread(dst, sl):
        for u4 in range(4):
            A(f"ds_read_b64_tr_b16 {r(dst+2*u4,2)}, v{vTRb[sl//7]} offset:{(sl%7)*8192 + 4096*(u4>>1) + 1024*(u4&1)}")
    order = []
    def issue_blk(i):
        issue(i); order.extend([i, i])
    vWR = 23
    A(f"v_and_b32 v{vWR}, 0xf0, v{vL16}")
    A(f"v_lshlrev_b32 v{vWR}, 3, v{vWR}")
    A(f"v_lshrrev_b32 v{t1}, 8, v{vL16}")
    A(f"v_min_u32 v{t1}, 1, v{t1}")
    A(f"v_lshl_or_b32 v{vWR}, v{t1}, 30, v{vWR}")
    A(f"s_lshl_b32 s{sT+3}, s{sH}, 13")
    A(f"s_lshl_b32 s3, s{S_WAVE}, 11")
    A(f"s_add_u32 s{sT+3}, s{sT+3}, s3")
    warmed = [NR]
    def warm_to(n):
        while warmed[0] < min(n, len(seq)):
            u = seq[warmed[0]]; warmed[0] += 1
            if u[0] != 'o' and PAR['wd']:
                d = {'q': S_WQ, 'k': S_WK, 'v': S_WV}[u[0]]
                A(f"s_mov_b32 m0, {L_JUNK}")
                A(f"s_add_u32 s{sT}, s{sT+3}, {u[1]*32*8192}")
                A(f"buffer_load_dword v{vWR}, s[{d}:{d+3}], s{sT} offen lds")
                order.append(None)
    issued = 0
    while issued < PAR['fill']:
        issue_blk(issued); issued += 1
    G = PAR['G']
    i = 0
    gi = 0
    pending_w = []
    HB = 40
    GA, GB = PAR['ga'], 28
    while i < len(seq):
        grp = list(range(i, min(i + G, len(seq))))
        if i < len(regu) < grp[-1] + 1:
            grp = list(range(i, len(regu)))
        last = max(p for p, b in enumerate(order) if b == grp[-1])
        assert len(order) - 1 - last < 60
        A(f"s_waitcnt vmcnt({len(order) - 1 - last})")
        if LDST and gi in LDST:
            A(f"s_memrealtime s[{LDST[gi]}:{LDST[gi]+1}]")
        if gi == 0:
            init_done(A)
        if gi == 19:
            assert m0pos < last
            mem0_write(A)
        if gi == GB:
            assert pollpos < last
            lr, lb = A.newlabel("notyet"), A.newlabel("ready")
            if AFTER:
                A("s_memrealtime s[98:99]")
                A("s_mov_b32 s100, 0")
            eval_counts(A, 41, lr, True, 80)
            A(f"v_cmp_gt_u32 vcc, {0x1c0 if nrb else 0}, v43")
            A(f"s_cbranch_vccz {lb}")
            A.label(lr)
            A("s_mov_b32 s100, 1")
            read_counts(A, fail, 40, True, 80)
            if nrb:
                wait_kv(A, fail, nrb, 42)
            A.label(lb)
        A("s_barrier")
        if gi == 10:
            l = A.newlabel("hb")
            A(f"s_cmp_lt_u32 s{S_WAVE}, 2")
            A(f"s_cbranch_scc1 {l}")
            for k in range(4):
                A(f"ds_write_b128 v13, {v(HB+8*k,4)} offset:{4096 + k*4096}")
                A(f"ds_write_b128 v13, {v(HB+8*k+4,4)} offset:{4096 + k*4096 + 1024}")
            A.label(l)
        for t in pending_w:
            A(t)
        pending_w = []
        lim = issued + PAR['step']
        while issued < min(len(seq), i + NR, lim):
            issue_blk(issued); issued += 1
        if gi == 0:
            for k in range(4):
                A(f"s_add_u32 s{sT}, s{sWOB}, {k*32*1152 + 1024}")
                A(f"s_add_u32 m0, s{sT+2}, {k*4096}")
                A("s_nop 0")
                A(f"buffer_load_dwordx4 v{vO4}, s[{S_WO}:{S_WO+3}], s{sT} offen lds")
            order.extend([None] * 4); hbpos = len(order) - 1
        if gi == 11:
            mem0_issue(A)
            order.extend([None] * 18); m0pos = len(order) - 1
        warm_to(issued + PAR['wd'])
        if gi == GA:
            A(f"v_lshrrev_b32 v40, 2, v{vL16}")
            A(f"global_load_dword v41, v40, s[{S_DBG}:{S_DBG+1}] sc1")
            kv_addr(A, nrb, 42)
            A(f"buffer_load_dword v43, v42, {BUF}, s{sT} offen sc1")
            order.extend([None, None]); pollpos = len(order) - 1
        if gi == GB:
            assert issued == len(seq)
            kx_addr(A, 70, 71)
            A(f"s_lshl_b32 s3, s{S_WAVE}, 11")
            for xt in range(2):
                A(f"s_add_u32 m0, s3, {L_KX + xt*1024}")
                A(f"s_add_u32 s{sT}, s3, {WS_K + xt*128}")
                A(f"s_add_u32 s{sT}, s{sT}, s{sKVOFF}")
                A(f"buffer_load_dwordx4 v70, {BUF}, s{sT} offen sc1 lds")
            A(f"v_lshlrev_b32 v{tWA}, 2, v{vL16}")
            warm(A, sKVOFF, tWA)
            A(f"s_add_u32 s{sT+2}, s{sKVOFF}, {32*8192}")
            warm(A, sT + 2, tWA)
            order.extend([None] * 4)
        if gi == 9:
            assert hbpos < last
            for k in range(4):
                for u4 in range(4):
                    A(f"ds_read_b64_tr_b16 {v(HB+8*k+2*u4,2)}, v{vTR4} offset:{k*4096 + 2048*(u4>>1) + 512*(u4&1)}")
            A("s_waitcnt lgkmcnt(0)")
        for j, b in enumerate(grp):
            if b < len(regu):
                trread(wreg(LOC[seq[b]][1]), slot(b))
            else:
                assert slot(b) * 8192 == LOC[seq[b]][1]
                cv = CV + 8 * j
                if j == 0:
                    A("s_waitcnt lgkmcnt(0)")
                trread(cv, slot(b))
                sl = slot(b)
                pending_w += [f"ds_write_b128 v{vRb[sl//7]}, {v(cv,4)} offset:{(sl%7)*8192}",
                              f"ds_write_b128 v{vRb[sl//7]}, {v(cv+4,4)} offset:{(sl%7)*8192+1024}"]
        A("s_waitcnt lgkmcnt(0)")
        i = grp[-1] + 1
        gi += 1
    A("s_barrier")
    for t in pending_w:
        A(t)
    A("s_waitcnt lgkmcnt(0)")

def mem0_issue(A):
    A.c("chain: mem0 -> LDS fragment image")
    q, t1, ad, D = 62, 63, 64, 44
    A(f"s_lshl_b32 s3, s{S_WAVE}, 6")
    A(f"v_lshrrev_b32 v{q}, 4, v{vL16}")
    A(f"v_add_u32 v{q}, s3, v{q}")
    A(f"v_bfe_u32 v{t1}, v{q}, 2, 3")
    A(f"v_mul_u32_u24 v{ad}, 1152, v{t1}")
    A(f"v_lshrrev_b32 v{t1}, 5, v{q}")
    A(f"v_lshl_add_u32 v{ad}, v{t1}, 4, v{ad}")
    A(f"v_and_b32 v{t1}, 1, v{q}")
    A(f"v_lshl_add_u32 v{ad}, v{t1}, 3, v{ad}")
    A(f"v_bfe_u32 v{t1}, v{q}, 1, 1")
    A(f"v_lshl_add_u32 v{ad}, v{t1}, 1, v{ad}")
    for it in range(9):
        A(f"buffer_load_ushort v{D+2*it}, v{ad}, s[{S_TMPD}:{S_TMPD+3}], 0 offen offset:{it*128}")
        A(f"buffer_load_ushort v{D+2*it+1}, v{ad}, s[{S_TMPD}:{S_TMPD+3}], 0 offen offset:{it*128+4}")
    A(f"v_lshlrev_b32 v{q}, 2, v{q}")

def mem0_write(A):
    q, D = 62, 44
    for it in range(9):
        A(f"v_lshl_or_b32 v{D+2*it}, v{D+2*it+1}, 16, v{D+2*it}")
        A(f"ds_write_b32 v{q}, v{D+2*it} offset:{L_M + it*1024}")

AF, ST = 10, 26
QACC, KACC, VACC, VX, PUB = 42, 46, 50, 54, 62
tVX, tWA, tFL, tFV, tKX = 70, 66, 67, 68, 36
XPK = 62
XF, KXF = 10, 26
SX0, SX1, SM = 42, 46, 62
VAF = 66
PAR = dict(qks=(3, 9, 12, 16), rdelay=12, mdelay=8, kx=0, sp=6, ns=3, r1=4, kc=3, kb=6, ga=20, wd=0, G=2, fill=6, step=4)
sMK = 24
V_IN_QK = 6

def warm(A, seg_off_sgpr, va):
    A(f"s_add_u32 s{sT}, s{seg_off_sgpr}, s{sWARM}")
    A(f"s_mov_b32 m0, {L_JUNK}")
    A("s_nop 0")
    A(f"buffer_load_dword v{va}, {BUF}, s{sT} offen sc1 lds")

KBUF = {1: 26, 2: 34, 3: 62, 4: 26, 5: 34, 7: 26, 8: 34, 10: 26, 11: 34, 13: 26, 14: 34, 15: 62}
KFET = {1: 4, 2: 5, 4: 7, 5: 8, 7: 10, 8: 11, 10: 13, 11: 14, 12: 15}
if W6:
    KBUF = {1: 26, 2: 34, 3: 62, 6: 26, 7: 34, 10: 26, 11: 34, 14: 26, 15: 34}
    KFET = {2: 6, 4: 7, 7: 10, 8: 11, 11: 14, 12: 15}
MB = {1: (4, 5), 2: (6, 7), 3: (8,)}
NVQ = 12
tPA = 58

def pub_addr():
    return [f"v_bfe_u32 v{tPA}, v{vL16}, 5, 1", f"v_mul_i32_i24 v{tPA}, {256 - 2*XP}, v{tPA}", f"v_add_u32 v{tPA}, v{tPA}, v{vXR}"]

def pub_read(w):
    if w in (0, 3):
        o = 2 * XP + (512 if w else 0)
        return [f"ds_read_b64_tr_b16 {v(PUB,2)}, v{tPA} offset:{o}", f"ds_read_b64_tr_b16 {v(PUB+2,2)}, v{tPA} offset:{o+64}"]
    return [f"ds_read_b128 {v(PUB,4)}, v{vL16} offset:{L_VM + (w-1)*XP}"]

def kx_addr_ops(t, t2):
    return [f"v_bfe_u32 v{t2}, v{vL16}, 8, 2", f"v_and_b32 v{t}, 0x70, v{vL16}", f"v_lshl_add_u32 v{t}, v{t2}, 9, v{t}",
            f"v_and_b32 v{t2}, 0x80, v{vL16}", f"v_lshl_add_u32 v{t}, v{t2}, 1, v{t}"]

def kx_addr(A, t, t2):
    for x in kx_addr_ops(t, t2): A(x)

def kx_dma(A, w, t, ahead):
    for xt in range(2):
        A(f"s_mov_b32 m0, {L_KX + (2*w+xt)*1024}")
        A(f"s_add_u32 s{sT}, s{sKVOFF}, {WS_K + ahead*32*8192 + w*2048 + xt*128}")
        A(f"buffer_load_dwordx4 v{t}, {BUF}, s{sT} offen sc1 lds")

def vx_load(A):
    A(f"s_add_u32 s{sT}, s{sKVOFF}, {WS_V}")
    A(f"buffer_load_dwordx4 {v(VX,4)}, v{tVX}, {BUF}, s{sT} offen sc1")
    A(f"buffer_load_dwordx4 {v(VX+4,4)}, v{tVX}, {BUF}, s{sT} offen offset:256 sc1")

def vx_addr(A):
    A(f"v_and_b32 v{tVX}, 0xf0, v{vL16}")
    A(f"v_bfe_u32 v71, v{vL16}, 8, 2")
    A(f"v_lshl_add_u32 v71, v71, 9, s{sKXO}")
    A(f"v_add_u32 v{tVX}, v{tVX}, v71")

def kunit(k):
    o = LOC[('k', k)][1]
    base, o = (vRES, o) if o < 7 * 8192 else (vT, o - 7 * 8192)
    return [f"ds_read_b128 {v(KBUF[k],4)}, v{base} offset:{o}", f"ds_read_b128 {v(KBUF[k]+4,4)}, v{base} offset:{o+1024}"]

def st_preload(A):
    for k in (1, 2, 3):
        for t in kunit(k): A(t)

def pre_b1(A):
    for i in range(6):
        A(f"v_mov_b64 {v(QACC+2*i,2)}, 0")
    vx_addr(A)
    A(f"v_add_u32 v{vT}, {7*8192}, v{vRES}")

def delay(A, n):
    while n > 0:
        k = min(n, 4)
        A(f"s_nop {4*k-1}")
        n -= k

def smf(acc, af, w):
    return f"v_smfmac_f32_16x16x64_bf16 {v(acc,4)}, {v(af,4)}, {r(w,8)}, v{vIDX}"

STAMPS = {'al': (1, 2, 4, 6, 7), 'wo': (1, 2, 6, 7), 'sm': (1, 5, 6, 7), 'qk': (4, 5, 6, 7)}
def stamp(A, prof, i, mode=None):
    cur = [m for m in STAMPS if m in OPT]
    taken = STAMPS[cur[0]] if cur else ()
    if mode is True:
        mode = 'al'
    if prof and ((mode is None and i not in taken) or (mode in cur and i in taken)):
        A(f"{'s_memrealtime' if (mode == 'al' and i == 1) else 's_memtime'} s[{80+2*i}:{81+2*i}]")

def mread(L, dst, k):
    return L.op(f"ds_read_b128 {v(dst,4)}, v{vMA} offset:{L_M + k*512}")

def vstep(A, L, tokA, kv):
    tok, reg = tokA[('v', kv)]
    L.wait(tok)
    A(smf(VACC, reg, wreg(LOC[('v', kv)][1])))

def vload(L, tokA, kv, reg):
    tokA[('v', kv)] = (mread(L, reg, kv), reg)

def tagcheck(regs, ck, tag, stride):
    op = "0x80" if tag else "0xfe"
    out = []
    for i, b in enumerate(regs):
        d = [b + j for j in range(0, 4, stride)]
        if i == 0 and stride == 1:
            ops = [f"v_bitop3_b32 v{ck}, v{d[0]}, v{d[1]}, v{d[2]} bitop3:{op}", f"v_bitop3_b32 v{ck}, v{ck}, v{d[3]}, v{d[3]} bitop3:{op}"]
        elif i == 0:
            ops = [f"v_bitop3_b32 v{ck}, v{d[0]}, v{d[1]}, v{d[1]} bitop3:{op}"]
        else:
            ops = [f"v_bitop3_b32 v{ck}, v{ck}, v{d[j]}, v{d[j+1]} bitop3:{op}" for j in range(0, len(d), 2)]
        out.append(ops)
    out[-1] = out[-1] + [f"v_and_b32 v{ck}, 1, v{ck}", f"v_cmp_ne_u32 vcc, {tag}, v{ck}"]
    return out

def mload(A, reg, chunk):
    so, off = sMLD + chunk // 4, (chunk % 4) * 1024
    A(f"buffer_load_dwordx4 {v(reg,4)}, v{vL16}, {BUF}, s{so} offen offset:{off} sc1")

def mb_dma(A, w):
    for c in MB.get(w, ()):
        A(f"s_mov_b32 m0, {L_M + (c // 4) * 4096}")
        A("s_nop 0")
        A(f"buffer_load_dwordx4 v{vL16}, {BUF}, s{sMLD + c // 4} offen offset:{(c % 4) * 1024} sc1 lds")

def spin(A, cold, label, back, loads, check, fail, cnt):
    def f():
        A.label(label)
        loads()
        A(f"s_add_u32 s{sCNT}, s{sCNT}, {cnt}")
        A(f"s_cmp_gt_u32 s{sCNT}, {SPIN_MAX*cnt}")
        A(f"s_cbranch_scc1 {fail}")
        A("s_waitcnt vmcnt(0)")
        for t in check: A(t)
        A(f"s_cbranch_vccnz {label}")
        A(f"s_branch {back}")
    cold.append(f)

def qkv_stage(A, L, w, ptag, fail, cold, prof, last):
    tokA, tokU = {}, {1: 0, 2: 0, 3: 0}
    for k in range(3):
        tokA[k] = mread(L, AF + 4 * (k % 4), k)
    slots = [(k, m) for k in range(18) for m in (("v", "q", "k") if k < NVQ else ("q", "k"))]
    idx = {x: i for i, x in enumerate(slots)}
    pre, post, valu = {}, {}, {}
    add = lambda d, key, *x: d.setdefault(idx[key], []).extend(x)
    def spread_valu(ops, start):
        i = idx[start]
        for t in ops:
            while valu.get(i):
                i += 1
            valu[i] = [t]
        return i
    rd_at = {k: [k + 3] for k in range(15)}
    KB = PAR['kb']
    for k in (15, 16, 17):
        add(post, (k, "q"), ("v", k - 3, AF + 4 * ((k + 3) % 4)))
    for k, ku in KFET.items():
        a_, b_ = kunit(ku)
        add(post, (k, "k"), ("l", None, a_))
        add(post, (k + 1, "v" if k + 1 < NVQ else "q"), ("l", ku, b_))
    if not last:
        for k, kps in (((16, (0, 1)), (17, (2, 3))) if W6 else ((16, (2, 3)), (17, (0, 1)))):
            for kp in kps:
                add(post, (k, "k"), ("l", ('kx', kp), f"ds_read_b128 {v(KXF+4*kp,4)}, v{vL16} offset:{L_KX + 2*kp*1024}"))
    KC = PAR['kc']
    mb = MB.get(w, ())
    add(pre, (KC, "v"), "s_waitcnt vmcnt(0)")
    if mb:
        regs = [VX + 4 * i for i in range(len(mb))]
        rb = [f"ds_read_b128 {v(regs[i],4)}, v{vL16} offset:{L_M + c*1024}" for i, c in enumerate(mb)]
        for t in rb:
            add(pre, (KC, "v"), ("l", 'mb', t))
        chk = sum(tagcheck(regs, 71, ptag, 1), [])
        chk.insert(-2, f"v_bitop3_b32 v71, v71, v71, s{sEXM} bitop3:{'0xf5' if ptag else '0xa0'}")
        lb, lr = A.newlabel("mbok"), A.newlabel("mbre")
        st = idx[(KC + 1, "q")]
        post.setdefault(st, []).append(("w", 'mb'))
        for j, t in enumerate(chk):
            valu.setdefault(st + (2 * j) // 3, []).append(t)
        end = st + (2 * (len(chk) - 1)) // 3
        assert end < idx[(KB, "q")]
        add(pre, (KB, "q"), f"s_cbranch_vccnz {lr}", ("label", lb))
        def again():
            lp = A.newlabel("mbspin")
            A.label(lr)
            for _ in range(2):
                mb_dma(A, w)
                delay(A, 5)
            A.label(lp)
            mb_dma(A, w)
            A(f"s_add_u32 s{sCNT}, s{sCNT}, 65536")
            A(f"s_cmp_gt_u32 s{sCNT}, {SPIN_MAX*65536}")
            A(f"s_cbranch_scc1 {fail}")
            A(f"s_waitcnt vmcnt({2*len(mb)})")
            for t in rb: A(t)
            A("s_waitcnt lgkmcnt(0)")
            for t in chk: A(t)
            A(f"s_cbranch_vccnz {lp}")
            A(f"s_branch {lb}")
        cold.append(again)
    add(pre, (KB, "q"), "s_barrier")
    if KB == 6:
        del rd_at[5]
        rd_at[6] = [8, 9]
    if w in (0, 3):
        e = spread_valu(pub_addr(), (KC, "v"))
    for k, ks in rd_at.items():
        for kk in ks:
            add(post, (k, "q"), ("a", kk))
    for t in pub_read(w):
        add(post, (7, "v"), ("l", 'pub', t))
    nslow = 0
    late = 'late' in OPT
    wa, fv = (70, 71) if late else (tWA, tFV)
    extra = [f"v_lshlrev_b32 v{wa}, 2, v{vL16}"] + ([f"v_mov_b32 v{fv}, s{sFV}"] if w == 3 else [])
    spread_valu(extra, (9, "v"))
    slow = [[("w", 'pub'), f"buffer_store_dwordx4 {v(PUB,4)}, v{vL16}, {BUF}, s{sPUB} offen sc1"]]
    if not last:
        add(post, (7, "k"), f"s_add_u32 s{sT}, s{sKVOFF}, {WS_V}", f"buffer_load_dwordx4 {v(VX,4)}, v{tVX}, {BUF}, s{sT} offen sc1")
        add(post, (8, "k"), f"buffer_load_dwordx4 {v(VX+4,4)}, v{tVX}, {BUF}, s{sT} offen offset:256 sc1")
        add(post, (10, "k"), f"s_add_u32 s{sT+1}, s{sKVOFF}, {2*32*8192}", f"s_min_u32 s{sT+1}, s{sT+1}, {63*32*8192}",
            f"s_mov_b32 m0, {L_JUNK}", f"s_add_u32 s{sT}, s{sT+1}, s{sWARM}")
        slow.append([f"buffer_load_dword v{wa}, {BUF}, s{sT} offen sc1 lds"])
    if w == 3:
        slow.append(["s_mov_b64 exec, 1", f"buffer_store_dword v{fv}, v{vL16}, {BUF}, s{sFLAG} offen sc1", "s_mov_b64 exec, -1"])
    nslow = len(slow)
    if KVGATE and w == 0 and ptag == 0 and not last:
        lg, lb2 = A.newlabel("kvs"), A.newlabel("kvsb")
        add(post, (12, "q"), f"s_bitcmp1_b32 s{sGATE}, s{sSTEP}", f"s_cbranch_scc1 {lg}", ("label", lb2))
        def sample():
            A.label(lg)
            A(f"v_lshlrev_b32 v71, 3, v{vL16}")
            A(f"s_mov_b32 m0, {L_KVC}")
            A(f"s_mov_b32 s{sT}, {WS_FLAG + 32*128}")
            A("s_mov_b64 exec, 0xffff")
            A(f"buffer_load_dword v71, {BUF}, s{sT} offen sc1 lds")
            A("s_mov_b64 exec, -1")
            A(f"s_branch {lb2}")
        cold.append(sample)
    if not late:
        for key, ops in zip(((10, "v"), (11, "v"), (11, "k")), slow):
            add(post, key, *ops)
    tk = {}
    def emit(x):
        if isinstance(x, str):
            A(x)
        elif x[0] == "a":
            tokA[x[1]] = mread(L, AF + 4 * (x[1] % 4), x[1])
        elif x[0] == "v":
            vload(L, tokA, x[1], x[2])
        elif x[0] == "l":
            t = L.op(x[2])
            if isinstance(x[1], int): tokU[x[1]] = t
            elif isinstance(x[1], tuple): tokA[x[1]] = t
            else: tk[x[1]] = t
        elif x[0] == "w":
            L.wait(tk[x[1]])
        elif x[0] == "label":
            A.label(x[1])
    for i, (k, m) in enumerate(slots):
        af = AF + 4 * (k % 4)
        if m == "q" and k in PAR.get('qks', ()):
            stamp(A, prof, 4 + PAR['qks'].index(k), 'qk')
        for x in pre.get(i, []): emit(x)
        if (k, m) == slots[idx[(k, "q")] - (1 if k < NVQ else 0)]:
            L.wait(tokA[k])
        if m == "k" and LOC[('k', k)][0] == 'l':
            L.wait(tokU[k])
            A(smf(KACC, af, KBUF[k]))
        else:
            A(smf({"v": VACC, "q": QACC, "k": KACC}[m], af, wreg(LOC[(m, k)][1])))
        for x in post.get(i, []): emit(x)
        for x in valu.get(i, []): emit(x)
    vload(L, tokA, 15, AF + 4)
    vstep(A, L, tokA, 12)
    A("s_nop 1")
    vstep(A, L, tokA, 13)
    A("s_nop 2")
    xpk = 66 if late else XPK
    A(f"v_cvt_pk_bf16_f32 v{xpk}, v{QACC}, v{QACC+1}")
    A(f"v_cvt_pk_bf16_f32 v{xpk+1}, v{QACC+2}, v{QACC+3}")
    L.op(f"ds_write_b64 v{vXW}, {v(xpk,2)}")
    A(f"v_cvt_pk_bf16_f32 v{xpk+2}, v{KACC}, v{KACC+1}")
    A(f"v_cvt_pk_bf16_f32 v{xpk+3}, v{KACC+2}, v{KACC+3}")
    tw = L.op(f"ds_write_b64 v{vXW}, {v(xpk+2,2)} offset:{2*XP}")
    vload(L, tokA, 16, QACC)
    vload(L, tokA, 17, KACC)
    for j, kv in enumerate((14, 15, None)):
        if kv:
            vstep(A, L, tokA, kv)
        if late and j < len(slow):
            for x in slow[j]: emit(x)
    L.wait(tw)
    A("s_barrier")
    return tokA, nslow

def step(A, w, tag, fail, cold, prof=False, stf=""):
    cls = max(w - 1, 0)
    L = LgkmTracker(A)
    A("s_waitcnt lgkmcnt(0)")
    A("s_barrier")
    stamp(A, prof, 0)
    stamp(A, prof, 1, True)
    A(f"s_mov_b32 s{sCNT}, 0")
    tokA, nslow = qkv_stage(A, L, w, tag ^ 1, fail, cold, prof, False)
    stamp(A, prof, 2)
    tx = {}
    def xread(kp):
        L.op(f"ds_read_b64_tr_b16 {v(XF+4*kp,2)}, v{vXR} offset:{kp*256}")
        tx[kp] = L.op(f"ds_read_b64_tr_b16 {v(XF+4*kp+2,2)}, v{vXR} offset:{kp*256+64}")
    xread(0); xread(1)
    vstep(A, L, tokA, 16)
    xread(2); xread(3)
    vstep(A, L, tokA, 17)
    m1, m2, m3, mt = 70, 71, 20, 21
    ONES, PX, PM, LS, O0, VQ, O1 = 22, 26, 32, 10, 14, 66, 36
    VP = VQ + 2
    SC = [SX0 + i for i in range(8)] + [SM + i for i in range(4)]
    mf = lambda d, a_, b_, c: A(f"v_mfma_f32_16x16x32_bf16 {v(d,4)}, {v(a_,4)}, {v(b_,4)}, {c}")
    for kp in range(4):
        L.wait(max(tx[kp], tokA[('kx', kp)]))
        mf(SX0, KXF + 4 * kp, XF + 4 * kp, "0" if kp == 0 else v(SX0, 4))
        tokA[('kx1', kp)] = L.op(f"ds_read_b128 {v(KXF+4*kp,4)}, v{vL16} offset:{L_KX + (2*kp+1)*1024}")
        if kp < 2:
            A(f"v_mov_b32 v{SM+2*kp}, v{vMASK}")
            A(f"v_mov_b32 v{SM+2*kp+1}, v{vMASK}")
    fill = {0: [f"v_cvt_pk_bf16_f32 v{VP}, v{VACC}, v{VACC+1}", f"v_cvt_pk_bf16_f32 v{VP+1}, v{VACC+2}, v{VACC+3}"],
            1: [None, f"v_mov_b64 {v(VQ,2)}, {v(VP,2)}"],
            2: ["s_nop 0", f"v_max3_f32 v{m1}, v{SX0}, v{SX0+1}, v{SX0+2}"],
            3: [f"v_permlane32_swap_b32 v{VQ}, v{VP}", f"v_permlane32_swap_b32 v{VQ+1}, v{VP+1}"]}
    for kp in range(4):
        mf(SM, XF + 4 * kp, XF + 4 * kp, v(SM, 4))
        for t in fill[kp]:
            if t is None:
                L.op(f"ds_write_b64 v{vXW}, {v(VP,2)} offset:{4*XP}")
            else:
                A(t)
    for kp in range(4):
        L.wait(tokA[('kx1', kp)])
        mf(SX1, KXF + 4 * kp, XF + 4 * kp, "0" if kp == 0 else v(SX1, 4))
        if kp < 2:
            A("s_nop 1")
        if kp == 2:
            A("s_nop 0")
            A(f"v_max3_f32 v{m1}, v{m1}, v{SX0+3}, v{SM}")
    A(f"v_max3_f32 v{m2}, v{SM+1}, v{SM+2}, v{SM+3}")
    A(f"v_mov_b64 {v(30,2)}, 0")
    A(f"v_mov_b64 {v(34,2)}, 0")
    A(f"v_mov_b64 {v(ONES,2)}, s[{sONE}:{sONE+1}]")
    A(f"v_mov_b64 {v(ONES+2,2)}, s[{sONE}:{sONE+1}]")
    A(f"v_max_f32 v{m1}, v{m1}, v{m2}")
    A("s_nop 1")
    stamp(A, prof, 1, 'sm')
    A(f"v_max3_f32 v{m1}, v{m1}, v{SX1}, v{SX1+1}")
    A(f"v_max3_f32 v{mt}, v{m1}, v{SX1+2}, v{SX1+3}")
    A(f"v_max3_f32 v{m1}, v{m1}, v{SX1+2}, v{SX1+3}")
    A("s_nop 1")
    A(f"v_permlane16_swap_b32 v{m1}, v{mt}")
    A(f"v_max_f32 v{m2}, v{m1}, v{mt}")
    A(f"v_max_f32 v{m1}, v{m1}, v{mt}")
    A("s_nop 1")
    A(f"v_permlane32_swap_b32 v{m1}, v{m2}")
    A(f"v_max_f32 v{m1}, v{m1}, v{m2}")
    A(f"v_mul_f32 v{m1}, s{sC}, v{m1}")
    for i in range(6):
        A(f"v_pk_fma_f32 {v(SC[2*i],2)}, {v(SC[2*i],2)}, s[{sC}:{sC+1}], {v(m1,2)} op_sel_hi:[1,0,0] neg_lo:[0,0,1] neg_hi:[0,0,1]")
    stamp(A, prof, 5, 'sm')
    for i in range(8):
        A(f"v_exp_f32 v{SC[i]}, v{SC[i]}")
    A(f"v_exp_f32 v{SC[8]}, v{SC[8]}")
    for i in range(4):
        A(f"v_cvt_pk_bf16_f32 v{PX+i}, v{SC[2*i]}, v{SC[2*i+1]}")
    A(f"v_exp_f32 v{SC[9]}, v{SC[9]}")
    A(f"s_waitcnt vmcnt({nslow})")
    A(f"v_mfma_f32_16x16x32_bf16 {v(LS,4)}, {v(ONES,4)}, {v(PX,4)}, 0")
    A(f"v_exp_f32 v{SC[10]}, v{SC[10]}")
    A(f"v_mfma_f32_16x16x32_bf16 {v(O0,4)}, {v(VX,4)}, {v(PX,4)}, 0")
    A(f"v_exp_f32 v{SC[11]}, v{SC[11]}")
    A(f"v_mfma_f32_16x16x32_bf16 {v(O1,4)}, {v(VX+4,4)}, {v(PX,4)}, 0")
    A(f"v_cvt_pk_bf16_f32 v{PM}, v{SM}, v{SM+1}")
    A(f"v_cvt_pk_bf16_f32 v{PM+1}, v{SM+2}, v{SM+3}")
    A("s_nop 1")
    A(f"v_mfma_f32_16x16x32_bf16 {v(LS,4)}, {v(ONES,4)}, {v(PM,4)}, {v(LS,4)}")
    A(f"v_mfma_f32_16x16x32_bf16 {v(O0,4)}, {v(VQ,4)}, {v(PM,4)}, {v(O0,4)}")
    A(f"v_mfma_f32_16x16x32_bf16 {v(O1,4)}, {v(VQ,4)}, {v(PM-2,4)}, {v(O1,4)}")
    stamp(A, prof, 6, 'sm')
    OACC, OF, WST, OPK = 52, 10, 26, 22
    nr = 4 if cls == 0 else 5
    lu = [('o', rd, k) for rd in range(nr) for k in range(4) if (rd, k) not in WO_REG]
    tu = {}
    bufs = {0: 26, 1: 34, 2: 42, 3: 26, 4: 34, 5: 42, 6: 52}
    if W6:
        bufs = {0: 26, 1: 34, 2: 42, 3: 26, 4: 34, 5: 42, 6: 26, 7: 52, 8: 34, 9: 42}
    def fetch(i):
        o = LOC[lu[i]][1] - WO_BASE
        L.op(f"ds_read_b128 {v(bufs[i],4)}, v{vT} offset:{o}")
        tu[i] = L.op(f"ds_read_b128 {v(bufs[i]+4,4)}, v{vT} offset:{o+1024}")
    A(f"v_add_u32 v{vT}, {WO_BASE}, v{vRES}")
    for i in range(52, 60, 2):
        A(f"v_mov_b64 {v(i,2)}, 0")
    A("s_nop 0")
    m1 = 18
    A(f"v_rcp_f32 v{m1}, v{LS}")
    A(f"v_mov_b64 {v(60,2)}, 0")
    for i in range(2):
        A(f"v_pk_mul_f32 {v(O0+2*i,2)}, {v(O0+2*i,2)}, {v(m1,2)} op_sel_hi:[1,0]")
    for i in range(2):
        A(f"v_pk_mul_f32 {v(O1+2*i,2)}, {v(O1+2*i,2)}, {v(m1,2)} op_sel_hi:[1,0]")
    A(f"v_cvt_pk_bf16_f32 v{OPK}, v{O0}, v{O0+1}")
    A(f"v_cvt_pk_bf16_f32 v{OPK+1}, v{O0+2}, v{O0+3}")
    A(f"v_cvt_pk_bf16_f32 v{OPK+2}, v{O1}, v{O1+1}")
    A(f"v_cvt_pk_bf16_f32 v{OPK+3}, v{O1+2}, v{O1+3}")
    tw = L.op(f"ds_write_b128 v{vOW}, {v(OPK,4)}")
    stamp(A, prof, 7, 'sm')
    A(f"s_add_u32 s{sSTEP}, s{sSTEP}, 1")
    for i in range(62, 52 + 4 * nr, 2):
        A(f"v_mov_b64 {v(i,2)}, 0")
    L.wait(tw)
    A("s_barrier")
    stamp(A, prof, 4)
    to = {}
    for k in range(4):
        to[k] = L.op(f"ds_read_b128 {v(OF+4*k,4)}, v{vMA} offset:{L_O + k*512}")
    tagop = (lambda x: f"v_or_b32 v{x}, 1, v{x}") if tag else (lambda x: f"v_and_b32 v{x}, -2, v{x}")
    def emit_out(rd):
        p = OACC + 4 * rd
        return [f"v_cvt_pk_bf16_f32 v{p}, v{p}, v{p+1}", f"v_cvt_pk_bf16_f32 v{p+1}, v{p+2}, v{p+3}", tagop(p),
                f"buffer_store_dwordx2 {v(p,2)}, v{vPST}, {BUF}, s{sPST+rd} offen {stf}"]
    after = {0: 3, 1: 4, 2: 5}
    early = {1: 0, 3: 1, 5: 2, 15: 6}
    if W6:
        after = {0: 3, 1: 4, 2: 5, 3: 6, 4: 8, 5: 9}
        early = {0: 0, 2: 1, 4: 2, 13: 7}
    sched = {}
    for rd in range(nr - 1):
        o = emit_out(rd)
        b = 4 * rd + 3
        so = ([3, 4, 1, 1] if W6 else [3, 4, 1, 2])[w]
        sched.setdefault(b + 3, []).append(o[0]); sched.setdefault(b + 4, []).append(o[1])
        sched.setdefault(b + 5, []).append(o[2]); sched.setdefault(b + 5 + so, []).append(o[3])
    tail = []
    for x in sorted(sched):
        if x >= 4 * nr:
            tail += sched[x]
    for rd in range(nr):
        for k in range(4):
            slot = 4 * rd + k
            if rd == 0:
                L.wait(to[k])
            u = ('o', rd, k)
            fill = 0
            if LOC[u][0] == 'r':
                A(smf(OACC + 4 * rd, OF + 4 * k, wreg(LOC[u][1])))
                if early.get(slot, 99) < len(lu):
                    fetch(early[slot]); fill = 2
            else:
                i = lu.index(u)
                L.wait(tu[i])
                A(smf(OACC + 4 * rd, OF + 4 * k, bufs[i]))
                if after.get(i, 99) < len(lu):
                    fetch(after[i]); fill = 2
            fill += len(sched.get(slot, []))
            if rd and k < 2 and fill < 3:
                A(f"s_nop {2 - fill}")
            for t in sorted(sched.get(slot, []), key=lambda x: (x.startswith("v_"), 0) if so else (0, 0)):
                if not ('nost' in OPT and t.startswith("buffer_store") and rd < 9 and False):
                    A(t)
            if slot in (0, 3, 7, 11):
                stamp(A, prof, {0: 1, 3: 2, 7: 6, 11: 7}[slot], 'wo')
    for t in tail:
        A(t)
    A(f"s_add_u32 s{sKVOFF}, s{sKVOFF}, {32*8192}")
    A(f"s_add_u32 s{sPUB}, s{sPUB}, {32*4096}")
    A(f"s_mov_b64 s[{sEXM}:{sEXM+1}], -1")
    A(f"s_sub_i32 s{sFV}, s{sSTEP}, 1")
    A("s_nop 0")
    for x in emit_out(nr - 1): A(x)
    stamp(A, prof, 5)
    RD, SEL, RA, ck, vMST = [10, 14, 18, 22], 26, 30, 34, 35
    rloads = lambda: [A(f"buffer_load_dwordx4 {v(RD[i],4)}, v{vL16}, {BUF}, s{sRLD} offen offset:{i*1024} sc1") for i in range(4)]
    def reduce_start(dly):
        delay(A, dly)
        stamp(A, prof, 2, True)
        rloads()
        A(f"v_and_b32 v{ck}, 16, v{vL16}")
        A(f"v_mov_b32 v{RA}, 0x3f80")
        A(f"v_lshlrev_b32 v{RA}, v{ck}, v{RA}")
        A(f"v_bfe_u32 v{ck}, v{vL16}, 5, 3")
        for q in range(4):
            A(f"v_cmp_eq_u32 vcc, {q}, v{ck}")
            A("s_nop 1")
            A(f"v_cndmask_b32 v{SEL+q}, 0, v{RA}, vcc")
        A(f"v_and_b32 v{vMST}, 0xf0, v{vL16}")
        A(f"v_bfe_u32 v{ck}, v{vL16}, 8, 2")
        A(f"v_lshl_add_u32 v{vMST}, v{ck}, 2, v{vMST}")
        A(f"v_and_b32 v{ck}, 0x80, v{vL16}")
        A(f"v_lshl_add_u32 v{vMST}, v{ck}, 23, v{vMST}")
        pre_b1(A)
    def reduce_finish():
        lr = A.newlabel("rre")
        for i, ops in enumerate(tagcheck(RD, ck, tag, 2)):
            A(f"s_waitcnt vmcnt({3-i})")
            A(f"v_mfma_f32_16x16x32_bf16 {v(RA,4)}, {v(RD[i],4)}, {v(SEL,4)}, {'0' if i == 0 else v(RA,4)}")
            for t in ops: A(t)
        A(f"s_cbranch_vccnz {lr}")
        A("s_nop 3")
        def finish():
            A(f"v_permlane32_swap_b32 v{RA}, v{RA+1}")
            A(f"v_permlane32_swap_b32 v{RA+2}, v{RA+3}")
            A(f"v_add_f32 v{RA}, v{RA}, v{RA+1}")
            A(f"v_add_f32 v{RA+2}, v{RA+2}, v{RA+3}")
            A(f"v_cvt_pk_bf16_f32 v{RA}, v{RA}, v{RA+2}")
            A(tagop(RA))
            A(f"buffer_store_dword v{RA}, v{vMST}, {BUF}, s{sMST} offen {stf}")
            stamp(A, prof, 6, True)
        finish()
        lback = A.newlabel("rback")
        A.label(lback)
        def again():
            R2 = [54, 58, 62, 66]
            ld = lambda R: [A(f"buffer_load_dwordx4 {v(R[i],4)}, v{vL16}, {BUF}, s{sRLD} offen offset:{i*1024} sc1") for i in range(4)]
            lsp, lok = A.newlabel("rspin"), A.newlabel("rok")
            A.label(lr)
            ld(RD)
            delay(A, 6)
            A.label(lsp)
            for cur, nxt in ((RD, R2), (R2, RD)):
                ld(nxt)
                A(f"s_add_u32 s{sCNT}, s{sCNT}, 1")
                for i, ops in enumerate(tagcheck(cur, ck, tag, 2)):
                    A(f"s_waitcnt vmcnt({7-i})")
                    A(f"v_mfma_f32_16x16x32_bf16 {v(RA,4)}, {v(cur[i],4)}, {v(SEL,4)}, {'0' if i == 0 else v(RA,4)}")
                    for t in ops: A(t)
                A(f"s_cbranch_vccz {lok}")
            A(f"s_and_b32 s3, s{sCNT}, 0xffff")
            A(f"s_cmp_gt_u32 s3, {SPIN_MAX}")
            A(f"s_cbranch_scc0 {lsp}")
            A(f"s_branch {fail}")
            A.label(lok)
            A("s_nop 3")
            finish()
            A("s_waitcnt vmcnt(1)")
            A(f"s_branch {lback}")
        cold.append(again)
    def gather_a(chunks):
        ns = PAR['ns']
        sets = [10, 18, VX][:ns]
        ld = lambda b: [mload(A, b + 4 * i, c) for i, c in enumerate(chunks)]
        wr = lambda b: [A(f"ds_write_b128 v{vL16}, {v(b+4*i,4)} offset:{L_M + c*1024}") for i, c in enumerate(chunks)]
        ckf = lambda b: tagcheck([b, b + 4], 71, tag, 1)
        lok = A.newlabel("maok")
        labs = [A.newlabel("ma") for _ in range(ns + 1)]
        delay(A, PAR['mdelay'])
        stamp(A, prof, 4, True)
        for j, b in enumerate(sets):
            ld(b)
            if j == 0:
                st_preload(A)
            if j < ns - 1:
                delay(A, PAR['sp'] - (2 if j == 0 else 0))
        def tail(b, j):
            wr(b)
            A("s_barrier")
            mb_dma(A, w)
            if j == 0 and ns > 1:
                A(f"s_waitcnt vmcnt({2*(ns-2) + (1 if w == 3 else 0)})")
        for i, ops in enumerate(ckf(sets[0])):
            A(f"s_waitcnt vmcnt({2*ns-1-i})")
            for t in ops: A(t)
        A(f"s_cbranch_vccnz {labs[1]}")
        stamp(A, prof, 7, True)
        tail(sets[0], 0)
        A.label(lok)
        def later():
            assert ns == 3
            lrot = A.newlabel("marot")
            oks = [A.newlabel("mahit") for _ in range(ns)]
            def look(j):
                A(f"s_add_u32 s{sCNT}, s{sCNT}, {0x1000000 if prof else 1}")
                for i, ops in enumerate(ckf(sets[j])):
                    A(f"s_waitcnt vmcnt({3-i})")
                    for t in ops: A(t)
                A(f"s_cbranch_vccz {oks[j]}")
                ld(sets[(j + 2) % 3])
            A.label(labs[1])
            look(1)
            A.label(lrot)
            for j in (2, 0, 1):
                look(j)
            A(f"s_add_u32 s{sCNT}, s{sCNT}, 1")
            A(f"s_and_b32 s3, s{sCNT}, 0xffff")
            A(f"s_cmp_gt_u32 s3, {SPIN_MAX}")
            A(f"s_cbranch_scc0 {lrot}")
            A(f"s_branch {fail}")
            for j in range(ns):
                A.label(oks[j])
                stamp(A, prof, 7, True)
                wr(sets[j])
                A("s_barrier")
                mb_dma(A, w)
                if j != 1:
                    A(f"s_waitcnt vmcnt({len(MB.get(w, ()))})")
                A(f"s_branch {lok}")
        cold.append(later)
    kx1 = 'kx1' in OPT
    if kx1 and w < 2:
        kx_addr(A, tKX, tKX + 1)
    A("s_barrier")
    if kx1:
        if w >= 2:
            kx_addr(A, tKX, tKX + 1)
        kx_dma(A, w, tKX, 0)
    if w == 0:
        reduce_start(PAR['rdelay'])
        reduce_finish()
        A("s_barrier")
        gather_a((0, 1))
    elif w == 3:
        pre_b1(A)
        kx_addr(A, tKX, tKX + 1)
        if KVGATE and tag == 0:
            lg, lb = A.newlabel("kvgate"), A.newlabel("kvback")
            A(f"s_sub_u32 s3, s{sSTEP}, 2")
            A(f"s_bitcmp1_b32 s{sGATE}, s3")
            A(f"s_cbranch_scc1 {lg}")
            A.label(lb)
            def kvgate():
                A.label(lg)
                A(f"s_cmp_eq_u32 s{sSTEP}, {KVGATE[0][0]}")
                A(f"s_cselect_b32 s{sT+1}, {4*(KVGATE[0][1]-1)}, 60")
                A(f"v_lshrrev_b32 v10, 2, v{vL16}")
                A(f"v_min_u32 v10, s{sT+1}, v10")
                A(f"ds_read_b32 v11, v10 offset:{L_KVC}")
                A("s_waitcnt lgkmcnt(0)")
                A(f"v_cmp_gt_u32 vcc, 0x1c0, v11")
                A(f"s_cbranch_vccz {lb}")
                A(f"v_lshlrev_b32 v10, 5, v10")
                A(f"s_mov_b32 s{sT}, {WS_FLAG + 32*128}")
                wait_kv(A, fail, None, 10)
                A(f"s_branch {lb}")
            cold.append(kvgate)
        if 'kxq' not in OPT and not kx1:
            delay(A, PAR['rdelay'] + PAR['kx'])
            for q in range(4):
                kx_dma(A, q, tKX, 0)
        if AFTER: AFTER(A)
        A("s_barrier")
        gather_a((2, 3))
    else:
        lo, lj = A.newlabel("nored"), A.newlabel("redj")
        if w == 2:
            A(f"s_cmp_ge_u32 s{sH}, 8")
            A(f"s_cbranch_scc1 {lo}")
            def nored():
                A.label(lo)
                pre_b1(A)
                A("s_barrier")
                A(f"s_branch {lj}")
            cold.append(nored)
        reduce_start(PAR['rdelay'] + PAR['r1'])
        A("s_barrier")
        reduce_finish()
        A.label(lj)
        st_preload(A)
        A("s_barrier")
        stamp(A, prof, 4, True)
        mb_dma(A, w)
    stamp(A, prof, 7)

def kv_addr(A, nrb, vt):
    A(f"v_and_b32 v{vt}, 0xf0, v{vL16}")
    A(f"v_min_u32 v{vt}, {16*max(nrb-1, 0)}, v{vt}")
    A(f"v_lshlrev_b32 v{vt}, 3, v{vt}")
    A(f"s_mov_b32 s{sT}, {WS_FLAG + 32*128}")

def wait_kv(A, fail, nrb, vt):
    lp = A.newlabel("kvw")
    if nrb is not None:
        kv_addr(A, nrb, vt)
    A(f"s_mov_b32 s3, 0")
    A.label(lp)
    A(f"buffer_load_dword v{vt+1}, v{vt}, {BUF}, s{sT} offen sc1")
    A(f"s_add_u32 s3, s3, 1")
    A(f"s_cmp_gt_u32 s3, 200000")
    A(f"s_cbranch_scc1 {fail}")
    A("s_waitcnt vmcnt(0)")
    A(f"v_cmp_gt_u32 vcc, 0x1c0, v{vt+1}")
    A(f"s_cbranch_vccnz {lp}")

def last_step(A, w, fail, cold):
    L = LgkmTracker(A)
    A("s_waitcnt lgkmcnt(0)")
    A("s_barrier")
    tokA, nslow = qkv_stage(A, L, w, 0, fail, cold, False, True)
    for kv in (16, 17):
        vstep(A, L, tokA, kv)
    if w in (0, 3):
        for t in pub_addr(): A(t)
    A("s_nop 7")
    A(f"v_cvt_pk_bf16_f32 v40, v{VACC}, v{VACC+1}")
    A(f"v_cvt_pk_bf16_f32 v41, v{VACC+2}, v{VACC+3}")
    A(f"ds_write_b64 v{vXW}, v[40:41] offset:{4*XP}")
    A(f"s_add_u32 s{sPUB}, s{sPUB}, {32*4096}")
    A("s_waitcnt lgkmcnt(0)")
    A("s_barrier")
    for t in pub_read(w): A(t)
    A("s_waitcnt lgkmcnt(0)")
    A(f"buffer_store_dwordx4 {v(PUB,4)}, v{vL16}, {BUF}, s{sPUB} offen sc1")
    A("s_waitcnt vmcnt(0)")
    A("s_barrier")
    if w == 3:
        A(f"v_mov_b32 v{tFV}, 64")
        A("s_mov_b64 exec, 1")
        A(f"buffer_store_dword v{tFV}, v{vL16}, {BUF}, s{sFLAG} offen sc1")
        A("s_mov_b64 exec, -1")

def run(A, fail, done, prof=None, stf=""):
    labs = [A.newlabel(f"wave{c}") for c in range(4)]
    A(f"s_mov_b32 s{sSTEP}, 0")
    A(f"s_mov_b32 s{sFV}, -1")
    A(f"s_mov_b32 s{sGATE}, {sum(1 << (g - 2) for g, _ in KVGATE) if KVGATE else 0}")
    A(f"s_mov_b64 s[{sEXM}:{sEXM+1}], 0")
    for c in range(1, 4):
        A(f"s_cmp_eq_u32 s{S_WAVE}, {c}")
        A(f"s_cbranch_scc1 {labs[c]}")
    for w in range(4):
        A.label(labs[w])
        cold = []
        pre_b1(A)
        st_preload(A)
        A("s_waitcnt vmcnt(0)")
        lo, la = A.newlabel("loop"), A.newlabel("last")
        A(".p2align 6")
        A.label(lo)
        step(A, w, 0, fail, cold, prof, stf)
        if prof: prof(A)
        A(f"s_cmp_eq_u32 s{sSTEP}, 63")
        A(f"s_cbranch_scc1 {la}")
        step(A, w, 1, fail, cold, prof, stf)
        if prof: prof(A)
        A(f"s_branch {lo}")
        A.label(la)
        last_step(A, w, fail, cold)
        A(f"s_branch {done}")
        i = 0
        while i < len(cold):
            cold[i](); i += 1
```

```python
import sys
from common import *
import chain, bulk, engine

KN = "parallel_sum__memory_aug_recurrent_mem_tr__dense_activation_silu__prompt_kernel"
REF = open("parallel_sum__memory_aug_recurrent_mem_tr__dense_activation_silu__prompt.s.ref").read()
COMMENT = REF[:REF.index("; Override launch geometry")]
HDR = COMMENT + f"""; @launch grid=(256,1,1) block=(256,1,1) lds=163840
.amdgcn_target "amdgcn-amd-amdhsa--gfx950"
.text
.globl {KN}
.p2align 8
.type {KN},@function
{KN}:
"""
FTR = f"""
.section .rodata,"a"
.p2align 6
.amdhsa_kernel {KN}
  .amdhsa_next_free_vgpr 512
  .amdhsa_next_free_sgpr 102
  .amdhsa_accum_offset 256
  .amdhsa_group_segment_fixed_size 0
  .amdhsa_kernarg_size 104
  .amdhsa_user_sgpr_count 2
  .amdhsa_user_sgpr_kernarg_segment_ptr 1
  .amdhsa_system_sgpr_workgroup_id_x 1
.end_amdhsa_kernel
"""

XO = set()
def tstamp(A, prof, i):
    if prof:
        A(f"s_memrealtime s[{i}:{i+1}]")

def steplog(A):
    A("s_memrealtime s[80:81]")
    A(f"s_lshl_b32 s3, s{chain.sSTEP}, 5")
    A(f"s_add_u32 s3, s3, s{S_ROLE}")
    A("s_lshl_b32 s3, s3, 2")
    A(f"s_add_u32 s3, s3, {WS_PROF + 65536}")
    A("s_waitcnt lgkmcnt(0)")
    A("v_mov_b32 v10, s80")
    A("v_mov_b32 v11, 0")
    A(f"buffer_store_dword v10, v11, s[{S_WS}:{S_WS+3}], s3 offen")

def fine(A, i):
    A("s_memrealtime s[96:97]")
    A(f"s_lshl_b32 s3, s{S_ROLE}, 4")
    A(f"s_add_u32 s3, s3, {WS_PROF + 131072 + 4*i}")
    A("s_waitcnt lgkmcnt(0)")
    A("v_mov_b32 v253, s96")
    A("v_mov_b32 v254, 0")
    A(f"buffer_store_dword v253, v254, s[{S_WS}:{S_WS+3}], s3 offen")
    A("s_waitcnt vmcnt(63)")

def build(prof=False, force_nonlocal=False):
    A = Asm()
    tstamp(A, prof, 22)
    if prof:
        A("s_waitcnt lgkmcnt(0)")
        A("s_mov_b32 s101, s22")
    prologue(A, "L_exit")
    if 'nopf' not in XO:
        prefetch_code(A, KN, "L_codeend")
    take_ticket(A)
    assign_roles(A, "L_exit")
    A(f"s_cmp_ge_u32 s{S_ROLE}, 32")
    A("s_cbranch_scc1 L_bulk")
    chain.AFTER = (lambda A_: steplog(A_)) if prof and 'dbg' not in XO else None
    init_shared(A)
    chain.setup(A)
    chain.setup_scalars(A)
    chain.load_weights(A, "L_exit", bulk.NP0)
    if force_nonlocal:
        A(f"s_mov_b32 s{S_LOCAL}, 0")
    tstamp(A, prof, 92)
    tstamp(A, prof, 94)
    A(f"s_cmp_eq_u32 s{S_LOCAL}, 0")
    A("s_cbranch_scc1 L_chain_far")
    chain.run(A, "L_exit0", "L_done0")
    chain.AFTER = None
    A.label("L_exit0")
    A("s_endpgm")
    A.label("L_done0")
    A("s_branch L_done1")
    A.label("L_chain_far")
    chain.run(A, "L_exit1", "L_done1", None, "sc1")
    A.label("L_exit")
    A.label("L_exit1")
    A("s_endpgm")
    A.label("L_done1")
    A("s_branch L_done")
    A.label("L_bulk")
    A(f"s_sub_u32 s{S_ROLE}, s{S_ROLE}, 32")
    bulk.run(A, "L_exit2", (lambda i: (tstamp(A, prof, 96), prof and (A('s_waitcnt lgkmcnt(0)'), A('s_mov_b32 s99, s96'))) if i == 2 else tstamp(A, prof, 92) if i == 3 else (tstamp(A, prof, 96), prof and (A('s_waitcnt lgkmcnt(0)'), A('s_mov_b32 s98, s96'))) if i else (tstamp(A, prof, 94), prof and (A('s_waitcnt lgkmcnt(0)'), A('s_mov_b32 s100, s94')))))
    if force_nonlocal:
        A(f"s_mov_b32 s{S_LOCAL}, 0")
    tstamp(A, prof, 92)
    engine.run(A, "L_exit2", "L_done2", (lambda: tstamp(A, prof, 94)))
    A.label("L_done2")
    if 'wb' in XO:
        A(f"s_cmp_lg_u32 s{S_WAVE}, 0")
        A("s_cbranch_scc1 L_nowb")
        A("s_waitcnt vmcnt(0)")
        A("buffer_wbl2 sc1")
        A.label("L_nowb")
    A(f"s_add_u32 s{S_ROLE}, s{S_ROLE}, 32")
    A.label("L_done")
    if 'dbg' in XO:
        tstamp(A, prof, 96)
        A("s_waitcnt lgkmcnt(0)")
        A(f"s_cmp_lt_u32 s{S_ROLE}, 32")
        A("s_cselect_b32 s3, 16, 32")
        A("v_mov_b32 v20, s3")
        A("s_mov_b64 exec, 1")
        for i, x in enumerate((92, 94, 96)):
            A(f"s_sub_u32 s3, s{x}, s101")
            A("v_mov_b32 v21, s3")
            A(f"global_atomic_umax v20, v21, s[{S_DBG}:{S_DBG+1}] offset:{4*i}")
        A("s_endpgm")
    if prof:
        tstamp(A, prof, 96)
        A("s_waitcnt lgkmcnt(0)")
        for i in range(4):
            A(f"v_mov_b32 v{16+i}, s{(101, 92, 94, 96)[i]}")
        A(f"s_lshl_b32 s3, s{S_ROLE}, 2")
        A(f"s_add_u32 s3, s3, s{S_WAVE}")
        A("s_lshl_b32 s3, s3, 4")
        A(f"s_add_u32 s3, s3, {WS_PROF}")
        A("v_mov_b32 v20, 0")
        A(f"buffer_store_dwordx4 v[16:19], v20, s[{S_WS}:{S_WS+3}], s3 offen")
        A("v_mov_b32 v16, s100")
        A("v_mov_b32 v17, s98")
        A("v_mov_b32 v18, s99")
        A(f"s_add_u32 s3, s3, 16384")
        A(f"buffer_store_dwordx4 v[16:19], v20, s[{S_WS}:{S_WS+3}], s3 offen")
    A.label("L_exit2")
    A("s_endpgm")
    A.label("L_codeend")
    return HDR + A.text() + FTR

if __name__ == "__main__":
    chain.KVGATE = ((9, 5), (17, 16))
    open("parallel_sum__memory_aug_recurrent_mem_tr__dense_activation_silu__prompt.s", "w").write(build())
    open("full_prof.s", "w").write(build(True))
    open("full_far.s", "w").write(build(True, True))
    P0 = dict(chain.PAR)
    for x in sys.argv[1:]:
        XO.clear(); XO.update(x.split("+"))
        engine.XO = XO; bulk.XO = XO
        chain.PAR.update(P0)
        for y in XO:
            if '=' in y: chain.PAR[y.split('=')[0]] = int(y.split('=')[1])
        bulk.FINE = fine if 'fine' in XO else None
        open(f"v_{x}.s", "w").write(build('prof' in XO))
```

```python
from common import *

BUF = f"s[{S_WS}:{S_WS+3}]"
SLAB = 73728
FL_KV, FL_ALL, FL_GRP = 32, 48, 96

NJ = 12
def ranges():
    nF = [6] * 12
    nKV = [11] * 8 + [10] * 4
    nQ = [5] * 8 + [6] * 4
    out, a, b, c = [], 0, 0, 0
    for j in range(NJ):
        out.append((a, nKV[j], b, nQ[j], c, nF[j]))
        a += nKV[j]; b += nQ[j]; c += nF[j]
    assert (a, b, c) == (128, 64, 72)
    return out

XN = 0
ACC0, ACC1 = 144, 160
FR = 176
HP = 192
OUTV = 208
vA = 240
vD1, vD2, vL, vT1, vT2, vT3, vT4, vD1F = 244, 245, 246, 247, 248, 249, 250, 251
sRB, sJ, sI, sN, sSRC, sOUT, sPOUT, sLB, sSEG = 50, 51, 52, 53, 54, 55, 56, 57, 58
sKV0, sNKV, sQ0, sNQ, sF0, sNF, sTYP, sNTYP, sRS32, sLOG = 59, 60, 61, 62, 63, 64, 65, 66, 67, 68
sSIG, sP0R, sP0U, sSAV = 69, 70, 71, 90
sT = 72
XO = set()
PAR = dict(d0=0, ds=1)
S_CUR = S_TMPD

def out_tile(dt):
    return 256 + 16 * dt if dt < 16 else OUTV + 16 * (dt - 16)

def setup(A):
    A.c("bulk: indices")
    A(f"s_and_b32 s{sRB}, s{S_ROLE}, 15")
    A(f"s_lshr_b32 s{sJ}, s{S_ROLE}, 4")
    A(f"s_sub_u32 s{sJ}, s{sJ}, 2")
    for j, rg in enumerate(ranges()):
        A(f"s_cmp_eq_u32 s{sJ}, {j}")
        pk1 = rg[0] | rg[1] << 8 | rg[2] << 16 | rg[3] << 24
        pk2 = rg[4] | rg[5] << 8
        A(f"s_cselect_b32 s{sT}, {pk1}, s{sT}" if j else f"s_mov_b32 s{sT}, {pk1}")
        A(f"s_cselect_b32 s{sT+1}, {pk2}, s{sT+1}" if j else f"s_mov_b32 s{sT+1}, {pk2}")
    A(f"s_and_b32 s{sKV0}, s{sT}, 255")
    A(f"s_bfe_u32 s{sNKV}, s{sT}, 0x80008")
    A(f"s_bfe_u32 s{sQ0}, s{sT}, 0x80010")
    A(f"s_lshr_b32 s{sNQ}, s{sT}, 24")
    A(f"s_and_b32 s{sF0}, s{sT+1}, 255")
    A(f"s_lshr_b32 s{sNF}, s{sT+1}, 8")
    A(f"s_lshl_b32 s{sSEG}, s{sRB}, 2")
    A(f"s_add_u32 s{sSEG}, s{sSEG}, s{S_WAVE}")
    A(f"s_mov_b32 s{sLOG}, 0xbfb8aa3b")
    A(f"v_mov_b32 v{vL}, v0")
    A(f"v_lshrrev_b32 v{vT1}, 3, v{vL}")
    A(f"v_bfe_u32 v{vT2}, v{vL}, 4, 1")
    A(f"v_lshlrev_b32 v{vT2}, 2, v{vT2}")
    A(f"v_xor_b32 v{vT2}, v{vT2}, v{vL}")
    A(f"v_and_b32 v{vT2}, 7, v{vT2}")
    A(f"v_lshlrev_b32 v{vT2}, 4, v{vT2}")
    A(f"v_lshl_add_u32 v{vD1}, v{vT1}, 13, v{vT2}")
    A(f"v_mul_u32_u24 v{vD1F}, 9216, v{vT1}")
    A(f"v_add_u32 v{vD1F}, v{vD1F}, v{vT2}")
    A(f"v_bfe_u32 v{vT3}, v{vL}, 5, 1")
    A(f"v_and_b32 v{vT1}, 3, v{vT1}")
    A(f"v_lshl_add_u32 v{vT1}, v{vT3}, 3, v{vT1}")
    A(f"v_mul_u32_u24 v{vD2}, 1152, v{vT1}")
    A(f"v_add_u32 v{vD2}, v{vD2}, v{vT2}")
    read_addr(A, vA, vL, vT1, vT2)
    A(f"v_xor_b32 v{vA+2}, 64, v{vA}")
    A(f"v_add_u32 v{vA+1}, {18*2048}, v{vA}")
    A(f"v_add_u32 v{vA+3}, {18*2048}, v{vA+2}")
    A(f"v_lshlrev_b32 v{vL}, 4, v{vL}")

def read_addr(A, dst, ln, t1, t2):
    A(f"v_bfe_u32 v{t1}, v{ln}, 2, 2")
    A(f"v_bfe_u32 v{t2}, v{ln}, 5, 1")
    A(f"v_lshl_add_u32 v{t1}, v{t2}, 3, v{t1}")
    A(f"v_lshlrev_b32 v{dst}, 7, v{t1}")
    A(f"v_bfe_u32 v{t2}, v{ln}, 3, 1")
    A(f"v_lshl_add_u32 v{dst}, v{t2}, 6, v{dst}")
    A(f"v_bfe_u32 v{t2}, v{ln}, 4, 1")
    A(f"v_lshl_add_u32 v{dst}, v{t2}, 5, v{dst}")
    A(f"v_and_b32 v{t2}, 3, v{ln}")
    A(f"v_lshl_add_u32 v{dst}, v{t2}, 3, v{dst}")

def copy_srd(A, src):
    for i in range(4):
        A(f"s_mov_b32 s{S_CUR+i}, s{src+i}")

def params_qkv(A, idx):
    la, lb, le = A.newlabel("pq"), A.newlabel("pv"), A.newlabel("pe")
    A(f"s_cmp_ge_u32 s{idx}, s{sNKV}")
    A(f"s_cbranch_scc1 {la}")
    A(f"s_add_u32 s{sT}, s{sKV0}, s{idx}")
    A(f"s_cmp_ge_u32 s{sT}, 64")
    A(f"s_cbranch_scc1 {lb}")
    copy_srd(A, S_WK)
    A(f"s_mov_b32 s{sT+1}, {WS_K}")
    A(f"s_mov_b32 s{sNTYP}, 0")
    A(f"s_branch {le}")
    A.label(lb)
    A(f"s_sub_u32 s{sT}, s{sT}, 64")
    copy_srd(A, S_WV)
    A(f"s_mov_b32 s{sT+1}, {WS_V}")
    A(f"s_mov_b32 s{sNTYP}, 1")
    A(f"s_branch {le}")
    A.label(la)
    A(f"s_sub_u32 s{sT}, s{idx}, s{sNKV}")
    A(f"s_add_u32 s{sT}, s{sT}, s{sQ0}")
    copy_srd(A, S_WQ)
    A(f"s_mov_b32 s{sT+1}, {WS_Q}")
    A(f"s_mov_b32 s{sNTYP}, 0")
    A.label(le)
    A(f"s_lshl_b32 s{sSRC}, s{sT}, 7")
    A(f"s_lshl_b32 s3, s{S_WAVE}, 16")
    A(f"s_add_u32 s{sSRC}, s{sSRC}, s3")
    A(f"s_lshl_b32 s{sT+2}, s{sT}, 12")
    A(f"s_lshl_b32 s3, s{sSEG}, 18")
    A(f"s_add_u32 s{sT+2}, s{sT+2}, s3")
    A(f"s_add_u32 s{sT+2}, s{sT+2}, s{sT+1}")
    A(f"s_mov_b32 s{sRS32}, {32*8192}")

def params_w1(A, unit):
    copy_srd(A, S_W1)
    A(f"s_lshl_b32 s{sSRC}, s{unit}, 7")
    A(f"s_mul_i32 s3, s{S_WAVE}, {8*9216}")
    A(f"s_add_u32 s{sSRC}, s{sSRC}, s3")
    A(f"s_mov_b32 s{sRS32}, {32*9216}")

def params_w2(A, unit):
    copy_srd(A, S_W2)
    A(f"s_mul_i32 s{sSRC}, s{unit}, {64*1152}")
    A(f"s_lshr_b32 s3, s{S_WAVE}, 1")
    A(f"s_mul_i32 s3, s3, {16*1152}")
    A(f"s_add_u32 s{sSRC}, s{sSRC}, s3")
    A(f"s_and_b32 s3, s{S_WAVE}, 1")
    A(f"s_mul_i32 s3, s3, {4*1152}")
    A(f"s_add_u32 s{sSRC}, s{sSRC}, s3")

def dma_ops(kind, vo):
    ops = []
    for i in range(18):
        g = [f"s_add_u32 m0, s{sLB}, {i*4096}"]
        if kind == 2:
            g.append(f"s_add_u32 s{sT+3}, s{sSRC}, {(i & 1)*32*1152 + (i >> 1)*128}")
            g.append(f"buffer_load_dwordx4 v{vo}, s[{S_CUR}:{S_CUR+3}], s{sT+3} offen {'nt' if 'bnt' in XO else ''} lds")
        else:
            g.append("s_nop 0")
            g.append(f"buffer_load_dwordx4 v{vo}, s[{S_CUR}:{S_CUR+3}], s{sSRC} offen {'nt' if 'bnt' in XO else ''} lds")
            g.append(f"s_add_u32 s{sSRC}, s{sSRC}, s{sRS32}")
        ops.append(g)
    return ops

def flip(A, younger=0):
    A(f"s_waitcnt vmcnt({younger}) lgkmcnt(0)")
    A("s_barrier")
    A(f"s_lshl_b32 s3, s{S_WAVE}, 10")
    A(f"s_sub_u32 s{sT+4}, s{sLB}, s3")
    A(f"s_sub_u32 s{sT+5}, {SLAB}, s{sT+4}")
    A(f"s_add_u32 s{sLB}, s{sT+5}, s3")
    A(f"s_sub_u32 s{sT+4}, s{sT+4}, s{sT+5}")
    for i in range(4):
        A(f"v_add_u32 v{vA+i}, s{sT+4}, v{vA+i}")

def store_epi(acc, soff, hp):
    ops = [f"v_cvt_pk_bf16_f32 v{hp+i}, v{acc+2*i}, v{acc+2*i+1}" for i in range(8)]
    return ops[:4] + [f"buffer_store_dwordx4 {v(hp,4)}, v{vL}, {BUF}, s{soff[0]} offen offset:{soff[1]} sc1{' nt' if 'snt' in XO else ''}"] + \
           ops[4:] + [f"buffer_store_dwordx4 {v(hp+4,4)}, v{vL}, {BUF}, s{soff[0]} offen offset:{soff[1]+1024} sc1{' nt' if 'snt' in XO else ''}"]

def silu_epi(acc, hp):
    ops = []
    for i in range(8):
        a0, a1 = acc + 2 * i, acc + 2 * i + 1
        t0, t1 = (vT1, vT2) if i % 2 == 0 else (vT3, vT4)
        ops += [f"v_mul_f32 v{t0}, s{sLOG}, v{a0}", f"v_mul_f32 v{t1}, s{sLOG}, v{a1}",
                f"v_exp_f32 v{t0}, v{t0}", f"v_exp_f32 v{t1}, v{t1}",
                f"v_add_f32 v{t0}, 1.0, v{t0}", f"v_add_f32 v{t1}, 1.0, v{t1}",
                f"v_rcp_f32 v{t0}, v{t0}", f"v_rcp_f32 v{t1}, v{t1}",
                f"v_mul_f32 v{a0}, v{a0}, v{t0}", f"v_mul_f32 v{a1}, v{a1}, v{t1}",
                f"v_cvt_pk_bf16_f32 v{hp+i}, v{a0}, v{a1}"]
    return ops

def mfma_stream(A, steps, fillers):
    L = LgkmTracker(A)
    tok = {}
    def rd(n):
        ad, off, _ = steps[n]
        f = FR + 4 * (n % 4)
        L.op(f"ds_read_b64_tr_b16 {v(f,2)}, v{ad} offset:{off}")
        tok[n] = L.op(f"ds_read_b64_tr_b16 {v(f+2,2)}, v{ad} offset:{off+512}")
    for n in range(3):
        rd(n)
    for n in range(len(steps)):
        L.wait(tok[n])
        A(steps[n][2](FR + 4 * (n % 4)))
        if n + 3 < len(steps):
            rd(n + 3)
        for t in fillers.get(n, []):
            A(t)

def spread(fillers, ops, start, per):
    n = start
    for i in range(0, len(ops), per):
        fillers.setdefault(n, []).extend(ops[i:i + per])
        n += 1
    return n

def proj_steps(vtype):
    steps = []
    for ct in range(2):
        acc = ACC0 if ct == 0 else ACC1
        for k in range(36):
            def f(fr, acc=acc, k=k):
                c = "0" if k == 0 else v(acc, 16)
                x, w = v(XN + 4 * k, 4), v(fr, 4)
                a_, b_ = (x, w) if vtype else (w, x)
                return f"v_mfma_f32_32x32x16_bf16 {v(acc,16)}, {a_}, {b_}, {c}"
            steps.append((vA + 2 * ct + k // 18, (k % 18) * 2048, f))
    return steps

def stage_proj(A, vtype, epi_prev, epi0, dma, extra=()):
    fill = {}
    for i, g in enumerate(dma):
        fill.setdefault(PAR['d0'] + PAR['ds'] * i, []).extend(g)
    per = 2 if len(epi0) < 20 else 4
    spread(fill, epi_prev, 30, 2)
    spread(fill, epi0, 40, per)
    for i, t in enumerate(extra):
        fill.setdefault(20 + (3 * i) // 2, []).append(t)
    mfma_stream(A, proj_steps(vtype), fill)

def stage_ffn2(A, epi1, dma):
    steps = []
    for k in range(4):
        for dt in range(18):
            def f(fr, dt=dt, k=k):
                o = r(out_tile(dt), 16)
                return f"v_mfma_f32_32x32x16_bf16 {o}, {v(fr,4)}, {v(HP+4*k,4)}, {o}"
            blk = 4 * (dt >> 1) + k
            steps.append((vA + 2 * (dt & 1) + blk // 18, (blk % 18) * 2048, f))
    fill = {}
    for i, g in enumerate(dma):
        fill.setdefault(PAR['d0'] + PAR['ds'] * i, []).extend(g)
    spread(fill, epi1, 4, 4)
    mfma_stream(A, steps, fill)

def x_loads(A, seg, dst, addr):
    A(f"v_bfe_u32 v{addr}, v{vL}, 4, 5")
    A(f"s_lshl_b32 s3, s{seg}, 5")
    A(f"v_add_u32 v{addr}, s3, v{addr}")
    A(f"v_mul_u32_u24 v{addr}, 1152, v{addr}")
    A(f"v_bfe_u32 v{vT2}, v{vL}, 9, 1")
    A(f"v_lshl_add_u32 v{addr}, v{vT2}, 4, v{addr}")
    return [f"buffer_load_dwordx4 {r(dst+4*k,4)}, v{addr}, s[{S_X}:{S_X+3}], 0 offen offset:{32*k}" for k in range(36)]

def layernorm(A):
    A.c("bulk: load x rows as MFMA fragments and normalise them")
    for t in x_loads(A, sSEG, XN, vT1):
        A(t)

def layernorm2(A, dma=(), from_acc=False):
    dma = list(dma)
    s1, s2, one = ACC0, ACC0 + 4, ACC0 + 8
    for i in range(8):
        A(f"v_mov_b32 v{ACC0+i}, 0")
    A(f"v_mov_b32 v{one}, 0x3f803f80")
    for k in range(36):
        if from_acc:
            for i in range(4):
                A(f"v_accvgpr_read_b32 v{XN+4*k+i}, a{4*k+i}")
        elif k % 4 == 0:
            A(f"s_waitcnt vmcnt({32 - k})")
        for i in range(4):
            A(f"v_dot2c_f32_bf16 v{s1+i}, v{XN+4*k+i}, v{one}")
            A(f"v_dot2c_f32_bf16 v{s2+i}, v{XN+4*k+i}, v{XN+4*k+i}")
    A("s_nop 2")
    for b in (s1, s2):
        A(f"v_add_f32 v{b}, v{b}, v{b+1}")
        A(f"v_add_f32 v{b+2}, v{b+2}, v{b+3}")
        A(f"v_add_f32 v{b}, v{b}, v{b+2}")
        A(f"v_mov_b32 v{b+1}, v{b}")
    A("s_nop 1")
    A(f"v_permlane32_swap_b32 v{s1}, v{s1+1}")
    A(f"v_permlane32_swap_b32 v{s2}, v{s2+1}")
    A(f"v_add_f32 v{s1}, v{s1}, v{s1+1}")
    A(f"v_add_f32 v{s2}, v{s2}, v{s2+1}")
    A(f"v_mul_f32 v{s1}, 0x3ae38e39, v{s1}")
    A(f"v_mul_f32 v{s2}, 0x3ae38e39, v{s2}")
    A(f"v_fma_f32 v{s2}, -v{s1}, v{s1}, v{s2}")
    A(f"v_max_f32 v{s2}, 0, v{s2}")
    A(f"v_cvt_pk_bf16_f32 v{s1+1}, v{s2}, v{s1}")
    A(f"v_lshlrev_b32 v{s2}, 16, v{s1+1}")
    A(f"v_and_b32 v{s1}, 0xffff0000, v{s1+1}")
    A(f"v_add_f32 v{s2}, 0x3727c5ac, v{s2}")
    A(f"v_cvt_pk_bf16_f32 v{s2}, v{s2}, v{s2}")
    A(f"v_lshlrev_b32 v{s2}, 16, v{s2}")
    A(f"v_sqrt_f32 v{s2}, v{s2}")
    A("s_nop 0")
    A(f"v_cvt_pk_bf16_f32 v{s2}, v{s2}, v{s2}")
    A(f"v_lshlrev_b32 v{s2}, 16, v{s2}")
    A(f"v_rcp_f32 v{s2}, v{s2}")
    A("s_nop 0")
    A(f"v_mul_f32 v{s1}, v{s1}, v{s2}")
    A(f"s_mov_b32 s{sT+6}, 0xffff0000")
    for i in range(144):
        t = ACC1 + 2 * (i % 4)
        A(f"v_lshlrev_b32 v{t}, 16, v{XN+i}")
        A(f"v_and_b32 v{t+1}, s{sT+6}, v{XN+i}")
        A(f"v_pk_fma_f32 {v(t,2)}, {v(t,2)}, {v(s2,2)}, {v(s1,2)} op_sel_hi:[1,0,0] neg_lo:[0,0,1] neg_hi:[0,0,1]")
        A(f"v_cvt_pk_bf16_f32 v{XN+i}, v{t}, v{t+1}")
        if i % 4 == 0 and dma:
            for x in dma.pop(0): A(x)

def signal(A, line_sgpr, amount=1):
    l = A.newlabel("sig")
    A(f"s_cmp_lg_u32 s{S_WAVE}, 0")
    A(f"s_cbranch_scc1 {l}")
    A(f"v_mov_b32 v{vT1}, {amount}")
    A(f"v_mov_b32 v{vT2}, 0")
    A("s_mov_b64 exec, 1")
    A(f"buffer_atomic_add v{vT1}, v{vT2}, {BUF}, s{line_sgpr} offen")
    A("s_mov_b64 exec, -1")
    A.label(l)

FINE = None
NP0 = 3
KV_FULL = 384

def two_types(A, epi_prev, epi0, dma, extra=()):
    lv, lj = A.newlabel("projv"), A.newlabel("projj")
    A(f"s_cmp_eq_u32 s{sTYP}, 1")
    A(f"s_cbranch_scc1 {lv}")
    for vt in range(2):
        if vt:
            A.label(lv)
        stage_proj(A, vt, epi_prev, epi0, dma, extra)
        if not vt:
            A(f"s_branch {lj}")
    A.label(lj)

def counts(A, fail):
    A(f"v_lshrrev_b32 v{vT1}, 2, v{vL}")
    read_counts(A, fail, vT1, True, 80)

def run(A, fail, done, hook=None):
    setup(A)
    lmain, lskip, lown, lnog = A.newlabel("main"), A.newlabel("nop0"), A.newlabel("own"), A.newlabel("notg0")
    A(f"s_lshl_b32 s{sLB}, s{S_WAVE}, 10")
    for i in range(4):
        A(f"v_add_u32 v{vA+i}, {SLAB}, v{vA+i}")
    A.c("bulk: group 0 shares a power domain with the recurrence: it only projects K/V of row block 2, early")
    A(f"s_cmp_ge_u32 s{S_ROLE}, 32")
    A(f"s_cbranch_scc1 {lnog}")
    A(f"s_lshl_b32 s{sKV0}, s{S_ROLE}, 2")
    A(f"s_mov_b32 s{sNKV}, 4")
    A(f"s_mov_b32 s{sNQ}, 0")
    A(f"s_mov_b32 s{sSIG}, -2")
    A(f"s_add_u32 s{sSEG}, s{S_WAVE}, 8")
    A(f"s_branch {lskip}")
    A.label(lnog)
    A(f"s_mov_b32 s{sSIG}, s{sNKV}")
    A.c("bulk: first the K/V projections of row blocks 0 and 1")
    A(f"s_mov_b32 s{sP0R}, s{sRB}")
    A(f"s_mov_b32 s{sP0U}, s{sJ}")
    A(f"s_cmp_lt_u32 s{sRB}, {NP0}")
    A(f"s_cselect_b32 s{sNKV}, 0, s{sNKV}")
    A(f"s_cselect_b32 s{sSIG}, -2, s{sSIG}")
    A(f"s_cmp_lt_u32 s{sRB}, 2")
    A(f"s_cbranch_scc1 {lown}")
    A(f"s_sub_u32 s3, s{sRB}, 3")
    A(f"s_cmp_lt_u32 s3, 2")
    A(f"s_cbranch_scc1 {lskip}")
    A(f"s_sub_u32 s3, s{sRB}, 4")
    A(f"s_cmp_eq_u32 s{sRB}, 2")
    A(f"s_cselect_b32 s3, 0, s3")
    A(f"s_cmp_ge_u32 s3, 9")
    A(f"s_cbranch_scc1 {lskip}")
    A(f"s_mul_i32 s{sP0U}, s{sJ}, 9")
    A(f"s_add_u32 s3, s3, s{sP0U}")
    A(f"s_cmp_ge_u32 s3, 104")
    A(f"s_cbranch_scc1 {lskip}")
    A(f"s_and_b32 s{sP0R}, s3, 1")
    A(f"s_lshr_b32 s{sP0U}, s3, 1")
    A(f"s_add_u32 s{sP0U}, s{sP0U}, {NJ}")
    A.label(lown)
    A(f"s_mov_b32 s{sSAV}, s{sKV0}")
    A(f"s_mov_b32 s{sSAV+1}, s{sNKV}")
    A(f"s_lshl_b32 s{sKV0}, s{sP0U}, 1")
    A(f"s_mov_b32 s{sNKV}, 2")
    A(f"s_lshl_b32 s{sSEG}, s{sP0R}, 2")
    A(f"s_add_u32 s{sSEG}, s{sSEG}, s{S_WAVE}")
    layernorm(A)
    A(f"s_mov_b32 s{sI}, 0")
    params_qkv(A, sI)
    layernorm2(A, dma_ops(1, vD1))
    if hook: hook(0)
    flip(A)
    A(f"s_mov_b32 s{sOUT}, s{sT+2}")
    A(f"s_mov_b32 s{sTYP}, s{sNTYP}")
    A(f"s_mov_b32 s{sI}, 1")
    params_qkv(A, sI)
    two_types(A, [], store_epi(ACC0, (sOUT, 0), HP + 8), dma_ops(1, vD1))
    A(f"s_mov_b32 s{sPOUT}, s{sOUT}")
    flip(A, 2)
    A(f"s_mov_b32 s{sOUT}, s{sT+2}")
    A(f"s_mov_b32 s{sKV0}, s{sSAV}")
    A(f"s_mov_b32 s{sNKV}, s{sSAV+1}")
    A(f"s_lshl_b32 s{sSEG}, s{sRB}, 2")
    A(f"s_add_u32 s{sSEG}, s{sSEG}, s{S_WAVE}")
    A(f"s_mov_b32 s{sI}, 0")
    params_qkv(A, sI)
    two_types(A, store_epi(ACC1, (sPOUT, 2048), HP), store_epi(ACC0, (sOUT, 0), HP + 8), dma_ops(1, vD1))
    A("s_nop 7")
    A("s_nop 3")
    for t in store_epi(ACC1, (sOUT, 2048), HP):
        A(t)
    counts(A, fail)
    A("s_barrier")
    A(f"s_lshl_b32 s{sT}, s{sP0R}, 7")
    A(f"s_add_u32 s{sT}, s{sT}, {WS_FLAG + FL_KV*128}")
    signal(A, sT, 6)
    if hook: hook(2)
    A(f"s_cmp_lt_u32 s{sRB}, 2")
    A(f"s_cbranch_scc1 {lmain}")
    layernorm(A)
    layernorm2(A)
    A(f"s_branch {lmain}")
    A.label(lskip)
    layernorm(A)
    A(f"s_mov_b32 s{sI}, 0")
    params_qkv(A, sI)
    layernorm2(A, dma_ops(1, vD1))
    counts(A, fail)
    if hook: hook(0)
    A.label(lmain)
    A("s_waitcnt vmcnt(0)")
    A(f"s_add_u32 s{sN}, s{sNKV}, s{sNQ}")
    A(f"s_mov_b32 s{sPOUT}, 0x40000000")
    lp, lnx, lnx2, lns = (A.newlabel(x) for x in ("proj", "nx", "nx2", "nosig"))
    A.label(lp)
    flip(A, 4)
    A(f"s_mov_b32 s{sOUT}, s{sT+2}")
    A(f"s_mov_b32 s{sTYP}, s{sNTYP}")
    A(f"s_sub_u32 s3, s{sI}, 1")
    A(f"s_cmp_lg_u32 s3, s{sSIG}")
    A(f"s_cbranch_scc1 {lns}")
    A("s_waitcnt vmcnt(2)")
    A("s_barrier")
    if hook: hook(1)
    A(f"s_lshl_b32 s{sT}, s{sRB}, 7")
    A(f"s_add_u32 s{sT}, s{sT}, {WS_FLAG + FL_KV*128}")
    signal(A, sT, 32)
    A.label(lns)
    A(f"s_add_u32 s{sI}, s{sI}, 1")
    A(f"s_cmp_eq_u32 s{sI}, s{sN}")
    A(f"s_cbranch_scc1 {lnx}")
    params_qkv(A, sI)
    A(f"v_mov_b32 v{vT4+2}, v{vD1}")
    A(f"s_branch {lnx2}")
    A.label(lnx)
    params_w1(A, sF0)
    A(f"v_mov_b32 v{vT4+2}, v{vD1F}")
    A.label(lnx2)
    two_types(A, store_epi(ACC1, (sPOUT, 2048), HP), store_epi(ACC0, (sOUT, 0), HP + 8), dma_ops(1, vT4 + 2))
    A(f"s_mov_b32 s{sPOUT}, s{sOUT}")
    A(f"s_cmp_lt_u32 s{sI}, s{sN}")
    A(f"s_cbranch_scc1 {lp}")
    A("s_nop 7")
    A("s_nop 3")
    for t in store_epi(ACC1, (sPOUT, 2048), HP):
        A(t)
    lff = A.newlabel("goffn")
    A(f"s_cmp_ge_u32 s{S_ROLE}, 32")
    A(f"s_cbranch_scc1 {lff}")
    A("s_waitcnt vmcnt(0)")
    A("s_barrier")
    A(f"s_mov_b32 s{sT}, {WS_FLAG + (FL_KV + 2)*128}")
    signal(A, sT, 12)
    if hook: hook(2)
    if True:
        A.c("pull the lines the recurrence will publish into the memory-side cache")
        A(f"v_lshlrev_b32 v{vT1}, 3, v{vL}")
        A(f"s_lshl_b32 s{sT}, s{S_ROLE}, 2")
        A(f"s_add_u32 s{sT}, s{sT}, s{S_WAVE}")
        A(f"s_lshl_b32 s{sT}, s{sT}, 13")
        A(f"s_add_u32 s{sT}, s{sT}, {WS_KVM}")
        for i in range(8):
            A(f"buffer_load_dword v{vT2}, v{vT1}, {BUF}, s{sT} offen sc1")
            A(f"s_add_u32 s{sT}, s{sT}, {1 << 20}")
        A("s_waitcnt vmcnt(0)")
    A(f"s_branch {done}")
    A.label(lff)
    A.c("bulk: fused FFN over this range of hidden units")
    for i in range(256):
        A(f"v_accvgpr_write_b32 a{i}, 0")
    for i in range(0, 32, 2):
        A(f"v_mov_b64 {v(OUTV+i,2)}, 0")
    A(f"s_mov_b32 s{sI}, 0")
    lf, lf2, lf3 = A.newlabel("ffn"), A.newlabel("ffnl"), A.newlabel("ffnj")
    A.label(lf)
    flip(A)
    A(f"s_add_u32 s{sT+6}, s{sF0}, s{sI}")
    params_w2(A, sT + 6)
    stage_proj(A, 0, [], silu_epi(ACC0, HP), dma_ops(2, vD2))
    flip(A)
    A(f"s_add_u32 s{sI}, s{sI}, 1")
    A(f"s_add_u32 s{sT+6}, s{sF0}, s{sI}")
    A(f"s_min_u32 s{sT+6}, s{sT+6}, 71")
    params_w1(A, sT + 6)
    stage_ffn2(A, silu_epi(ACC1, HP + 8), dma_ops(1, vD1F))
    A(f"s_cmp_lt_u32 s{sI}, s{sNF}")
    A(f"s_cbranch_scc1 {lf}")
    A.c("bulk: FFN partial -> workspace")
    A(f"s_mul_i32 s{sOUT}, s{sSEG}, {36*16384}")
    A(f"s_lshl_b32 s3, s{sJ}, 10")
    A(f"s_add_u32 s{sOUT}, s{sOUT}, s3")
    A(f"s_add_u32 s{sOUT}, s{sOUT}, {WS_FFN}")
    A("s_nop 7")
    for dt in range(18):
        for half in range(2):
            b = 2 * dt + half
            hp = HP + 4 * (b % 4)
            for i in range(4):
                o = out_tile(dt) + 8 * half + 2 * i
                if dt < 16:
                    A(f"v_accvgpr_read_b32 v{vT1}, a{o-256}")
                    A(f"v_accvgpr_read_b32 v{vT2}, a{o-255}")
                    A(f"v_cvt_pk_bf16_f32 v{hp+i}, v{vT1}, v{vT2}")
                else:
                    A(f"v_cvt_pk_bf16_f32 v{hp+i}, v{o}, v{o+1}")
            A(f"buffer_store_dwordx4 {v(hp,4)}, v{vL}, {BUF}, s{sOUT} offen sc1")
            A(f"s_add_u32 s{sOUT}, s{sOUT}, 16384")
    A("s_waitcnt vmcnt(0)")
    A("s_barrier")
    A(f"s_lshl_b32 s{sT}, s{sRB}, 7")
    A(f"s_add_u32 s{sT}, s{sT}, {WS_FLAG + FL_ALL*128}")
    signal(A, sT)
```

```python
from common import *

L_M   = 0
L_O   = 0
XP    = 1088
L_X   = 9216
L_VM  = L_X + 4 * XP
L_KX  = L_VM + 2 * XP
L_JUNK= L_KX + 8192
L_KVC = L_JUNK + 512
L_RES = 24576
assert L_JUNK + 512 <= L_RES and L_KX % 16 == 0

vL16, vIDX, vMASK, vRES, vMA, vXW, vXR, vOW, vPST, vT = range(10)
WV0 = 72
def wreg(i):
    return WV0 + 8 * i

import os
W6 = os.environ.get('W6') == '1'
QK_LDS_KAPPA = [1, 2, 3, 6, 7, 10, 11, 14, 15] if W6 else [1, 2, 3, 4, 5, 7, 8, 10, 11, 13, 14, 15]
WO_REG = [(rd, k) for rd in range(4) for k in range(4) if (rd, k) not in (((1, 2), (2, 0), (2, 2), (3, 0), (3, 2), (3, 3)) if W6 else ((2, 2), (3, 0), (3, 2)))]

def unit_tables():
    loc = {}
    n = 0
    for k in range(18):
        loc[('q', k)] = ('r', n); n += 1
        if k not in QK_LDS_KAPPA:
            loc[('k', k)] = ('r', n); n += 1
    for k in range(18):
        loc[('v', k)] = ('r', n); n += 1
    for u in WO_REG:
        loc[('o',) + u] = ('r', n); n += 1
    assert n == 55
    off = 0
    for k in QK_LDS_KAPPA:
        loc[('k', k)] = ('l', off); off += 8192
    for rd in range(4):
        for k in range(4):
            if (rd, k) not in WO_REG:
                loc[('o', rd, k)] = ('l', off); off += 8192
    for k in range(4):
        loc[('o', 4, k)] = ('l', off - 4096); off += 4096
    assert off == 17 * 8192
    return loc
LOC = unit_tables()
WO_BASE = len(QK_LDS_KAPPA) * 8192
STB = [26, 34, 62]

sH = S_ROLE
sSTEP, sCNT, sKVOFF, sRHO, sISRED = 50, 51, 52, 53, 54
sPST = 55
sRLD, sMST, sC, sFV, sPUB, sFLAG, sKXO, sWARM = 60, 61, 62, 64, 65, 66, 67, 68
sMLD, sGATE, sEXM = 24, 30, 28
sONE = 76
sQKVB, sWOB = 69, 70
sH1W, sH1R, sH2W, sH2R = 69, 70, 71, 75
sT = 72
SPIN_MAX = 20000
OPT = set()
AFTER = None
LDST = None
KVGATE = 0
BUF = f"s[{S_WS}:{S_WS+3}]"

def setup(A):
    A.c("chain: lane constants (v0 = lane id on entry)")
    n, g, t1, t2, ln = 10, 11, 12, 13, 14
    A(f"v_mov_b32 v{ln}, v0")
    A(f"v_and_b32 v{n}, 15, v{ln}")
    A(f"v_lshrrev_b32 v{g}, 4, v{ln}")
    A(f"v_mov_b32 v{vIDX}, 0x44444444")
    A(f"v_mov_b32 v{t1}, 0xeeeeeeee")
    A(f"v_cmp_lt_u32 vcc, 7, v{n}")
    A("s_nop 1")
    A(f"v_cndmask_b32 v{vIDX}, v{vIDX}, v{t1}, vcc")
    A(f"v_mov_b32 v{vMASK}, 0")
    A(f"v_mov_b32 v{t1}, 0xff800000")
    A(f"v_cmp_gt_u32 vcc, 32, v{ln}")
    A("s_nop 1")
    A(f"v_cndmask_b32 v{vMASK}, v{vMASK}, v{t1}, vcc")
    A(f"v_lshlrev_b32 v{vL16}, 4, v{ln}")
    A(f"s_lshl_b32 s3, s{S_WAVE}, 11")
    A(f"s_add_u32 s3, s3, {L_RES}")
    A(f"v_add_u32 v{vRES}, s3, v{vL16}")
    A(f"v_and_b32 v{t1}, 7, v{ln}")
    A(f"v_lshl_add_u32 v{t1}, v{g}, 3, v{t1}")
    A(f"v_lshlrev_b32 v{vMA}, 4, v{t1}")
    A(f"v_and_b32 v{t1}, 1, v{g}")
    A(f"v_mul_u32_u24 v{t1}, {XP}, v{t1}")
    A(f"v_lshrrev_b32 v{t2}, 1, v{g}")
    A(f"v_lshl_add_u32 v{t2}, v{t2}, 4, v{n}")
    A(f"s_lshl_b32 s3, s{S_WAVE}, 5")
    A(f"v_add_u32 v{t2}, s3, v{t2}")
    A(f"v_lshl_add_u32 v{vXW}, v{t2}, 3, v{t1}")
    A(f"v_add_u32 v{vXW}, {L_X}, v{vXW}")
    A(f"v_and_b32 v{t1}, 3, v{n}")
    A(f"v_mul_u32_u24 v{t1}, {XP}, v{t1}")
    A(f"v_lshrrev_b32 v{t2}, 1, v{g}")
    A(f"v_lshlrev_b32 v{t2}, 4, v{t2}")
    A(f"v_and_b32 v{vXR}, 1, v{g}")
    A(f"v_lshl_add_u32 v{t2}, v{vXR}, 2, v{t2}")
    A(f"v_lshrrev_b32 v{vXR}, 2, v{n}")
    A(f"v_add_u32 v{t2}, v{t2}, v{vXR}")
    A(f"v_lshl_add_u32 v{vXR}, v{t2}, 3, v{t1}")
    A(f"v_add_u32 v{vXR}, {L_X}, v{vXR}")
    A(f"s_lshl_b32 s3, s{S_WAVE}, 9")
    A(f"s_add_u32 s3, s3, {L_O}")
    A(f"v_mov_b32 v{t1}, s3")
    A(f"v_mov_b32 v{t2}, {L_JUNK}")
    A(f"v_cmp_lt_u32 vcc, 7, v{n}")
    A("s_nop 1")
    A(f"v_cndmask_b32 v{t1}, v{t1}, v{t2}, vcc")
    A(f"v_add_u32 v{vOW}, v{t1}, v{vMA}")
    A(f"v_and_b32 v{t1}, 2, v{g}")
    A(f"v_lshrrev_b32 v{vPST}, 3, v{n}")
    A(f"v_add_u32 v{t1}, v{t1}, v{vPST}")
    A(f"v_lshlrev_b32 v{t1}, 12, v{t1}")
    A(f"v_and_b32 v{t2}, 1, v{g}")
    A(f"v_lshl_add_u32 v{t1}, v{t2}, 3, v{t1}")
    A(f"v_and_b32 v{vPST}, 7, v{n}")
    A(f"v_lshl_add_u32 v{vPST}, v{vPST}, 4, v{t1}")

def setup_scalars(A):
    A.c("chain: scalar constants")
    A(f"s_lshl_b32 s3, s{sH}, 7")
    A(f"s_lshl_b32 s{sT}, s{S_WAVE}, 14")
    A(f"s_add_u32 s3, s3, s{sT}")
    A(f"s_add_u32 s{sPST}, s3, {WS_PART}")
    for rd in range(1, 4):
        A(f"s_add_u32 s{sPST+rd}, s{sPST}, {rd*65536}")
    A(f"s_add_u32 s{sPST+4}, s{sPST}, {4*65536 - 2*16384}")
    A(f"s_lshl_b32 s{sRHO}, s{S_WAVE}, 5")
    A(f"s_add_u32 s{sRHO}, s{sRHO}, s{sH}")
    A(f"s_cmp_lt_u32 s{sRHO}, 72")
    A(f"s_cselect_b32 s{sISRED}, 1, 0")
    A(f"s_cmp_eq_u32 s{S_WAVE}, 3")
    A(f"s_cselect_b32 s{sISRED}, 0, s{sISRED}")
    A(f"s_lshl_b32 s{sRLD}, s{sRHO}, 12")
    A(f"s_add_u32 s{sRLD}, s{sRLD}, {WS_PART}")
    A(f"s_lshl_b32 s{sMST}, s{sRHO}, 7")
    A(f"s_add_u32 s{sMST}, s{sMST}, {WS_M}")
    for i in range(3):
        A(f"s_mov_b32 s{sMLD+i}, {WS_M + 4096*i}")
    A(f"s_mov_b32 s{sC}, 0x3e029413")
    A(f"s_lshl_b32 s{sKVOFF}, s{sH}, 13")
    A(f"s_lshl_b32 s{sPUB}, s{sH}, 12")
    A(f"s_add_u32 s3, s{S_WAVE}, 1")
    A(f"s_cmp_eq_u32 s{S_WAVE}, 3")
    A(f"s_cselect_b32 s3, 1, s3")
    A(f"s_cmp_eq_u32 s{S_WAVE}, 0")
    A(f"s_cselect_b32 s3, 0, s3")
    A(f"s_lshl_b32 s3, s3, 10")
    A(f"s_add_u32 s{sPUB}, s{sPUB}, s3")
    A(f"s_add_u32 s{sPUB}, s{sPUB}, {WS_KVM - 32*4096}")
    A(f"s_lshl_b32 s{sFLAG}, s{sH}, 7")
    A(f"s_add_u32 s{sFLAG}, s{sFLAG}, {WS_FLAG}")
    A(f"s_lshl_b32 s{sKXO}, s{S_WAVE}, 11")
    A(f"s_mov_b32 s{sONE}, 0x3f803f80")
    A(f"s_mov_b32 s{sONE+1}, 0x3f803f80")
    A(f"s_mov_b32 s{sC+1}, s{sC}")
    A(f"s_lshr_b32 s{sWARM}, s{S_WAVE}, 1")
    A(f"s_mul_i32 s{sWARM}, s{sWARM}, {WS_V - WS_K}")
    A(f"s_and_b32 s3, s{S_WAVE}, 1")
    A(f"s_lshl_b32 s3, s3, 12")
    A(f"s_add_u32 s{sWARM}, s{sWARM}, s3")

def load_weights(A, fail, nrb):
    A.c("chain: weight load")
    ln, vQ, vO, vO4, vTR, vTR4, t1, t2, t3 = 14, 15, 16, 17, 18, 19, 20, 21, 22
    CV = 24
    A(f"v_lshrrev_b32 v{t1}, 4, v{ln}")
    A(f"v_lshlrev_b32 v{t2}, 2, v{t1}")
    A(f"v_xor_b32 v{t2}, v{t2}, v{ln}")
    A(f"v_and_b32 v{t2}, 15, v{t2}")
    A(f"v_lshlrev_b32 v{t2}, 4, v{t2}")
    A(f"v_and_b32 v{t3}, 1, v{t1}")
    A(f"v_lshlrev_b32 v{t3}, 1, v{t3}")
    A(f"v_lshrrev_b32 v{vQ}, 1, v{t1}")
    A(f"v_add_u32 v{t3}, v{t3}, v{vQ}")
    A(f"v_lshl_add_u32 v{vQ}, v{t3}, 13, v{t2}")
    A(f"v_lshrrev_b32 v{t3}, 1, v{t1}")
    A(f"v_lshlrev_b32 v{t3}, 4, v{t3}")
    A(f"v_and_b32 v{vO}, 1, v{t1}")
    A(f"v_add_u32 v{t3}, v{t3}, v{vO}")
    A(f"v_mul_u32_u24 v{t3}, 1152, v{t3}")
    A(f"v_add_u32 v{vO}, v{t3}, v{t2}")
    A(f"v_lshrrev_b32 v{t1}, 3, v{ln}")
    A(f"v_bfe_u32 v{t2}, v{t1}, 1, 1")
    A(f"v_lshlrev_b32 v{t3}, 4, v{t2}")
    A(f"v_lshlrev_b32 v{t2}, 2, v{t2}")
    A(f"v_xor_b32 v{t2}, v{t2}, v{ln}")
    A(f"v_and_b32 v{t2}, 7, v{t2}")
    A(f"v_lshlrev_b32 v{t2}, 4, v{t2}")
    A(f"v_and_b32 v{vO4}, 1, v{t1}")
    A(f"v_add_u32 v{t3}, v{t3}, v{vO4}")
    A(f"v_bfe_u32 v{vO4}, v{t1}, 2, 1")
    A(f"v_lshl_add_u32 v{t3}, v{vO4}, 1, v{t3}")
    A(f"v_mul_u32_u24 v{t3}, 1152, v{t3}")
    A(f"v_add_u32 v{vO4}, v{t3}, v{t2}")
    A(f"v_bfe_u32 v{t1}, v{ln}, 4, 1")
    A(f"v_bfe_u32 v{t2}, v{ln}, 2, 1")
    A(f"v_lshl_add_u32 v{t1}, v{t1}, 1, v{t2}")
    A(f"v_bfe_u32 v{t2}, v{ln}, 5, 1")
    A(f"v_lshl_add_u32 v{t2}, v{t2}, 3, v{t1}")
    A(f"v_bfe_u32 v{t3}, v{ln}, 3, 1")
    A(f"v_lshlrev_b32 v{t3}, 5, v{t3}")
    A(f"v_and_b32 v{vTR}, 3, v{ln}")
    A(f"v_lshl_add_u32 v{t3}, v{vTR}, 3, v{t3}")
    A(f"v_xor_b32 v{vTR}, s{S_WAVE}, v{t1}")
    A(f"v_lshl_add_u32 v{vTR}, v{vTR}, 6, v{t3}")
    A(f"v_lshl_add_u32 v{vTR}, v{t2}, 8, v{vTR}")
    A(f"v_add_u32 v{vTR}, {L_RES}, v{vTR}")
    A(f"v_lshrrev_b32 v{t1}, 1, v{t1}")
    A(f"s_and_b32 s3, s{S_WAVE}, 1")
    A(f"v_xor_b32 v{vTR4}, s3, v{t1}")
    A(f"v_lshl_add_u32 v{vTR4}, v{vTR4}, 6, v{t3}")
    A(f"v_lshl_add_u32 v{vTR4}, v{t2}, 7, v{vTR4}")
    A(f"v_add_u32 v{vTR4}, {L_RES + 15*8192}, v{vTR4}")
    vTRb = [vTR, 10, 11]
    A(f"v_add_u32 v10, {7*8192}, v{vTR}")
    A(f"v_add_u32 v11, {14*8192}, v{vTR}")
    vRb = [vRES, 12, 13]
    A(f"v_add_u32 v12, {7*8192}, v{vRES}")
    A(f"v_add_u32 v13, {14*8192}, v{vRES}")
    A(f"s_lshl_b32 s{sQKVB}, s{sH}, 8")
    A(f"s_lshl_b32 s3, s{S_WAVE}, 16")
    A(f"s_add_u32 s{sQKVB}, s{sQKVB}, s3")
    A(f"s_mul_i32 s{sWOB}, s{sH}, {128*1152}")
    A(f"s_mul_i32 s3, s{S_WAVE}, {4*1152}")
    A(f"s_add_u32 s{sWOB}, s{sWOB}, s3")
    A(f"s_lshl_b32 s{sT+1}, s{S_WAVE}, 11")
    A(f"s_add_u32 s{sT+1}, s{sT+1}, {L_RES}")
    A(f"s_lshl_b32 s{sT+2}, s{S_WAVE}, 10")
    A(f"s_add_u32 s{sT+2}, s{sT+2}, {L_RES + 15*8192}")

    regu = sorted([u for u in LOC if LOC[u][0] == 'r'], key=lambda u: LOC[u][1])
    resu = sorted([u for u in LOC if LOC[u][0] == 'l' and not (u[0] == 'o' and u[1] == 4)], key=lambda u: LOC[u][1])
    NR = 15
    seq = regu + resu
    first = (-len(regu)) % NR
    slot = lambda i: (first + i) % NR
    def issue(i):
        u = seq[i]
        for q in range(2):
            if u[0] == 'o':
                A(f"s_add_u32 s{sT}, s{sWOB}, {(u[2]*32 + 2*q)*1152 + u[1]*256}")
                d, vo = S_WO, vO
            else:
                A(f"s_add_u32 s{sT}, s{sQKVB}, {(u[1]*32 + 4*q)*8192}")
                d, vo = {'q': S_WQ, 'k': S_WK, 'v': S_WV}[u[0]], vQ
            A(f"s_add_u32 m0, s{sT+1}, {slot(i)*8192 + q*1024}")
            A("s_nop 0")
            A(f"buffer_load_dwordx4 v{vo}, s[{d}:{d+3}], s{sT} offen {PAR['ldf']} lds")
    def trread(dst, sl):
        for u4 in range(4):
            A(f"ds_read_b64_tr_b16 {r(dst+2*u4,2)}, v{vTRb[sl//7]} offset:{(sl%7)*8192 + 4096*(u4>>1) + 1024*(u4&1)}")
    order = []
    def issue_blk(i):
        issue(i); order.extend([i, i])
    vWR = 23
    A(f"v_and_b32 v{vWR}, 0xf0, v{vL16}")
    A(f"v_lshlrev_b32 v{vWR}, 3, v{vWR}")
    A(f"v_lshrrev_b32 v{t1}, 8, v{vL16}")
    A(f"v_min_u32 v{t1}, 1, v{t1}")
    A(f"v_lshl_or_b32 v{vWR}, v{t1}, 30, v{vWR}")
    A(f"s_lshl_b32 s{sT+3}, s{sH}, 13")
    A(f"s_lshl_b32 s3, s{S_WAVE}, 11")
    A(f"s_add_u32 s{sT+3}, s{sT+3}, s3")
    warmed = [NR]
    def warm_to(n):
        while warmed[0] < min(n, len(seq)):
            u = seq[warmed[0]]; warmed[0] += 1
            if u[0] != 'o' and PAR['wd']:
                d = {'q': S_WQ, 'k': S_WK, 'v': S_WV}[u[0]]
                A(f"s_mov_b32 m0, {L_JUNK}")
                A(f"s_add_u32 s{sT}, s{sT+3}, {u[1]*32*8192}")
                A(f"buffer_load_dword v{vWR}, s[{d}:{d+3}], s{sT} offen lds")
                order.append(None)
    issued = 0
    while issued < PAR['fill']:
        issue_blk(issued); issued += 1
    G = PAR['G']
    i = 0
    gi = 0
    pending_w = []
    HB = 40
    GA, GB = PAR['ga'], 28
    while i < len(seq):
        grp = list(range(i, min(i + G, len(seq))))
        if i < len(regu) < grp[-1] + 1:
            grp = list(range(i, len(regu)))
        last = max(p for p, b in enumerate(order) if b == grp[-1])
        assert len(order) - 1 - last < 60
        A(f"s_waitcnt vmcnt({len(order) - 1 - last})")
        if LDST and gi in LDST:
            A(f"s_memrealtime s[{LDST[gi]}:{LDST[gi]+1}]")
        if gi == 0:
            init_done(A)
        if gi == 19:
            assert m0pos < last
            mem0_write(A)
        if gi == GB:
            assert pollpos < last
            lr, lb = A.newlabel("notyet"), A.newlabel("ready")
            if AFTER:
                A("s_memrealtime s[98:99]")
                A("s_mov_b32 s100, 0")
            eval_counts(A, 41, lr, True, 80)
            A(f"v_cmp_gt_u32 vcc, {0x180 if nrb else 0}, v43")
            A(f"s_cbranch_vccz {lb}")
            A.label(lr)
            A("s_mov_b32 s100, 1")
            read_counts(A, fail, 40, True, 80)
            if nrb:
                wait_kv(A, fail, nrb, 42)
            A.label(lb)
        A("s_barrier")
        if gi == 10:
            l = A.newlabel("hb")
            A(f"s_cmp_lt_u32 s{S_WAVE}, 2")
            A(f"s_cbranch_scc1 {l}")
            for k in range(4):
                A(f"ds_write_b128 v13, {v(HB+8*k,4)} offset:{4096 + k*4096}")
                A(f"ds_write_b128 v13, {v(HB+8*k+4,4)} offset:{4096 + k*4096 + 1024}")
            A.label(l)
        for t in pending_w:
            A(t)
        pending_w = []
        lim = issued + PAR['step']
        while issued < min(len(seq), i + NR, lim):
            issue_blk(issued); issued += 1
        if gi == 0:
            for k in range(4):
                A(f"s_add_u32 s{sT}, s{sWOB}, {k*32*1152 + 1024}")
                A(f"s_add_u32 m0, s{sT+2}, {k*4096}")
                A("s_nop 0")
                A(f"buffer_load_dwordx4 v{vO4}, s[{S_WO}:{S_WO+3}], s{sT} offen lds")
            order.extend([None] * 4); hbpos = len(order) - 1
        if gi == 11:
            mem0_issue(A)
            order.extend([None] * 18); m0pos = len(order) - 1
        warm_to(issued + PAR['wd'])
        if gi == GA:
            A(f"v_lshrrev_b32 v40, 2, v{vL16}")
            A(f"global_load_dword v41, v40, s[{S_DBG}:{S_DBG+1}] sc1")
            kv_addr(A, nrb, 42)
            A(f"buffer_load_dword v43, v42, {BUF}, s{sT} offen sc1")
            order.extend([None, None]); pollpos = len(order) - 1
        if gi == GB:
            assert issued == len(seq)
            kx_addr(A, 70, 71)
            A(f"s_lshl_b32 s3, s{S_WAVE}, 11")
            for xt in range(2):
                A(f"s_add_u32 m0, s3, {L_KX + xt*1024}")
                A(f"s_add_u32 s{sT}, s3, {WS_K + xt*128}")
                A(f"s_add_u32 s{sT}, s{sT}, s{sKVOFF}")
                A(f"buffer_load_dwordx4 v70, {BUF}, s{sT} offen sc1 lds")
            A(f"v_lshlrev_b32 v{tWA}, 2, v{vL16}")
            warm(A, sKVOFF, tWA)
            A(f"s_add_u32 s{sT+2}, s{sKVOFF}, {32*8192}")
            warm(A, sT + 2, tWA)
            order.extend([None] * 4)
        if gi == 9:
            assert hbpos < last
            for k in range(4):
                for u4 in range(4):
                    A(f"ds_read_b64_tr_b16 {v(HB+8*k+2*u4,2)}, v{vTR4} offset:{k*4096 + 2048*(u4>>1) + 512*(u4&1)}")
            A("s_waitcnt lgkmcnt(0)")
        for j, b in enumerate(grp):
            if b < len(regu):
                trread(wreg(LOC[seq[b]][1]), slot(b))
            else:
                assert slot(b) * 8192 == LOC[seq[b]][1]
                cv = CV + 8 * j
                if j == 0:
                    A("s_waitcnt lgkmcnt(0)")
                trread(cv, slot(b))
                sl = slot(b)
                pending_w += [f"ds_write_b128 v{vRb[sl//7]}, {v(cv,4)} offset:{(sl%7)*8192}",
                              f"ds_write_b128 v{vRb[sl//7]}, {v(cv+4,4)} offset:{(sl%7)*8192+1024}"]
        A("s_waitcnt lgkmcnt(0)")
        i = grp[-1] + 1
        gi += 1
    A("s_barrier")
    for t in pending_w:
        A(t)
    A("s_waitcnt lgkmcnt(0)")

def mem0_issue(A):
    A.c("chain: mem0 -> LDS fragment image")
    q, t1, ad, D = 62, 63, 64, 44
    A(f"s_lshl_b32 s3, s{S_WAVE}, 6")
    A(f"v_lshrrev_b32 v{q}, 4, v{vL16}")
    A(f"v_add_u32 v{q}, s3, v{q}")
    A(f"v_bfe_u32 v{t1}, v{q}, 2, 3")
    A(f"v_mul_u32_u24 v{ad}, 1152, v{t1}")
    A(f"v_lshrrev_b32 v{t1}, 5, v{q}")
    A(f"v_lshl_add_u32 v{ad}, v{t1}, 4, v{ad}")
    A(f"v_and_b32 v{t1}, 1, v{q}")
    A(f"v_lshl_add_u32 v{ad}, v{t1}, 3, v{ad}")
    A(f"v_bfe_u32 v{t1}, v{q}, 1, 1")
    A(f"v_lshl_add_u32 v{ad}, v{t1}, 1, v{ad}")
    for it in range(9):
        A(f"buffer_load_ushort v{D+2*it}, v{ad}, s[{S_TMPD}:{S_TMPD+3}], 0 offen offset:{it*128}")
        A(f"buffer_load_ushort v{D+2*it+1}, v{ad}, s[{S_TMPD}:{S_TMPD+3}], 0 offen offset:{it*128+4}")
    A(f"v_lshlrev_b32 v{q}, 2, v{q}")

def mem0_write(A):
    q, D = 62, 44
    for it in range(9):
        A(f"v_lshl_or_b32 v{D+2*it}, v{D+2*it+1}, 16, v{D+2*it}")
        A(f"ds_write_b32 v{q}, v{D+2*it} offset:{L_M + it*1024}")

AF, ST = 10, 26
QACC, KACC, VACC, VX, PUB = 42, 46, 50, 54, 62
tVX, tWA, tFL, tFV, tKX = 70, 66, 67, 68, 36
XPK = 62
XF, KXF = 10, 26
SX0, SX1, SM = 42, 46, 62
VAF = 66
PAR = dict(ldf='nt', pubf='sc1', e0=2, mb2=(0, 'q'), qks=(3, 9, 12, 16), rdelay=10, mdelay=8, kx=0, sp=6, ns=3, r1=4, kc=3, kb=6, ga=20, wd=0, G=2, fill=6, step=4)
sMK = 24
V_IN_QK = 6

def warm(A, seg_off_sgpr, va):
    A(f"s_add_u32 s{sT}, s{seg_off_sgpr}, s{sWARM}")
    A(f"s_mov_b32 m0, {L_JUNK}")
    A("s_nop 0")
    A(f"buffer_load_dword v{va}, {BUF}, s{sT} offen sc1 lds")

KBUF = {1: 26, 2: 34, 3: 62, 4: 26, 5: 34, 7: 26, 8: 34, 10: 26, 11: 34, 13: 26, 14: 34, 15: 62}
KFET = {1: 4, 2: 5, 4: 7, 5: 8, 7: 10, 8: 11, 10: 13, 11: 14, 12: 15}
if W6:
    KBUF = {1: 26, 2: 34, 3: 62, 6: 26, 7: 34, 10: 26, 11: 34, 14: 26, 15: 34}
    KFET = {2: 6, 4: 7, 7: 10, 8: 11, 11: 14, 12: 15}
MB = {1: (4, 5), 2: (6, 7), 3: (8,)}
NVQ = 12
tPA = 58

def pub_addr():
    return [f"v_bfe_u32 v{tPA}, v{vL16}, 5, 1", f"v_mul_i32_i24 v{tPA}, {256 - 2*XP}, v{tPA}", f"v_add_u32 v{tPA}, v{tPA}, v{vXR}"]

def pub_read(w):
    if w in (0, 3):
        o = 2 * XP + (512 if w else 0)
        return [f"ds_read_b64_tr_b16 {v(PUB,2)}, v{tPA} offset:{o}", f"ds_read_b64_tr_b16 {v(PUB+2,2)}, v{tPA} offset:{o+64}"]
    return [f"ds_read_b128 {v(PUB,4)}, v{vL16} offset:{L_VM + (w-1)*XP}"]

def kx_addr_ops(t, t2):
    return [f"v_bfe_u32 v{t2}, v{vL16}, 8, 2", f"v_and_b32 v{t}, 0x70, v{vL16}", f"v_lshl_add_u32 v{t}, v{t2}, 9, v{t}",
            f"v_and_b32 v{t2}, 0x80, v{vL16}", f"v_lshl_add_u32 v{t}, v{t2}, 1, v{t}"]

def kx_addr(A, t, t2):
    for x in kx_addr_ops(t, t2): A(x)

def kx_dma(A, w, t, ahead):
    for xt in range(2):
        A(f"s_mov_b32 m0, {L_KX + (2*w+xt)*1024}")
        A(f"s_add_u32 s{sT}, s{sKVOFF}, {WS_K + ahead*32*8192 + w*2048 + xt*128}")
        A(f"buffer_load_dwordx4 v{t}, {BUF}, s{sT} offen sc1 lds")

def vx_load(A):
    A(f"s_add_u32 s{sT}, s{sKVOFF}, {WS_V}")
    A(f"buffer_load_dwordx4 {v(VX,4)}, v{tVX}, {BUF}, s{sT} offen sc1")
    A(f"buffer_load_dwordx4 {v(VX+4,4)}, v{tVX}, {BUF}, s{sT} offen offset:256 sc1")

def vx_addr(A):
    A(f"v_and_b32 v{tVX}, 0xf0, v{vL16}")
    A(f"v_bfe_u32 v71, v{vL16}, 8, 2")
    A(f"v_lshl_add_u32 v71, v71, 9, s{sKXO}")
    A(f"v_add_u32 v{tVX}, v{tVX}, v71")

def kunit(k):
    o = LOC[('k', k)][1]
    base, o = (vRES, o) if o < 7 * 8192 else (vT, o - 7 * 8192)
    return [f"ds_read_b128 {v(KBUF[k],4)}, v{base} offset:{o}", f"ds_read_b128 {v(KBUF[k]+4,4)}, v{base} offset:{o+1024}"]

def st_preload(A):
    for k in (1, 2, 3):
        for t in kunit(k): A(t)

def pre_b1(A):
    for i in range(6):
        A(f"v_mov_b64 {v(QACC+2*i,2)}, 0")
    vx_addr(A)
    A(f"v_add_u32 v{vT}, {7*8192}, v{vRES}")

def delay(A, n):
    while n > 0:
        k = min(n, 4)
        A(f"s_nop {4*k-1}")
        n -= k

def smf(acc, af, w):
    return f"v_smfmac_f32_16x16x64_bf16 {v(acc,4)}, {v(af,4)}, {r(w,8)}, v{vIDX}"

STAMPS = {'al': (1, 2, 4, 6, 7), 'wo': (1, 2, 6, 7), 'sm': (1, 5, 6, 7), 'qk': (4, 5, 6, 7)}
def stamp(A, prof, i, mode=None):
    cur = [m for m in STAMPS if m in OPT]
    taken = STAMPS[cur[0]] if cur else ()
    if mode is True:
        mode = 'al'
    if prof and ((mode is None and i not in taken) or (mode in cur and i in taken)):
        A(f"{'s_memrealtime' if (mode == 'al' and i == 1) else 's_memtime'} s[{80+2*i}:{81+2*i}]")

def mread(L, dst, k):
    return L.op(f"ds_read_b128 {v(dst,4)}, v{vMA} offset:{L_M + k*512}")

def vstep(A, L, tokA, kv):
    tok, reg = tokA[('v', kv)]
    L.wait(tok)
    A(smf(VACC, reg, wreg(LOC[('v', kv)][1])))

def vload(L, tokA, kv, reg):
    tokA[('v', kv)] = (mread(L, reg, kv), reg)

def tagcheck(regs, ck, tag, stride):
    op = "0x80" if tag else "0xfe"
    out = []
    for i, b in enumerate(regs):
        d = [b + j for j in range(0, 4, stride)]
        if i == 0 and stride == 1:
            ops = [f"v_bitop3_b32 v{ck}, v{d[0]}, v{d[1]}, v{d[2]} bitop3:{op}", f"v_bitop3_b32 v{ck}, v{ck}, v{d[3]}, v{d[3]} bitop3:{op}"]
        elif i == 0:
            ops = [f"v_bitop3_b32 v{ck}, v{d[0]}, v{d[1]}, v{d[1]} bitop3:{op}"]
        else:
            ops = [f"v_bitop3_b32 v{ck}, v{ck}, v{d[j]}, v{d[j+1]} bitop3:{op}" for j in range(0, len(d), 2)]
        out.append(ops)
    out[-1] = out[-1] + [f"v_and_b32 v{ck}, 1, v{ck}", f"v_cmp_ne_u32 vcc, {tag}, v{ck}"]
    return out

def mload(A, reg, chunk):
    so, off = sMLD + chunk // 4, (chunk % 4) * 1024
    A(f"buffer_load_dwordx4 {v(reg,4)}, v{vL16}, {BUF}, s{so} offen offset:{off} sc1")

def mb_ops(w):
    mb = MB.get(w, ())
    ops = [f"s_mov_b32 m0, {L_M + (mb[0] // 4) * 4096}", "s_nop 0"] if mb else []
    return ops + [f"buffer_load_dwordx4 v{vL16}, {BUF}, s{sMLD + c // 4} offen offset:{(c % 4) * 1024} sc1 lds" for c in mb]

def mb_dma(A, w):
    for t in mb_ops(w): A(t)

def spin(A, cold, label, back, loads, check, fail, cnt):
    def f():
        A.label(label)
        loads()
        A(f"s_add_u32 s{sCNT}, s{sCNT}, {cnt}")
        A(f"s_cmp_gt_u32 s{sCNT}, {SPIN_MAX*cnt}")
        A(f"s_cbranch_scc1 {fail}")
        A("s_waitcnt vmcnt(0)")
        for t in check: A(t)
        A(f"s_cbranch_vccnz {label}")
        A(f"s_branch {back}")
    cold.append(f)

def qkv_stage(A, L, w, ptag, fail, cold, prof, last):
    tokA, tokU = {}, {1: 0, 2: 0, 3: 0}
    for k in range(3):
        if k == 2 and w in (0, 3) :
            A(f"s_waitcnt vmcnt({2 + (1 if w == 3 else 0)})")
        tokA[k] = mread(L, AF + 4 * (k % 4), k)
    slots = [(k, m) for k in range(18) for m in (("v", "q", "k") if k < NVQ else ("q", "k"))]
    idx = {x: i for i, x in enumerate(slots)}
    pre, post, valu = {}, {}, {}
    add = lambda d, key, *x: d.setdefault(idx[key], []).extend(x)
    def spread_valu(ops, start):
        i = idx[start]
        for t in ops:
            while valu.get(i):
                i += 1
            valu[i] = [t]
        return i
    rd_at = {k: [k + 3] for k in range(15)}
    KB = PAR['kb']
    for k in (15, 16, 17):
        add(post, (k, "q"), ("v", k - 3, AF + 4 * ((k + 3) % 4)))
    for k, ku in KFET.items():
        a_, b_ = kunit(ku)
        add(post, (k, "k"), ("l", None, a_))
        add(post, (k + 1, "v" if k + 1 < NVQ else "q"), ("l", ku, b_))
    if not last:
        for k, kps in (((16, (0, 1)), (17, (2, 3))) if W6 else ((16, (2, 3)), (17, (0, 1)))):
            for kp in kps:
                add(post, (k, "k"), ("l", ('kx', kp), f"ds_read_b128 {v(KXF+4*kp,4)}, v{vL16} offset:{L_KX + 2*kp*1024}"))
    KC = PAR['kc']
    mb = MB.get(w, ())
    two = 'mb1' not in OPT and bool(mb)
    add(pre, (KC, "v"), f"s_waitcnt vmcnt({len(mb) if two else 0})")
    if two:
        ops = mb_ops(w)
        lsk = A.newlabel("mb2skip")
        add(post, PAR['mb2'], ops[0], f"s_cmp_eq_u32 s{sSTEP}, 0", f"s_cbranch_scc1 {lsk}", *ops[2:], ("label", lsk))
    if mb:
        regs = [VX + 4 * i for i in range(len(mb))]
        rb = [f"ds_read_b128 {v(regs[i],4)}, v{vL16} offset:{L_M + c*1024}" for i, c in enumerate(mb)]
        for t in rb:
            add(pre, (KC, "v"), ("l", 'mb', t))
        chk = sum(tagcheck(regs, 71, ptag, 1), [])
        chk.insert(-2, f"v_bitop3_b32 v71, v71, v71, s{sEXM} bitop3:{'0xf5' if ptag else '0xa0'}")
        lb, lr = A.newlabel("mbok"), A.newlabel("mbre")
        st = idx[(KC + 1, "q")]
        post.setdefault(st, []).append(("w", 'mb'))
        for j, t in enumerate(chk):
            valu.setdefault(st + (2 * j) // 3, []).append(t)
        end = st + (2 * (len(chk) - 1)) // 3
        assert end < idx[(KB, "q")]
        add(pre, (KB, "q"), f"s_cbranch_vccnz {lr}", ("label", lb))
        def again():
            lp = A.newlabel("mbspin")
            A.label(lr)
            if two:
                mb_dma(A, w)
                A(f"s_add_u32 s{sCNT}, s{sCNT}, 65536")
                A(f"s_waitcnt vmcnt({len(mb)})")
                for t in rb: A(t)
                A("s_waitcnt lgkmcnt(0)")
                for t in chk: A(t)
                A(f"s_cbranch_vccz {lb}")
            for _ in range(1 if two else 2):
                mb_dma(A, w)
                delay(A, 5)
            A.label(lp)
            mb_dma(A, w)
            A(f"s_add_u32 s{sCNT}, s{sCNT}, 65536")
            A(f"s_cmp_gt_u32 s{sCNT}, {SPIN_MAX*65536}")
            A(f"s_cbranch_scc1 {fail}")
            A(f"s_waitcnt vmcnt({2*len(mb)})")
            for t in rb: A(t)
            A("s_waitcnt lgkmcnt(0)")
            for t in chk: A(t)
            A(f"s_cbranch_vccnz {lp}")
            A(f"s_branch {lb}")
        cold.append(again)
    add(pre, (KB, "q"), "s_barrier")
    if KB == 6:
        del rd_at[5]
        rd_at[6] = [8, 9]
    if w in (0, 3):
        e = spread_valu(pub_addr(), (KC, "v"))
    for k, ks in rd_at.items():
        for kk in ks:
            add(post, (k, "q"), ("a", kk))
    for t in pub_read(w):
        add(post, (6, "v") if True else (7, "v"), ("l", 'pub', t))
    nslow = 0
    late = 'late' in OPT
    wa, fv = (70, 71) if late else (tWA, tFV)
    extra = [f"v_lshlrev_b32 v{wa}, 2, v{vL16}"] + ([f"v_mov_b32 v{fv}, s{sFV}"] if w == 3 else [])
    spread_valu(extra, (7, "v") if True else (9, "v"))
    slow = [[("w", 'pub'), f"buffer_store_dwordx4 {v(PUB,4)}, v{vL16}, {BUF}, s{sPUB} offen {PAR['pubf']}"]]
    if not last:
        add(post, (6, "k") if True else (7, "k"), f"s_add_u32 s{sT}, s{sKVOFF}, {WS_V}", f"buffer_load_dwordx4 {v(VX,4)}, v{tVX}, {BUF}, s{sT} offen sc1")
        add(post, (7, "q") if True else (8, "k"), f"buffer_load_dwordx4 {v(VX+4,4)}, v{tVX}, {BUF}, s{sT} offen offset:256 sc1")
        add(post, (8, "k") if True else (10, "k"), f"s_add_u32 s{sT+1}, s{sKVOFF}, {2*32*8192}", f"s_min_u32 s{sT+1}, s{sT+1}, {63*32*8192}",
            f"s_mov_b32 m0, {L_JUNK}", f"s_add_u32 s{sT}, s{sT+1}, s{sWARM}")
        slow.append([f"buffer_load_dword v{wa}, {BUF}, s{sT} offen sc1 lds"])
    if w == 3:
        slow.append(["s_mov_b64 exec, 1", f"buffer_store_dword v{fv}, v{vL16}, {BUF}, s{sFLAG} offen sc1", "s_mov_b64 exec, -1"])
    nslow = len(slow)
    if KVGATE and w == 0 and ptag == 1 and not last:
        lg, lb2 = A.newlabel("kvs"), A.newlabel("kvsb")
        add(post, (12, "q"), f"s_bitcmp1_b64 s[{sGATE}:{sGATE+1}], s{sSTEP}", f"s_cbranch_scc1 {lg}", ("label", lb2))
        def sample():
            A.label(lg)
            A(f"v_lshlrev_b32 v71, 3, v{vL16}")
            A(f"s_mov_b32 m0, {L_KVC}")
            A(f"s_mov_b32 s{sT}, {WS_FLAG + 32*128}")
            A("s_mov_b64 exec, 0xffff")
            A(f"buffer_load_dword v71, {BUF}, s{sT} offen sc1 lds")
            A("s_mov_b64 exec, -1")
            A(f"s_branch {lb2}")
        cold.append(sample)
    if not late:
        for key, ops in zip(((8, "q"), (9, "q"), (10, "q")) if True else ((10, "v"), (11, "v"), (11, "k")), slow):
            add(post, key, *ops)
    tk = {}
    def emit(x):
        if isinstance(x, str):
            A(x)
        elif x[0] == "a":
            tokA[x[1]] = mread(L, AF + 4 * (x[1] % 4), x[1])
        elif x[0] == "v":
            vload(L, tokA, x[1], x[2])
        elif x[0] == "l":
            t = L.op(x[2])
            if isinstance(x[1], int): tokU[x[1]] = t
            elif isinstance(x[1], tuple): tokA[x[1]] = t
            else: tk[x[1]] = t
        elif x[0] == "w":
            L.wait(tk[x[1]])
        elif x[0] == "label":
            A.label(x[1])
    for i, (k, m) in enumerate(slots):
        af = AF + 4 * (k % 4)
        if m == "q" and k in PAR.get('qks', ()):
            stamp(A, prof, 4 + PAR['qks'].index(k), 'qk')
        for x in pre.get(i, []): emit(x)
        if (k, m) == slots[idx[(k, "q")] - (1 if k < NVQ else 0)]:
            L.wait(tokA[k])
        if m == "k" and LOC[('k', k)][0] == 'l':
            L.wait(tokU[k])
            A(smf(KACC, af, KBUF[k]))
        else:
            A(smf({"v": VACC, "q": QACC, "k": KACC}[m], af, wreg(LOC[(m, k)][1])))
        for x in post.get(i, []): emit(x)
        for x in valu.get(i, []): emit(x)
    vload(L, tokA, 15, AF + 4)
    vstep(A, L, tokA, 12)
    A("s_nop 1")
    vstep(A, L, tokA, 13)
    A("s_nop 2")
    xpk = 66 if late else XPK
    A(f"v_cvt_pk_bf16_f32 v{xpk}, v{QACC}, v{QACC+1}")
    A(f"v_cvt_pk_bf16_f32 v{xpk+1}, v{QACC+2}, v{QACC+3}")
    L.op(f"ds_write_b64 v{vXW}, {v(xpk,2)}")
    A(f"v_cvt_pk_bf16_f32 v{xpk+2}, v{KACC}, v{KACC+1}")
    A(f"v_cvt_pk_bf16_f32 v{xpk+3}, v{KACC+2}, v{KACC+3}")
    tw = L.op(f"ds_write_b64 v{vXW}, {v(xpk+2,2)} offset:{2*XP}")
    vload(L, tokA, 16, QACC)
    vload(L, tokA, 17, KACC)
    for j, kv in enumerate((14, 15, None)):
        if kv:
            vstep(A, L, tokA, kv)
        if late and j < len(slow):
            for x in slow[j]: emit(x)
    L.wait(tw)
    A("s_barrier")
    return tokA, nslow

def kick(A, w, tag, pos):
    if 'kick' in OPT and tag == 1 and w == 1 and pos == PAR.get('kp', 0):
        lk = A.newlabel("kick")
        A(f"s_and_b32 s3, s{sSTEP}, 14")
        A(f"s_lshl_b32 s3, s3, 8")
        A(f"s_add_u32 s3, s3, s{sH}")
        A(f"s_cmp_lg_u32 s3, {8*256 + 5}")
        A(f"s_cbranch_scc1 {lk}")
        delay(A, PAR.get('kick', 40))
        A.label(lk)

def step(A, w, tag, fail, cold, prof=False, stf=""):
    cls = max(w - 1, 0)
    L = LgkmTracker(A)
    A("s_waitcnt lgkmcnt(0)")
    A("s_barrier")
    stamp(A, prof, 0)
    stamp(A, prof, 1, True)
    A(f"s_mov_b32 s{sCNT}, 0")
    kick(A, w, tag, 1)
    tokA, nslow = qkv_stage(A, L, w, tag ^ 1, fail, cold, prof, False)
    stamp(A, prof, 2)
    tx = {}
    def xread(kp):
        L.op(f"ds_read_b64_tr_b16 {v(XF+4*kp,2)}, v{vXR} offset:{kp*256}")
        tx[kp] = L.op(f"ds_read_b64_tr_b16 {v(XF+4*kp+2,2)}, v{vXR} offset:{kp*256+64}")
    xread(0); xread(1)
    vstep(A, L, tokA, 16)
    xread(2); xread(3)
    vstep(A, L, tokA, 17)
    m1, m2, m3, mt = 70, 71, 20, 21
    ONES, PX, PM, LS, O0, VQ, O1 = 22, 26, 32, 10, 14, 66, 36
    VP = VQ + 2
    SC = [SX0 + i for i in range(8)] + [SM + i for i in range(4)]
    mf = lambda d, a_, b_, c: A(f"v_mfma_f32_16x16x32_bf16 {v(d,4)}, {v(a_,4)}, {v(b_,4)}, {c}")
    for kp in range(4):
        L.wait(max(tx[kp], tokA[('kx', kp)]))
        mf(SX0, KXF + 4 * kp, XF + 4 * kp, "0" if kp == 0 else v(SX0, 4))
        tokA[('kx1', kp)] = L.op(f"ds_read_b128 {v(KXF+4*kp,4)}, v{vL16} offset:{L_KX + (2*kp+1)*1024}")
        if kp < 2:
            A(f"v_mov_b32 v{SM+2*kp}, v{vMASK}")
            A(f"v_mov_b32 v{SM+2*kp+1}, v{vMASK}")
    fill = {0: [f"v_cvt_pk_bf16_f32 v{VP}, v{VACC}, v{VACC+1}", f"v_cvt_pk_bf16_f32 v{VP+1}, v{VACC+2}, v{VACC+3}"],
            1: [None, f"v_mov_b64 {v(VQ,2)}, {v(VP,2)}"],
            2: ["s_nop 0", f"v_max3_f32 v{m1}, v{SX0}, v{SX0+1}, v{SX0+2}"],
            3: [f"v_permlane32_swap_b32 v{VQ}, v{VP}", f"v_permlane32_swap_b32 v{VQ+1}, v{VP+1}"]}
    for kp in range(4):
        mf(SM, XF + 4 * kp, XF + 4 * kp, v(SM, 4))
        for t in fill[kp]:
            if t is None:
                L.op(f"ds_write_b64 v{vXW}, {v(VP,2)} offset:{4*XP}")
            else:
                A(t)
    for kp in range(4):
        L.wait(tokA[('kx1', kp)])
        mf(SX1, KXF + 4 * kp, XF + 4 * kp, "0" if kp == 0 else v(SX1, 4))
        if kp < 2:
            A("s_nop 1")
        if kp == 2:
            A("s_nop 0")
            A(f"v_max3_f32 v{m1}, v{m1}, v{SX0+3}, v{SM}")
    A(f"v_max3_f32 v{m2}, v{SM+1}, v{SM+2}, v{SM+3}")
    A(f"v_mov_b64 {v(30,2)}, 0")
    A(f"v_mov_b64 {v(34,2)}, 0")
    A(f"v_mov_b64 {v(ONES,2)}, s[{sONE}:{sONE+1}]")
    A(f"v_mov_b64 {v(ONES+2,2)}, s[{sONE}:{sONE+1}]")
    A(f"v_max_f32 v{m1}, v{m1}, v{m2}")
    A("s_nop 1")
    stamp(A, prof, 1, 'sm')
    A(f"v_max3_f32 v{m1}, v{m1}, v{SX1}, v{SX1+1}")
    A(f"v_max3_f32 v{mt}, v{m1}, v{SX1+2}, v{SX1+3}")
    A(f"v_max3_f32 v{m1}, v{m1}, v{SX1+2}, v{SX1+3}")
    A("s_nop 1")
    A(f"v_permlane16_swap_b32 v{m1}, v{mt}")
    A(f"v_max_f32 v{m2}, v{m1}, v{mt}")
    A(f"v_max_f32 v{m1}, v{m1}, v{mt}")
    A("s_nop 1")
    A(f"v_permlane32_swap_b32 v{m1}, v{m2}")
    A(f"v_max_f32 v{m1}, v{m1}, v{m2}")
    A(f"v_mul_f32 v{m1}, s{sC}, v{m1}")
    for i in range(6):
        A(f"v_pk_fma_f32 {v(SC[2*i],2)}, {v(SC[2*i],2)}, s[{sC}:{sC+1}], {v(m1,2)} op_sel_hi:[1,0,0] neg_lo:[0,0,1] neg_hi:[0,0,1]")
    stamp(A, prof, 5, 'sm')
    for i in range(8):
        A(f"v_exp_f32 v{SC[i]}, v{SC[i]}")
    A(f"v_exp_f32 v{SC[8]}, v{SC[8]}")
    for i in range(4):
        A(f"v_cvt_pk_bf16_f32 v{PX+i}, v{SC[2*i]}, v{SC[2*i+1]}")
    A(f"v_exp_f32 v{SC[9]}, v{SC[9]}")
    A(f"s_waitcnt vmcnt({nslow})")
    A(f"v_mfma_f32_16x16x32_bf16 {v(LS,4)}, {v(ONES,4)}, {v(PX,4)}, 0")
    A(f"v_exp_f32 v{SC[10]}, v{SC[10]}")
    A(f"v_mfma_f32_16x16x32_bf16 {v(O0,4)}, {v(VX,4)}, {v(PX,4)}, 0")
    A(f"v_exp_f32 v{SC[11]}, v{SC[11]}")
    A(f"v_mfma_f32_16x16x32_bf16 {v(O1,4)}, {v(VX+4,4)}, {v(PX,4)}, 0")
    A(f"v_cvt_pk_bf16_f32 v{PM}, v{SM}, v{SM+1}")
    A(f"v_cvt_pk_bf16_f32 v{PM+1}, v{SM+2}, v{SM+3}")
    A("s_nop 1")
    A(f"v_mfma_f32_16x16x32_bf16 {v(LS,4)}, {v(ONES,4)}, {v(PM,4)}, {v(LS,4)}")
    A(f"v_mfma_f32_16x16x32_bf16 {v(O0,4)}, {v(VQ,4)}, {v(PM,4)}, {v(O0,4)}")
    A(f"v_mfma_f32_16x16x32_bf16 {v(O1,4)}, {v(VQ,4)}, {v(PM-2,4)}, {v(O1,4)}")
    stamp(A, prof, 6, 'sm')
    OACC, OF, WST, OPK = 52, 10, 26, 22
    nr = 4 if cls == 0 else 5
    lu = [('o', rd, k) for rd in range(nr) for k in range(4) if (rd, k) not in WO_REG]
    tu = {}
    bufs = {0: 26, 1: 34, 2: 42, 3: 26, 4: 34, 5: 42, 6: 52}
    if W6:
        bufs = {0: 26, 1: 34, 2: 42, 3: 26, 4: 34, 5: 42, 6: 26, 7: 52, 8: 34, 9: 42}
    def fetch(i):
        o = LOC[lu[i]][1] - WO_BASE
        L.op(f"ds_read_b128 {v(bufs[i],4)}, v{vT} offset:{o}")
        tu[i] = L.op(f"ds_read_b128 {v(bufs[i]+4,4)}, v{vT} offset:{o+1024}")
    A(f"v_add_u32 v{vT}, {WO_BASE}, v{vRES}")
    for i in range(52, 60, 2):
        A(f"v_mov_b64 {v(i,2)}, 0")
    A("s_nop 0")
    m1 = 18
    A(f"v_rcp_f32 v{m1}, v{LS}")
    A(f"v_mov_b64 {v(60,2)}, 0")
    for i in range(2):
        A(f"v_pk_mul_f32 {v(O0+2*i,2)}, {v(O0+2*i,2)}, {v(m1,2)} op_sel_hi:[1,0]")
    for i in range(2):
        A(f"v_pk_mul_f32 {v(O1+2*i,2)}, {v(O1+2*i,2)}, {v(m1,2)} op_sel_hi:[1,0]")
    A(f"v_cvt_pk_bf16_f32 v{OPK}, v{O0}, v{O0+1}")
    A(f"v_cvt_pk_bf16_f32 v{OPK+1}, v{O0+2}, v{O0+3}")
    A(f"v_cvt_pk_bf16_f32 v{OPK+2}, v{O1}, v{O1+1}")
    A(f"v_cvt_pk_bf16_f32 v{OPK+3}, v{O1+2}, v{O1+3}")
    tw = L.op(f"ds_write_b128 v{vOW}, {v(OPK,4)}")
    stamp(A, prof, 7, 'sm')
    A(f"s_add_u32 s{sSTEP}, s{sSTEP}, 1")
    for i in range(62, 52 + 4 * nr, 2):
        A(f"v_mov_b64 {v(i,2)}, 0")
    L.wait(tw)
    A("s_barrier")
    stamp(A, prof, 4)
    to = {}
    for k in range(4):
        to[k] = L.op(f"ds_read_b128 {v(OF+4*k,4)}, v{vMA} offset:{L_O + k*512}")
    tagop = (lambda x: f"v_or_b32 v{x}, 1, v{x}") if tag else (lambda x: f"v_and_b32 v{x}, -2, v{x}")
    def emit_out(rd):
        p = OACC + 4 * rd
        return [f"v_cvt_pk_bf16_f32 v{p}, v{p}, v{p+1}", f"v_cvt_pk_bf16_f32 v{p+1}, v{p+2}, v{p+3}", tagop(p),
                f"buffer_store_dwordx2 {v(p,2)}, v{vPST}, {BUF}, s{sPST+rd} offen {stf}"]
    after = {0: 3, 1: 4, 2: 5}
    early = {1: 0, 3: 1, 5: 2, 15: 6}
    if W6:
        after = {0: 3, 1: 4, 2: 5, 3: 6, 4: 8, 5: 9}
        early = {0: 0, 2: 1, 4: 2, 13: 7}
    sched = {}
    for rd in range(nr - 1):
        o = emit_out(rd)
        b = 4 * rd + 3
        so = ([3, 4, 1, 1] if W6 else [3, 4, 1, 2])[w]
        if 'ea' in OPT and rd == 1:
            so = [1, 2, 1, 2][w]
        sched.setdefault(b + 3, []).append(o[0]); sched.setdefault(b + 4, []).append(o[1])
        sched.setdefault(b + 5, []).append(o[2]); sched.setdefault(b + 5 + so, []).append(o[3])
    tail = []
    for x in sorted(sched):
        if x >= 4 * nr:
            tail += sched[x]
    for rd in range(nr):
        for k in range(4):
            slot = 4 * rd + k
            if rd == 0:
                L.wait(to[k])
            u = ('o', rd, k)
            fill = 0
            if LOC[u][0] == 'r':
                A(smf(OACC + 4 * rd, OF + 4 * k, wreg(LOC[u][1])))
                if early.get(slot, 99) < len(lu):
                    fetch(early[slot]); fill = 2
            else:
                i = lu.index(u)
                L.wait(tu[i])
                A(smf(OACC + 4 * rd, OF + 4 * k, bufs[i]))
                if after.get(i, 99) < len(lu):
                    fetch(after[i]); fill = 2
            fill += len(sched.get(slot, []))
            if rd and k < 2 and fill < 3:
                A(f"s_nop {2 - fill}")
            for t in sorted(sched.get(slot, []), key=lambda x: (x.startswith("v_"), 0) if so else (0, 0)):
                if not ('nost' in OPT and t.startswith("buffer_store") and rd < 9 and False):
                    A(t)
            if slot in (0, 3, 7, 11):
                stamp(A, prof, {0: 1, 3: 2, 7: 6, 11: 7}[slot], 'wo')
    for t in tail:
        A(t)
    A(f"s_add_u32 s{sKVOFF}, s{sKVOFF}, {32*8192}")
    A(f"s_add_u32 s{sPUB}, s{sPUB}, {32*4096}")
    A(f"s_mov_b64 s[{sEXM}:{sEXM+1}], -1")
    A(f"s_sub_i32 s{sFV}, s{sSTEP}, 1")
    A("s_nop 0")
    for x in emit_out(nr - 1): A(x)
    stamp(A, prof, 5)
    RD, SEL, RA, ck, vMST = [10, 14, 18, 22], 26, 30, 34, 35
    rloads = lambda: [A(f"buffer_load_dwordx4 {v(RD[i],4)}, v{vL16}, {BUF}, s{sRLD} offen offset:{i*1024} sc1") for i in range(4)]
    def reduce_start(dly, bar=False):
        delay(A, dly)
        stamp(A, prof, 2, True)
        rloads()
        if bar:
            A("s_barrier")
        A(f"v_and_b32 v{ck}, 16, v{vL16}")
        A(f"v_mov_b32 v{RA}, 0x3f80")
        A(f"v_lshlrev_b32 v{RA}, v{ck}, v{RA}")
        A(f"v_bfe_u32 v{ck}, v{vL16}, 5, 3")
        for q in range(4):
            A(f"v_cmp_eq_u32 vcc, {q}, v{ck}")
            A("s_nop 1")
            A(f"v_cndmask_b32 v{SEL+q}, 0, v{RA}, vcc")
        A(f"v_and_b32 v{vMST}, 0xf0, v{vL16}")
        A(f"v_bfe_u32 v{ck}, v{vL16}, 8, 2")
        A(f"v_lshl_add_u32 v{vMST}, v{ck}, 2, v{vMST}")
        A(f"v_and_b32 v{ck}, 0x80, v{vL16}")
        A(f"v_lshl_add_u32 v{vMST}, v{ck}, 23, v{vMST}")
        pre_b1(A)
    def reduce_finish():
        lr = A.newlabel("rre")
        for i, ops in enumerate(tagcheck(RD, ck, tag, 2)):
            A(f"s_waitcnt vmcnt({3-i})")
            A(f"v_mfma_f32_16x16x32_bf16 {v(RA,4)}, {v(RD[i],4)}, {v(SEL,4)}, {'0' if i == 0 else v(RA,4)}")
            for t in ops: A(t)
        A(f"s_cbranch_vccnz {lr}")
        A("s_nop 3")
        def finish():
            A(f"v_permlane32_swap_b32 v{RA}, v{RA+1}")
            A(f"v_permlane32_swap_b32 v{RA+2}, v{RA+3}")
            A(f"v_add_f32 v{RA}, v{RA}, v{RA+1}")
            A(f"v_add_f32 v{RA+2}, v{RA+2}, v{RA+3}")
            A(f"v_cvt_pk_bf16_f32 v{RA}, v{RA}, v{RA+2}")
            A(tagop(RA))
            A(f"buffer_store_dword v{RA}, v{vMST}, {BUF}, s{sMST} offen {stf}")
            stamp(A, prof, 6, True)
        finish()
        lback = A.newlabel("rback")
        A.label(lback)
        def again():
            R2 = [54, 58, 62, 66]
            ld = lambda R: [A(f"buffer_load_dwordx4 {v(R[i],4)}, v{vL16}, {BUF}, s{sRLD} offen offset:{i*1024} sc1") for i in range(4)]
            lsp, lok = A.newlabel("rspin"), A.newlabel("rok")
            A.label(lr)
            ld(RD)
            delay(A, 6)
            A.label(lsp)
            for cur, nxt in ((RD, R2), (R2, RD)):
                ld(nxt)
                A(f"s_add_u32 s{sCNT}, s{sCNT}, 1")
                for i, ops in enumerate(tagcheck(cur, ck, tag, 2)):
                    A(f"s_waitcnt vmcnt({7-i})")
                    A(f"v_mfma_f32_16x16x32_bf16 {v(RA,4)}, {v(cur[i],4)}, {v(SEL,4)}, {'0' if i == 0 else v(RA,4)}")
                    for t in ops: A(t)
                A(f"s_cbranch_vccz {lok}")
            A(f"s_and_b32 s3, s{sCNT}, 0xffff")
            A(f"s_cmp_gt_u32 s3, {SPIN_MAX}")
            A(f"s_cbranch_scc0 {lsp}")
            A(f"s_branch {fail}")
            A.label(lok)
            A("s_nop 3")
            finish()
            A("s_waitcnt vmcnt(1)")
            A(f"s_branch {lback}")
        cold.append(again)
    def gather_a(chunks):
        ns = PAR['ns']
        sets = [10, 18, VX][:ns]
        ld = lambda b: [mload(A, b + 4 * i, c) for i, c in enumerate(chunks)]
        wr = lambda b: [A(f"ds_write_b128 v{vL16}, {v(b+4*i,4)} offset:{L_M + c*1024}") for i, c in enumerate(chunks)]
        ckf = lambda b: tagcheck([b, b + 4], 71, tag, 1)
        lok = A.newlabel("maok")
        labs = [A.newlabel("ma") for _ in range(ns + 1)]
        delay(A, PAR['mdelay'])
        stamp(A, prof, 4, True)
        for j, b in enumerate(sets):
            ld(b)
            if j == 0:
                st_preload(A)
            if j < ns - 1:
                delay(A, PAR['sp'] - (2 if j == 0 else 0))
        def tail(b, j):
            wr(b)
            A("s_barrier")
            mb_dma(A, w)
            if j == 0 and ns > 1 and False:
                A(f"s_waitcnt vmcnt({2*(ns-2) + (1 if w == 3 else 0)})")
        for i, ops in enumerate(ckf(sets[0])):
            A(f"s_waitcnt vmcnt({2*ns-1-i})")
            for t in ops: A(t)
        A(f"s_cbranch_vccnz {labs[1]}")
        stamp(A, prof, 7, True)
        tail(sets[0], 0)
        A.label(lok)
        def later():
            assert ns == 3
            lrot = A.newlabel("marot")
            oks = [A.newlabel("mahit") for _ in range(ns)]
            def look(j):
                A(f"s_add_u32 s{sCNT}, s{sCNT}, {0x1000000 if prof else 1}")
                for i, ops in enumerate(ckf(sets[j])):
                    A(f"s_waitcnt vmcnt({3-i})")
                    for t in ops: A(t)
                A(f"s_cbranch_vccz {oks[j]}")
                ld(sets[(j + 2) % 3])
            A.label(labs[1])
            look(1)
            A.label(lrot)
            for j in (2, 0, 1):
                look(j)
            A(f"s_add_u32 s{sCNT}, s{sCNT}, 1")
            A(f"s_and_b32 s3, s{sCNT}, 0xffff")
            A(f"s_cmp_gt_u32 s3, {SPIN_MAX}")
            A(f"s_cbranch_scc0 {lrot}")
            A(f"s_branch {fail}")
            for j in range(ns):
                A.label(oks[j])
                stamp(A, prof, 7, True)
                wr(sets[j])
                A("s_barrier")
                mb_dma(A, w)
                if j != 1:
                    A(f"s_waitcnt vmcnt({len(MB.get(w, ()))})")
                A(f"s_branch {lok}")
        cold.append(later)
    kick(A, w, tag, 0)
    ea = 'ea' in OPT
    kx1 = ea
    if ea and w == 3:
        kx_addr(A, tKX, tKX + 1)
    if not (ea and w == 0):
        A("s_barrier")
    if ea and w == 3:
        for q in range(4):
            kx_dma(A, q, tKX, 0)
    if w == 0:
        reduce_start(PAR['e0'] if ea else PAR['rdelay'], ea)
        reduce_finish()
        A("s_barrier")
        gather_a((0, 1))
    elif w == 3:
        pre_b1(A)
        kx_addr(A, tKX, tKX + 1)
        if KVGATE and tag == 1:
            lg, lb = A.newlabel("kvgate"), A.newlabel("kvback")
            A(f"s_sub_u32 s3, s{sSTEP}, 2")
            A(f"s_bitcmp1_b64 s[{sGATE}:{sGATE+1}], s3")
            A(f"s_cbranch_scc1 {lg}")
            A.label(lb)
            def kvgate():
                A.label(lg)
                A(f"s_mov_b32 s{sT+1}, 60")
                for g, n in KVGATE[:-1]:
                    A(f"s_cmp_eq_u32 s{sSTEP}, {g}")
                    A(f"s_cselect_b32 s{sT+1}, {4*(n-1)}, s{sT+1}")
                A(f"v_lshrrev_b32 v10, 2, v{vL16}")
                A(f"v_min_u32 v10, s{sT+1}, v10")
                A(f"ds_read_b32 v11, v10 offset:{L_KVC}")
                A("s_waitcnt lgkmcnt(0)")
                A(f"v_cmp_gt_u32 vcc, 0x180, v11")
                A(f"s_cbranch_vccz {lb}")
                A(f"v_lshlrev_b32 v10, 5, v10")
                A(f"s_mov_b32 s{sT}, {WS_FLAG + 32*128}")
                wait_kv(A, fail, None, 10)
                A(f"s_branch {lb}")
            cold.append(kvgate)
        if 'kxq' not in OPT and not kx1:
            delay(A, PAR['rdelay'] + PAR['kx'])
            for q in range(4):
                kx_dma(A, q, tKX, 0)
        if AFTER: AFTER(A)
        A("s_barrier")
        gather_a((2, 3))
    else:
        lo, lj = A.newlabel("nored"), A.newlabel("redj")
        if w == 2:
            A(f"s_cmp_ge_u32 s{sH}, 8")
            A(f"s_cbranch_scc1 {lo}")
            def nored():
                A.label(lo)
                pre_b1(A)
                A("s_barrier")
                A(f"s_branch {lj}")
            cold.append(nored)
        reduce_start(PAR['rdelay'] + PAR['r1'], ea)
        if not ea:
            A("s_barrier")
        kick(A, w, tag, 2)
        reduce_finish()
        A.label(lj)
        st_preload(A)
        A("s_barrier")
        stamp(A, prof, 4, True)
        mb_dma(A, w)
    stamp(A, prof, 7)

def kv_addr(A, nrb, vt):
    A(f"v_and_b32 v{vt}, 0xf0, v{vL16}")
    A(f"v_min_u32 v{vt}, {16*max(nrb-1, 0)}, v{vt}")
    A(f"v_lshlrev_b32 v{vt}, 3, v{vt}")
    A(f"s_mov_b32 s{sT}, {WS_FLAG + 32*128}")

def wait_kv(A, fail, nrb, vt):
    lp = A.newlabel("kvw")
    if nrb is not None:
        kv_addr(A, nrb, vt)
    A(f"s_mov_b32 s3, 0")
    A.label(lp)
    A(f"buffer_load_dword v{vt+1}, v{vt}, {BUF}, s{sT} offen sc1")
    A(f"s_add_u32 s3, s3, 1")
    A(f"s_cmp_gt_u32 s3, 200000")
    A(f"s_cbranch_scc1 {fail}")
    A("s_waitcnt vmcnt(0)")
    A(f"v_cmp_gt_u32 vcc, 0x180, v{vt+1}")
    A(f"s_cbranch_vccnz {lp}")

def last_step(A, w, fail, cold):
    L = LgkmTracker(A)
    A("s_waitcnt lgkmcnt(0)")
    A("s_barrier")
    tokA, nslow = qkv_stage(A, L, w, 0, fail, cold, False, True)
    for kv in (16, 17):
        vstep(A, L, tokA, kv)
    if w in (0, 3):
        for t in pub_addr(): A(t)
    A("s_nop 7")
    A(f"v_cvt_pk_bf16_f32 v40, v{VACC}, v{VACC+1}")
    A(f"v_cvt_pk_bf16_f32 v41, v{VACC+2}, v{VACC+3}")
    A(f"ds_write_b64 v{vXW}, v[40:41] offset:{4*XP}")
    A(f"s_add_u32 s{sPUB}, s{sPUB}, {32*4096}")
    A("s_waitcnt lgkmcnt(0)")
    A("s_barrier")
    for t in pub_read(w): A(t)
    A("s_waitcnt lgkmcnt(0)")
    A(f"buffer_store_dwordx4 {v(PUB,4)}, v{vL16}, {BUF}, s{sPUB} offen sc1")
    A("s_waitcnt vmcnt(0)")
    A("s_barrier")
    if w == 3:
        A(f"v_mov_b32 v{tFV}, 64")
        A("s_mov_b64 exec, 1")
        A(f"buffer_store_dword v{tFV}, v{vL16}, {BUF}, s{sFLAG} offen sc1")
        A("s_mov_b64 exec, -1")

def run(A, fail, done, prof=None, stf=""):
    labs = [A.newlabel(f"wave{c}") for c in range(4)]
    A(f"s_mov_b32 s{sSTEP}, 0")
    A(f"s_mov_b32 s{sFV}, -1")
    A(f"s_mov_b32 s{sGATE}, {sum(1 << (g - 2) for g, _ in KVGATE) if KVGATE else 0}")
    A(f"s_mov_b32 s{sGATE+1}, 0")
    A(f"s_mov_b64 s[{sEXM}:{sEXM+1}], 0")
    for c in range(1, 4):
        A(f"s_cmp_eq_u32 s{S_WAVE}, {c}")
        A(f"s_cbranch_scc1 {labs[c]}")
    for w in range(4):
        A.label(labs[w])
        cold = []
        pre_b1(A)
        st_preload(A)
        A("s_waitcnt vmcnt(0)")
        lo, la = A.newlabel("loop"), A.newlabel("last")
        A(".p2align 6")
        A.label(lo)
        step(A, w, 0, fail, cold, prof, stf)
        if prof: prof(A)
        A(f"s_cmp_eq_u32 s{sSTEP}, 63")
        A(f"s_cbranch_scc1 {la}")
        step(A, w, 1, fail, cold, prof, stf)
        if prof: prof(A)
        A(f"s_branch {lo}")
        A.label(la)
        last_step(A, w, fail, cold)
        A(f"s_branch {done}")
        i = 0
        while i < len(cold):
            cold[i](); i += 1
```

```python
from common import *
from bulk import read_addr, FL_ALL, FL_GRP

BUF = f"s[{S_WS}:{S_WS+3}]"
L_QKV = 0
L_KVM = 49152
L_OX  = 53248
EPB = 36 * 32768
vL, vKM, vVM, vRA, vRF, vRO, vT1, vT2, vT3, vT4 = 240, 241, 242, 243, 244, 245, 246, 247, 248, 249
MASK = 0
QF, KF, KMF = 16, 48, 80
SX, SM = 112, 128
PX = 144
VF = 156
OA = 168
OF = 16
WA = 184
SELA, SELB = 216, 220
RD = 48
RACC, XR = 224, 228
sH, sG, sSEG, sK, sQB, sEPW, sEPR, sISR, sC, sCNT, sRBOK, sTAG, sU, sNT, sWB = 50, 51, 52, 53, 54, 55, 56, 57, 58, 60, 61, 62, 63, 64, 65
sT = 72
SPIN_MAX = 400000
XO = set()

def wo_reg(t, k):
    return 256 + 32 * t + 4 * k

def poll_ge(A, line_sgpr, val, fail, signed=False):
    lp = A.newlabel("pw")
    A(f"s_mov_b32 s{sCNT}, 0")
    A(f"v_mov_b32 v{vT1}, 0")
    A.label(lp)
    A(f"buffer_load_dword v{vT2}, v{vT1}, {BUF}, s{line_sgpr} offen sc1")
    A(f"s_add_u32 s{sCNT}, s{sCNT}, 1")
    A(f"s_cmp_gt_u32 s{sCNT}, {SPIN_MAX}")
    A(f"s_cbranch_scc1 {fail}")
    A("s_waitcnt vmcnt(0)")
    A(f"v_cmp_gt_i32 vcc, {val}, v{vT2}")
    lq = A.newlabel("pwok")
    A(f"s_cbranch_vccz {lq}")
    A("s_sleep 2")
    A(f"s_branch {lp}")
    A.label(lq)

def release(A):
    l = A.newlabel("rel")
    A(f"s_cmp_eq_u32 s{S_LOCAL}, 1")
    A(f"s_cbranch_scc1 {l}")
    A("s_waitcnt vmcnt(0)")
    A("buffer_wbl2 sc1")
    A("s_waitcnt vmcnt(0)")
    A.label(l)

def setup(A, fail):
    A.c("engine: setup")
    A(f"v_mov_b32 v{vL}, v246")
    A(f"s_and_b32 s{sH}, s{S_ROLE}, 31")
    A(f"s_lshr_b32 s{sG}, s{S_ROLE}, 5")
    A(f"s_mul_i32 s{sEPW}, s{sG}, {2*EPB}")
    A(f"s_lshl_b32 s3, s{sH}, 10")
    A(f"s_add_u32 s{sEPW}, s{sEPW}, s3")
    A(f"s_add_u32 s{sEPW}, s{sEPW}, {WS_EP}")
    for i in range(4):
        A(f"v_mov_b32 v{i}, 1")
    A(f"s_mul_i32 s{sT}, s{S_WAVE}, {18*32768}")
    A(f"s_add_u32 s{sT}, s{sT}, s{sEPW}")
    for i in range(18):
        A(f"buffer_store_dwordx4 v[0:3], v{vL}, {BUF}, s{sT} offen")
        A(f"s_add_u32 s{sT}, s{sT}, 32768")
    A(f"v_lshrrev_b32 v{vT4}, 4, v{vL}")
    A(f"v_bfe_u32 v{vT1}, v{vT4}, 3, 2")
    A(f"v_bfe_u32 v{vT3}, v{vT4}, 5, 1")
    A(f"v_lshl_add_u32 v{vT1}, v{vT3}, 3, v{vT1}")
    A(f"v_mul_u32_u24 v{vT1}, 1152, v{vT1}")
    A(f"v_bfe_u32 v{vT2}, v{vT4}, 4, 1")
    A(f"v_lshlrev_b32 v{vT2}, 2, v{vT2}")
    A(f"v_xor_b32 v{vT2}, v{vT2}, v{vT4}")
    A(f"v_and_b32 v{vT2}, 7, v{vT2}")
    A(f"v_lshl_add_u32 v{vT1}, v{vT2}, 4, v{vT1}")
    A(f"s_mul_i32 s{sWB}, s{sH}, {128*1152}")
    A(f"s_lshr_b32 s3, s{S_WAVE}, 1")
    A(f"s_mul_i32 s3, s3, {16*1152}")
    A(f"s_add_u32 s{sWB}, s{sWB}, s3")
    A(f"s_and_b32 s3, s{S_WAVE}, 1")
    A(f"s_mul_i32 s3, s3, {4*1152}")
    A(f"s_add_u32 s{sWB}, s{sWB}, s3")
    A(f"s_lshl_b32 s{sT+1}, s{S_WAVE}, 10")
    for i in range(36):
        A(f"s_add_u32 m0, s{sT+1}, {i*4096}")
        A(f"s_add_u32 s{sT}, s{sWB}, {(i & 3)*32*1152 + (i >> 2)*128}")
        A(f"buffer_load_dwordx4 v{vT1}, s[{S_WO}:{S_WO+3}], s{sT} offen lds")
    ln = vT4
    read_addr(A, vRA, ln, vT1, vT2)
    A(f"s_mul_i32 s{sU}, s{S_WAVE}, 5")
    A(f"s_cmp_eq_u32 s{S_WAVE}, 3")
    A(f"s_cselect_b32 s{sU}, 14, s{sU}")
    A(f"s_waitcnt vmcnt(0)")
    release(A)
    A("s_barrier")
    A(f"s_lshl_b32 s{sT}, s{sG}, 7")
    A(f"s_add_u32 s{sT}, s{sT}, {WS_FLAG + FL_GRP*128}")
    l = A.newlabel("gs")
    A(f"s_cmp_lg_u32 s{S_WAVE}, 0")
    A(f"s_cbranch_scc1 {l}")
    A(f"v_mov_b32 v{vT1}, 1")
    A(f"v_mov_b32 v{vT2}, 0")
    A("s_mov_b64 exec, 1")
    A(f"buffer_atomic_add v{vT1}, v{vT2}, {BUF}, s{sT} offen")
    A("s_mov_b64 exec, -1")
    A.label(l)
    for t in range(5):
        A(f"s_add_u32 s3, s{sU}, {t}")
        A(f"s_min_u32 s3, s3, 17")
        A(f"s_lshr_b32 s{sT+1}, s3, 1")
        A(f"s_lshl_b32 s{sT+1}, s{sT+1}, 14")
        A(f"s_and_b32 s3, s3, 1")
        A(f"s_lshl_b32 s3, s3, 6")
        A(f"v_xor_b32 v{vT1}, s3, v{vRA}")
        A(f"v_add_u32 v{vT1}, s{sT+1}, v{vT1}")
        for k in range(8):
            A(f"ds_read_b64_tr_b16 {r(wo_reg(t,k),2)}, v{vT1} offset:{k*2048}")
            A(f"ds_read_b64_tr_b16 {r(wo_reg(t,k)+2,2)}, v{vT1} offset:{k*2048+512}")
        A("s_waitcnt lgkmcnt(0)")
    A(f"v_and_b32 v{vT1}, 31, v{ln}")
    A(f"v_bfe_u32 v{vT2}, v{ln}, 5, 1")
    A(f"v_lshlrev_b32 v{vT2}, 2, v{vT2}")
    A(f"v_sub_u32 v{vT1}, v{vT1}, v{vT2}")
    A(f"v_mov_b32 v{vT2}, 0xff800000")
    for i in range(16):
        A(f"v_cmp_gt_i32 vcc, {8*(i>>2) + (i&3)}, v{vT1}")
        A("s_nop 1")
        A(f"v_cndmask_b32 v{MASK+i}, 0, v{vT2}, vcc")
    A(f"v_and_b32 v{vKM}, 0x70, v{vL}")
    A(f"v_bfe_u32 v{vT1}, v{ln}, 5, 1")
    A(f"v_lshl_add_u32 v{vKM}, v{vT1}, 8, v{vKM}")
    A(f"v_and_b32 v{vVM}, 31, v{ln}")
    A(f"s_lshl_b32 s3, s{S_WAVE}, 5")
    A(f"v_add_u32 v{vVM}, s3, v{vVM}")
    A(f"v_lshlrev_b32 v{vVM}, 3, v{vVM}")
    A(f"v_lshl_add_u32 v{vVM}, v{vT1}, 10, v{vVM}")
    A(f"s_lshl_b32 s{sNT}, s{sH}, 1")
    A(f"s_add_u32 s{sNT}, s{sNT}, s{S_WAVE}")
    A(f"s_add_u32 s3, s{sH}, 64")
    A(f"s_cmp_eq_u32 s{S_WAVE}, 2")
    A(f"s_cselect_b32 s{sNT}, s3, s{sNT}")
    A(f"s_cmp_lt_u32 s{sNT}, 72")
    A(f"s_cselect_b32 s{sISR}, 1, 0")
    A(f"s_cmp_eq_u32 s{S_WAVE}, 3")
    A(f"s_cselect_b32 s{sISR}, 0, s{sISR}")
    A(f"s_lshr_b32 s{sT}, s{sNT}, 1")
    A(f"s_lshl_b32 s{sEPR}, s{sT}, 15")
    A(f"s_and_b32 s3, s{sNT}, 1")
    A(f"s_lshl_b32 s3, s3, 8")
    A(f"s_add_u32 s{sEPR}, s{sEPR}, s3")
    A(f"s_mul_i32 s3, s{sG}, {2*EPB}")
    A(f"s_add_u32 s{sEPR}, s{sEPR}, s3")
    A(f"s_add_u32 s{sEPR}, s{sEPR}, {WS_EP}")
    A(f"v_and_b32 v{vRA}, 0xf0, v{vL}")
    A(f"v_lshrrev_b32 v{vT1}, 4, v{ln}")
    A(f"v_lshl_add_u32 v{vRA}, v{vT1}, 10, v{vRA}")
    A(f"v_lshrrev_b32 v{vT2}, 1, v{vT1}")
    A(f"v_and_b32 v{vRO}, 15, v{ln}")
    A(f"s_and_b32 s3, s{sNT}, 1")
    A(f"s_lshl_b32 s3, s3, 4")
    A(f"v_add_u32 v{vRO}, s3, v{vRO}")
    A(f"v_mul_u32_u24 v{vRO}, 1152, v{vRO}")
    A(f"v_lshl_add_u32 v{vRO}, v{vT2}, 3, v{vRO}")
    A(f"v_and_b32 v{vT2}, 1, v{vT1}")
    A(f"v_lshl_add_u32 v{vRO}, v{vT2}, 4, v{vRO}")
    A(f"s_lshl_b32 s3, s{sT}, 5")
    A(f"v_add_u32 v{vRO}, s3, v{vRO}")
    A(f"v_and_b32 v{vT1}, 1, v{ln}")
    A(f"v_lshlrev_b32 v{vT1}, 4, v{vT1}")
    A(f"v_mov_b32 v{vT2}, 0x3f80")
    A(f"v_lshlrev_b32 v{vT2}, v{vT1}, v{vT2}")
    A(f"v_bfe_u32 v{vT1}, v{ln}, 1, 3")
    for q in range(8):
        A(f"v_cmp_eq_u32 vcc, {q}, v{vT1}")
        A("s_nop 1")
        A(f"v_cndmask_b32 v{SELA+q}, 0, v{vT2}, vcc")
    A(f"v_mov_b64 {v(PX+10,2)}, 0")
    A(f"v_mov_b64 {v(VF+10,2)}, 0")
    A(f"s_mov_b32 s{sC}, 0x3e029413")
    A(f"s_mov_b32 s{sC+1}, 0x3e029413")
    A(f"s_lshl_b32 s3, s{sU}, 16")
    A(f"s_add_u32 s{sEPW}, s{sEPW}, s3")
    A(f"s_lshl_b32 s{sT}, s{sG}, 7")
    A(f"s_add_u32 s{sT}, s{sT}, {WS_FLAG + FL_GRP*128}")
    poll_ge(A, sT, 32, fail)
    A("s_barrier")

def qkv_fetch(A, seg, bufsel, fail):
    l = A.newlabel("rbok")
    A(f"s_lshr_b32 s{sT}, s{seg}, 2")
    A(f"s_cmp_eq_u32 s{sT}, s{sRBOK}")
    A(f"s_cbranch_scc1 {l}")
    A(f"s_mov_b32 s{sRBOK}, s{sT}")
    A(f"s_lshl_b32 s{sT}, s{sT}, 7")
    A(f"s_add_u32 s{sT}, s{sT}, {WS_FLAG + FL_ALL*128}")
    poll_ge(A, sT, 12, fail)
    A.label(l)
    A(f"s_lshl_b32 s{sT}, s{seg}, 5")
    A(f"s_add_u32 s{sT}, s{sT}, s{sH}")
    A(f"s_lshl_b32 s{sT}, s{sT}, 13")
    A(f"s_lshl_b32 s3, s{S_WAVE}, 11")
    A(f"s_add_u32 s{sT}, s{sT}, s3")
    A(f"s_add_u32 s{sT+1}, s{bufsel}, s3")
    for m, base in enumerate((WS_Q, WS_K, WS_V)):
        A(f"s_add_u32 m0, s{sT+1}, {m*8192}")
        A(f"s_add_u32 s{sT+2}, s{sT}, {base}")
        A(f"buffer_load_dwordx4 v{vL}, {BUF}, s{sT+2} offen sc1 lds")
        A(f"buffer_load_dwordx4 v{vL}, {BUF}, s{sT+2} offen offset:1024 sc1 lds")

def segment(A, fail):
    L = LgkmTracker(A)
    A("s_waitcnt vmcnt(0)")
    A("s_barrier")
    A(f"v_add_u32 v{vT3}, s{sQB}, v{vL}")
    tq = {}
    for k in range(8):
        L.op(f"ds_read_b128 {v(QF+4*k,4)}, v{vT3} offset:{k*1024}")
        tq[k] = L.op(f"ds_read_b128 {v(KF+4*k,4)}, v{vT3} offset:{8192 + k*1024}")
        if k == 5:
            L.wait(tq[0])
    A(f"s_lshl_b32 s3, s{S_WAVE}, 11")
    A(f"v_add_u32 v{vT3}, s3, v{vT3}")
    for k in range(8):
        L.wait(tq[k])
        A(f"v_mfma_f32_32x32x16_bf16 {v(SX,16)}, {v(KF+4*k,4)}, {v(QF+4*k,4)}, {v(MASK,16) if k == 0 else v(SX,16)}")
    L.op(f"ds_read_b128 {v(VF,4)}, v{vT3} offset:{16384}")
    L.op(f"ds_read_b128 {v(VF+4,4)}, v{vT3} offset:{16384+1024}")
    ln = A.newlabel("nonext")
    A(f"s_add_u32 s{sT+6}, s{sSEG}, 6")
    A(f"s_xor_b32 s{sT+7}, s{sQB}, 24576")
    A(f"s_cmp_gt_u32 s{sT+6}, 62")
    A(f"s_cbranch_scc1 {ln}")
    qkv_fetch(A, sT + 6, sT + 7, fail)
    A.label(ln)
    lr = A.newlabel("nored0")
    A(f"s_cmp_eq_u32 s{sISR}, 0")
    A(f"s_cbranch_scc1 {lr}")
    A(f"s_mul_i32 s{sT}, s{sSEG}, {36*16384}")
    A(f"s_lshr_b32 s3, s{sNT}, 1")
    A(f"s_lshl_b32 s3, s3, 14")
    A(f"s_add_u32 s{sT}, s{sT}, s3")
    A(f"s_and_b32 s3, s{sNT}, 1")
    A(f"s_lshl_b32 s3, s3, 8")
    A(f"s_add_u32 s{sT}, s{sT}, s3")
    A(f"s_add_u32 s{sT}, s{sT}, {WS_FFN}")
    for u in range(3):
        for hf in range(2):
            A(f"buffer_load_dwordx4 {v(KMF+8*u+4*hf,4)}, v{vRA}, {BUF}, s{sT} offen offset:{hf*512} sc1")
        A(f"s_add_u32 s{sT}, s{sT}, 4096")
    A(f"s_mul_i32 s{sT}, s{sSEG}, {32*1152}")
    A(f"buffer_load_dwordx2 {v(XR,2)}, v{vRO}, s[{S_X}:{S_X+3}], s{sT} offen")
    A("s_waitcnt vmcnt(1)")
    for u in range(3):
        for hf in range(2):
            A(f"v_mfma_f32_16x16x32_bf16 {v(RACC,4)}, {v(SELA+4*hf,4)}, {v(KMF+8*u+4*hf,4)}, {'0' if u + hf == 0 else v(RACC,4)}")
    A.label(lr)
    if 'wbe' in XO:
        lw = A.newlabel("nowb")
        A(f"s_cmp_lt_u32 s{sSEG}, 57")
        A(f"s_cbranch_scc1 {lw}")
        A(f"s_or_b32 s3, s{S_WAVE}, s{sH}")
        A(f"s_cmp_lg_u32 s3, 0")
        A(f"s_cbranch_scc1 {lw}")
        A("buffer_wbl2 sc1")
        A.label(lw)
    A(f"s_lshl_b32 s{sT+3}, s{sH}, 7")
    A(f"s_add_u32 s{sT+3}, s{sT+3}, {WS_FLAG}")
    A(f"s_add_u32 s{sT+4}, s{sSEG}, 1")
    poll_ge(A, sT + 3, f"s{sT+4}", fail)
    A(f"s_lshl_b32 s{sT}, s{sSEG}, 5")
    A(f"s_add_u32 s{sT}, s{sT}, s{sH}")
    A(f"s_lshl_b32 s{sT}, s{sT}, 12")
    A(f"s_add_u32 s{sT}, s{sT}, {WS_KVM}")
    for k in range(8):
        A(f"buffer_load_dwordx4 {v(KMF+4*k,4)}, v{vKM}, {BUF}, s{sT} offen offset:{(k>>2)*1024 + (k&1)*512 + ((k>>1)&1)*128} sc1")
    A(f"buffer_load_dwordx2 {v(VF+8,2)}, v{vVM}, {BUF}, s{sT} offen offset:2048 sc1")
    for k in range(8):
        A(f"s_waitcnt vmcnt({8-k})")
        A(f"v_mfma_f32_32x32x16_bf16 {v(SM,16)}, {v(KMF+4*k,4)}, {v(QF+4*k,4)}, {'0' if k == 0 else v(SM,16)}")
    m1, m2, l1 = vT1, vT2, vT3
    A(f"v_max3_f32 v{m1}, v{SX}, v{SX+1}, v{SX+2}")
    for i in range(3, 15, 2):
        A(f"v_max3_f32 v{m1}, v{m1}, v{SX+i}, v{SX+i+1}")
    A(f"v_max_f32 v{m1}, v{m1}, v{SX+15}")
    A("s_nop 3")
    A(f"v_max3_f32 v{m1}, v{m1}, v{SM}, v{SM+1}")
    A(f"v_max3_f32 v{m2}, v{m1}, v{SM+2}, v{SM+3}")
    A(f"v_max3_f32 v{m1}, v{m1}, v{SM+2}, v{SM+3}")
    A("s_nop 1")
    A(f"v_permlane32_swap_b32 v{m1}, v{m2}")
    A(f"v_max_f32 v{m1}, v{m1}, v{m2}")
    A(f"v_mul_f32 v{m1}, s{sC}, v{m1}")
    for i in range(10):
        A(f"v_pk_fma_f32 {v(SX+2*i,2)}, {v(SX+2*i,2)}, s[{sC}:{sC+1}], {v(m1,2)} op_sel_hi:[1,0,0] neg_lo:[0,0,1] neg_hi:[0,0,1]")
    for i in range(20):
        A(f"v_exp_f32 v{SX+i}, v{SX+i}")
    for i in range(10):
        A(f"v_cvt_pk_bf16_f32 v{PX+i}, v{SX+2*i}, v{SX+2*i+1}")
    L.all()
    A("s_waitcnt vmcnt(0)")
    A(f"v_mfma_f32_32x32x16_bf16 {v(OA,16)}, {v(VF,4)}, {v(PX,4)}, 0")
    A(f"v_pk_add_f32 {v(SX,2)}, {v(SX,2)}, {v(SX+2,2)}")
    A(f"v_mfma_f32_32x32x16_bf16 {v(OA,16)}, {v(VF+4,4)}, {v(PX+4,4)}, {v(OA,16)}")
    A(f"v_mfma_f32_32x32x16_bf16 {v(OA,16)}, {v(VF+8,4)}, {v(PX+8,4)}, {v(OA,16)}")
    for i in range(2, 10):
        A(f"v_pk_add_f32 {v(SX,2)}, {v(SX,2)}, {v(SX+2*i,2)}")
    A(f"v_add_f32 v{m1}, v{SX}, v{SX+1}")
    A(f"v_add_f32 v{m2}, v{SX}, v{SX+1}")
    A("s_nop 1")
    A(f"v_permlane32_swap_b32 v{m1}, v{m2}")
    A(f"v_add_f32 v{m1}, v{m1}, v{m2}")
    A(f"v_rcp_f32 v{m1}, v{m1}")
    A("s_nop 0")
    for i in range(8):
        A(f"v_pk_mul_f32 {v(OA+2*i,2)}, {v(OA+2*i,2)}, {v(m1,2)} op_sel_hi:[1,0]")
    for i in range(8):
        A(f"v_cvt_pk_bf16_f32 v{PX+i}, v{OA+2*i}, v{OA+2*i+1}")
    A(f"s_lshl_b32 s3, s{S_WAVE}, 11")
    A(f"v_add_u32 v{vT3}, s3, v{vL}")
    A(f"ds_write_b128 v{vT3}, {v(PX,4)} offset:{L_OX}")
    A(f"ds_write_b128 v{vT3}, {v(PX+4,4)} offset:{L_OX+1024}")
    A("s_waitcnt lgkmcnt(0)")
    A("s_barrier")
    L = LgkmTracker(A)
    to = {k: L.op(f"ds_read_b128 {v(OF+4*k,4)}, v{vL} offset:{L_OX + k*1024}") for k in range(8)}
    A(f"s_and_b32 s3, s{sK}, 1")
    A(f"s_mul_i32 s{sT+5}, s3, {EPB}")
    A(f"s_add_u32 s{sT}, s{sEPW}, s{sT+5}")
    A(f"s_lshr_b32 s{sTAG}, s{sK}, 1")
    A(f"s_and_b32 s{sTAG}, s{sTAG}, 1")
    def epi(t):
        acc = WA + 16 * (t % 2)
        ops = []
        for half in range(2):
            for i in range(4):
                ops.append(f"v_cvt_pk_bf16_f32 v{acc+8*half+i}, v{acc+8*half+2*i}, v{acc+8*half+2*i+1}")
            for i in range(4):
                ops.append(f"v_and_or_b32 v{acc+8*half+i}, v{acc+8*half+i}, -2, s{sTAG}")
            ops.append(f"buffer_store_dwordx4 {v(acc+8*half,4)}, v{vL}, {BUF}, s{sT} offen")
            ops.append(f"s_add_u32 s{sT}, s{sT}, 32768")
        return ops
    l4, lj = A.newlabel("t4"), A.newlabel("tj")
    for t in range(5):
        if t == 4:
            A(f"s_cmp_ge_u32 s{S_WAVE}, 2")
            A(f"s_cbranch_scc1 {l4}")
        acc = WA + 16 * (t % 2)
        ops = epi(t - 1) if t else []
        for k in range(8):
            L.wait(to[k])
            A(f"v_mfma_f32_32x32x16_bf16 {v(acc,16)}, {r(wo_reg(t,k),4)}, {v(OF+4*k,4)}, {'0' if k == 0 else v(acc,16)}")
            if ops and k < 3:
                A("s_nop 3")
            if k >= 3:
                for x in ops[4*(k-3):4*(k-2)]:
                    A(x)
    A("s_nop 11")
    for x in epi(4): A(x)
    A(f"s_branch {lj}")
    A.label(l4)
    A("s_nop 11")
    for x in epi(3): A(x)
    A.label(lj)
    release(A)
    le = A.newlabel("segend")
    A(f"s_cmp_eq_u32 s{sISR}, 0")
    A(f"s_cbranch_scc1 {le}")
    A(f"s_mov_b32 s{sCNT}, 0")
    lp = A.newlabel("epoll")
    A.label(lp)
    A(f"s_add_u32 s{sT}, s{sEPR}, s{sT+5}")
    for u in range(8):
        for hf in range(2):
            A(f"buffer_load_dwordx4 {v(RD+8*u+4*hf,4)}, v{vRA}, {BUF}, s{sT} offen offset:{hf*512} sc1")
        A(f"s_add_u32 s{sT}, s{sT}, 4096")
    A(f"s_add_u32 s{sCNT}, s{sCNT}, 1")
    A(f"s_cmp_gt_u32 s{sCNT}, {SPIN_MAX}")
    A(f"s_cbranch_scc1 {fail}")
    a1, o1 = vT1, vT2
    for i in range(16):
        b = RD + 4 * i
        A(f"s_waitcnt vmcnt({15-i})")
        A(f"v_mfma_f32_16x16x32_bf16 {v(OA,4)}, {v(SELA+4*(i%2),4)}, {v(b,4)}, {v(RACC,4) if i == 0 else v(OA,4)}")
        if i == 0:
            A(f"v_bitop3_b32 v{a1}, v{b}, v{b+1}, v{b+2} bitop3:0x80")
            A(f"v_bitop3_b32 v{o1}, v{b}, v{b+1}, v{b+2} bitop3:0xfe")
            A(f"v_and_b32 v{a1}, v{a1}, v{b+3}")
            A(f"v_or_b32 v{o1}, v{o1}, v{b+3}")
        else:
            A(f"v_bitop3_b32 v{a1}, v{a1}, v{b}, v{b+1} bitop3:0x80")
            A(f"v_bitop3_b32 v{o1}, v{o1}, v{b}, v{b+1} bitop3:0xfe")
            A(f"v_bitop3_b32 v{a1}, v{a1}, v{b+2}, v{b+3} bitop3:0x80")
            A(f"v_bitop3_b32 v{o1}, v{o1}, v{b+2}, v{b+3} bitop3:0xfe")
    A(f"v_xor_b32 v{a1}, s{sTAG}, v{a1}")
    A(f"v_xor_b32 v{o1}, s{sTAG}, v{o1}")
    A(f"v_or_b32 v{a1}, v{a1}, v{o1}")
    A(f"v_and_b32 v{a1}, 1, v{a1}")
    A(f"v_cmp_ne_u32 vcc, 0, v{a1}")
    A(f"s_cbranch_vccnz {lp}")
    A(f"v_lshlrev_b32 v{vT1}, 16, v{XR}")
    A(f"v_and_b32 v{vT2}, 0xffff0000, v{XR}")
    A(f"v_lshlrev_b32 v{vT3}, 16, v{XR+1}")
    A(f"v_and_b32 v{vT4}, 0xffff0000, v{XR+1}")
    for i in range(4):
        A(f"v_add_f32 v{OA+i}, v{OA+i}, v{vT1+i}")
    A(f"v_cvt_pk_bf16_f32 v{OA}, v{OA}, v{OA+1}")
    A(f"v_cvt_pk_bf16_f32 v{OA+1}, v{OA+2}, v{OA+3}")
    A(f"s_mul_i32 s{sT}, s{sSEG}, {32*1152}")
    A(f"buffer_store_dwordx2 {v(OA,2)}, v{vRO}, s[{S_OUT}:{S_OUT+3}], s{sT} offen")
    A.label(le)

def run(A, fail, done, hook=None):
    setup(A, fail)
    if hook: hook()
    A(f"s_sub_u32 s{sSEG}, s{sG}, 1")
    A(f"s_cmp_eq_u32 s{sG}, 0")
    A(f"s_cselect_b32 s{sSEG}, 63, s{sSEG}")
    A(f"s_mov_b32 s{sK}, 0")
    A(f"s_mov_b32 s{sQB}, {L_QKV}")
    A(f"s_mov_b32 s{sRBOK}, -1")
    qkv_fetch(A, sSEG, sQB, fail)
    lp = A.newlabel("seg")
    A.label(lp)
    segment(A, fail)
    A(f"s_add_u32 s{sSEG}, s{sSEG}, 6")
    A(f"s_add_u32 s{sK}, s{sK}, 1")
    A(f"s_xor_b32 s{sQB}, s{sQB}, 24576")
    A(f"s_cmp_lt_u32 s{sSEG}, 63")
    A(f"s_cbranch_scc1 {lp}")
    A(f"s_branch {done}")
```

```python
import sys
from common import *
import chain, bulk, engine

KN = "parallel_sum__memory_aug_recurrent_mem_tr__dense_activation_silu__prompt_kernel"
REF = open("parallel_sum__memory_aug_recurrent_mem_tr__dense_activation_silu__prompt.s.ref").read()
COMMENT = REF[:REF.index("; Override launch geometry")]
HDR = COMMENT + f"""; @launch grid=(256,1,1) block=(256,1,1) lds=163840
.amdgcn_target "amdgcn-amd-amdhsa--gfx950"
.text
.globl {KN}
.p2align 8
.type {KN},@function
{KN}:
"""
FTR = f"""
.section .rodata,"a"
.p2align 6
.amdhsa_kernel {KN}
  .amdhsa_next_free_vgpr 512
  .amdhsa_next_free_sgpr 102
  .amdhsa_accum_offset 256
  .amdhsa_group_segment_fixed_size 0
  .amdhsa_kernarg_size 104
  .amdhsa_user_sgpr_count 2
  .amdhsa_user_sgpr_kernarg_segment_ptr 1
  .amdhsa_system_sgpr_workgroup_id_x 1
.end_amdhsa_kernel
"""

XO = set()
def tstamp(A, prof, i):
    if prof:
        A(f"s_memrealtime s[{i}:{i+1}]")

def steplog(A):
    A("s_memrealtime s[80:81]")
    A("s_memtime s[82:83]")
    A(f"s_lshl_b32 s3, s{chain.sSTEP}, 5")
    A(f"s_add_u32 s3, s3, s{S_ROLE}")
    A("s_lshl_b32 s3, s3, 2")
    A(f"s_add_u32 s3, s3, {WS_PROF + 65536}")
    A("s_waitcnt lgkmcnt(0)")
    A("v_mov_b32 v10, s80")
    A("v_mov_b32 v11, 0")
    A(f"buffer_store_dword v10, v11, s[{S_WS}:{S_WS+3}], s3 offen")
    A("v_mov_b32 v12, s82")
    A(f"s_add_u32 s3, s3, 16384")
    A(f"buffer_store_dword v12, v11, s[{S_WS}:{S_WS+3}], s3 offen")

def fine(A, i):
    A("s_memrealtime s[96:97]")
    A(f"s_lshl_b32 s3, s{S_ROLE}, 4")
    A(f"s_add_u32 s3, s3, {WS_PROF + 131072 + 4*i}")
    A("s_waitcnt lgkmcnt(0)")
    A("v_mov_b32 v253, s96")
    A("v_mov_b32 v254, 0")
    A(f"buffer_store_dword v253, v254, s[{S_WS}:{S_WS+3}], s3 offen")
    A("s_waitcnt vmcnt(63)")

def build(prof=False, force_nonlocal=False):
    A = Asm()
    tstamp(A, prof, 22)
    if prof:
        A("s_waitcnt lgkmcnt(0)")
        A("s_mov_b32 s101, s22")
    prologue(A, "L_exit")
    if 'nopf' not in XO:
        prefetch_code(A, KN, "L_codeend")
    take_ticket(A)
    assign_roles(A, "L_exit")
    A(f"s_cmp_ge_u32 s{S_ROLE}, 32")
    A("s_cbranch_scc1 L_bulk")
    chain.AFTER = (lambda A_: steplog(A_)) if prof and 'dbg' not in XO else None
    init_shared(A)
    chain.setup(A)
    chain.setup_scalars(A)
    chain.load_weights(A, "L_exit", 2)
    if force_nonlocal:
        A(f"s_mov_b32 s{S_LOCAL}, 0")
    tstamp(A, prof, 92)
    tstamp(A, prof, 94)
    A(f"s_cmp_eq_u32 s{S_LOCAL}, 0")
    A("s_cbranch_scc1 L_chain_far")
    chain.run(A, "L_exit0", "L_done0")
    chain.AFTER = None
    A.label("L_exit0")
    A("s_endpgm")
    A.label("L_done0")
    A("s_branch L_done1")
    A.label("L_chain_far")
    chain.run(A, "L_exit1", "L_done1", None, "sc1")
    A.label("L_exit")
    A.label("L_exit1")
    A("s_endpgm")
    A.label("L_done1")
    A("s_branch L_done")
    A.label("L_bulk")
    A(f"s_sub_u32 s{S_ROLE}, s{S_ROLE}, 32")
    bulk.run(A, "L_exit2", "L_engine", (lambda i: (tstamp(A, prof, 96), prof and (A('s_waitcnt lgkmcnt(0)'), A('s_mov_b32 s99, s96'))) if i == 2 else tstamp(A, prof, 92) if i == 3 else (tstamp(A, prof, 96), prof and (A('s_waitcnt lgkmcnt(0)'), A('s_mov_b32 s98, s96'))) if i else (tstamp(A, prof, 94), prof and (A('s_waitcnt lgkmcnt(0)'), A('s_mov_b32 s100, s94')))))
    A.label("L_engine")
    if force_nonlocal:
        A(f"s_mov_b32 s{S_LOCAL}, 0")
    tstamp(A, prof, 92)
    engine.run(A, "L_exit2", "L_done2", (lambda: tstamp(A, prof, 94)))
    A.label("L_done2")
    if 'wb' in XO:
        A(f"s_cmp_lg_u32 s{S_WAVE}, 0")
        A("s_cbranch_scc1 L_nowb")
        A("s_waitcnt vmcnt(0)")
        A("buffer_wbl2 sc1")
        A.label("L_nowb")
    A(f"s_add_u32 s{S_ROLE}, s{S_ROLE}, 32")
    A.label("L_done")
    if 'dbg' in XO:
        tstamp(A, prof, 96)
        A("s_waitcnt lgkmcnt(0)")
        A(f"s_cmp_lt_u32 s{S_ROLE}, 32")
        A("s_cselect_b32 s3, 16, 32")
        A("v_mov_b32 v20, s3")
        A("s_mov_b64 exec, 1")
        for i, x in enumerate((92, 94, 96)):
            A(f"s_sub_u32 s3, s{x}, s101")
            A("v_mov_b32 v21, s3")
            A(f"global_atomic_umax v20, v21, s[{S_DBG}:{S_DBG+1}] offset:{4*i}")
        A("s_endpgm")
    if prof:
        tstamp(A, prof, 96)
        A("s_waitcnt lgkmcnt(0)")
        for i in range(4):
            A(f"v_mov_b32 v{16+i}, s{(101, 92, 94, 96)[i]}")
        A(f"s_lshl_b32 s3, s{S_ROLE}, 2")
        A(f"s_add_u32 s3, s3, s{S_WAVE}")
        A("s_lshl_b32 s3, s3, 4")
        A(f"s_add_u32 s3, s3, {WS_PROF}")
        A("v_mov_b32 v20, 0")
        A(f"buffer_store_dwordx4 v[16:19], v20, s[{S_WS}:{S_WS+3}], s3 offen")
        A("v_mov_b32 v16, s100")
        A("v_mov_b32 v17, s98")
        A("v_mov_b32 v18, s99")
        A(f"s_add_u32 s3, s3, 16384")
        A(f"buffer_store_dwordx4 v[16:19], v20, s[{S_WS}:{S_WS+3}], s3 offen")
    A.label("L_exit2")
    A("s_endpgm")
    A.label("L_codeend")
    return HDR + A.text() + FTR

if __name__ == "__main__":
    chain.KVGATE = ((6, 3), (10, 5), (18, 16))
    open("parallel_sum__memory_aug_recurrent_mem_tr__dense_activation_silu__prompt.s", "w").write(build())
    open("full_prof.s", "w").write(build(True))
    open("full_far.s", "w").write(build(True, True))
    P0 = dict(chain.PAR)
    for x in sys.argv[1:]:
        XO.clear(); XO.update(x.split("+"))
        engine.XO = XO; bulk.XO = XO; chain.OPT = XO
        chain.PAR.update(P0)
        for y in XO:
            if '=' in y: chain.PAR[y.split('=')[0]] = int(y.split('=')[1]) if y.split('=')[1].isdigit() else y.split('=')[1].replace('_', ' ')
        bulk.FINE = fine if 'fine' in XO else None
        open(f"v_{x}.s", "w").write(build('prof' in XO))
```

```python
from common import *

BUF = f"s[{S_WS}:{S_WS+3}]"
SLAB = 73728
FL_KV, FL_ALL, FL_GRP = 32, 104, 96

NJ = 12
def ranges():
    nF = [6] * 12
    nKV = [11] * 8 + [10] * 4
    nQ = [5] * 8 + [6] * 4
    out, a, b, c = [], 0, 0, 0
    for j in range(NJ):
        out.append((a, nKV[j], b, nQ[j], c, nF[j]))
        a += nKV[j]; b += nQ[j]; c += nF[j]
    assert (a, b, c) == (128, 64, 72)
    return out

XN = 0
ACC0, ACC1 = 144, 160
FR = 176
HP = 192
OUTV = 208
vA = 240
vD1, vD2, vL, vT1, vT2, vT3, vT4, vD1F = 244, 245, 246, 247, 248, 249, 250, 251
sRB, sJ, sI, sN, sSRC, sOUT, sPOUT, sLB, sSEG = 50, 51, 52, 53, 54, 55, 56, 57, 58
sKV0, sNKV, sQ0, sNQ, sF0, sNF, sTYP, sNTYP, sRS32, sLOG = 59, 60, 61, 62, 63, 64, 65, 66, 67, 68
sSIG, sP0R, sP0U, sSAV, sORD = 69, 70, 71, 90, 89
sT = 72
XO = set()
PAR = dict(d0=0, ds=1)
S_CUR = S_TMPD

def out_tile(dt):
    return 256 + 16 * dt if dt < 16 else OUTV + 16 * (dt - 16)

def setup(A):
    A.c("bulk: indices")
    A(f"s_and_b32 s{sRB}, s{S_ROLE}, 15")
    A(f"s_lshr_b32 s{sJ}, s{S_ROLE}, 4")
    A(f"s_sub_u32 s{sJ}, s{sJ}, 2")
    for j, rg in enumerate(ranges()):
        A(f"s_cmp_eq_u32 s{sJ}, {j}")
        pk1 = rg[0] | rg[1] << 8 | rg[2] << 16 | rg[3] << 24
        pk2 = rg[4] | rg[5] << 8
        A(f"s_cselect_b32 s{sT}, {pk1}, s{sT}" if j else f"s_mov_b32 s{sT}, {pk1}")
        A(f"s_cselect_b32 s{sT+1}, {pk2}, s{sT+1}" if j else f"s_mov_b32 s{sT+1}, {pk2}")
    A(f"s_and_b32 s{sKV0}, s{sT}, 255")
    A(f"s_bfe_u32 s{sNKV}, s{sT}, 0x80008")
    A(f"s_bfe_u32 s{sQ0}, s{sT}, 0x80010")
    A(f"s_lshr_b32 s{sNQ}, s{sT}, 24")
    A(f"s_and_b32 s{sF0}, s{sT+1}, 255")
    A(f"s_lshr_b32 s{sNF}, s{sT+1}, 8")
    A(f"s_lshl_b32 s{sSEG}, s{sRB}, 2")
    A(f"s_add_u32 s{sSEG}, s{sSEG}, s{S_WAVE}")
    A(f"s_mov_b32 s{sLOG}, 0xbfb8aa3b")
    A(f"v_mov_b32 v{vL}, v0")
    A(f"v_lshrrev_b32 v{vT1}, 3, v{vL}")
    A(f"v_bfe_u32 v{vT2}, v{vL}, 4, 1")
    A(f"v_lshlrev_b32 v{vT2}, 2, v{vT2}")
    A(f"v_xor_b32 v{vT2}, v{vT2}, v{vL}")
    A(f"v_and_b32 v{vT2}, 7, v{vT2}")
    A(f"v_lshlrev_b32 v{vT2}, 4, v{vT2}")
    A(f"v_lshl_add_u32 v{vD1}, v{vT1}, 13, v{vT2}")
    A(f"v_mul_u32_u24 v{vD1F}, 9216, v{vT1}")
    A(f"v_add_u32 v{vD1F}, v{vD1F}, v{vT2}")
    A(f"v_bfe_u32 v{vT3}, v{vL}, 5, 1")
    A(f"v_and_b32 v{vT1}, 3, v{vT1}")
    A(f"v_lshl_add_u32 v{vT1}, v{vT3}, 3, v{vT1}")
    A(f"v_mul_u32_u24 v{vD2}, 1152, v{vT1}")
    A(f"v_add_u32 v{vD2}, v{vD2}, v{vT2}")
    read_addr(A, vA, vL, vT1, vT2)
    A(f"v_xor_b32 v{vA+2}, 64, v{vA}")
    A(f"v_add_u32 v{vA+1}, {18*2048}, v{vA}")
    A(f"v_add_u32 v{vA+3}, {18*2048}, v{vA+2}")
    A(f"v_lshlrev_b32 v{vL}, 4, v{vL}")

def read_addr(A, dst, ln, t1, t2):
    A(f"v_bfe_u32 v{t1}, v{ln}, 2, 2")
    A(f"v_bfe_u32 v{t2}, v{ln}, 5, 1")
    A(f"v_lshl_add_u32 v{t1}, v{t2}, 3, v{t1}")
    A(f"v_lshlrev_b32 v{dst}, 7, v{t1}")
    A(f"v_bfe_u32 v{t2}, v{ln}, 3, 1")
    A(f"v_lshl_add_u32 v{dst}, v{t2}, 6, v{dst}")
    A(f"v_bfe_u32 v{t2}, v{ln}, 4, 1")
    A(f"v_lshl_add_u32 v{dst}, v{t2}, 5, v{dst}")
    A(f"v_and_b32 v{t2}, 3, v{ln}")
    A(f"v_lshl_add_u32 v{dst}, v{t2}, 3, v{dst}")

def copy_srd(A, src):
    for i in range(4):
        A(f"s_mov_b32 s{S_CUR+i}, s{src+i}")

def params_qkv(A, idx):
    la, lb, le = A.newlabel("pq"), A.newlabel("pv"), A.newlabel("pe")
    A(f"s_cmp_ge_u32 s{idx}, s{sNKV}")
    A(f"s_cbranch_scc1 {la}")
    A(f"s_add_u32 s{sT}, s{sKV0}, s{idx}")
    A(f"s_cmp_ge_u32 s{sT}, 64")
    A(f"s_cbranch_scc1 {lb}")
    copy_srd(A, S_WK)
    A(f"s_mov_b32 s{sT+1}, {WS_K}")
    A(f"s_mov_b32 s{sNTYP}, 0")
    A(f"s_branch {le}")
    A.label(lb)
    A(f"s_sub_u32 s{sT}, s{sT}, 64")
    copy_srd(A, S_WV)
    A(f"s_mov_b32 s{sT+1}, {WS_V}")
    A(f"s_mov_b32 s{sNTYP}, 1")
    A(f"s_branch {le}")
    A.label(la)
    A(f"s_sub_u32 s{sT}, s{idx}, s{sNKV}")
    A(f"s_add_u32 s{sT}, s{sT}, s{sQ0}")
    copy_srd(A, S_WQ)
    A(f"s_mov_b32 s{sT+1}, {WS_Q}")
    A(f"s_mov_b32 s{sNTYP}, 0")
    A.label(le)
    A(f"s_lshl_b32 s{sSRC}, s{sT}, 7")
    A(f"s_lshl_b32 s3, s{S_WAVE}, 16")
    A(f"s_add_u32 s{sSRC}, s{sSRC}, s3")
    A(f"s_lshl_b32 s{sT+2}, s{sT}, 12")
    A(f"s_lshl_b32 s3, s{sSEG}, 18")
    A(f"s_add_u32 s{sT+2}, s{sT+2}, s3")
    A(f"s_add_u32 s{sT+2}, s{sT+2}, s{sT+1}")
    A(f"s_mov_b32 s{sRS32}, {32*8192}")

def params_w1(A, unit):
    copy_srd(A, S_W1)
    A(f"s_lshl_b32 s{sSRC}, s{unit}, 7")
    A(f"s_mul_i32 s3, s{S_WAVE}, {8*9216}")
    A(f"s_add_u32 s{sSRC}, s{sSRC}, s3")
    A(f"s_mov_b32 s{sRS32}, {32*9216}")

def params_w2(A, unit):
    copy_srd(A, S_W2)
    A(f"s_mul_i32 s{sSRC}, s{unit}, {64*1152}")
    A(f"s_lshr_b32 s3, s{S_WAVE}, 1")
    A(f"s_mul_i32 s3, s3, {16*1152}")
    A(f"s_add_u32 s{sSRC}, s{sSRC}, s3")
    A(f"s_and_b32 s3, s{S_WAVE}, 1")
    A(f"s_mul_i32 s3, s3, {4*1152}")
    A(f"s_add_u32 s{sSRC}, s{sSRC}, s3")

def dma_ops(kind, vo):
    ops = []
    for i in range(18):
        g = [f"s_add_u32 m0, s{sLB}, {i*4096}"]
        if kind == 2:
            g.append(f"s_add_u32 s{sT+3}, s{sSRC}, {(i & 1)*32*1152 + (i >> 1)*128}")
            g.append(f"buffer_load_dwordx4 v{vo}, s[{S_CUR}:{S_CUR+3}], s{sT+3} offen {'nt' if 'bnt' in XO else ''} lds")
        else:
            g.append("s_nop 0")
            g.append(f"buffer_load_dwordx4 v{vo}, s[{S_CUR}:{S_CUR+3}], s{sSRC} offen {'nt' if 'bnt' in XO else ''} lds")
            g.append(f"s_add_u32 s{sSRC}, s{sSRC}, s{sRS32}")
        ops.append(g)
    return ops

def flip(A, younger=0):
    A(f"s_waitcnt vmcnt({younger}) lgkmcnt(0)")
    A("s_barrier")
    A(f"s_lshl_b32 s3, s{S_WAVE}, 10")
    A(f"s_sub_u32 s{sT+4}, s{sLB}, s3")
    A(f"s_sub_u32 s{sT+5}, {SLAB}, s{sT+4}")
    A(f"s_add_u32 s{sLB}, s{sT+5}, s3")
    A(f"s_sub_u32 s{sT+4}, s{sT+4}, s{sT+5}")
    for i in range(4):
        A(f"v_add_u32 v{vA+i}, s{sT+4}, v{vA+i}")

def store_epi(acc, soff, hp):
    ops = [f"v_cvt_pk_bf16_f32 v{hp+i}, v{acc+2*i}, v{acc+2*i+1}" for i in range(8)]
    return ops[:4] + [f"buffer_store_dwordx4 {v(hp,4)}, v{vL}, {BUF}, s{soff[0]} offen offset:{soff[1]} sc1{' nt' if 'snt' in XO else ''}"] + \
           ops[4:] + [f"buffer_store_dwordx4 {v(hp+4,4)}, v{vL}, {BUF}, s{soff[0]} offen offset:{soff[1]+1024} sc1{' nt' if 'snt' in XO else ''}"]

def silu_epi(acc, hp):
    ops = []
    for i in range(8):
        a0, a1 = acc + 2 * i, acc + 2 * i + 1
        t0, t1 = (vT1, vT2) if i % 2 == 0 else (vT3, vT4)
        ops += [f"v_mul_f32 v{t0}, s{sLOG}, v{a0}", f"v_mul_f32 v{t1}, s{sLOG}, v{a1}",
                f"v_exp_f32 v{t0}, v{t0}", f"v_exp_f32 v{t1}, v{t1}",
                f"v_add_f32 v{t0}, 1.0, v{t0}", f"v_add_f32 v{t1}, 1.0, v{t1}",
                f"v_rcp_f32 v{t0}, v{t0}", f"v_rcp_f32 v{t1}, v{t1}",
                f"v_mul_f32 v{a0}, v{a0}, v{t0}", f"v_mul_f32 v{a1}, v{a1}, v{t1}",
                f"v_cvt_pk_bf16_f32 v{hp+i}, v{a0}, v{a1}"]
    return ops

def mfma_stream(A, steps, fillers):
    L = LgkmTracker(A)
    tok = {}
    def rd(n):
        ad, off, _ = steps[n]
        f = FR + 4 * (n % 4)
        L.op(f"ds_read_b64_tr_b16 {v(f,2)}, v{ad} offset:{off}")
        tok[n] = L.op(f"ds_read_b64_tr_b16 {v(f+2,2)}, v{ad} offset:{off+512}")
    for n in range(3):
        rd(n)
    for n in range(len(steps)):
        L.wait(tok[n])
        A(steps[n][2](FR + 4 * (n % 4)))
        if n + 3 < len(steps):
            rd(n + 3)
        for t in fillers.get(n, []):
            A(t)

def spread(fillers, ops, start, per):
    n = start
    for i in range(0, len(ops), per):
        fillers.setdefault(n, []).extend(ops[i:i + per])
        n += 1
    return n

def proj_steps(vtype):
    steps = []
    for ct in range(2):
        acc = ACC0 if ct == 0 else ACC1
        for k in range(36):
            def f(fr, acc=acc, k=k):
                c = "0" if k == 0 else v(acc, 16)
                x, w = v(XN + 4 * k, 4), v(fr, 4)
                a_, b_ = (x, w) if vtype else (w, x)
                return f"v_mfma_f32_32x32x16_bf16 {v(acc,16)}, {a_}, {b_}, {c}"
            steps.append((vA + 2 * ct + k // 18, (k % 18) * 2048, f))
    return steps

def stage_proj(A, vtype, epi_prev, epi0, dma, extra=()):
    fill = {}
    for i, g in enumerate(dma):
        fill.setdefault(PAR['d0'] + PAR['ds'] * i, []).extend(g)
    per = 2 if len(epi0) < 20 else 4
    spread(fill, epi_prev, 30, 2)
    spread(fill, epi0, 40, per)
    for i, t in enumerate(extra):
        fill.setdefault(20 + (3 * i) // 2, []).append(t)
    mfma_stream(A, proj_steps(vtype), fill)

def stage_ffn2(A, epi1, dma):
    steps = []
    for k in range(4):
        for dt in range(18):
            def f(fr, dt=dt, k=k):
                o = r(out_tile(dt), 16)
                return f"v_mfma_f32_32x32x16_bf16 {o}, {v(fr,4)}, {v(HP+4*k,4)}, {o}"
            blk = 4 * (dt >> 1) + k
            steps.append((vA + 2 * (dt & 1) + blk // 18, (blk % 18) * 2048, f))
    fill = {}
    for i, g in enumerate(dma):
        fill.setdefault(PAR['d0'] + PAR['ds'] * i, []).extend(g)
    spread(fill, epi1, 4, 4)
    mfma_stream(A, steps, fill)

def x_loads(A, seg, dst, addr):
    A(f"v_bfe_u32 v{addr}, v{vL}, 4, 5")
    A(f"s_lshl_b32 s3, s{seg}, 5")
    A(f"v_add_u32 v{addr}, s3, v{addr}")
    A(f"v_mul_u32_u24 v{addr}, 1152, v{addr}")
    A(f"v_bfe_u32 v{vT2}, v{vL}, 9, 1")
    A(f"v_lshl_add_u32 v{addr}, v{vT2}, 4, v{addr}")
    return [f"buffer_load_dwordx4 {r(dst+4*k,4)}, v{addr}, s[{S_X}:{S_X+3}], 0 offen offset:{32*k}" for k in range(36)]

def layernorm(A):
    A.c("bulk: load x rows as MFMA fragments and normalise them")
    for t in x_loads(A, sSEG, XN, vT1):
        A(t)

def layernorm2(A, dma=(), from_acc=False):
    dma = list(dma)
    s1, s2, one = ACC0, ACC0 + 4, ACC0 + 8
    for i in range(8):
        A(f"v_mov_b32 v{ACC0+i}, 0")
    A(f"v_mov_b32 v{one}, 0x3f803f80")
    for k in range(36):
        if from_acc:
            for i in range(4):
                A(f"v_accvgpr_read_b32 v{XN+4*k+i}, a{4*k+i}")
        elif k % 4 == 0:
            A(f"s_waitcnt vmcnt({32 - k})")
        for i in range(4):
            A(f"v_dot2c_f32_bf16 v{s1+i}, v{XN+4*k+i}, v{one}")
            A(f"v_dot2c_f32_bf16 v{s2+i}, v{XN+4*k+i}, v{XN+4*k+i}")
    A("s_nop 2")
    for b in (s1, s2):
        A(f"v_add_f32 v{b}, v{b}, v{b+1}")
        A(f"v_add_f32 v{b+2}, v{b+2}, v{b+3}")
        A(f"v_add_f32 v{b}, v{b}, v{b+2}")
        A(f"v_mov_b32 v{b+1}, v{b}")
    A("s_nop 1")
    A(f"v_permlane32_swap_b32 v{s1}, v{s1+1}")
    A(f"v_permlane32_swap_b32 v{s2}, v{s2+1}")
    A(f"v_add_f32 v{s1}, v{s1}, v{s1+1}")
    A(f"v_add_f32 v{s2}, v{s2}, v{s2+1}")
    A(f"v_mul_f32 v{s1}, 0x3ae38e39, v{s1}")
    A(f"v_mul_f32 v{s2}, 0x3ae38e39, v{s2}")
    A(f"v_fma_f32 v{s2}, -v{s1}, v{s1}, v{s2}")
    A(f"v_max_f32 v{s2}, 0, v{s2}")
    A(f"v_cvt_pk_bf16_f32 v{s1+1}, v{s2}, v{s1}")
    A(f"v_lshlrev_b32 v{s2}, 16, v{s1+1}")
    A(f"v_and_b32 v{s1}, 0xffff0000, v{s1+1}")
    A(f"v_add_f32 v{s2}, 0x3727c5ac, v{s2}")
    A(f"v_cvt_pk_bf16_f32 v{s2}, v{s2}, v{s2}")
    A(f"v_lshlrev_b32 v{s2}, 16, v{s2}")
    A(f"v_sqrt_f32 v{s2}, v{s2}")
    A("s_nop 0")
    A(f"v_cvt_pk_bf16_f32 v{s2}, v{s2}, v{s2}")
    A(f"v_lshlrev_b32 v{s2}, 16, v{s2}")
    A(f"v_rcp_f32 v{s2}, v{s2}")
    A("s_nop 0")
    A(f"v_mul_f32 v{s1}, v{s1}, v{s2}")
    A(f"s_mov_b32 s{sT+6}, 0xffff0000")
    for i in range(144):
        t = ACC1 + 2 * (i % 4)
        A(f"v_lshlrev_b32 v{t}, 16, v{XN+i}")
        A(f"v_and_b32 v{t+1}, s{sT+6}, v{XN+i}")
        A(f"v_pk_fma_f32 {v(t,2)}, {v(t,2)}, {v(s2,2)}, {v(s1,2)} op_sel_hi:[1,0,0] neg_lo:[0,0,1] neg_hi:[0,0,1]")
        A(f"v_cvt_pk_bf16_f32 v{XN+i}, v{t}, v{t+1}")
        if i % 4 == 0 and dma:
            for x in dma.pop(0): A(x)

def signal(A, line_sgpr, amount=1):
    l = A.newlabel("sig")
    A(f"s_cmp_lg_u32 s{S_WAVE}, 0")
    A(f"s_cbranch_scc1 {l}")
    A(f"v_mov_b32 v{vT1}, {amount}")
    A(f"v_mov_b32 v{vT2}, 0")
    A("s_mov_b64 exec, 1")
    A(f"buffer_atomic_add v{vT1}, v{vT2}, {BUF}, s{line_sgpr} offen")
    A("s_mov_b64 exec, -1")
    A.label(l)

FINE = None
NP0 = 3
KV_FULL = 384

def two_types(A, epi_prev, epi0, dma, extra=()):
    lv, lj = A.newlabel("projv"), A.newlabel("projj")
    A(f"s_cmp_eq_u32 s{sTYP}, 1")
    A(f"s_cbranch_scc1 {lv}")
    for vt in range(2):
        if vt:
            A.label(lv)
        stage_proj(A, vt, epi_prev, epi0, dma, extra)
        if not vt:
            A(f"s_branch {lj}")
    A.label(lj)

def counts(A, fail):
    A(f"v_lshrrev_b32 v{vT1}, 2, v{vL}")
    read_counts(A, fail, vT1, True, 80)

RBF = 8
def first_slab(A):
    l1, l2 = A.newlabel("fs"), A.newlabel("fs2")
    A(f"s_mov_b32 s{sI}, 0")
    A(f"s_cmp_eq_u32 s{sORD}, 1")
    A(f"s_cbranch_scc1 {l1}")
    params_qkv(A, sI)
    A(f"v_mov_b32 v{vT4+2}, v{vD1}")
    A(f"s_branch {l2}")
    A.label(l1)
    params_w1(A, sF0)
    A(f"v_mov_b32 v{vT4+2}, v{vD1F}")
    A.label(l2)

def run(A, fail, done, hook=None):
    setup(A)
    lmain, lskip, lown, lnog = A.newlabel("main"), A.newlabel("nop0"), A.newlabel("own"), A.newlabel("notg0")
    A(f"s_lshl_b32 s{sLB}, s{S_WAVE}, 10")
    for i in range(4):
        A(f"v_add_u32 v{vA+i}, {SLAB}, v{vA+i}")
    A(f"s_cmp_ge_u32 s{sRB}, {RBF if 'noff' not in XO else 99}")
    A(f"s_cselect_b32 s{sORD}, 1, 0")
    A(f"s_cmp_lt_u32 s{S_ROLE}, 32")
    A(f"s_cselect_b32 s{sORD}, 0, s{sORD}")
    A.c("bulk: group 0 shares a power domain with the recurrence: it only projects K/V of row block 2, early")
    A(f"s_cmp_ge_u32 s{S_ROLE}, 32")
    A(f"s_cbranch_scc1 {lnog}")
    A(f"s_lshl_b32 s{sKV0}, s{S_ROLE}, 2")
    A(f"s_mov_b32 s{sNKV}, 4")
    A(f"s_mov_b32 s{sNQ}, 0")
    A(f"s_mov_b32 s{sSIG}, -2")
    A(f"s_add_u32 s{sSEG}, s{S_WAVE}, 8")
    A(f"s_branch {lskip}")
    A.label(lnog)
    A(f"s_mov_b32 s{sSIG}, s{sNKV}")
    A.c("bulk: first the K/V projections of row blocks 0 and 1")
    A(f"s_mov_b32 s{sP0R}, s{sRB}")
    A(f"s_mov_b32 s{sP0U}, s{sJ}")
    A(f"s_cmp_lt_u32 s{sRB}, {NP0}")
    A(f"s_cselect_b32 s{sNKV}, 0, s{sNKV}")
    A(f"s_cselect_b32 s{sSIG}, -2, s{sSIG}")
    A(f"s_cmp_lt_u32 s{sRB}, 2")
    A(f"s_cbranch_scc1 {lown}")
    A(f"s_sub_u32 s3, s{sRB}, 3")
    A(f"s_cmp_lt_u32 s3, 2")
    A(f"s_cbranch_scc1 {lskip}")
    A(f"s_sub_u32 s3, s{sRB}, 4")
    A(f"s_cmp_eq_u32 s{sRB}, 2")
    A(f"s_cselect_b32 s3, 0, s3")
    A(f"s_cmp_ge_u32 s3, 9")
    A(f"s_cbranch_scc1 {lskip}")
    A(f"s_mul_i32 s{sP0U}, s{sJ}, 9")
    A(f"s_add_u32 s3, s3, s{sP0U}")
    A(f"s_cmp_ge_u32 s3, 104")
    A(f"s_cbranch_scc1 {lskip}")
    A(f"s_and_b32 s{sP0R}, s3, 1")
    A(f"s_lshr_b32 s{sP0U}, s3, 1")
    A(f"s_add_u32 s{sP0U}, s{sP0U}, {NJ}")
    A.label(lown)
    A(f"s_mov_b32 s{sSAV}, s{sKV0}")
    A(f"s_mov_b32 s{sSAV+1}, s{sNKV}")
    A(f"s_lshl_b32 s{sKV0}, s{sP0U}, 1")
    A(f"s_mov_b32 s{sNKV}, 2")
    A(f"s_lshl_b32 s{sSEG}, s{sP0R}, 2")
    A(f"s_add_u32 s{sSEG}, s{sSEG}, s{S_WAVE}")
    layernorm(A)
    A(f"s_mov_b32 s{sI}, 0")
    params_qkv(A, sI)
    layernorm2(A, dma_ops(1, vD1))
    if hook: hook(0)
    flip(A)
    A(f"s_mov_b32 s{sOUT}, s{sT+2}")
    A(f"s_mov_b32 s{sTYP}, s{sNTYP}")
    A(f"s_mov_b32 s{sI}, 1")
    params_qkv(A, sI)
    two_types(A, [], store_epi(ACC0, (sOUT, 0), HP + 8), dma_ops(1, vD1))
    A(f"s_mov_b32 s{sPOUT}, s{sOUT}")
    flip(A, 2)
    A(f"s_mov_b32 s{sOUT}, s{sT+2}")
    A(f"s_mov_b32 s{sKV0}, s{sSAV}")
    A(f"s_mov_b32 s{sNKV}, s{sSAV+1}")
    A(f"s_lshl_b32 s{sSEG}, s{sRB}, 2")
    A(f"s_add_u32 s{sSEG}, s{sSEG}, s{S_WAVE}")
    first_slab(A)
    two_types(A, store_epi(ACC1, (sPOUT, 2048), HP), store_epi(ACC0, (sOUT, 0), HP + 8), dma_ops(1, vT4 + 2))
    A("s_nop 7")
    A("s_nop 3")
    for t in store_epi(ACC1, (sOUT, 2048), HP):
        A(t)
    counts(A, fail)
    A("s_barrier")
    A(f"s_lshl_b32 s{sT}, s{sP0R}, 7")
    A(f"s_add_u32 s{sT}, s{sT}, {WS_FLAG + FL_KV*128}")
    signal(A, sT, 6)
    if hook: hook(2)
    A(f"s_cmp_lt_u32 s{sRB}, 2")
    A(f"s_cbranch_scc1 {lmain}")
    layernorm(A)
    layernorm2(A)
    A(f"s_branch {lmain}")
    A.label(lskip)
    layernorm(A)
    first_slab(A)
    layernorm2(A, dma_ops(1, vT4 + 2))
    counts(A, fail)
    if hook: hook(0)
    A.label(lmain)
    lff, lproj, lfin = A.newlabel("goffn"), A.newlabel("goproj"), A.newlabel("fin")
    A(f"s_cmp_eq_u32 s{sORD}, 1")
    A(f"s_cbranch_scc1 {lff}")
    A.label(lproj)
    A("s_waitcnt vmcnt(0)")
    A(f"s_add_u32 s{sN}, s{sNKV}, s{sNQ}")
    A(f"s_mov_b32 s{sPOUT}, 0x40000000")
    lp, lnx, lnx2, lns = (A.newlabel(x) for x in ("proj", "nx", "nx2", "nosig"))
    A.label(lp)
    flip(A, 4)
    A(f"s_mov_b32 s{sOUT}, s{sT+2}")
    if 'drop8' in XO:
        A(f"s_cmp_ge_u32 s{sSEG}, 32")
        A(f"s_cselect_b32 s{sOUT}, 0x40000000, s{sOUT}")
    A(f"s_mov_b32 s{sTYP}, s{sNTYP}")
    A(f"s_sub_u32 s3, s{sI}, 1")
    A(f"s_cmp_lg_u32 s3, s{sSIG}")
    A(f"s_cbranch_scc1 {lns}")
    A("s_waitcnt vmcnt(2)")
    A("s_barrier")
    if hook: hook(1)
    A(f"s_lshl_b32 s{sT}, s{sRB}, 7")
    A(f"s_add_u32 s{sT}, s{sT}, {WS_FLAG + FL_KV*128}")
    signal(A, sT, 32)
    A.label(lns)
    A(f"s_add_u32 s{sI}, s{sI}, 1")
    A(f"s_cmp_eq_u32 s{sI}, s{sN}")
    A(f"s_cbranch_scc1 {lnx}")
    params_qkv(A, sI)
    A(f"v_mov_b32 v{vT4+2}, v{vD1}")
    A(f"s_branch {lnx2}")
    A.label(lnx)
    params_w1(A, sF0)
    A(f"v_mov_b32 v{vT4+2}, v{vD1F}")
    A.label(lnx2)
    two_types(A, store_epi(ACC1, (sPOUT, 2048), HP), store_epi(ACC0, (sOUT, 0), HP + 8), dma_ops(1, vT4 + 2))
    A(f"s_mov_b32 s{sPOUT}, s{sOUT}")
    A(f"s_cmp_lt_u32 s{sI}, s{sN}")
    A(f"s_cbranch_scc1 {lp}")
    A("s_nop 7")
    A("s_nop 3")
    for t in store_epi(ACC1, (sPOUT, 2048), HP):
        A(t)
    A(f"s_cmp_eq_u32 s{sORD}, 1")
    A(f"s_cbranch_scc1 {lfin}")
    A(f"s_cmp_ge_u32 s{S_ROLE}, 32")
    A(f"s_cbranch_scc1 {lff}")
    A("s_waitcnt vmcnt(0)")
    A("s_barrier")
    A(f"s_mov_b32 s{sT}, {WS_FLAG + (FL_KV + 2)*128}")
    signal(A, sT, 12)
    if hook: hook(2)
    if True:
        A.c("pull the lines the recurrence will publish into the memory-side cache")
        A(f"v_lshlrev_b32 v{vT1}, 3, v{vL}")
        A(f"s_lshl_b32 s{sT}, s{S_ROLE}, 2")
        A(f"s_add_u32 s{sT}, s{sT}, s{S_WAVE}")
        A(f"s_lshl_b32 s{sT}, s{sT}, 13")
        A(f"s_add_u32 s{sT}, s{sT}, {WS_KVM}")
        for i in range(8):
            A(f"buffer_load_dword v{vT2}, v{vT1}, {BUF}, s{sT} offen sc1")
            A(f"s_add_u32 s{sT}, s{sT}, {1 << 20}")
        A("s_waitcnt vmcnt(0)")
    A(f"s_branch {done}")
    A.label(lff)
    A.c("bulk: fused FFN over this range of hidden units")
    for i in range(256):
        A(f"v_accvgpr_write_b32 a{i}, 0")
    for i in range(0, 32, 2):
        A(f"v_mov_b64 {v(OUTV+i,2)}, 0")
    A(f"s_mov_b32 s{sI}, 0")
    lf, lf2, lf3 = A.newlabel("ffn"), A.newlabel("ffnl"), A.newlabel("ffnj")
    A.label(lf)
    flip(A)
    A(f"s_add_u32 s{sT+6}, s{sF0}, s{sI}")
    params_w2(A, sT + 6)
    stage_proj(A, 0, [], silu_epi(ACC0, HP), dma_ops(2, vD2))
    flip(A)
    A(f"s_add_u32 s{sI}, s{sI}, 1")
    A(f"s_add_u32 s{sT+6}, s{sF0}, s{sI}")
    A(f"s_min_u32 s{sT+6}, s{sT+6}, 71")
    A(f"s_cmp_eq_u32 s{sI}, s{sNF}")
    A(f"s_cbranch_scc1 {lf2}")
    params_w1(A, sT + 6)
    A(f"v_mov_b32 v{vT4+2}, v{vD1F}")
    A(f"s_branch {lf3}")
    A.label(lf2)
    A(f"s_mov_b32 s{sT+6}, 0")
    params_qkv(A, sT + 6)
    A(f"v_mov_b32 v{vT4+2}, v{vD1}")
    A.label(lf3)
    stage_ffn2(A, silu_epi(ACC1, HP + 8), dma_ops(1, vT4 + 2))
    A(f"s_cmp_lt_u32 s{sI}, s{sNF}")
    A(f"s_cbranch_scc1 {lf}")
    A.c("bulk: FFN partial -> workspace")
    A(f"s_mul_i32 s{sOUT}, s{sSEG}, {36*16384}")
    A(f"s_lshl_b32 s3, s{sJ}, 10")
    A(f"s_add_u32 s{sOUT}, s{sOUT}, s3")
    A(f"s_add_u32 s{sOUT}, s{sOUT}, {WS_FFN}")
    A("s_nop 7")
    for dt in range(18):
        for half in range(2):
            b = 2 * dt + half
            hp = HP + 4 * (b % 4)
            for i in range(4):
                o = out_tile(dt) + 8 * half + 2 * i
                if dt < 16:
                    A(f"v_accvgpr_read_b32 v{vT1}, a{o-256}")
                    A(f"v_accvgpr_read_b32 v{vT2}, a{o-255}")
                    A(f"v_cvt_pk_bf16_f32 v{hp+i}, v{vT1}, v{vT2}")
                else:
                    A(f"v_cvt_pk_bf16_f32 v{hp+i}, v{o}, v{o+1}")
            A(f"buffer_store_dwordx4 {v(hp,4)}, v{vL}, {BUF}, s{sOUT} offen sc1")
            A(f"s_add_u32 s{sOUT}, s{sOUT}, 16384")
    A(f"s_mov_b32 s{sI}, 0")
    A(f"s_cmp_eq_u32 s{sORD}, 1")
    A(f"s_cbranch_scc1 {lproj}")
    A.label(lfin)
    A("s_waitcnt vmcnt(0)")
    A("s_barrier")
    A(f"s_lshl_b32 s{sT}, s{sRB}, 7")
    A(f"s_add_u32 s{sT}, s{sT}, {WS_FLAG + FL_ALL*128}")
    signal(A, sT)
```

```python
from common import *

L_M   = 0
L_O   = 0
XP    = 1088
L_X   = 9216
L_VM  = L_X + 4 * XP
L_KX  = L_VM + 2 * XP
L_JUNK= L_KX + 8192
L_KVC = L_JUNK + 512
L_RES = 24576
assert L_JUNK + 512 <= L_RES and L_KX % 16 == 0

vL16, vIDX, vMASK, vRES, vMA, vXW, vXR, vOW, vPST, vT = range(10)
WV0 = 72
def wreg(i):
    return WV0 + 8 * i

import os
W6 = os.environ.get('W6') == '1'
QK_LDS_KAPPA = [1, 2, 3, 6, 7, 10, 11, 14, 15] if W6 else [1, 2, 3, 4, 5, 7, 8, 10, 11, 13, 14, 15]
WO_REG = [(rd, k) for rd in range(4) for k in range(4) if (rd, k) not in (((1, 2), (2, 0), (2, 2), (3, 0), (3, 2), (3, 3)) if W6 else ((2, 2), (3, 0), (3, 2)))]

def unit_tables():
    loc = {}
    n = 0
    for k in range(18):
        loc[('q', k)] = ('r', n); n += 1
        if k not in QK_LDS_KAPPA:
            loc[('k', k)] = ('r', n); n += 1
    for k in range(18):
        loc[('v', k)] = ('r', n); n += 1
    for u in WO_REG:
        loc[('o',) + u] = ('r', n); n += 1
    assert n == 55
    off = 0
    for k in QK_LDS_KAPPA:
        loc[('k', k)] = ('l', off); off += 8192
    for rd in range(4):
        for k in range(4):
            if (rd, k) not in WO_REG:
                loc[('o', rd, k)] = ('l', off); off += 8192
    for k in range(4):
        loc[('o', 4, k)] = ('l', off - 4096); off += 4096
    assert off == 17 * 8192
    return loc
LOC = unit_tables()
WO_BASE = len(QK_LDS_KAPPA) * 8192
STB = [26, 34, 62]

sH = S_ROLE
sSTEP, sCNT, sKVOFF, sRHO, sISRED = 50, 51, 52, 53, 54
sPST = 55
sRLD, sMST, sC, sFV, sPUB, sFLAG, sKXO, sWARM = 60, 61, 62, 64, 65, 66, 67, 68
sBOOT, sSAVE, sINC, sFVD = 79, 78, 27, 71
BOOT = 0
sMLD, sGATE, sEXM = 24, 30, 28
sONE = 76
sQKVB, sWOB = 69, 70
sH1W, sH1R, sH2W, sH2R = 69, 70, 71, 75
sT = 72
SPIN_MAX = 20000
OPT = set()
AFTER = None
LDST = None
KVGATE = 0
BUF = f"s[{S_WS}:{S_WS+3}]"

def setup(A):
    A.c("chain: lane constants (v0 = lane id on entry)")
    n, g, t1, t2, ln = 10, 11, 12, 13, 14
    A(f"v_mov_b32 v{ln}, v0")
    A(f"v_and_b32 v{n}, 15, v{ln}")
    A(f"v_lshrrev_b32 v{g}, 4, v{ln}")
    A(f"v_mov_b32 v{vIDX}, 0x44444444")
    A(f"v_mov_b32 v{t1}, 0xeeeeeeee")
    A(f"v_cmp_lt_u32 vcc, 7, v{n}")
    A("s_nop 1")
    A(f"v_cndmask_b32 v{vIDX}, v{vIDX}, v{t1}, vcc")
    A(f"v_mov_b32 v{vMASK}, 0")
    A(f"v_mov_b32 v{t1}, 0xff800000")
    A(f"v_cmp_gt_u32 vcc, 32, v{ln}")
    A("s_nop 1")
    A(f"v_cndmask_b32 v{vMASK}, v{vMASK}, v{t1}, vcc")
    A(f"v_lshlrev_b32 v{vL16}, 4, v{ln}")
    A(f"s_lshl_b32 s3, s{S_WAVE}, 11")
    A(f"s_add_u32 s3, s3, {L_RES}")
    A(f"v_add_u32 v{vRES}, s3, v{vL16}")
    A(f"v_and_b32 v{t1}, 7, v{ln}")
    A(f"v_lshl_add_u32 v{t1}, v{g}, 3, v{t1}")
    A(f"v_lshlrev_b32 v{vMA}, 4, v{t1}")
    A(f"v_and_b32 v{t1}, 1, v{g}")
    A(f"v_mul_u32_u24 v{t1}, {XP}, v{t1}")
    A(f"v_lshrrev_b32 v{t2}, 1, v{g}")
    A(f"v_lshl_add_u32 v{t2}, v{t2}, 4, v{n}")
    A(f"s_lshl_b32 s3, s{S_WAVE}, 5")
    A(f"v_add_u32 v{t2}, s3, v{t2}")
    A(f"v_lshl_add_u32 v{vXW}, v{t2}, 3, v{t1}")
    A(f"v_add_u32 v{vXW}, {L_X}, v{vXW}")
    A(f"v_and_b32 v{t1}, 3, v{n}")
    A(f"v_mul_u32_u24 v{t1}, {XP}, v{t1}")
    A(f"v_lshrrev_b32 v{t2}, 1, v{g}")
    A(f"v_lshlrev_b32 v{t2}, 4, v{t2}")
    A(f"v_and_b32 v{vXR}, 1, v{g}")
    A(f"v_lshl_add_u32 v{t2}, v{vXR}, 2, v{t2}")
    A(f"v_lshrrev_b32 v{vXR}, 2, v{n}")
    A(f"v_add_u32 v{t2}, v{t2}, v{vXR}")
    A(f"v_lshl_add_u32 v{vXR}, v{t2}, 3, v{t1}")
    A(f"v_add_u32 v{vXR}, {L_X}, v{vXR}")
    A(f"s_lshl_b32 s3, s{S_WAVE}, 9")
    A(f"s_add_u32 s3, s3, {L_O}")
    A(f"v_mov_b32 v{t1}, s3")
    A(f"v_mov_b32 v{t2}, {L_JUNK}")
    A(f"v_cmp_lt_u32 vcc, 7, v{n}")
    A("s_nop 1")
    A(f"v_cndmask_b32 v{t1}, v{t1}, v{t2}, vcc")
    A(f"v_add_u32 v{vOW}, v{t1}, v{vMA}")
    A(f"v_and_b32 v{t1}, 2, v{g}")
    A(f"v_lshrrev_b32 v{vPST}, 3, v{n}")
    A(f"v_add_u32 v{t1}, v{t1}, v{vPST}")
    A(f"v_lshlrev_b32 v{t1}, 12, v{t1}")
    A(f"v_and_b32 v{t2}, 1, v{g}")
    A(f"v_lshl_add_u32 v{t1}, v{t2}, 3, v{t1}")
    A(f"v_and_b32 v{vPST}, 7, v{n}")
    A(f"v_lshl_add_u32 v{vPST}, v{vPST}, 4, v{t1}")

def setup_scalars(A):
    A.c("chain: scalar constants")
    A(f"s_lshl_b32 s3, s{sH}, 7")
    A(f"s_lshl_b32 s{sT}, s{S_WAVE}, 14")
    A(f"s_add_u32 s3, s3, s{sT}")
    A(f"s_add_u32 s{sPST}, s3, {WS_PART}")
    for rd in range(1, 4):
        A(f"s_add_u32 s{sPST+rd}, s{sPST}, {rd*65536}")
    A(f"s_add_u32 s{sPST+4}, s{sPST}, {4*65536 - 2*16384}")
    A(f"s_lshl_b32 s{sRHO}, s{S_WAVE}, 5")
    A(f"s_add_u32 s{sRHO}, s{sRHO}, s{sH}")
    A(f"s_cmp_lt_u32 s{sRHO}, 72")
    A(f"s_cselect_b32 s{sISRED}, 1, 0")
    A(f"s_cmp_eq_u32 s{S_WAVE}, 3")
    A(f"s_cselect_b32 s{sISRED}, 0, s{sISRED}")
    A(f"s_lshl_b32 s{sRLD}, s{sRHO}, 12")
    A(f"s_add_u32 s{sRLD}, s{sRLD}, {WS_PART}")
    A(f"s_lshl_b32 s{sMST}, s{sRHO}, 7")
    A(f"s_add_u32 s{sMST}, s{sMST}, {WS_M}")
    for i in range(3):
        A(f"s_mov_b32 s{sMLD+i}, {WS_M + 4096*i}")
    A(f"s_mov_b32 s{sC}, 0x3e029413")
    A(f"s_lshl_b32 s{sKVOFF}, s{sH}, 13")
    A(f"s_lshl_b32 s{sPUB}, s{sH}, 12")
    A(f"s_add_u32 s3, s{S_WAVE}, 1")
    A(f"s_cmp_eq_u32 s{S_WAVE}, 3")
    A(f"s_cselect_b32 s3, 1, s3")
    A(f"s_cmp_eq_u32 s{S_WAVE}, 0")
    A(f"s_cselect_b32 s3, 0, s3")
    A(f"s_lshl_b32 s3, s3, 10")
    A(f"s_add_u32 s{sPUB}, s{sPUB}, s3")
    A(f"s_add_u32 s{sPUB}, s{sPUB}, {WS_KVM - 32*4096}")
    A(f"s_lshl_b32 s{sFLAG}, s{sH}, 7")
    A(f"s_add_u32 s{sFLAG}, s{sFLAG}, {WS_FLAG}")
    A(f"s_mov_b32 s{sINC}, {32*4096}")
    A(f"s_mov_b32 s{sFVD}, 1")
    if BOOT:
        A(f"s_cmp_eq_u32 s{sBOOT}, 1")
        A(f"s_cselect_b32 s3, {64*128}, 0")
        A(f"s_add_u32 s{sFLAG}, s{sFLAG}, s3")
        A(f"s_cmp_eq_u32 s{sBOOT}, 1")
        A(f"s_cselect_b32 s{sINC}, s{sINC}, {(BOOT+1)*32*4096}")
        A(f"s_cselect_b32 s{sFVD}, 0, 1")
        A(f"s_cselect_b32 s3, 0, {BOOT*32*8192}")
        A(f"s_add_u32 s{sKVOFF}, s{sKVOFF}, s3")
    A(f"s_lshl_b32 s{sKXO}, s{S_WAVE}, 11")
    A(f"s_mov_b32 s{sONE}, 0x3f803f80")
    A(f"s_mov_b32 s{sONE+1}, 0x3f803f80")
    A(f"s_mov_b32 s{sC+1}, s{sC}")
    A(f"s_lshr_b32 s{sWARM}, s{S_WAVE}, 1")
    A(f"s_mul_i32 s{sWARM}, s{sWARM}, {WS_V - WS_K}")
    A(f"s_and_b32 s3, s{S_WAVE}, 1")
    A(f"s_lshl_b32 s3, s3, 12")
    A(f"s_add_u32 s{sWARM}, s{sWARM}, s3")

def load_weights(A, fail, nrb):
    A.c("chain: weight load")
    ln, vQ, vO, vO4, vTR, vTR4, t1, t2, t3 = 14, 15, 16, 17, 18, 19, 20, 21, 22
    CV = 24
    A(f"v_lshrrev_b32 v{t1}, 4, v{ln}")
    A(f"v_lshlrev_b32 v{t2}, 2, v{t1}")
    A(f"v_xor_b32 v{t2}, v{t2}, v{ln}")
    A(f"v_and_b32 v{t2}, 15, v{t2}")
    A(f"v_lshlrev_b32 v{t2}, 4, v{t2}")
    A(f"v_and_b32 v{t3}, 1, v{t1}")
    A(f"v_lshlrev_b32 v{t3}, 1, v{t3}")
    A(f"v_lshrrev_b32 v{vQ}, 1, v{t1}")
    A(f"v_add_u32 v{t3}, v{t3}, v{vQ}")
    A(f"v_lshl_add_u32 v{vQ}, v{t3}, 13, v{t2}")
    A(f"v_lshrrev_b32 v{t3}, 1, v{t1}")
    A(f"v_lshlrev_b32 v{t3}, 4, v{t3}")
    A(f"v_and_b32 v{vO}, 1, v{t1}")
    A(f"v_add_u32 v{t3}, v{t3}, v{vO}")
    A(f"v_mul_u32_u24 v{t3}, 1152, v{t3}")
    A(f"v_add_u32 v{vO}, v{t3}, v{t2}")
    A(f"v_lshrrev_b32 v{t1}, 3, v{ln}")
    A(f"v_bfe_u32 v{t2}, v{t1}, 1, 1")
    A(f"v_lshlrev_b32 v{t3}, 4, v{t2}")
    A(f"v_lshlrev_b32 v{t2}, 2, v{t2}")
    A(f"v_xor_b32 v{t2}, v{t2}, v{ln}")
    A(f"v_and_b32 v{t2}, 7, v{t2}")
    A(f"v_lshlrev_b32 v{t2}, 4, v{t2}")
    A(f"v_and_b32 v{vO4}, 1, v{t1}")
    A(f"v_add_u32 v{t3}, v{t3}, v{vO4}")
    A(f"v_bfe_u32 v{vO4}, v{t1}, 2, 1")
    A(f"v_lshl_add_u32 v{t3}, v{vO4}, 1, v{t3}")
    A(f"v_mul_u32_u24 v{t3}, 1152, v{t3}")
    A(f"v_add_u32 v{vO4}, v{t3}, v{t2}")
    A(f"v_bfe_u32 v{t1}, v{ln}, 4, 1")
    A(f"v_bfe_u32 v{t2}, v{ln}, 2, 1")
    A(f"v_lshl_add_u32 v{t1}, v{t1}, 1, v{t2}")
    A(f"v_bfe_u32 v{t2}, v{ln}, 5, 1")
    A(f"v_lshl_add_u32 v{t2}, v{t2}, 3, v{t1}")
    A(f"v_bfe_u32 v{t3}, v{ln}, 3, 1")
    A(f"v_lshlrev_b32 v{t3}, 5, v{t3}")
    A(f"v_and_b32 v{vTR}, 3, v{ln}")
    A(f"v_lshl_add_u32 v{t3}, v{vTR}, 3, v{t3}")
    A(f"v_xor_b32 v{vTR}, s{S_WAVE}, v{t1}")
    A(f"v_lshl_add_u32 v{vTR}, v{vTR}, 6, v{t3}")
    A(f"v_lshl_add_u32 v{vTR}, v{t2}, 8, v{vTR}")
    A(f"v_add_u32 v{vTR}, {L_RES}, v{vTR}")
    A(f"v_lshrrev_b32 v{t1}, 1, v{t1}")
    A(f"s_and_b32 s3, s{S_WAVE}, 1")
    A(f"v_xor_b32 v{vTR4}, s3, v{t1}")
    A(f"v_lshl_add_u32 v{vTR4}, v{vTR4}, 6, v{t3}")
    A(f"v_lshl_add_u32 v{vTR4}, v{t2}, 7, v{vTR4}")
    A(f"v_add_u32 v{vTR4}, {L_RES + 15*8192}, v{vTR4}")
    vTRb = [vTR, 10, 11]
    A(f"v_add_u32 v10, {7*8192}, v{vTR}")
    A(f"v_add_u32 v11, {14*8192}, v{vTR}")
    vRb = [vRES, 12, 13]
    A(f"v_add_u32 v12, {7*8192}, v{vRES}")
    A(f"v_add_u32 v13, {14*8192}, v{vRES}")
    A(f"s_lshl_b32 s{sQKVB}, s{sH}, 8")
    A(f"s_lshl_b32 s3, s{S_WAVE}, 16")
    A(f"s_add_u32 s{sQKVB}, s{sQKVB}, s3")
    A(f"s_mul_i32 s{sWOB}, s{sH}, {128*1152}")
    A(f"s_mul_i32 s3, s{S_WAVE}, {4*1152}")
    A(f"s_add_u32 s{sWOB}, s{sWOB}, s3")
    A(f"s_lshl_b32 s{sT+1}, s{S_WAVE}, 11")
    A(f"s_add_u32 s{sT+1}, s{sT+1}, {L_RES}")
    A(f"s_lshl_b32 s{sT+2}, s{S_WAVE}, 10")
    A(f"s_add_u32 s{sT+2}, s{sT+2}, {L_RES + 15*8192}")

    regu = sorted([u for u in LOC if LOC[u][0] == 'r'], key=lambda u: LOC[u][1])
    resu = sorted([u for u in LOC if LOC[u][0] == 'l' and not (u[0] == 'o' and u[1] == 4)], key=lambda u: LOC[u][1])
    NR = 15
    seq = regu + resu
    first = (-len(regu)) % NR
    slot = lambda i: (first + i) % NR
    def issue(i):
        u = seq[i]
        for q in range(2):
            if u[0] == 'o':
                A(f"s_add_u32 s{sT}, s{sWOB}, {(u[2]*32 + 2*q)*1152 + u[1]*256}")
                d, vo = S_WO, vO
            else:
                A(f"s_add_u32 s{sT}, s{sQKVB}, {(u[1]*32 + 4*q)*8192}")
                d, vo = {'q': S_WQ, 'k': S_WK, 'v': S_WV}[u[0]], vQ
            A(f"s_add_u32 m0, s{sT+1}, {slot(i)*8192 + q*1024}")
            A("s_nop 0")
            A(f"buffer_load_dwordx4 v{vo}, s[{d}:{d+3}], s{sT} offen {PAR['ldf']} lds")
    def trread(dst, sl):
        for u4 in range(4):
            A(f"ds_read_b64_tr_b16 {r(dst+2*u4,2)}, v{vTRb[sl//7]} offset:{(sl%7)*8192 + 4096*(u4>>1) + 1024*(u4&1)}")
    order = []
    def issue_blk(i):
        issue(i); order.extend([i, i])
    vWR = 23
    A(f"v_and_b32 v{vWR}, 0xf0, v{vL16}")
    A(f"v_lshlrev_b32 v{vWR}, 3, v{vWR}")
    A(f"v_lshrrev_b32 v{t1}, 8, v{vL16}")
    A(f"v_min_u32 v{t1}, 1, v{t1}")
    A(f"v_lshl_or_b32 v{vWR}, v{t1}, 30, v{vWR}")
    A(f"s_lshl_b32 s{sT+3}, s{sH}, 13")
    A(f"s_lshl_b32 s3, s{S_WAVE}, 11")
    A(f"s_add_u32 s{sT+3}, s{sT+3}, s3")
    warmed = [NR]
    def warm_to(n):
        while warmed[0] < min(n, len(seq)):
            u = seq[warmed[0]]; warmed[0] += 1
            if u[0] != 'o' and PAR['wd']:
                d = {'q': S_WQ, 'k': S_WK, 'v': S_WV}[u[0]]
                A(f"s_mov_b32 m0, {L_JUNK}")
                A(f"s_add_u32 s{sT}, s{sT+3}, {u[1]*32*8192}")
                A(f"buffer_load_dword v{vWR}, s[{d}:{d+3}], s{sT} offen lds")
                order.append(None)
    issued = 0
    while issued < PAR['fill']:
        issue_blk(issued); issued += 1
    G = PAR['G']
    i = 0
    gi = 0
    pending_w = []
    HB = 40
    GA, GB = PAR['ga'], max(28, PAR['ga'] + 8)
    while i < len(seq):
        grp = list(range(i, min(i + G, len(seq))))
        if i < len(regu) < grp[-1] + 1:
            grp = list(range(i, len(regu)))
        last = max(p for p, b in enumerate(order) if b == grp[-1])
        assert len(order) - 1 - last < 60
        A(f"s_waitcnt vmcnt({len(order) - 1 - last})")
        if LDST and gi in LDST:
            A(f"s_memrealtime s[{LDST[gi]}:{LDST[gi]+1}]")
        if gi == 0:
            lnb = A.newlabel("noinit")
            if BOOT:
                A(f"s_cmp_eq_u32 s{sBOOT}, 1")
                A(f"s_cbranch_scc1 {lnb}")
            init_done(A)
            A.label(lnb)
        if gi == 19:
            assert m0pos < last
            mem0_write(A)
        if gi == GB:
            assert pollpos < last
            lr, lb = A.newlabel("notyet"), A.newlabel("ready")
            if AFTER:
                A("s_memrealtime s[98:99]")
                A("s_mov_b32 s100, 0")
            eval_counts(A, 41, lr, True, 80)
            A(f"v_cmp_gt_u32 vcc, {0x180 if nrb else 0}, v43")
            A(f"s_cbranch_vccz {lb}")
            A.label(lr)
            A("s_mov_b32 s100, 1")
            read_counts(A, fail, 40, True, 80)
            if nrb:
                wait_kv(A, fail, nrb, 42)
            A.label(lb)
        A("s_barrier")
        if gi == 10:
            l = A.newlabel("hb")
            A(f"s_cmp_lt_u32 s{S_WAVE}, 2")
            A(f"s_cbranch_scc1 {l}")
            for k in range(4):
                A(f"ds_write_b128 v13, {v(HB+8*k,4)} offset:{4096 + k*4096}")
                A(f"ds_write_b128 v13, {v(HB+8*k+4,4)} offset:{4096 + k*4096 + 1024}")
            A.label(l)
        for t in pending_w:
            A(t)
        pending_w = []
        lim = issued + PAR['step']
        while issued < min(len(seq), i + NR, lim):
            issue_blk(issued); issued += 1
        if gi == 0:
            for k in range(4):
                A(f"s_add_u32 s{sT}, s{sWOB}, {k*32*1152 + 1024}")
                A(f"s_add_u32 m0, s{sT+2}, {k*4096}")
                A("s_nop 0")
                A(f"buffer_load_dwordx4 v{vO4}, s[{S_WO}:{S_WO+3}], s{sT} offen lds")
            order.extend([None] * 4); hbpos = len(order) - 1
        if gi == 11:
            mem0_issue(A)
            order.extend([None] * 18); m0pos = len(order) - 1
        warm_to(issued + PAR['wd'])
        if gi == GA:
            A(f"v_lshrrev_b32 v40, 2, v{vL16}")
            A(f"global_load_dword v41, v40, s[{S_DBG}:{S_DBG+1}] sc1")
            kv_addr(A, nrb, 42)
            A(f"buffer_load_dword v43, v42, {BUF}, s{sT} offen sc1")
            order.extend([None, None]); pollpos = len(order) - 1
        if gi == GB:
            assert issued == len(seq)
            kx_addr(A, 70, 71)
            A(f"s_lshl_b32 s3, s{S_WAVE}, 11")
            for xt in range(2):
                A(f"s_add_u32 m0, s3, {L_KX + xt*1024}")
                A(f"s_add_u32 s{sT}, s3, {WS_K + xt*128}")
                A(f"s_add_u32 s{sT}, s{sT}, s{sKVOFF}")
                A(f"buffer_load_dwordx4 v70, {BUF}, s{sT} offen sc1 lds")
            A(f"v_lshlrev_b32 v{tWA}, 2, v{vL16}")
            warm(A, sKVOFF, tWA)
            A(f"s_add_u32 s{sT+2}, s{sKVOFF}, {32*8192}")
            warm(A, sT + 2, tWA)
            order.extend([None] * 4)
            if BOOT:
                A(f"v_mov_b32 v44, 0")
                A(f"s_lshl_b32 s{sT+2}, s{sH}, 7")
                A(f"s_add_u32 s{sT+2}, s{sT+2}, {WS_FLAG + 64*128}")
                A(f"buffer_load_dword v45, v44, {BUF}, s{sT+2} offen sc1")
                order.append(None)
        if gi == 9:
            assert hbpos < last
            for k in range(4):
                for u4 in range(4):
                    A(f"ds_read_b64_tr_b16 {v(HB+8*k+2*u4,2)}, v{vTR4} offset:{k*4096 + 2048*(u4>>1) + 512*(u4&1)}")
            A("s_waitcnt lgkmcnt(0)")
        for j, b in enumerate(grp):
            if b < len(regu):
                trread(wreg(LOC[seq[b]][1]), slot(b))
            else:
                assert slot(b) * 8192 == LOC[seq[b]][1]
                cv = CV + 8 * j
                if j == 0:
                    A("s_waitcnt lgkmcnt(0)")
                trread(cv, slot(b))
                sl = slot(b)
                pending_w += [f"ds_write_b128 v{vRb[sl//7]}, {v(cv,4)} offset:{(sl%7)*8192}",
                              f"ds_write_b128 v{vRb[sl//7]}, {v(cv+4,4)} offset:{(sl%7)*8192+1024}"]
        A("s_waitcnt lgkmcnt(0)")
        i = grp[-1] + 1
        gi += 1
    A("s_barrier")
    for t in pending_w:
        A(t)
    if BOOT:
        A.c("the start-up group must be past its first step before tags of its last one can be told from the initial ones")
        lp, lok = A.newlabel("bootw"), A.newlabel("bootok")
        A(f"s_cmp_eq_u32 s{sBOOT}, 1")
        A(f"s_cbranch_scc1 {lok}")
        A("s_mov_b32 s3, 0")
        A.label(lp)
        A("s_waitcnt vmcnt(0)")
        A("v_cmp_gt_i32 vcc, 1, v45")
        A(f"s_cbranch_vccz {lok}")
        A(f"buffer_load_dword v45, v44, {BUF}, s{sT+2} offen sc1")
        A("s_add_u32 s3, s3, 1")
        A("s_cmp_gt_u32 s3, 200000")
        A(f"s_cbranch_scc0 {lp}")
        A(f"s_branch {fail}")
        A.label(lok)
    A("s_waitcnt lgkmcnt(0)")

def mem0_issue(A):
    A.c("chain: mem0 -> LDS fragment image")
    q, t1, ad, D = 62, 63, 64, 44
    A(f"s_lshl_b32 s3, s{S_WAVE}, 6")
    A(f"v_lshrrev_b32 v{q}, 4, v{vL16}")
    A(f"v_add_u32 v{q}, s3, v{q}")
    A(f"v_bfe_u32 v{t1}, v{q}, 2, 3")
    A(f"v_mul_u32_u24 v{ad}, 1152, v{t1}")
    A(f"v_lshrrev_b32 v{t1}, 5, v{q}")
    A(f"v_lshl_add_u32 v{ad}, v{t1}, 4, v{ad}")
    A(f"v_and_b32 v{t1}, 1, v{q}")
    A(f"v_lshl_add_u32 v{ad}, v{t1}, 3, v{ad}")
    A(f"v_bfe_u32 v{t1}, v{q}, 1, 1")
    A(f"v_lshl_add_u32 v{ad}, v{t1}, 1, v{ad}")
    for it in range(9):
        A(f"buffer_load_ushort v{D+2*it}, v{ad}, s[{S_TMPD}:{S_TMPD+3}], 0 offen offset:{it*128}")
        A(f"buffer_load_ushort v{D+2*it+1}, v{ad}, s[{S_TMPD}:{S_TMPD+3}], 0 offen offset:{it*128+4}")
    A(f"v_lshlrev_b32 v{q}, 2, v{q}")

def mem0_write(A):
    q, D = 62, 44
    for it in range(9):
        A(f"v_lshl_or_b32 v{D+2*it}, v{D+2*it+1}, 16, v{D+2*it}")
        A(f"ds_write_b32 v{q}, v{D+2*it} offset:{L_M + it*1024}")

AF, ST = 10, 26
QACC, KACC, VACC, VX, PUB = 42, 46, 50, 54, 62
tVX, tWA, tFL, tFV, tKX = 70, 66, 67, 68, 36
XPK = 62
XF, KXF = 10, 26
SX0, SX1, SM = 42, 46, 62
VAF = 66
PAR = dict(ldf='nt', pubf='sc1', e0=2, mb2=(0, 'q'), qks=(3, 9, 12, 16), rdelay=10, mdelay=8, kx=0, sp=6, ns=3, r1=4, kc=3, kb=6, ga=24, wd=0, G=2, fill=6, step=4)
sMK = 24
V_IN_QK = 6

def warm(A, seg_off_sgpr, va):
    A(f"s_add_u32 s{sT}, s{seg_off_sgpr}, s{sWARM}")
    A(f"s_mov_b32 m0, {L_JUNK}")
    A("s_nop 0")
    A(f"buffer_load_dword v{va}, {BUF}, s{sT} offen sc1 lds")

KBUF = {1: 26, 2: 34, 3: 62, 4: 26, 5: 34, 7: 26, 8: 34, 10: 26, 11: 34, 13: 26, 14: 34, 15: 62}
KFET = {1: 4, 2: 5, 4: 7, 5: 8, 7: 10, 8: 11, 10: 13, 11: 14, 12: 15}
if W6:
    KBUF = {1: 26, 2: 34, 3: 62, 6: 26, 7: 34, 10: 26, 11: 34, 14: 26, 15: 34}
    KFET = {2: 6, 4: 7, 7: 10, 8: 11, 11: 14, 12: 15}
MB = {1: (4, 5), 2: (6, 7), 3: (8,)}
NVQ = 12
tPA = 58

def pub_addr():
    return [f"v_bfe_u32 v{tPA}, v{vL16}, 5, 1", f"v_mul_i32_i24 v{tPA}, {256 - 2*XP}, v{tPA}", f"v_add_u32 v{tPA}, v{tPA}, v{vXR}"]

def pub_read(w):
    if w in (0, 3):
        o = 2 * XP + (512 if w else 0)
        return [f"ds_read_b64_tr_b16 {v(PUB,2)}, v{tPA} offset:{o}", f"ds_read_b64_tr_b16 {v(PUB+2,2)}, v{tPA} offset:{o+64}"]
    return [f"ds_read_b128 {v(PUB,4)}, v{vL16} offset:{L_VM + (w-1)*XP}"]

def kx_addr_ops(t, t2):
    return [f"v_bfe_u32 v{t2}, v{vL16}, 8, 2", f"v_and_b32 v{t}, 0x70, v{vL16}", f"v_lshl_add_u32 v{t}, v{t2}, 9, v{t}",
            f"v_and_b32 v{t2}, 0x80, v{vL16}", f"v_lshl_add_u32 v{t}, v{t2}, 1, v{t}"]

def kx_addr(A, t, t2):
    for x in kx_addr_ops(t, t2): A(x)

def kx_dma(A, w, t, ahead):
    for xt in range(2):
        A(f"s_mov_b32 m0, {L_KX + (2*w+xt)*1024}")
        A(f"s_add_u32 s{sT}, s{sKVOFF}, {WS_K + ahead*32*8192 + w*2048 + xt*128}")
        A(f"buffer_load_dwordx4 v{t}, {BUF}, s{sT} offen sc1 lds")

def vx_load(A):
    A(f"s_add_u32 s{sT}, s{sKVOFF}, {WS_V}")
    A(f"buffer_load_dwordx4 {v(VX,4)}, v{tVX}, {BUF}, s{sT} offen sc1")
    A(f"buffer_load_dwordx4 {v(VX+4,4)}, v{tVX}, {BUF}, s{sT} offen offset:256 sc1")

def vx_addr(A):
    A(f"v_and_b32 v{tVX}, 0xf0, v{vL16}")
    A(f"v_bfe_u32 v71, v{vL16}, 8, 2")
    A(f"v_lshl_add_u32 v71, v71, 9, s{sKXO}")
    A(f"v_add_u32 v{tVX}, v{tVX}, v71")

def kunit(k):
    o = LOC[('k', k)][1]
    base, o = (vRES, o) if o < 7 * 8192 else (vT, o - 7 * 8192)
    return [f"ds_read_b128 {v(KBUF[k],4)}, v{base} offset:{o}", f"ds_read_b128 {v(KBUF[k]+4,4)}, v{base} offset:{o+1024}"]

def st_preload(A):
    for k in (1, 2, 3):
        for t in kunit(k): A(t)

def pre_b1(A):
    for i in range(6):
        A(f"v_mov_b64 {v(QACC+2*i,2)}, 0")
    vx_addr(A)
    A(f"v_add_u32 v{vT}, {7*8192}, v{vRES}")

def delay(A, n):
    while n > 0:
        k = min(n, 4)
        A(f"s_nop {4*k-1}")
        n -= k

def smf(acc, af, w):
    return f"v_smfmac_f32_16x16x64_bf16 {v(acc,4)}, {v(af,4)}, {r(w,8)}, v{vIDX}"

STAMPS = {'al': (1, 2, 4, 6, 7), 'wo': (1, 2, 6, 7), 'sm': (1, 5, 6, 7), 'qk': (4, 5, 6, 7)}
def stamp(A, prof, i, mode=None):
    cur = [m for m in STAMPS if m in OPT]
    taken = STAMPS[cur[0]] if cur else ()
    if mode is True:
        mode = 'al'
    if prof and ((mode is None and i not in taken) or (mode in cur and i in taken)):
        A(f"{'s_memrealtime' if (mode == 'al' and i == 1) else 's_memtime'} s[{80+2*i}:{81+2*i}]")

def mread(L, dst, k):
    return L.op(f"ds_read_b128 {v(dst,4)}, v{vMA} offset:{L_M + k*512}")

def vstep(A, L, tokA, kv):
    tok, reg = tokA[('v', kv)]
    L.wait(tok)
    A(smf(VACC, reg, wreg(LOC[('v', kv)][1])))

def vload(L, tokA, kv, reg):
    tokA[('v', kv)] = (mread(L, reg, kv), reg)

def tagcheck(regs, ck, tag, stride):
    op = "0x80" if tag else "0xfe"
    out = []
    for i, b in enumerate(regs):
        d = [b + j for j in range(0, 4, stride)]
        if i == 0 and stride == 1:
            ops = [f"v_bitop3_b32 v{ck}, v{d[0]}, v{d[1]}, v{d[2]} bitop3:{op}", f"v_bitop3_b32 v{ck}, v{ck}, v{d[3]}, v{d[3]} bitop3:{op}"]
        elif i == 0:
            ops = [f"v_bitop3_b32 v{ck}, v{d[0]}, v{d[1]}, v{d[1]} bitop3:{op}"]
        else:
            ops = [f"v_bitop3_b32 v{ck}, v{ck}, v{d[j]}, v{d[j+1]} bitop3:{op}" for j in range(0, len(d), 2)]
        out.append(ops)
    out[-1] = out[-1] + [f"v_and_b32 v{ck}, 1, v{ck}", f"v_cmp_ne_u32 vcc, {tag}, v{ck}"]
    return out

def mload(A, reg, chunk):
    so, off = sMLD + chunk // 4, (chunk % 4) * 1024
    A(f"buffer_load_dwordx4 {v(reg,4)}, v{vL16}, {BUF}, s{so} offen offset:{off} sc1")

def mb_ops(w):
    mb = MB.get(w, ())
    ops = [f"s_mov_b32 m0, {L_M + (mb[0] // 4) * 4096}", "s_nop 0"] if mb else []
    return ops + [f"buffer_load_dwordx4 v{vL16}, {BUF}, s{sMLD + c // 4} offen offset:{(c % 4) * 1024} sc1 lds" for c in mb]

def mb_dma(A, w):
    for t in mb_ops(w): A(t)

def spin(A, cold, label, back, loads, check, fail, cnt):
    def f():
        A.label(label)
        loads()
        A(f"s_add_u32 s{sCNT}, s{sCNT}, {cnt}")
        A(f"s_cmp_gt_u32 s{sCNT}, {SPIN_MAX*cnt}")
        A(f"s_cbranch_scc1 {fail}")
        A("s_waitcnt vmcnt(0)")
        for t in check: A(t)
        A(f"s_cbranch_vccnz {label}")
        A(f"s_branch {back}")
    cold.append(f)

def qkv_stage(A, L, w, ptag, fail, cold, prof, last):
    tokA, tokU = {}, {1: 0, 2: 0, 3: 0}
    for k in range(3):
        if k == 2 and w in (0, 3) :
            A(f"s_waitcnt vmcnt({2 + (1 if w == 3 else 0)})")
        tokA[k] = mread(L, AF + 4 * (k % 4), k)
    slots = [(k, m) for k in range(18) for m in (("v", "q", "k") if k < NVQ else ("q", "k"))]
    idx = {x: i for i, x in enumerate(slots)}
    pre, post, valu = {}, {}, {}
    add = lambda d, key, *x: d.setdefault(idx[key], []).extend(x)
    def spread_valu(ops, start):
        i = idx[start]
        for t in ops:
            while valu.get(i):
                i += 1
            valu[i] = [t]
        return i
    rd_at = {k: [k + 3] for k in range(15)}
    KB = PAR['kb']
    for k in (15, 16, 17):
        add(post, (k, "q"), ("v", k - 3, AF + 4 * ((k + 3) % 4)))
    for k, ku in KFET.items():
        a_, b_ = kunit(ku)
        add(post, (k, "k"), ("l", None, a_))
        add(post, (k + 1, "v" if k + 1 < NVQ else "q"), ("l", ku, b_))
    if not last:
        for k, kps in (((16, (0, 1)), (17, (2, 3))) if W6 else ((16, (2, 3)), (17, (0, 1)))):
            for kp in kps:
                add(post, (k, "k"), ("l", ('kx', kp), f"ds_read_b128 {v(KXF+4*kp,4)}, v{vL16} offset:{L_KX + 2*kp*1024}"))
    KC = PAR['kc']
    mb = MB.get(w, ())
    two = 'mb1' not in OPT and bool(mb)
    add(pre, (KC, "v"), f"s_waitcnt vmcnt({len(mb) if two else 0})")
    if two:
        ops = mb_ops(w)
        lsk = A.newlabel("mb2skip")
        add(post, PAR['mb2'], ops[0], f"s_cmp_eq_u32 s{sSTEP}, 0", f"s_cbranch_scc1 {lsk}", *ops[2:], ("label", lsk))
    if mb:
        regs = [VX + 4 * i for i in range(len(mb))]
        rb = [f"ds_read_b128 {v(regs[i],4)}, v{vL16} offset:{L_M + c*1024}" for i, c in enumerate(mb)]
        for t in rb:
            add(pre, (KC, "v"), ("l", 'mb', t))
        chk = sum(tagcheck(regs, 71, ptag, 1), [])
        chk.insert(-2, f"v_bitop3_b32 v71, v71, v71, s{sEXM} bitop3:{'0xf5' if ptag else '0xa0'}")
        lb, lr = A.newlabel("mbok"), A.newlabel("mbre")
        st = idx[(KC + 1, "q")]
        post.setdefault(st, []).append(("w", 'mb'))
        for j, t in enumerate(chk):
            valu.setdefault(st + (2 * j) // 3, []).append(t)
        end = st + (2 * (len(chk) - 1)) // 3
        assert end < idx[(KB, "q")]
        add(pre, (KB, "q"), f"s_cbranch_vccnz {lr}", ("label", lb))
        def again():
            lp = A.newlabel("mbspin")
            A.label(lr)
            if two:
                mb_dma(A, w)
                A(f"s_add_u32 s{sCNT}, s{sCNT}, 65536")
                A(f"s_waitcnt vmcnt({len(mb)})")
                for t in rb: A(t)
                A("s_waitcnt lgkmcnt(0)")
                for t in chk: A(t)
                A(f"s_cbranch_vccz {lb}")
            for _ in range(1 if two else 2):
                mb_dma(A, w)
                delay(A, 5)
            A.label(lp)
            mb_dma(A, w)
            A(f"s_add_u32 s{sCNT}, s{sCNT}, 65536")
            A(f"s_cmp_gt_u32 s{sCNT}, {SPIN_MAX*65536}")
            A(f"s_cbranch_scc1 {fail}")
            A(f"s_waitcnt vmcnt({2*len(mb)})")
            for t in rb: A(t)
            A("s_waitcnt lgkmcnt(0)")
            for t in chk: A(t)
            A(f"s_cbranch_vccnz {lp}")
            A(f"s_branch {lb}")
        cold.append(again)
    add(pre, (KB, "q"), "s_barrier")
    if KB == 6:
        del rd_at[5]
        rd_at[6] = [8, 9]
    if w in (0, 3):
        e = spread_valu(pub_addr(), (KC, "v"))
    for k, ks in rd_at.items():
        for kk in ks:
            add(post, (k, "q"), ("a", kk))
    for t in pub_read(w):
        add(post, (6, "v") if True else (7, "v"), ("l", 'pub', t))
    nslow = 0
    late = 'late' in OPT
    wa, fv = (70, 71) if late else (tWA, tFV)
    extra = [f"v_lshlrev_b32 v{wa}, 2, v{vL16}"] + ([f"v_mov_b32 v{fv}, s{sFV}"] if w == 3 else [])
    spread_valu(extra, (7, "v") if True else (9, "v"))
    slow = [[("w", 'pub'), f"buffer_store_dwordx4 {v(PUB,4)}, v{vL16}, {BUF}, s{sPUB} offen {PAR['pubf']}"]]
    if not last:
        add(post, (6, "k") if True else (7, "k"), f"s_add_u32 s{sT}, s{sKVOFF}, {WS_V}", f"buffer_load_dwordx4 {v(VX,4)}, v{tVX}, {BUF}, s{sT} offen sc1")
        add(post, (7, "q") if True else (8, "k"), f"buffer_load_dwordx4 {v(VX+4,4)}, v{tVX}, {BUF}, s{sT} offen offset:256 sc1")
        add(post, (8, "k") if True else (10, "k"), f"s_add_u32 s{sT+1}, s{sKVOFF}, {2*32*8192}", f"s_min_u32 s{sT+1}, s{sT+1}, {63*32*8192}",
            f"s_mov_b32 m0, {L_JUNK}", f"s_add_u32 s{sT}, s{sT+1}, s{sWARM}")
        slow.append([f"buffer_load_dword v{wa}, {BUF}, s{sT} offen sc1 lds"])
    if w == 3:
        slow.append(["s_mov_b64 exec, 1", f"buffer_store_dword v{fv}, v{vL16}, {BUF}, s{sFLAG} offen sc1", "s_mov_b64 exec, -1"])
    nslow = len(slow)
    if KVGATE and w == 0 and ptag == 1 and not last:
        lg, lb2 = A.newlabel("kvs"), A.newlabel("kvsb")
        add(post, (12, "q"), f"s_bitcmp1_b64 s[{sGATE}:{sGATE+1}], s{sSTEP}", f"s_cbranch_scc1 {lg}", ("label", lb2))
        def sample():
            A.label(lg)
            A(f"v_lshlrev_b32 v71, 3, v{vL16}")
            A(f"s_mov_b32 m0, {L_KVC}")
            A(f"s_mov_b32 s{sT}, {WS_FLAG + 32*128}")
            A("s_mov_b64 exec, 0x1ffff")
            A(f"buffer_load_dword v71, {BUF}, s{sT} offen sc1 lds")
            A("s_mov_b64 exec, -1")
            A(f"s_branch {lb2}")
        cold.append(sample)
    if not late:
        for key, ops in zip(((8, "q"), (9, "q"), (10, "q")) if True else ((10, "v"), (11, "v"), (11, "k")), slow):
            add(post, key, *ops)
    tk = {}
    def emit(x):
        if isinstance(x, str):
            A(x)
        elif x[0] == "a":
            tokA[x[1]] = mread(L, AF + 4 * (x[1] % 4), x[1])
        elif x[0] == "v":
            vload(L, tokA, x[1], x[2])
        elif x[0] == "l":
            t = L.op(x[2])
            if isinstance(x[1], int): tokU[x[1]] = t
            elif isinstance(x[1], tuple): tokA[x[1]] = t
            else: tk[x[1]] = t
        elif x[0] == "w":
            L.wait(tk[x[1]])
        elif x[0] == "label":
            A.label(x[1])
    for i, (k, m) in enumerate(slots):
        af = AF + 4 * (k % 4)
        if m == "q" and k in PAR.get('qks', ()):
            stamp(A, prof, 4 + PAR['qks'].index(k), 'qk')
        for x in pre.get(i, []): emit(x)
        if (k, m) == slots[idx[(k, "q")] - (1 if k < NVQ else 0)]:
            L.wait(tokA[k])
        if m == "k" and LOC[('k', k)][0] == 'l':
            L.wait(tokU[k])
            A(smf(KACC, af, KBUF[k]))
        else:
            A(smf({"v": VACC, "q": QACC, "k": KACC}[m], af, wreg(LOC[(m, k)][1])))
        for x in post.get(i, []): emit(x)
        for x in valu.get(i, []): emit(x)
    vload(L, tokA, 15, AF + 4)
    vstep(A, L, tokA, 12)
    A("s_nop 1")
    vstep(A, L, tokA, 13)
    A("s_nop 2")
    xpk = 66 if late else XPK
    A(f"v_cvt_pk_bf16_f32 v{xpk}, v{QACC}, v{QACC+1}")
    A(f"v_cvt_pk_bf16_f32 v{xpk+1}, v{QACC+2}, v{QACC+3}")
    L.op(f"ds_write_b64 v{vXW}, {v(xpk,2)}")
    A(f"v_cvt_pk_bf16_f32 v{xpk+2}, v{KACC}, v{KACC+1}")
    A(f"v_cvt_pk_bf16_f32 v{xpk+3}, v{KACC+2}, v{KACC+3}")
    tw = L.op(f"ds_write_b64 v{vXW}, {v(xpk+2,2)} offset:{2*XP}")
    vload(L, tokA, 16, QACC)
    vload(L, tokA, 17, KACC)
    for j, kv in enumerate((14, 15, None)):
        if kv:
            vstep(A, L, tokA, kv)
        if late and j < len(slow):
            for x in slow[j]: emit(x)
    L.wait(tw)
    A("s_barrier")
    return tokA, nslow

def kick(A, w, tag, pos):
    if 'kick' in OPT and tag == 1 and w == 1 and pos == PAR.get('kp', 0):
        lk = A.newlabel("kick")
        A(f"s_and_b32 s3, s{sSTEP}, 14")
        A(f"s_lshl_b32 s3, s3, 8")
        A(f"s_add_u32 s3, s3, s{sH}")
        A(f"s_cmp_lg_u32 s3, {8*256 + 5}")
        A(f"s_cbranch_scc1 {lk}")
        delay(A, PAR.get('kick', 40))
        A.label(lk)

def step(A, w, tag, fail, cold, prof=False, stf="", entry=None, bootend=None):
    cls = max(w - 1, 0)
    L = LgkmTracker(A)
    A("s_waitcnt lgkmcnt(0)")
    A("s_barrier")
    stamp(A, prof, 0)
    stamp(A, prof, 1, True)
    A(f"s_mov_b32 s{sCNT}, 0")
    kick(A, w, tag, 1)
    tokA, nslow = qkv_stage(A, L, w, tag ^ 1, fail, cold, prof, False)
    stamp(A, prof, 2)
    tx = {}
    def xread(kp):
        L.op(f"ds_read_b64_tr_b16 {v(XF+4*kp,2)}, v{vXR} offset:{kp*256}")
        tx[kp] = L.op(f"ds_read_b64_tr_b16 {v(XF+4*kp+2,2)}, v{vXR} offset:{kp*256+64}")
    xread(0); xread(1)
    vstep(A, L, tokA, 16)
    xread(2); xread(3)
    vstep(A, L, tokA, 17)
    m1, m2, m3, mt = 70, 71, 20, 21
    ONES, PX, PM, LS, O0, VQ, O1 = 22, 26, 32, 10, 14, 66, 36
    VP = VQ + 2
    SC = [SX0 + i for i in range(8)] + [SM + i for i in range(4)]
    mf = lambda d, a_, b_, c: A(f"v_mfma_f32_16x16x32_bf16 {v(d,4)}, {v(a_,4)}, {v(b_,4)}, {c}")
    for kp in range(4):
        L.wait(max(tx[kp], tokA[('kx', kp)]))
        mf(SX0, KXF + 4 * kp, XF + 4 * kp, "0" if kp == 0 else v(SX0, 4))
        tokA[('kx1', kp)] = L.op(f"ds_read_b128 {v(KXF+4*kp,4)}, v{vL16} offset:{L_KX + (2*kp+1)*1024}")
        if kp < 2:
            A(f"v_mov_b32 v{SM+2*kp}, v{vMASK}")
            A(f"v_mov_b32 v{SM+2*kp+1}, v{vMASK}")
    fill = {0: [f"v_cvt_pk_bf16_f32 v{VP}, v{VACC}, v{VACC+1}", f"v_cvt_pk_bf16_f32 v{VP+1}, v{VACC+2}, v{VACC+3}"],
            1: [None, f"v_mov_b64 {v(VQ,2)}, {v(VP,2)}"],
            2: ["s_nop 0", f"v_max3_f32 v{m1}, v{SX0}, v{SX0+1}, v{SX0+2}"],
            3: [f"v_permlane32_swap_b32 v{VQ}, v{VP}", f"v_permlane32_swap_b32 v{VQ+1}, v{VP+1}"]}
    for kp in range(4):
        mf(SM, XF + 4 * kp, XF + 4 * kp, v(SM, 4))
        for t in fill[kp]:
            if t is None:
                L.op(f"ds_write_b64 v{vXW}, {v(VP,2)} offset:{4*XP}")
            else:
                A(t)
    for kp in range(4):
        L.wait(tokA[('kx1', kp)])
        mf(SX1, KXF + 4 * kp, XF + 4 * kp, "0" if kp == 0 else v(SX1, 4))
        if kp < 2:
            A("s_nop 1")
        if kp == 2:
            A("s_nop 0")
            A(f"v_max3_f32 v{m1}, v{m1}, v{SX0+3}, v{SM}")
    A(f"v_max3_f32 v{m2}, v{SM+1}, v{SM+2}, v{SM+3}")
    A(f"v_mov_b64 {v(30,2)}, 0")
    A(f"v_mov_b64 {v(34,2)}, 0")
    A(f"v_mov_b64 {v(ONES,2)}, s[{sONE}:{sONE+1}]")
    A(f"v_mov_b64 {v(ONES+2,2)}, s[{sONE}:{sONE+1}]")
    A(f"v_max_f32 v{m1}, v{m1}, v{m2}")
    A("s_nop 1")
    stamp(A, prof, 1, 'sm')
    A(f"v_max3_f32 v{m1}, v{m1}, v{SX1}, v{SX1+1}")
    A(f"v_max3_f32 v{mt}, v{m1}, v{SX1+2}, v{SX1+3}")
    A(f"v_max3_f32 v{m1}, v{m1}, v{SX1+2}, v{SX1+3}")
    A("s_nop 1")
    A(f"v_permlane16_swap_b32 v{m1}, v{mt}")
    A(f"v_max_f32 v{m2}, v{m1}, v{mt}")
    A(f"v_max_f32 v{m1}, v{m1}, v{mt}")
    A("s_nop 1")
    A(f"v_permlane32_swap_b32 v{m1}, v{m2}")
    A(f"v_max_f32 v{m1}, v{m1}, v{m2}")
    A(f"v_mul_f32 v{m1}, s{sC}, v{m1}")
    for i in range(6):
        A(f"v_pk_fma_f32 {v(SC[2*i],2)}, {v(SC[2*i],2)}, s[{sC}:{sC+1}], {v(m1,2)} op_sel_hi:[1,0,0] neg_lo:[0,0,1] neg_hi:[0,0,1]")
    stamp(A, prof, 5, 'sm')
    for i in range(8):
        A(f"v_exp_f32 v{SC[i]}, v{SC[i]}")
    A(f"v_exp_f32 v{SC[8]}, v{SC[8]}")
    for i in range(4):
        A(f"v_cvt_pk_bf16_f32 v{PX+i}, v{SC[2*i]}, v{SC[2*i+1]}")
    A(f"v_exp_f32 v{SC[9]}, v{SC[9]}")
    A(f"s_waitcnt vmcnt({nslow})")
    A(f"v_mfma_f32_16x16x32_bf16 {v(LS,4)}, {v(ONES,4)}, {v(PX,4)}, 0")
    A(f"v_exp_f32 v{SC[10]}, v{SC[10]}")
    A(f"v_mfma_f32_16x16x32_bf16 {v(O0,4)}, {v(VX,4)}, {v(PX,4)}, 0")
    A(f"v_exp_f32 v{SC[11]}, v{SC[11]}")
    A(f"v_mfma_f32_16x16x32_bf16 {v(O1,4)}, {v(VX+4,4)}, {v(PX,4)}, 0")
    A(f"v_cvt_pk_bf16_f32 v{PM}, v{SM}, v{SM+1}")
    A(f"v_cvt_pk_bf16_f32 v{PM+1}, v{SM+2}, v{SM+3}")
    A("s_nop 1")
    A(f"v_mfma_f32_16x16x32_bf16 {v(LS,4)}, {v(ONES,4)}, {v(PM,4)}, {v(LS,4)}")
    A(f"v_mfma_f32_16x16x32_bf16 {v(O0,4)}, {v(VQ,4)}, {v(PM,4)}, {v(O0,4)}")
    A(f"v_mfma_f32_16x16x32_bf16 {v(O1,4)}, {v(VQ,4)}, {v(PM-2,4)}, {v(O1,4)}")
    stamp(A, prof, 6, 'sm')
    OACC, OF, WST, OPK = 52, 10, 26, 22
    nr = 4 if cls == 0 else 5
    lu = [('o', rd, k) for rd in range(nr) for k in range(4) if (rd, k) not in WO_REG]
    tu = {}
    bufs = {0: 26, 1: 34, 2: 42, 3: 26, 4: 34, 5: 42, 6: 52}
    if W6:
        bufs = {0: 26, 1: 34, 2: 42, 3: 26, 4: 34, 5: 42, 6: 26, 7: 52, 8: 34, 9: 42}
    def fetch(i):
        o = LOC[lu[i]][1] - WO_BASE
        L.op(f"ds_read_b128 {v(bufs[i],4)}, v{vT} offset:{o}")
        tu[i] = L.op(f"ds_read_b128 {v(bufs[i]+4,4)}, v{vT} offset:{o+1024}")
    A(f"v_add_u32 v{vT}, {WO_BASE}, v{vRES}")
    for i in range(52, 60, 2):
        A(f"v_mov_b64 {v(i,2)}, 0")
    A("s_nop 0")
    m1 = 18
    A(f"v_rcp_f32 v{m1}, v{LS}")
    A(f"v_mov_b64 {v(60,2)}, 0")
    for i in range(2):
        A(f"v_pk_mul_f32 {v(O0+2*i,2)}, {v(O0+2*i,2)}, {v(m1,2)} op_sel_hi:[1,0]")
    for i in range(2):
        A(f"v_pk_mul_f32 {v(O1+2*i,2)}, {v(O1+2*i,2)}, {v(m1,2)} op_sel_hi:[1,0]")
    A(f"v_cvt_pk_bf16_f32 v{OPK}, v{O0}, v{O0+1}")
    A(f"v_cvt_pk_bf16_f32 v{OPK+1}, v{O0+2}, v{O0+3}")
    A(f"v_cvt_pk_bf16_f32 v{OPK+2}, v{O1}, v{O1+1}")
    A(f"v_cvt_pk_bf16_f32 v{OPK+3}, v{O1+2}, v{O1+3}")
    tw = L.op(f"ds_write_b128 v{vOW}, {v(OPK,4)}")
    stamp(A, prof, 7, 'sm')
    A(f"s_add_u32 s{sSTEP}, s{sSTEP}, 1")
    for i in range(62, 52 + 4 * nr, 2):
        A(f"v_mov_b64 {v(i,2)}, 0")
    L.wait(tw)
    A("s_barrier")
    stamp(A, prof, 4)
    to = {}
    for k in range(4):
        to[k] = L.op(f"ds_read_b128 {v(OF+4*k,4)}, v{vMA} offset:{L_O + k*512}")
    tagop = (lambda x: f"v_or_b32 v{x}, 1, v{x}") if tag else (lambda x: f"v_and_b32 v{x}, -2, v{x}")
    def emit_out(rd):
        p = OACC + 4 * rd
        return [f"v_cvt_pk_bf16_f32 v{p}, v{p}, v{p+1}", f"v_cvt_pk_bf16_f32 v{p+1}, v{p+2}, v{p+3}", tagop(p),
                f"buffer_store_dwordx2 {v(p,2)}, v{vPST}, {BUF}, s{sPST+rd} offen {stf}"]
    after = {0: 3, 1: 4, 2: 5}
    early = {1: 0, 3: 1, 5: 2, 15: 6}
    if W6:
        after = {0: 3, 1: 4, 2: 5, 3: 6, 4: 8, 5: 9}
        early = {0: 0, 2: 1, 4: 2, 13: 7}
    sched = {}
    for rd in range(nr - 1):
        o = emit_out(rd)
        b = 4 * rd + 3
        so = ([3, 4, 1, 1] if W6 else [3, 4, 1, 2])[w]
        if 'ea' in OPT and rd == 1:
            so = [1, 2, 1, 2][w]
        sched.setdefault(b + 3, []).append(o[0]); sched.setdefault(b + 4, []).append(o[1])
        sched.setdefault(b + 5, []).append(o[2]); sched.setdefault(b + 5 + so, []).append(o[3])
    tail = []
    for x in sorted(sched):
        if x >= 4 * nr:
            tail += sched[x]
    for rd in range(nr):
        for k in range(4):
            slot = 4 * rd + k
            if rd == 0:
                L.wait(to[k])
            u = ('o', rd, k)
            fill = 0
            if LOC[u][0] == 'r':
                A(smf(OACC + 4 * rd, OF + 4 * k, wreg(LOC[u][1])))
                if early.get(slot, 99) < len(lu):
                    fetch(early[slot]); fill = 2
            else:
                i = lu.index(u)
                L.wait(tu[i])
                A(smf(OACC + 4 * rd, OF + 4 * k, bufs[i]))
                if after.get(i, 99) < len(lu):
                    fetch(after[i]); fill = 2
            fill += len(sched.get(slot, []))
            if rd and k < 2 and fill < 3:
                A(f"s_nop {2 - fill}")
            for t in sorted(sched.get(slot, []), key=lambda x: (x.startswith("v_"), 0) if so else (0, 0)):
                if not ('nost' in OPT and t.startswith("buffer_store") and rd < 9 and False):
                    A(t)
            if slot in (0, 3, 7, 11):
                stamp(A, prof, {0: 1, 3: 2, 7: 6, 11: 7}[slot], 'wo')
    for t in tail:
        A(t)
    A(f"s_add_u32 s{sKVOFF}, s{sKVOFF}, {32*8192}")
    A(f"s_add_u32 s{sPUB}, s{sPUB}, s{sINC}")
    A(f"s_mov_b64 s[{sEXM}:{sEXM+1}], -1")
    A(f"s_sub_i32 s{sFV}, s{sSTEP}, s{sFVD}")
    A(f"s_mov_b32 s{sINC}, {32*4096}")
    for x in emit_out(nr - 1): A(x)
    stamp(A, prof, 5)
    RD, SEL, RA, ck, vMST = [10, 14, 18, 22], 26, 30, 34, 35
    rloads = lambda: [A(f"buffer_load_dwordx4 {v(RD[i],4)}, v{vL16}, {BUF}, s{sRLD} offen offset:{i*1024} sc1") for i in range(4)]
    def reduce_start(dly, bar=False):
        delay(A, dly)
        stamp(A, prof, 2, True)
        rloads()
        if bar:
            A("s_barrier")
        A(f"v_and_b32 v{ck}, 16, v{vL16}")
        A(f"v_mov_b32 v{RA}, 0x3f80")
        A(f"v_lshlrev_b32 v{RA}, v{ck}, v{RA}")
        A(f"v_bfe_u32 v{ck}, v{vL16}, 5, 3")
        for q in range(4):
            A(f"v_cmp_eq_u32 vcc, {q}, v{ck}")
            A("s_nop 1")
            A(f"v_cndmask_b32 v{SEL+q}, 0, v{RA}, vcc")
        A(f"v_and_b32 v{vMST}, 0xf0, v{vL16}")
        A(f"v_bfe_u32 v{ck}, v{vL16}, 8, 2")
        A(f"v_lshl_add_u32 v{vMST}, v{ck}, 2, v{vMST}")
        A(f"v_and_b32 v{ck}, 0x80, v{vL16}")
        A(f"v_lshl_add_u32 v{vMST}, v{ck}, 23, v{vMST}")
        pre_b1(A)
    def reduce_finish():
        lr = A.newlabel("rre")
        for i, ops in enumerate(tagcheck(RD, ck, tag, 2)):
            A(f"s_waitcnt vmcnt({3-i})")
            A(f"v_mfma_f32_16x16x32_bf16 {v(RA,4)}, {v(RD[i],4)}, {v(SEL,4)}, {'0' if i == 0 else v(RA,4)}")
            for t in ops: A(t)
        A(f"s_cbranch_vccnz {lr}")
        A("s_nop 3")
        def finish():
            A(f"v_permlane32_swap_b32 v{RA}, v{RA+1}")
            A(f"v_permlane32_swap_b32 v{RA+2}, v{RA+3}")
            A(f"v_add_f32 v{RA}, v{RA}, v{RA+1}")
            A(f"v_add_f32 v{RA+2}, v{RA+2}, v{RA+3}")
            A(f"v_cvt_pk_bf16_f32 v{RA}, v{RA}, v{RA+2}")
            A(tagop(RA))
            A(f"buffer_store_dword v{RA}, v{vMST}, {BUF}, s{sMST} offen {stf}")
            stamp(A, prof, 6, True)
        finish()
        lback = A.newlabel("rback")
        A.label(lback)
        def again():
            R2 = [54, 58, 62, 66]
            ld = lambda R: [A(f"buffer_load_dwordx4 {v(R[i],4)}, v{vL16}, {BUF}, s{sRLD} offen offset:{i*1024} sc1") for i in range(4)]
            lsp, lok = A.newlabel("rspin"), A.newlabel("rok")
            A.label(lr)
            ld(RD)
            delay(A, 6)
            A.label(lsp)
            for cur, nxt in ((RD, R2), (R2, RD)):
                ld(nxt)
                A(f"s_add_u32 s{sCNT}, s{sCNT}, 1")
                for i, ops in enumerate(tagcheck(cur, ck, tag, 2)):
                    A(f"s_waitcnt vmcnt({7-i})")
                    A(f"v_mfma_f32_16x16x32_bf16 {v(RA,4)}, {v(cur[i],4)}, {v(SEL,4)}, {'0' if i == 0 else v(RA,4)}")
                    for t in ops: A(t)
                A(f"s_cbranch_vccz {lok}")
            A(f"s_and_b32 s3, s{sCNT}, 0xffff")
            A(f"s_cmp_gt_u32 s3, {SPIN_MAX}")
            A(f"s_cbranch_scc0 {lsp}")
            A(f"s_branch {fail}")
            A.label(lok)
            A("s_nop 3")
            finish()
            A("s_waitcnt vmcnt(1)")
            A(f"s_branch {lback}")
        cold.append(again)
    def gather_a(chunks):
        ns = PAR['ns']
        sets = [10, 18, VX][:ns]
        ld = lambda b: [mload(A, b + 4 * i, c) for i, c in enumerate(chunks)]
        wr = lambda b: [A(f"ds_write_b128 v{vL16}, {v(b+4*i,4)} offset:{L_M + c*1024}") for i, c in enumerate(chunks)]
        ckf = lambda b: tagcheck([b, b + 4], 71, tag, 1)
        lok = A.newlabel("maok")
        labs = [A.newlabel("ma") for _ in range(ns + 1)]
        delay(A, PAR['mdelay'])
        stamp(A, prof, 4, True)
        for j, b in enumerate(sets):
            ld(b)
            if j == 0:
                st_preload(A)
            if j < ns - 1:
                delay(A, PAR['sp'] - (2 if j == 0 else 0))
        def tail(b, j):
            wr(b)
            A("s_barrier")
            mb_dma(A, w)
            if j == 0 and ns > 1 and False:
                A(f"s_waitcnt vmcnt({2*(ns-2) + (1 if w == 3 else 0)})")
        for i, ops in enumerate(ckf(sets[0])):
            A(f"s_waitcnt vmcnt({2*ns-1-i})")
            for t in ops: A(t)
        A(f"s_cbranch_vccnz {labs[1]}")
        stamp(A, prof, 7, True)
        tail(sets[0], 0)
        A.label(lok)
        def later():
            assert ns == 3
            lrot = A.newlabel("marot")
            oks = [A.newlabel("mahit") for _ in range(ns)]
            def look(j):
                A(f"s_add_u32 s{sCNT}, s{sCNT}, {0x1000000 if prof else 1}")
                for i, ops in enumerate(ckf(sets[j])):
                    A(f"s_waitcnt vmcnt({3-i})")
                    for t in ops: A(t)
                A(f"s_cbranch_vccz {oks[j]}")
                ld(sets[(j + 2) % 3])
            A.label(labs[1])
            look(1)
            A.label(lrot)
            for j in (2, 0, 1):
                look(j)
            A(f"s_add_u32 s{sCNT}, s{sCNT}, 1")
            A(f"s_and_b32 s3, s{sCNT}, 0xffff")
            A(f"s_cmp_gt_u32 s3, {SPIN_MAX}")
            A(f"s_cbranch_scc0 {lrot}")
            A(f"s_branch {fail}")
            for j in range(ns):
                A.label(oks[j])
                stamp(A, prof, 7, True)
                wr(sets[j])
                A("s_barrier")
                mb_dma(A, w)
                if j != 1:
                    A(f"s_waitcnt vmcnt({len(MB.get(w, ()))})")
                A(f"s_branch {lok}")
        cold.append(later)
    def junction():
        if entry:
            if bootend:
                A(f"s_cmp_eq_u32 s{sBOOT}, 1")
                A(f"s_cbranch_scc1 {bootend}")
            A.label(entry)
    kick(A, w, tag, 0)
    ea = 'ea' in OPT
    kx1 = ea
    if ea and w == 3:
        kx_addr(A, tKX, tKX + 1)
    if not (ea and w == 0):
        A("s_barrier")
    if ea and w == 3:
        for q in range(4):
            kx_dma(A, q, tKX, 0)
    if w == 0:
        reduce_start(PAR['e0'] if ea else PAR['rdelay'], ea)
        reduce_finish()
        A("s_barrier")
        junction()
        gather_a((0, 1))
    elif w == 3:
        pre_b1(A)
        kx_addr(A, tKX, tKX + 1)
        if KVGATE and tag == 1:
            lg, lb = A.newlabel("kvgate"), A.newlabel("kvback")
            A(f"s_sub_u32 s3, s{sSTEP}, 2")
            A(f"s_bitcmp1_b64 s[{sGATE}:{sGATE+1}], s3")
            A(f"s_cbranch_scc1 {lg}")
            A.label(lb)
            def kvgate():
                A.label(lg)
                A(f"s_mov_b32 s{sT+1}, 64")
                for g, n in KVGATE[:-1]:
                    A(f"s_cmp_eq_u32 s{sSTEP}, {g}")
                    A(f"s_cselect_b32 s{sT+1}, {4*(n-1)}, s{sT+1}")
                A(f"v_lshrrev_b32 v10, 2, v{vL16}")
                A(f"v_min_u32 v10, s{sT+1}, v10")
                A(f"ds_read_b32 v11, v10 offset:{L_KVC}")
                A("s_waitcnt lgkmcnt(0)")
                A(f"v_cmp_gt_u32 vcc, 0x180, v11")
                A(f"s_cbranch_vccz {lb}")
                A(f"v_lshlrev_b32 v10, 5, v10")
                A(f"s_mov_b32 s{sT}, {WS_FLAG + 32*128}")
                wait_kv(A, fail, None, 10)
                A(f"s_branch {lb}")
            cold.append(kvgate)
        if 'kxq' not in OPT and not kx1:
            delay(A, PAR['rdelay'] + PAR['kx'])
            for q in range(4):
                kx_dma(A, q, tKX, 0)
        if AFTER: AFTER(A)
        A("s_barrier")
        junction()
        gather_a((2, 3))
    else:
        lo, lj = A.newlabel("nored"), A.newlabel("redj")
        if w == 2:
            A(f"s_cmp_ge_u32 s{sH}, 8")
            A(f"s_cbranch_scc1 {lo}")
            def nored():
                A.label(lo)
                pre_b1(A)
                A("s_barrier")
                A(f"s_branch {lj}")
            cold.append(nored)
        reduce_start(PAR['rdelay'] + PAR['r1'], ea)
        if not ea:
            A("s_barrier")
        kick(A, w, tag, 2)
        reduce_finish()
        A.label(lj)
        junction()
        st_preload(A)
        A("s_barrier")
        stamp(A, prof, 4, True)
        mb_dma(A, w)
    stamp(A, prof, 7)

def kv_addr(A, nrb, vt):
    A(f"v_and_b32 v{vt}, 0xf0, v{vL16}")
    A(f"v_min_u32 v{vt}, {16*max(nrb-1, 0)}, v{vt}")
    A(f"v_lshlrev_b32 v{vt}, 3, v{vt}")
    A(f"s_mov_b32 s{sT}, {WS_FLAG + 32*128}")

def wait_kv(A, fail, nrb, vt):
    lp = A.newlabel("kvw")
    if nrb is not None:
        kv_addr(A, nrb, vt)
    A(f"s_mov_b32 s3, 0")
    A.label(lp)
    A(f"buffer_load_dword v{vt+1}, v{vt}, {BUF}, s{sT} offen sc1")
    A(f"s_add_u32 s3, s3, 1")
    A(f"s_cmp_gt_u32 s3, 200000")
    A(f"s_cbranch_scc1 {fail}")
    A("s_waitcnt vmcnt(0)")
    A(f"v_cmp_gt_u32 vcc, 0x180, v{vt+1}")
    A(f"s_cbranch_vccnz {lp}")

def last_step(A, w, fail, cold):
    L = LgkmTracker(A)
    A("s_waitcnt lgkmcnt(0)")
    A("s_barrier")
    tokA, nslow = qkv_stage(A, L, w, 0, fail, cold, False, True)
    for kv in (16, 17):
        vstep(A, L, tokA, kv)
    if w in (0, 3):
        for t in pub_addr(): A(t)
    A("s_nop 7")
    A(f"v_cvt_pk_bf16_f32 v40, v{VACC}, v{VACC+1}")
    A(f"v_cvt_pk_bf16_f32 v41, v{VACC+2}, v{VACC+3}")
    A(f"ds_write_b64 v{vXW}, v[40:41] offset:{4*XP}")
    A(f"s_add_u32 s{sPUB}, s{sPUB}, {32*4096}")
    A("s_waitcnt vmcnt(0) lgkmcnt(0)")
    A("s_barrier")
    for t in pub_read(w): A(t)
    if w == 3:
        A(f"v_mov_b32 v{tFV}, 63")
        A("s_mov_b64 exec, 1")
        A(f"buffer_store_dword v{tFV}, v{vL16}, {BUF}, s{sFLAG} offen sc1")
        A("s_mov_b64 exec, -1")
    A("s_waitcnt lgkmcnt(0)")
    for i in range(4):
        A(f"v_or_b32 v{PUB+i}, 1, v{PUB+i}")
    A(f"buffer_store_dwordx4 {v(PUB,4)}, v{vL16}, {BUF}, s{sPUB} offen sc1")

def run(A, fail, done, prof=None, stf="", bootdone=None):
    labs = [A.newlabel(f"wave{c}") for c in range(4)]
    A(f"s_mov_b32 s{sSTEP}, 0")
    A(f"s_mov_b32 s{sCNT}, 0")
    A(f"s_mov_b32 s{sFV}, -1")
    A(f"s_mov_b32 s{sGATE}, {sum(1 << (g - 2) for g, _ in KVGATE) if KVGATE else 0}")
    A(f"s_mov_b32 s{sGATE+1}, 0")
    A(f"s_mov_b64 s[{sEXM}:{sEXM+1}], 0")
    for c in range(1, 4):
        A(f"s_cmp_eq_u32 s{S_WAVE}, {c}")
        A(f"s_cbranch_scc1 {labs[c]}")
    for w in range(4):
        A.label(labs[w])
        cold = []
        lo, la = A.newlabel("loop"), A.newlabel("last")
        entry = A.newlabel("entry") if BOOT else None
        bootend = A.newlabel("bootend") if bootdone else None
        pre_b1(A)
        if BOOT or 'w0' in OPT:
            A("s_waitcnt vmcnt(0)")
        if BOOT:
            lz = A.newlabel("fromzero")
            if bootdone:
                A(f"s_cmp_eq_u32 s{sBOOT}, 1")
                A(f"s_cbranch_scc1 {lz}")
            A(f"s_mov_b32 s{sSTEP}, {BOOT}")
            A(f"s_mov_b64 s[{sEXM}:{sEXM+1}], -1")
            A(f"s_branch {entry}")
            A.label(lz)
        st_preload(A)
        A(".p2align 6")
        A.label(lo)
        step(A, w, 0, fail, cold, prof, stf)
        if prof: prof(A)
        A(f"s_cmp_eq_u32 s{sSTEP}, 63")
        A(f"s_cbranch_scc1 {la}")
        step(A, w, 1, fail, cold, prof, stf, entry, bootend)
        if prof: prof(A)
        A(f"s_branch {lo}")
        A.label(la)
        last_step(A, w, fail, cold)
        A(f"s_branch {done}")
        if bootend:
            A.label(bootend)
            if w in (0, 3):
                for t in pub_addr(): A(t)
            for t in pub_read(w): A(t)
            A("s_waitcnt lgkmcnt(0)")
            A(f"buffer_store_dwordx4 {v(PUB,4)}, v{vL16}, {BUF}, s{sPUB} offen sc1")
            A("s_waitcnt vmcnt(0)")
            A("s_barrier")
            if w == 3:
                A(f"v_mov_b32 v{tFV}, 3")
                A("s_mov_b64 exec, 1")
                A(f"buffer_store_dword v{tFV}, v{vL16}, {BUF}, s{sFLAG} offen sc1")
                A("s_mov_b64 exec, -1")
            A(f"s_branch {bootdone}")
        i = 0
        while i < len(cold):
            cold[i](); i += 1
```

```python
from common import *
from bulk import read_addr, FL_ALL, FL_GRP

BUF = f"s[{S_WS}:{S_WS+3}]"
L_QKV = 0
L_KVM = 49152
L_OX  = 53248
EPB = 36 * 32768
vL, vKM, vVM, vRA, vRF, vRO, vT1, vT2, vT3, vT4 = 240, 241, 242, 243, 244, 245, 246, 247, 248, 249
MASK = 0
QF, KF, KMF = 16, 48, 80
SX, SM = 112, 128
PX = 144
VF = 156
OA = 168
OF = 16
WA = 184
SELA, SELB = 216, 220
RD = 48
RACC, XR = 224, 228
sH, sG, sSEG, sK, sQB, sEPW, sEPR, sISR, sC, sCNT, sRBOK, sTAG, sU, sNT, sWB = 50, 51, 52, 53, 54, 55, 56, 57, 58, 60, 61, 62, 63, 64, 65
sT = 72
SPIN_MAX = 400000
XO = set()
XP = {}
BOOT = 0

def ts(A, i):
    if 'tail' in XO:
        A(f"s_memrealtime s[{80+2*i}:{81+2*i}]")

def wo_reg(t, k):
    return 256 + 32 * t + 4 * k

def poll_ge(A, line_sgpr, val, fail, signed=False):
    lp = A.newlabel("pw")
    A(f"s_mov_b32 s{sCNT}, 0")
    A(f"v_mov_b32 v{vT1}, 0")
    A.label(lp)
    A(f"buffer_load_dword v{vT2}, v{vT1}, {BUF}, s{line_sgpr} offen sc1")
    A(f"s_add_u32 s{sCNT}, s{sCNT}, 1")
    A(f"s_cmp_gt_u32 s{sCNT}, {SPIN_MAX}")
    A(f"s_cbranch_scc1 {fail}")
    A("s_waitcnt vmcnt(0)")
    A(f"v_cmp_gt_i32 vcc, {val}, v{vT2}")
    lq = A.newlabel("pwok")
    A(f"s_cbranch_vccz {lq}")
    A("s_sleep 2")
    A(f"s_branch {lp}")
    A.label(lq)

def release(A):
    l = A.newlabel("rel")
    A(f"s_cmp_eq_u32 s{S_LOCAL}, 1")
    A(f"s_cbranch_scc1 {l}")
    A("s_waitcnt vmcnt(0)")
    A("buffer_wbl2 sc1")
    A("s_waitcnt vmcnt(0)")
    A.label(l)

def setup(A, fail):
    A.c("engine: setup")
    A(f"v_mov_b32 v{vL}, v246")
    A(f"s_and_b32 s{sH}, s{S_ROLE}, 31")
    A(f"s_lshr_b32 s{sG}, s{S_ROLE}, 5")
    A(f"s_mul_i32 s{sEPW}, s{sG}, {2*EPB}")
    A(f"s_lshl_b32 s3, s{sH}, 10")
    A(f"s_add_u32 s{sEPW}, s{sEPW}, s3")
    A(f"s_add_u32 s{sEPW}, s{sEPW}, {WS_EP}")
    for i in range(4):
        A(f"v_mov_b32 v{i}, 1")
    A(f"s_mul_i32 s{sT}, s{S_WAVE}, {18*32768}")
    A(f"s_add_u32 s{sT}, s{sT}, s{sEPW}")
    for i in range(18):
        A(f"buffer_store_dwordx4 v[0:3], v{vL}, {BUF}, s{sT} offen")
        A(f"s_add_u32 s{sT}, s{sT}, 32768")
    lt = A.newlabel("notlast")
    A(f"s_cmp_lg_u32 s{sG}, 0")
    A(f"s_cbranch_scc1 {lt}")
    for i in range(4):
        A(f"v_mov_b32 v{4+i}, 0")
    A(f"s_lshl_b32 s{sT}, s{sH}, 2")
    A(f"s_add_u32 s{sT}, s{sT}, s{S_WAVE}")
    A(f"s_lshl_b32 s{sT}, s{sT}, 10")
    A(f"s_add_u32 s{sT}, s{sT}, {WS_KVM + 63*32*4096}")
    A(f"buffer_store_dwordx4 v[4:7], v{vL}, {BUF}, s{sT} offen sc1")
    A.label(lt)
    A(f"v_lshrrev_b32 v{vT4}, 4, v{vL}")
    A(f"v_bfe_u32 v{vT1}, v{vT4}, 3, 2")
    A(f"v_bfe_u32 v{vT3}, v{vT4}, 5, 1")
    A(f"v_lshl_add_u32 v{vT1}, v{vT3}, 3, v{vT1}")
    A(f"v_mul_u32_u24 v{vT1}, 1152, v{vT1}")
    A(f"v_bfe_u32 v{vT2}, v{vT4}, 4, 1")
    A(f"v_lshlrev_b32 v{vT2}, 2, v{vT2}")
    A(f"v_xor_b32 v{vT2}, v{vT2}, v{vT4}")
    A(f"v_and_b32 v{vT2}, 7, v{vT2}")
    A(f"v_lshl_add_u32 v{vT1}, v{vT2}, 4, v{vT1}")
    A(f"s_mul_i32 s{sWB}, s{sH}, {128*1152}")
    A(f"s_lshr_b32 s3, s{S_WAVE}, 1")
    A(f"s_mul_i32 s3, s3, {16*1152}")
    A(f"s_add_u32 s{sWB}, s{sWB}, s3")
    A(f"s_and_b32 s3, s{S_WAVE}, 1")
    A(f"s_mul_i32 s3, s3, {4*1152}")
    A(f"s_add_u32 s{sWB}, s{sWB}, s3")
    A(f"s_lshl_b32 s{sT+1}, s{S_WAVE}, 10")
    for i in range(36):
        A(f"s_add_u32 m0, s{sT+1}, {i*4096}")
        A(f"s_add_u32 s{sT}, s{sWB}, {(i & 3)*32*1152 + (i >> 2)*128}")
        A(f"buffer_load_dwordx4 v{vT1}, s[{S_WO}:{S_WO+3}], s{sT} offen lds")
    ln = vT4
    read_addr(A, vRA, ln, vT1, vT2)
    A(f"s_mul_i32 s{sU}, s{S_WAVE}, 5")
    A(f"s_cmp_eq_u32 s{S_WAVE}, 3")
    A(f"s_cselect_b32 s{sU}, 14, s{sU}")
    A(f"s_waitcnt vmcnt(0)")
    release(A)
    A("s_barrier")
    A(f"s_lshl_b32 s{sT}, s{sG}, 7")
    A(f"s_add_u32 s{sT}, s{sT}, {WS_FLAG + FL_GRP*128}")
    l = A.newlabel("gs")
    A(f"s_cmp_lg_u32 s{S_WAVE}, 0")
    A(f"s_cbranch_scc1 {l}")
    A(f"v_mov_b32 v{vT1}, 1")
    A(f"v_mov_b32 v{vT2}, 0")
    A("s_mov_b64 exec, 1")
    A(f"buffer_atomic_add v{vT1}, v{vT2}, {BUF}, s{sT} offen")
    A(f"s_cmp_eq_u32 s{sG}, 0")
    A(f"s_cselect_b32 s3, 12, 0")
    A(f"v_mov_b32 v{vT1}, s3")
    A(f"s_mov_b32 s3, {WS_FLAG + 48*128}")
    A(f"buffer_atomic_add v{vT1}, v{vT2}, {BUF}, s3 offen")
    A("s_mov_b64 exec, -1")
    A.label(l)
    for t in range(5):
        A(f"s_add_u32 s3, s{sU}, {t}")
        A(f"s_min_u32 s3, s3, 17")
        A(f"s_lshr_b32 s{sT+1}, s3, 1")
        A(f"s_lshl_b32 s{sT+1}, s{sT+1}, 14")
        A(f"s_and_b32 s3, s3, 1")
        A(f"s_lshl_b32 s3, s3, 6")
        A(f"v_xor_b32 v{vT1}, s3, v{vRA}")
        A(f"v_add_u32 v{vT1}, s{sT+1}, v{vT1}")
        for k in range(8):
            A(f"ds_read_b64_tr_b16 {r(wo_reg(t,k),2)}, v{vT1} offset:{k*2048}")
            A(f"ds_read_b64_tr_b16 {r(wo_reg(t,k)+2,2)}, v{vT1} offset:{k*2048+512}")
        A("s_waitcnt lgkmcnt(0)")
    A(f"v_and_b32 v{vT1}, 31, v{ln}")
    A(f"v_bfe_u32 v{vT2}, v{ln}, 5, 1")
    A(f"v_lshlrev_b32 v{vT2}, 2, v{vT2}")
    A(f"v_sub_u32 v{vT1}, v{vT1}, v{vT2}")
    A(f"v_mov_b32 v{vT2}, 0xff800000")
    for i in range(16):
        A(f"v_cmp_gt_i32 vcc, {8*(i>>2) + (i&3)}, v{vT1}")
        A("s_nop 1")
        A(f"v_cndmask_b32 v{MASK+i}, 0, v{vT2}, vcc")
    A(f"v_and_b32 v{vKM}, 0x70, v{vL}")
    A(f"v_bfe_u32 v{vT1}, v{ln}, 5, 1")
    A(f"v_lshl_add_u32 v{vKM}, v{vT1}, 8, v{vKM}")
    A(f"v_and_b32 v{vVM}, 31, v{ln}")
    A(f"s_lshl_b32 s3, s{S_WAVE}, 5")
    A(f"v_add_u32 v{vVM}, s3, v{vVM}")
    A(f"v_lshlrev_b32 v{vVM}, 3, v{vVM}")
    A(f"v_lshl_add_u32 v{vVM}, v{vT1}, 10, v{vVM}")
    A(f"s_lshl_b32 s{sNT}, s{sH}, 1")
    A(f"s_add_u32 s{sNT}, s{sNT}, s{S_WAVE}")
    A(f"s_add_u32 s3, s{sH}, 64")
    A(f"s_cmp_eq_u32 s{S_WAVE}, 2")
    A(f"s_cselect_b32 s{sNT}, s3, s{sNT}")
    A(f"s_cmp_lt_u32 s{sNT}, 72")
    A(f"s_cselect_b32 s{sISR}, 1, 0")
    A(f"s_cmp_eq_u32 s{S_WAVE}, 3")
    A(f"s_cselect_b32 s{sISR}, 0, s{sISR}")
    A(f"s_lshr_b32 s{sT}, s{sNT}, 1")
    A(f"s_lshl_b32 s{sEPR}, s{sT}, 15")
    A(f"s_and_b32 s3, s{sNT}, 1")
    A(f"s_lshl_b32 s3, s3, 8")
    A(f"s_add_u32 s{sEPR}, s{sEPR}, s3")
    A(f"s_mul_i32 s3, s{sG}, {2*EPB}")
    A(f"s_add_u32 s{sEPR}, s{sEPR}, s3")
    A(f"s_add_u32 s{sEPR}, s{sEPR}, {WS_EP}")
    A(f"v_and_b32 v{vRA}, 0xf0, v{vL}")
    A(f"v_lshrrev_b32 v{vT1}, 4, v{ln}")
    A(f"v_lshl_add_u32 v{vRA}, v{vT1}, 10, v{vRA}")
    A(f"v_lshrrev_b32 v{vT2}, 1, v{vT1}")
    A(f"v_and_b32 v{vRO}, 15, v{ln}")
    A(f"s_and_b32 s3, s{sNT}, 1")
    A(f"s_lshl_b32 s3, s3, 4")
    A(f"v_add_u32 v{vRO}, s3, v{vRO}")
    A(f"v_mul_u32_u24 v{vRO}, 1152, v{vRO}")
    A(f"v_lshl_add_u32 v{vRO}, v{vT2}, 3, v{vRO}")
    A(f"v_and_b32 v{vT2}, 1, v{vT1}")
    A(f"v_lshl_add_u32 v{vRO}, v{vT2}, 4, v{vRO}")
    A(f"s_lshl_b32 s3, s{sT}, 5")
    A(f"v_add_u32 v{vRO}, s3, v{vRO}")
    A(f"v_and_b32 v{vT1}, 1, v{ln}")
    A(f"v_lshlrev_b32 v{vT1}, 4, v{vT1}")
    A(f"v_mov_b32 v{vT2}, 0x3f80")
    A(f"v_lshlrev_b32 v{vT2}, v{vT1}, v{vT2}")
    A(f"v_bfe_u32 v{vT1}, v{ln}, 1, 3")
    for q in range(8):
        A(f"v_cmp_eq_u32 vcc, {q}, v{vT1}")
        A("s_nop 1")
        A(f"v_cndmask_b32 v{SELA+q}, 0, v{vT2}, vcc")
    A(f"v_mov_b64 {v(PX+10,2)}, 0")
    A(f"v_mov_b64 {v(VF+10,2)}, 0")
    A(f"s_mov_b32 s{sC}, 0x3e029413")
    A(f"s_mov_b32 s{sC+1}, 0x3e029413")
    A(f"s_lshl_b32 s3, s{sU}, 16")
    A(f"s_add_u32 s{sEPW}, s{sEPW}, s3")
    A(f"s_lshl_b32 s{sT}, s{sG}, 7")
    A(f"s_add_u32 s{sT}, s{sT}, {WS_FLAG + FL_GRP*128}")
    poll_ge(A, sT, 32, fail)
    A("s_barrier")

def qkv_fetch(A, seg, bufsel, fail):
    l = A.newlabel("rbok")
    A(f"s_lshr_b32 s{sT}, s{seg}, 2")
    A(f"s_cmp_eq_u32 s{sT}, s{sRBOK}")
    A(f"s_cbranch_scc1 {l}")
    A(f"s_mov_b32 s{sRBOK}, s{sT}")
    A(f"s_lshl_b32 s{sT}, s{sT}, 7")
    A(f"s_add_u32 s{sT}, s{sT}, {WS_FLAG + FL_ALL*128}")
    poll_ge(A, sT, 12, fail)
    A.label(l)
    A(f"s_lshl_b32 s{sT}, s{seg}, 5")
    A(f"s_add_u32 s{sT}, s{sT}, s{sH}")
    A(f"s_lshl_b32 s{sT}, s{sT}, 13")
    A(f"s_lshl_b32 s3, s{S_WAVE}, 11")
    A(f"s_add_u32 s{sT}, s{sT}, s3")
    A(f"s_add_u32 s{sT+1}, s{bufsel}, s3")
    for m, base in enumerate((WS_Q, WS_K, WS_V)):
        A(f"s_add_u32 m0, s{sT+1}, {m*8192}")
        A(f"s_add_u32 s{sT+2}, s{sT}, {base}")
        A(f"buffer_load_dwordx4 v{vL}, {BUF}, s{sT+2} offen sc1 lds")
        A(f"buffer_load_dwordx4 v{vL}, {BUF}, s{sT+2} offen offset:1024 sc1 lds")

def segment(A, fail):
    L = LgkmTracker(A)
    A("s_waitcnt vmcnt(0)")
    A("s_barrier")
    A(f"v_add_u32 v{vT3}, s{sQB}, v{vL}")
    tq = {}
    for k in range(8):
        L.op(f"ds_read_b128 {v(QF+4*k,4)}, v{vT3} offset:{k*1024}")
        tq[k] = L.op(f"ds_read_b128 {v(KF+4*k,4)}, v{vT3} offset:{8192 + k*1024}")
        if k == 5:
            L.wait(tq[0])
    A(f"s_lshl_b32 s3, s{S_WAVE}, 11")
    A(f"v_add_u32 v{vT3}, s3, v{vT3}")
    for k in range(8):
        L.wait(tq[k])
        A(f"v_mfma_f32_32x32x16_bf16 {v(SX,16)}, {v(KF+4*k,4)}, {v(QF+4*k,4)}, {v(MASK,16) if k == 0 else v(SX,16)}")
    L.op(f"ds_read_b128 {v(VF,4)}, v{vT3} offset:{16384}")
    L.op(f"ds_read_b128 {v(VF+4,4)}, v{vT3} offset:{16384+1024}")
    ln = A.newlabel("nonext")
    A(f"s_add_u32 s{sT+6}, s{sSEG}, 6")
    A(f"s_xor_b32 s{sT+7}, s{sQB}, 24576")
    A(f"s_cmp_gt_u32 s{sT+6}, 62")
    A(f"s_cbranch_scc1 {ln}")
    qkv_fetch(A, sT + 6, sT + 7, fail)
    A.label(ln)
    lr = A.newlabel("nored0")
    A(f"s_cmp_eq_u32 s{sISR}, 0")
    A(f"s_cbranch_scc1 {lr}")
    A(f"s_mul_i32 s{sT}, s{sSEG}, {36*16384}")
    A(f"s_lshr_b32 s3, s{sNT}, 1")
    A(f"s_lshl_b32 s3, s3, 14")
    A(f"s_add_u32 s{sT}, s{sT}, s3")
    A(f"s_and_b32 s3, s{sNT}, 1")
    A(f"s_lshl_b32 s3, s3, 8")
    A(f"s_add_u32 s{sT}, s{sT}, s3")
    A(f"s_add_u32 s{sT}, s{sT}, {WS_FFN}")
    for u in range(3):
        for hf in range(2):
            A(f"buffer_load_dwordx4 {v(KMF+8*u+4*hf,4)}, v{vRA}, {BUF}, s{sT} offen offset:{hf*512} sc1")
        A(f"s_add_u32 s{sT}, s{sT}, 4096")
    A(f"s_mul_i32 s{sT}, s{sSEG}, {32*1152}")
    A(f"buffer_load_dwordx2 {v(XR,2)}, v{vRO}, s[{S_X}:{S_X+3}], s{sT} offen")
    A("s_waitcnt vmcnt(1)")
    for u in range(3):
        for hf in range(2):
            A(f"v_mfma_f32_16x16x32_bf16 {v(RACC,4)}, {v(SELA+4*hf,4)}, {v(KMF+8*u+4*hf,4)}, {'0' if u + hf == 0 else v(RACC,4)}")
    A.label(lr)
    if 'wbe' in XO:
        lw = A.newlabel("nowb")
        A(f"s_cmp_lt_u32 s{sSEG}, 57")
        A(f"s_cbranch_scc1 {lw}")
        A(f"s_or_b32 s3, s{S_WAVE}, s{sH}")
        A(f"s_cmp_lg_u32 s3, 0")
        A(f"s_cbranch_scc1 {lw}")
        A("buffer_wbl2 sc1")
        A.label(lw)
    lk, lk2 = A.newlabel("kvm"), A.newlabel("kvmok")
    A(f"s_lshl_b32 s{sT+3}, s{sH}, 7")
    A(f"s_add_u32 s{sT+3}, s{sT+3}, {WS_FLAG}")
    A(f"s_add_u32 s{sT+4}, s{sSEG}, 1")
    A(f"s_cmp_eq_u32 s{sSEG}, 63")
    A(f"s_cselect_b32 s{sT+4}, 62, s{sT+4}")
    poll_ge(A, sT + 3, f"s{sT+4}", fail)
    ts(A, 0)
    A.label(lk)
    A(f"s_lshl_b32 s{sT}, s{sSEG}, 5")
    A(f"s_add_u32 s{sT}, s{sT}, s{sH}")
    A(f"s_lshl_b32 s{sT}, s{sT}, 2")
    A(f"s_add_u32 s{sT}, s{sT}, s{S_WAVE}")
    A(f"s_lshl_b32 s{sT}, s{sT}, 10")
    A(f"s_add_u32 s{sT}, s{sT}, {WS_KVM}")
    A(f"s_lshl_b32 s3, s{S_WAVE}, 10")
    A(f"v_add_u32 v{vT3}, s3, v{vL}")
    A(f"s_mov_b32 s{sCNT}, 0")
    lp = A.newlabel("kvmp")
    A.label(lp)
    A(f"buffer_load_dwordx4 {v(KMF,4)}, v{vL}, {BUF}, s{sT} offen sc1")
    A(f"s_add_u32 s{sCNT}, s{sCNT}, 1")
    A(f"s_cmp_gt_u32 s{sCNT}, {SPIN_MAX}")
    A(f"s_cbranch_scc1 {fail}")
    A(f"s_cmp_lg_u32 s{sSEG}, 63")
    A("s_waitcnt vmcnt(0)")
    A(f"s_cbranch_scc1 {lk2}")
    A(f"v_bitop3_b32 v{vT1}, v{KMF}, v{KMF+1}, v{KMF+2} bitop3:0x80")
    A(f"v_bitop3_b32 v{vT1}, v{vT1}, v{KMF+3}, 1 bitop3:0x80")
    A(f"v_cmp_ne_u32 vcc, 1, v{vT1}")
    A(f"s_cbranch_vccnz {lp}")
    ts(A, 0)
    A.label(lk2)
    A(f"ds_write_b128 v{vT3}, {v(KMF,4)} offset:{L_KVM}")
    L.all()
    A("s_barrier")
    tk = {k: L.op(f"ds_read_b128 {v(KMF+4*k,4)}, v{vKM} offset:{L_KVM + (k>>2)*1024 + (k&1)*512 + ((k>>1)&1)*128}") for k in range(8)}
    L.op(f"ds_read_b64 {v(VF+8,2)}, v{vVM} offset:{L_KVM + 2048}")
    for k in range(8):
        L.wait(tk[k])
        A(f"v_mfma_f32_32x32x16_bf16 {v(SM,16)}, {v(KMF+4*k,4)}, {v(QF+4*k,4)}, {'0' if k == 0 else v(SM,16)}")
    ts(A, 1)
    m1, m2, l1 = vT1, vT2, vT3
    A(f"v_max3_f32 v{m1}, v{SX}, v{SX+1}, v{SX+2}")
    for i in range(3, 15, 2):
        A(f"v_max3_f32 v{m1}, v{m1}, v{SX+i}, v{SX+i+1}")
    A(f"v_max_f32 v{m1}, v{m1}, v{SX+15}")
    A("s_nop 3")
    A(f"v_max3_f32 v{m1}, v{m1}, v{SM}, v{SM+1}")
    A(f"v_max3_f32 v{m2}, v{m1}, v{SM+2}, v{SM+3}")
    A(f"v_max3_f32 v{m1}, v{m1}, v{SM+2}, v{SM+3}")
    A("s_nop 1")
    A(f"v_permlane32_swap_b32 v{m1}, v{m2}")
    A(f"v_max_f32 v{m1}, v{m1}, v{m2}")
    A(f"v_mul_f32 v{m1}, s{sC}, v{m1}")
    for i in range(10):
        A(f"v_pk_fma_f32 {v(SX+2*i,2)}, {v(SX+2*i,2)}, s[{sC}:{sC+1}], {v(m1,2)} op_sel_hi:[1,0,0] neg_lo:[0,0,1] neg_hi:[0,0,1]")
    for i in range(20):
        A(f"v_exp_f32 v{SX+i}, v{SX+i}")
    for i in range(10):
        A(f"v_cvt_pk_bf16_f32 v{PX+i}, v{SX+2*i}, v{SX+2*i+1}")
    L.all()
    A("s_waitcnt vmcnt(0)")
    A(f"v_mfma_f32_32x32x16_bf16 {v(OA,16)}, {v(VF,4)}, {v(PX,4)}, 0")
    A(f"v_pk_add_f32 {v(SX,2)}, {v(SX,2)}, {v(SX+2,2)}")
    A(f"v_mfma_f32_32x32x16_bf16 {v(OA,16)}, {v(VF+4,4)}, {v(PX+4,4)}, {v(OA,16)}")
    A(f"v_mfma_f32_32x32x16_bf16 {v(OA,16)}, {v(VF+8,4)}, {v(PX+8,4)}, {v(OA,16)}")
    for i in range(2, 10):
        A(f"v_pk_add_f32 {v(SX,2)}, {v(SX,2)}, {v(SX+2*i,2)}")
    A(f"v_add_f32 v{m1}, v{SX}, v{SX+1}")
    A(f"v_add_f32 v{m2}, v{SX}, v{SX+1}")
    A("s_nop 1")
    A(f"v_permlane32_swap_b32 v{m1}, v{m2}")
    A(f"v_add_f32 v{m1}, v{m1}, v{m2}")
    A(f"v_rcp_f32 v{m1}, v{m1}")
    A("s_nop 0")
    for i in range(8):
        A(f"v_pk_mul_f32 {v(OA+2*i,2)}, {v(OA+2*i,2)}, {v(m1,2)} op_sel_hi:[1,0]")
    for i in range(8):
        A(f"v_cvt_pk_bf16_f32 v{PX+i}, v{OA+2*i}, v{OA+2*i+1}")
    A(f"s_lshl_b32 s3, s{S_WAVE}, 11")
    A(f"v_add_u32 v{vT3}, s3, v{vL}")
    A(f"ds_write_b128 v{vT3}, {v(PX,4)} offset:{L_OX}")
    A(f"ds_write_b128 v{vT3}, {v(PX+4,4)} offset:{L_OX+1024}")
    A("s_waitcnt lgkmcnt(0)")
    A("s_barrier")
    ts(A, 2)
    L = LgkmTracker(A)
    to = {k: L.op(f"ds_read_b128 {v(OF+4*k,4)}, v{vL} offset:{L_OX + k*1024}") for k in range(8)}
    A(f"s_and_b32 s3, s{sK}, 1")
    A(f"s_mul_i32 s{sT+5}, s3, {EPB}")
    A(f"s_add_u32 s{sT}, s{sEPW}, s{sT+5}")
    A(f"s_lshr_b32 s{sTAG}, s{sK}, 1")
    A(f"s_and_b32 s{sTAG}, s{sTAG}, 1")
    def epi(t):
        acc = WA + 16 * (t % 2)
        ops = []
        for half in range(2):
            for i in range(4):
                ops.append(f"v_cvt_pk_bf16_f32 v{acc+8*half+i}, v{acc+8*half+2*i}, v{acc+8*half+2*i+1}")
            for i in range(4):
                ops.append(f"v_and_or_b32 v{acc+8*half+i}, v{acc+8*half+i}, -2, s{sTAG}")
            ops.append(f"buffer_store_dwordx4 {v(acc+8*half,4)}, v{vL}, {BUF}, s{sT} offen")
            ops.append(f"s_add_u32 s{sT}, s{sT}, 32768")
        return ops
    l4, lj = A.newlabel("t4"), A.newlabel("tj")
    for t in range(5):
        if t == 4:
            A(f"s_cmp_ge_u32 s{S_WAVE}, 2")
            A(f"s_cbranch_scc1 {l4}")
        acc = WA + 16 * (t % 2)
        ops = epi(t - 1) if t else []
        for k in range(8):
            L.wait(to[k])
            A(f"v_mfma_f32_32x32x16_bf16 {v(acc,16)}, {r(wo_reg(t,k),4)}, {v(OF+4*k,4)}, {'0' if k == 0 else v(acc,16)}")
            if ops and k < 3:
                A("s_nop 3")
            if k >= 3:
                for x in ops[4*(k-3):4*(k-2)]:
                    A(x)
    A("s_nop 11")
    for x in epi(4): A(x)
    A(f"s_branch {lj}")
    A.label(l4)
    A("s_nop 11")
    for x in epi(3): A(x)
    A.label(lj)
    ts(A, 3)
    release(A)
    le = A.newlabel("segend")
    A(f"s_cmp_eq_u32 s{sISR}, 0")
    A(f"s_cbranch_scc1 {le}")
    A(f"s_mov_b32 s{sCNT}, 0")
    for _ in range(XP.get('ed', 5)):
        A("s_nop 15")
    lp = A.newlabel("epoll")
    A.label(lp)
    A(f"s_add_u32 s{sT}, s{sEPR}, s{sT+5}")
    for u in range(8):
        for hf in range(2):
            A(f"buffer_load_dwordx4 {v(RD+8*u+4*hf,4)}, v{vRA}, {BUF}, s{sT} offen offset:{hf*512} sc1")
        A(f"s_add_u32 s{sT}, s{sT}, 4096")
    A(f"s_add_u32 s{sCNT}, s{sCNT}, 1")
    A(f"s_cmp_gt_u32 s{sCNT}, {SPIN_MAX}")
    A(f"s_cbranch_scc1 {fail}")
    a1, o1 = vT1, vT2
    for i in range(16):
        b = RD + 4 * i
        A(f"s_waitcnt vmcnt({15-i})")
        A(f"v_mfma_f32_16x16x32_bf16 {v(OA,4)}, {v(SELA+4*(i%2),4)}, {v(b,4)}, {v(RACC,4) if i == 0 else v(OA,4)}")
        if i == 0:
            A(f"v_bitop3_b32 v{a1}, v{b}, v{b+1}, v{b+2} bitop3:0x80")
            A(f"v_bitop3_b32 v{o1}, v{b}, v{b+1}, v{b+2} bitop3:0xfe")
            A(f"v_and_b32 v{a1}, v{a1}, v{b+3}")
            A(f"v_or_b32 v{o1}, v{o1}, v{b+3}")
        else:
            A(f"v_bitop3_b32 v{a1}, v{a1}, v{b}, v{b+1} bitop3:0x80")
            A(f"v_bitop3_b32 v{o1}, v{o1}, v{b}, v{b+1} bitop3:0xfe")
            A(f"v_bitop3_b32 v{a1}, v{a1}, v{b+2}, v{b+3} bitop3:0x80")
            A(f"v_bitop3_b32 v{o1}, v{o1}, v{b+2}, v{b+3} bitop3:0xfe")
    A(f"v_xor_b32 v{a1}, s{sTAG}, v{a1}")
    A(f"v_xor_b32 v{o1}, s{sTAG}, v{o1}")
    A(f"v_or_b32 v{a1}, v{a1}, v{o1}")
    A(f"v_and_b32 v{a1}, 1, v{a1}")
    A(f"v_cmp_ne_u32 vcc, 0, v{a1}")
    A(f"s_cbranch_vccnz {lp}")
    ts(A, 4)
    A(f"v_lshlrev_b32 v{vT1}, 16, v{XR}")
    A(f"v_and_b32 v{vT2}, 0xffff0000, v{XR}")
    A(f"v_lshlrev_b32 v{vT3}, 16, v{XR+1}")
    A(f"v_and_b32 v{vT4}, 0xffff0000, v{XR+1}")
    for i in range(4):
        A(f"v_add_f32 v{OA+i}, v{OA+i}, v{vT1+i}")
    A(f"v_cvt_pk_bf16_f32 v{OA}, v{OA}, v{OA+1}")
    A(f"v_cvt_pk_bf16_f32 v{OA+1}, v{OA+2}, v{OA+3}")
    A(f"s_mul_i32 s{sT}, s{sSEG}, {32*1152}")
    A(f"buffer_store_dwordx2 {v(OA,2)}, v{vRO}, s[{S_OUT}:{S_OUT+3}], s{sT} offen")
    A.label(le)

def run(A, fail, done, hook=None):
    setup(A, fail)
    if hook: hook()
    A(f"s_sub_u32 s{sSEG}, s{sG}, 1")
    A(f"s_cmp_eq_u32 s{sG}, 0")
    A(f"s_cselect_b32 s{sSEG}, 63, s{sSEG}")
    A(f"s_mov_b32 s{sK}, 0")
    A(f"s_mov_b32 s{sQB}, {L_QKV}")
    A(f"s_mov_b32 s{sRBOK}, -1")
    qkv_fetch(A, sSEG, sQB, fail)
    lp = A.newlabel("seg")
    A.label(lp)
    segment(A, fail)
    A(f"s_add_u32 s{sSEG}, s{sSEG}, 6")
    A(f"s_add_u32 s{sK}, s{sK}, 1")
    A(f"s_xor_b32 s{sQB}, s{sQB}, 24576")
    A(f"s_cmp_lt_u32 s{sSEG}, 63")
    A(f"s_cbranch_scc1 {lp}")
    A(f"s_branch {done}")
```

```python
import sys
from common import *
import chain, bulk, engine

KN = "parallel_sum__memory_aug_recurrent_mem_tr__dense_activation_silu__prompt_kernel"
REF = open("parallel_sum__memory_aug_recurrent_mem_tr__dense_activation_silu__prompt.s.ref").read()
COMMENT = REF[:REF.index("; Override launch geometry")]
HDR = COMMENT + f"""; @launch grid=(256,1,1) block=(256,1,1) lds=163840
.amdgcn_target "amdgcn-amd-amdhsa--gfx950"
.text
.globl {KN}
.p2align 8
.type {KN},@function
{KN}:
"""
FTR = f"""
.section .rodata,"a"
.p2align 6
.amdhsa_kernel {KN}
  .amdhsa_next_free_vgpr 512
  .amdhsa_next_free_sgpr 102
  .amdhsa_accum_offset 256
  .amdhsa_group_segment_fixed_size 0
  .amdhsa_kernarg_size 104
  .amdhsa_user_sgpr_count 2
  .amdhsa_user_sgpr_kernarg_segment_ptr 1
  .amdhsa_system_sgpr_workgroup_id_x 1
.end_amdhsa_kernel
"""

XO = set()
def tstamp(A, prof, i):
    if prof:
        A(f"s_memrealtime s[{i}:{i+1}]")

def steplog(A):
    A("s_memrealtime s[80:81]")
    A("s_memtime s[82:83]")
    A(f"s_lshl_b32 s3, s{chain.sSTEP}, 5")
    A(f"s_add_u32 s3, s3, s{S_ROLE}")
    A("s_lshl_b32 s3, s3, 2")
    A(f"s_add_u32 s3, s3, {WS_PROF + 65536}")
    A("s_waitcnt lgkmcnt(0)")
    A("v_mov_b32 v10, s80")
    A("v_mov_b32 v11, 0")
    A(f"buffer_store_dword v10, v11, s[{S_WS}:{S_WS+3}], s3 offen")
    A("v_mov_b32 v12, s82")
    A(f"s_add_u32 s3, s3, 16384")
    A(f"buffer_store_dword v12, v11, s[{S_WS}:{S_WS+3}], s3 offen")

def fine(A, i):
    A("s_memrealtime s[96:97]")
    A(f"s_lshl_b32 s3, s{S_ROLE}, 4")
    A(f"s_add_u32 s3, s3, {WS_PROF + 131072 + 4*i}")
    A("s_waitcnt lgkmcnt(0)")
    A("v_mov_b32 v253, s96")
    A("v_mov_b32 v254, 0")
    A(f"buffer_store_dword v253, v254, s[{S_WS}:{S_WS+3}], s3 offen")
    A("s_waitcnt vmcnt(63)")

def build(prof=False, force_nonlocal=False):
    A = Asm()
    tstamp(A, prof, 22)
    if prof:
        A("s_waitcnt lgkmcnt(0)")
        A("s_mov_b32 s101, s22")
    prologue(A, "L_exit")
    if 'nopf' not in XO:
        prefetch_code(A, KN, "L_codeend")
    take_ticket(A)
    assign_roles(A, "L_exit")
    A(f"s_mov_b32 s{chain.sBOOT}, 0")
    A(f"s_cmp_ge_u32 s{S_ROLE}, 32")
    A("s_cbranch_scc1 L_notchain")
    chain.AFTER = (lambda A_: steplog(A_)) if prof and 'dbg' not in XO else None
    init_shared(A)
    A.label("L_chain")
    chain.setup(A)
    chain.setup_scalars(A)
    chain.load_weights(A, "L_exit", 2)
    if force_nonlocal:
        A(f"s_mov_b32 s{S_LOCAL}, 0")
    tstamp(A, prof, 92)
    tstamp(A, prof, 94)
    A(f"s_cmp_eq_u32 s{chain.sBOOT}, 1")
    A("s_cbranch_scc1 L_chain_far")
    A(f"s_cmp_eq_u32 s{S_LOCAL}, 0")
    A("s_cbranch_scc1 L_chain_far")
    chain.run(A, "L_exit0", "L_done0")
    chain.AFTER = None
    A.label("L_exit0")
    A("s_endpgm")
    A.label("L_done0")
    A("s_branch L_done1")
    A.label("L_chain_far")
    chain.run(A, "L_exit1", "L_done1", None, "sc1", "L_bootdone" if chain.BOOT else None)
    A.label("L_exit")
    A.label("L_exit1")
    A("s_endpgm")
    A.label("L_done1")
    A("s_branch L_done")
    A.label("L_notchain")
    if chain.BOOT:
        A.c("start-up group: 32 workgroups spread over the other XCDs run the first steps while XCC 0 loads its weights")
        A(f"s_and_b32 s3, s{S_ROLE}, 15")
        A("s_sub_u32 s3, s3, 13")
        A("s_cmp_ge_u32 s3, 3")
        A("s_cbranch_scc1 L_bulk")
        A(f"s_lshr_b32 s50, s{S_ROLE}, 4")
        A("s_sub_u32 s50, s50, 4")
        A("s_mul_i32 s50, s50, 3")
        A("s_add_u32 s50, s50, s3")
        A("s_cmp_ge_u32 s50, 32")
        A("s_cbranch_scc1 L_bulk")
        A(f"s_mov_b32 s{chain.sSAVE}, s{S_ROLE}")
        A(f"s_mov_b32 s{S_ROLE}, s50")
        A(f"s_mov_b32 s{chain.sBOOT}, 1")
        A("s_branch L_chain")
        A.label("L_bootdone")
        tstamp(A, prof, 94)
        A(f"s_mov_b32 s{S_ROLE}, s{chain.sSAVE}")
        A(f"v_lshrrev_b32 v0, 4, v{chain.vL16}")
        A("s_load_dwordx2 s[52:53], s[0:1], 0")
        A("s_load_dwordx2 s[54:55], s[0:1], 64")
        A("s_waitcnt lgkmcnt(0)")
        if prof:
            A("s_mov_b32 s99, s94")
        srd(A, S_X, 52, 2048 * 576 * 2)
        srd(A, S_W1, 54, 576 * 4608 * 2)
    A.label("L_bulk")
    A(f"s_sub_u32 s{S_ROLE}, s{S_ROLE}, 32")
    bulk.run(A, "L_exit2", "L_engine", (lambda i: (tstamp(A, prof, 96), prof and (A('s_waitcnt lgkmcnt(0)'), A('s_mov_b32 s99, s96'))) if i == 2 else tstamp(A, prof, 92) if i == 3 else (tstamp(A, prof, 96), prof and (A('s_waitcnt lgkmcnt(0)'), A('s_mov_b32 s98, s96'))) if i else (tstamp(A, prof, 94), prof and (A('s_waitcnt lgkmcnt(0)'), A('s_mov_b32 s100, s94')))))
    A.label("L_engine")
    if force_nonlocal:
        A(f"s_mov_b32 s{S_LOCAL}, 0")
    tstamp(A, prof, 92)
    engine.run(A, "L_exit2", "L_done2", (lambda: tstamp(A, prof, 94)))
    A.label("L_done2")
    if 'wb' in XO:
        A(f"s_cmp_lg_u32 s{S_WAVE}, 0")
        A("s_cbranch_scc1 L_nowb")
        A("s_waitcnt vmcnt(0)")
        A("buffer_wbl2 sc1")
        A.label("L_nowb")
    A(f"s_add_u32 s{S_ROLE}, s{S_ROLE}, 32")
    A.label("L_done")
    if 'dbg' in XO:
        tstamp(A, prof, 96)
        A("s_waitcnt lgkmcnt(0)")
        A(f"s_cmp_lt_u32 s{S_ROLE}, 32")
        A("s_cselect_b32 s3, 16, 32")
        A("v_mov_b32 v20, s3")
        A("s_mov_b64 exec, 1")
        for i, x in enumerate((92, 94, 96)):
            A(f"s_sub_u32 s3, s{x}, s101")
            A("v_mov_b32 v21, s3")
            A(f"global_atomic_umax v20, v21, s[{S_DBG}:{S_DBG+1}] offset:{4*i}")
        A("s_endpgm")
    if prof and 'tail' in XO:
        A("s_waitcnt lgkmcnt(0)")
        for i in range(5):
            A(f"v_writelane_b32 v16, s{80+2*i}, {i}")
        A(f"s_lshl_b32 s3, s{S_ROLE}, 2")
        A(f"s_add_u32 s3, s3, s{S_WAVE}")
        A("s_lshl_b32 s3, s3, 5")
        A(f"s_add_u32 s3, s3, {WS_PROF + 196608}")
        A("v_mbcnt_lo_u32_b32 v20, -1, 0")
        A("v_lshlrev_b32 v20, 2, v20")
        A("s_mov_b64 exec, 0xff")
        A(f"buffer_store_dword v16, v20, s[{S_WS}:{S_WS+3}], s3 offen")
        A("s_mov_b64 exec, -1")
    if prof:
        tstamp(A, prof, 96)
        A("s_waitcnt lgkmcnt(0)")
        for i in range(4):
            A(f"v_mov_b32 v{16+i}, s{(101, 92, 94, 96)[i]}")
        A(f"s_lshl_b32 s3, s{S_ROLE}, 2")
        A(f"s_add_u32 s3, s3, s{S_WAVE}")
        A("s_lshl_b32 s3, s3, 4")
        A(f"s_add_u32 s3, s3, {WS_PROF}")
        A("v_mov_b32 v20, 0")
        A(f"buffer_store_dwordx4 v[16:19], v20, s[{S_WS}:{S_WS+3}], s3 offen")
        A("v_mov_b32 v16, s100")
        A("v_mov_b32 v17, s98")
        A("v_mov_b32 v18, s99")
        A(f"s_add_u32 s3, s3, 16384")
        A(f"buffer_store_dwordx4 v[16:19], v20, s[{S_WS}:{S_WS+3}], s3 offen")
    A.label("L_exit2")
    A("s_endpgm")
    A.label("L_codeend")
    return HDR + A.text() + FTR

if __name__ == "__main__":
    chain.KVGATE = ((6, 3), (10, 5), (18, 8), (30, 17))
    open("parallel_sum__memory_aug_recurrent_mem_tr__dense_activation_silu__prompt.s", "w").write(build())
    open("full_prof.s", "w").write(build(True))
    open("full_far.s", "w").write(build(True, True))
    P0 = dict(chain.PAR)
    for x in sys.argv[1:]:
        XO.clear(); XO.update(x.split("+"))
        engine.XO = XO; bulk.XO = XO; chain.OPT = XO
        chain.PAR.update(P0)
        chain.BOOT = engine.BOOT = 2 if 'boot' in XO else 0
        engine.XP = chain.PAR
        for y in XO:
            if '=' in y: chain.PAR[y.split('=')[0]] = int(y.split('=')[1]) if y.split('=')[1].isdigit() else y.split('=')[1].replace('_', ' ')
        bulk.FINE = fine if 'fine' in XO else None
        open(f"v_{x}.s", "w").write(build('prof' in XO))
```

```python
from common import *

BUF = f"s[{S_WS}:{S_WS+3}]"
SLAB = 73728
FL_KV, FL_ALL, FL_GRP = 32, 104, 96

NJ = 12
def ranges():
    nF = [6] * 12
    nKV = [11] * 8 + [10] * 4
    nQ = [5] * 8 + [6] * 4
    out, a, b, c = [], 0, 0, 0
    for j in range(NJ):
        out.append((a, nKV[j], b, nQ[j], c, nF[j]))
        a += nKV[j]; b += nQ[j]; c += nF[j]
    assert (a, b, c) == (128, 64, 72)
    return out

XN = 0
ACC0, ACC1 = 144, 160
FR = 176
HP = 192
OUTV = 208
vA = 240
vD1, vD2, vL, vT1, vT2, vT3, vT4, vD1F = 244, 245, 246, 247, 248, 249, 250, 251
sRB, sJ, sI, sN, sSRC, sOUT, sPOUT, sLB, sSEG = 50, 51, 52, 53, 54, 55, 56, 57, 58
sKV0, sNKV, sQ0, sNQ, sF0, sNF, sTYP, sNTYP, sRS32, sLOG = 59, 60, 61, 62, 63, 64, 65, 66, 67, 68
sSIG, sP0R, sP0U, sSAV, sORD = 69, 70, 71, 90, 89
sT = 72
XO = set()
PAR = dict(d0=0, ds=1)
S_CUR = S_TMPD

def out_tile(dt):
    return 256 + 16 * dt if dt < 16 else OUTV + 16 * (dt - 16)

def setup(A):
    A.c("bulk: indices")
    A(f"s_and_b32 s{sRB}, s{S_ROLE}, 15")
    A(f"s_lshr_b32 s{sJ}, s{S_ROLE}, 4")
    A(f"s_sub_u32 s{sJ}, s{sJ}, 2")
    for j, rg in enumerate(ranges()):
        A(f"s_cmp_eq_u32 s{sJ}, {j}")
        pk1 = rg[0] | rg[1] << 8 | rg[2] << 16 | rg[3] << 24
        pk2 = rg[4] | rg[5] << 8
        A(f"s_cselect_b32 s{sT}, {pk1}, s{sT}" if j else f"s_mov_b32 s{sT}, {pk1}")
        A(f"s_cselect_b32 s{sT+1}, {pk2}, s{sT+1}" if j else f"s_mov_b32 s{sT+1}, {pk2}")
    A(f"s_and_b32 s{sKV0}, s{sT}, 255")
    A(f"s_bfe_u32 s{sNKV}, s{sT}, 0x80008")
    A(f"s_bfe_u32 s{sQ0}, s{sT}, 0x80010")
    A(f"s_lshr_b32 s{sNQ}, s{sT}, 24")
    A(f"s_and_b32 s{sF0}, s{sT+1}, 255")
    A(f"s_lshr_b32 s{sNF}, s{sT+1}, 8")
    A(f"s_lshl_b32 s{sSEG}, s{sRB}, 2")
    A(f"s_add_u32 s{sSEG}, s{sSEG}, s{S_WAVE}")
    A(f"s_mov_b32 s{sLOG}, 0xbfb8aa3b")
    A(f"v_mov_b32 v{vL}, v0")
    A(f"v_lshrrev_b32 v{vT1}, 3, v{vL}")
    A(f"v_bfe_u32 v{vT2}, v{vL}, 4, 1")
    A(f"v_lshlrev_b32 v{vT2}, 2, v{vT2}")
    A(f"v_xor_b32 v{vT2}, v{vT2}, v{vL}")
    A(f"v_and_b32 v{vT2}, 7, v{vT2}")
    A(f"v_lshlrev_b32 v{vT2}, 4, v{vT2}")
    A(f"v_lshl_add_u32 v{vD1}, v{vT1}, 13, v{vT2}")
    A(f"v_mul_u32_u24 v{vD1F}, 9216, v{vT1}")
    A(f"v_add_u32 v{vD1F}, v{vD1F}, v{vT2}")
    A(f"v_bfe_u32 v{vT3}, v{vL}, 5, 1")
    A(f"v_and_b32 v{vT1}, 3, v{vT1}")
    A(f"v_lshl_add_u32 v{vT1}, v{vT3}, 3, v{vT1}")
    A(f"v_mul_u32_u24 v{vD2}, 1152, v{vT1}")
    A(f"v_add_u32 v{vD2}, v{vD2}, v{vT2}")
    read_addr(A, vA, vL, vT1, vT2)
    A(f"v_xor_b32 v{vA+2}, 64, v{vA}")
    A(f"v_add_u32 v{vA+1}, {18*2048}, v{vA}")
    A(f"v_add_u32 v{vA+3}, {18*2048}, v{vA+2}")
    A(f"v_lshlrev_b32 v{vL}, 4, v{vL}")

def read_addr(A, dst, ln, t1, t2):
    A(f"v_bfe_u32 v{t1}, v{ln}, 2, 2")
    A(f"v_bfe_u32 v{t2}, v{ln}, 5, 1")
    A(f"v_lshl_add_u32 v{t1}, v{t2}, 3, v{t1}")
    A(f"v_lshlrev_b32 v{dst}, 7, v{t1}")
    A(f"v_bfe_u32 v{t2}, v{ln}, 3, 1")
    A(f"v_lshl_add_u32 v{dst}, v{t2}, 6, v{dst}")
    A(f"v_bfe_u32 v{t2}, v{ln}, 4, 1")
    A(f"v_lshl_add_u32 v{dst}, v{t2}, 5, v{dst}")
    A(f"v_and_b32 v{t2}, 3, v{ln}")
    A(f"v_lshl_add_u32 v{dst}, v{t2}, 3, v{dst}")

def copy_srd(A, src):
    for i in range(4):
        A(f"s_mov_b32 s{S_CUR+i}, s{src+i}")

def params_qkv(A, idx):
    la, lb, le = A.newlabel("pq"), A.newlabel("pv"), A.newlabel("pe")
    A(f"s_cmp_ge_u32 s{idx}, s{sNKV}")
    A(f"s_cbranch_scc1 {la}")
    A(f"s_add_u32 s{sT}, s{sKV0}, s{idx}")
    A(f"s_cmp_ge_u32 s{sT}, 64")
    A(f"s_cbranch_scc1 {lb}")
    copy_srd(A, S_WK)
    A(f"s_mov_b32 s{sT+1}, {WS_K}")
    A(f"s_mov_b32 s{sNTYP}, 0")
    A(f"s_branch {le}")
    A.label(lb)
    A(f"s_sub_u32 s{sT}, s{sT}, 64")
    copy_srd(A, S_WV)
    A(f"s_mov_b32 s{sT+1}, {WS_V}")
    A(f"s_mov_b32 s{sNTYP}, 1")
    A(f"s_branch {le}")
    A.label(la)
    A(f"s_sub_u32 s{sT}, s{idx}, s{sNKV}")
    A(f"s_add_u32 s{sT}, s{sT}, s{sQ0}")
    copy_srd(A, S_WQ)
    A(f"s_mov_b32 s{sT+1}, {WS_Q}")
    A(f"s_mov_b32 s{sNTYP}, 0")
    A.label(le)
    A(f"s_lshl_b32 s{sSRC}, s{sT}, 7")
    A(f"s_lshl_b32 s3, s{S_WAVE}, 16")
    A(f"s_add_u32 s{sSRC}, s{sSRC}, s3")
    A(f"s_lshl_b32 s{sT+2}, s{sT}, 12")
    A(f"s_lshl_b32 s3, s{sSEG}, 18")
    A(f"s_add_u32 s{sT+2}, s{sT+2}, s3")
    A(f"s_add_u32 s{sT+2}, s{sT+2}, s{sT+1}")
    A(f"s_mov_b32 s{sRS32}, {32*8192}")

def params_w1(A, unit):
    copy_srd(A, S_W1)
    A(f"s_lshl_b32 s{sSRC}, s{unit}, 7")
    A(f"s_mul_i32 s3, s{S_WAVE}, {8*9216}")
    A(f"s_add_u32 s{sSRC}, s{sSRC}, s3")
    A(f"s_mov_b32 s{sRS32}, {32*9216}")

def params_w2(A, unit):
    copy_srd(A, S_W2)
    A(f"s_mul_i32 s{sSRC}, s{unit}, {64*1152}")
    A(f"s_lshr_b32 s3, s{S_WAVE}, 1")
    A(f"s_mul_i32 s3, s3, {16*1152}")
    A(f"s_add_u32 s{sSRC}, s{sSRC}, s3")
    A(f"s_and_b32 s3, s{S_WAVE}, 1")
    A(f"s_mul_i32 s3, s3, {4*1152}")
    A(f"s_add_u32 s{sSRC}, s{sSRC}, s3")

def dma_ops(kind, vo):
    ops = []
    for i in range(18):
        g = [f"s_add_u32 m0, s{sLB}, {i*4096}"]
        if kind == 2:
            g.append(f"s_add_u32 s{sT+3}, s{sSRC}, {(i & 1)*32*1152 + (i >> 1)*128}")
            g.append(f"buffer_load_dwordx4 v{vo}, s[{S_CUR}:{S_CUR+3}], s{sT+3} offen {'nt' if 'bnt' in XO else ''} lds")
        else:
            g.append("s_nop 0")
            g.append(f"buffer_load_dwordx4 v{vo}, s[{S_CUR}:{S_CUR+3}], s{sSRC} offen {'nt' if 'bnt' in XO else ''} lds")
            g.append(f"s_add_u32 s{sSRC}, s{sSRC}, s{sRS32}")
        ops.append(g)
    return ops

def flip(A, younger=0):
    A(f"s_waitcnt vmcnt({younger}) lgkmcnt(0)")
    A("s_barrier")
    A(f"s_lshl_b32 s3, s{S_WAVE}, 10")
    A(f"s_sub_u32 s{sT+4}, s{sLB}, s3")
    A(f"s_sub_u32 s{sT+5}, {SLAB}, s{sT+4}")
    A(f"s_add_u32 s{sLB}, s{sT+5}, s3")
    A(f"s_sub_u32 s{sT+4}, s{sT+4}, s{sT+5}")
    for i in range(4):
        A(f"v_add_u32 v{vA+i}, s{sT+4}, v{vA+i}")

def store_epi(acc, soff, hp):
    ops = [f"v_cvt_pk_bf16_f32 v{hp+i}, v{acc+2*i}, v{acc+2*i+1}" for i in range(8)]
    return ops[:4] + [f"buffer_store_dwordx4 {v(hp,4)}, v{vL}, {BUF}, s{soff[0]} offen offset:{soff[1]} sc1{' nt' if 'snt' in XO else ''}"] + \
           ops[4:] + [f"buffer_store_dwordx4 {v(hp+4,4)}, v{vL}, {BUF}, s{soff[0]} offen offset:{soff[1]+1024} sc1{' nt' if 'snt' in XO else ''}"]

def silu_epi(acc, hp):
    ops = []
    for i in range(8):
        a0, a1 = acc + 2 * i, acc + 2 * i + 1
        t0, t1 = (vT1, vT2) if i % 2 == 0 else (vT3, vT4)
        ops += [f"v_mul_f32 v{t0}, s{sLOG}, v{a0}", f"v_mul_f32 v{t1}, s{sLOG}, v{a1}",
                f"v_exp_f32 v{t0}, v{t0}", f"v_exp_f32 v{t1}, v{t1}",
                f"v_add_f32 v{t0}, 1.0, v{t0}", f"v_add_f32 v{t1}, 1.0, v{t1}",
                f"v_rcp_f32 v{t0}, v{t0}", f"v_rcp_f32 v{t1}, v{t1}",
                f"v_mul_f32 v{a0}, v{a0}, v{t0}", f"v_mul_f32 v{a1}, v{a1}, v{t1}",
                f"v_cvt_pk_bf16_f32 v{hp+i}, v{a0}, v{a1}"]
    return ops

def mfma_stream(A, steps, fillers):
    L = LgkmTracker(A)
    tok = {}
    def rd(n):
        ad, off, _ = steps[n]
        f = FR + 4 * (n % 4)
        L.op(f"ds_read_b64_tr_b16 {v(f,2)}, v{ad} offset:{off}")
        tok[n] = L.op(f"ds_read_b64_tr_b16 {v(f+2,2)}, v{ad} offset:{off+512}")
    for n in range(3):
        rd(n)
    for n in range(len(steps)):
        L.wait(tok[n])
        A(steps[n][2](FR + 4 * (n % 4)))
        if n + 3 < len(steps):
            rd(n + 3)
        for t in fillers.get(n, []):
            A(t)

def spread(fillers, ops, start, per):
    n = start
    for i in range(0, len(ops), per):
        fillers.setdefault(n, []).extend(ops[i:i + per])
        n += 1
    return n

def proj_steps(vtype):
    steps = []
    for ct in range(2):
        acc = ACC0 if ct == 0 else ACC1
        for k in range(36):
            def f(fr, acc=acc, k=k):
                c = "0" if k == 0 else v(acc, 16)
                x, w = v(XN + 4 * k, 4), v(fr, 4)
                a_, b_ = (x, w) if vtype else (w, x)
                return f"v_mfma_f32_32x32x16_bf16 {v(acc,16)}, {a_}, {b_}, {c}"
            steps.append((vA + 2 * ct + k // 18, (k % 18) * 2048, f))
    return steps

def stage_proj(A, vtype, epi_prev, epi0, dma, extra=()):
    fill = {}
    ds = 2 if 'ds2' in XO else 1
    for i, g in enumerate(dma):
        fill.setdefault(ds * i, []).extend(g)
    per = 2 if len(epi0) < 20 else 4
    if ds == 2:
        spread(fill, [t for t in epi_prev if not t.startswith("buffer")], 3, 2)
        spread(fill, [t for t in epi_prev if t.startswith("buffer")], 36, 1)
    else:
        spread(fill, epi_prev, 30, 2)
    spread(fill, epi0, 40, per)
    for i, t in enumerate(extra):
        fill.setdefault(20 + (3 * i) // 2, []).append(t)
    mfma_stream(A, proj_steps(vtype), fill)

def stage_ffn2(A, epi1, dma):
    steps = []
    for k in range(4):
        for dt in range(18):
            def f(fr, dt=dt, k=k):
                o = r(out_tile(dt), 16)
                return f"v_mfma_f32_32x32x16_bf16 {o}, {v(fr,4)}, {v(HP+4*k,4)}, {o}"
            blk = 4 * (dt >> 1) + k
            steps.append((vA + 2 * (dt & 1) + blk // 18, (blk % 18) * 2048, f))
    fill = {}
    for i, g in enumerate(dma):
        fill.setdefault((2 if 'ds2' in XO else 1) * i, []).extend(g)
    spread(fill, epi1, 4, 4)
    mfma_stream(A, steps, fill)

def x_loads(A, seg, dst, addr):
    A(f"v_bfe_u32 v{addr}, v{vL}, 4, 5")
    A(f"s_lshl_b32 s3, s{seg}, 5")
    A(f"v_add_u32 v{addr}, s3, v{addr}")
    A(f"v_mul_u32_u24 v{addr}, 1152, v{addr}")
    A(f"v_bfe_u32 v{vT2}, v{vL}, 9, 1")
    A(f"v_lshl_add_u32 v{addr}, v{vT2}, 4, v{addr}")
    return [f"buffer_load_dwordx4 {r(dst+4*k,4)}, v{addr}, s[{S_X}:{S_X+3}], 0 offen offset:{32*k}" for k in range(36)]

def layernorm(A):
    A.c("bulk: load x rows as MFMA fragments and normalise them")
    for t in x_loads(A, sSEG, XN, vT1):
        A(t)

def layernorm2(A, dma=(), from_acc=False):
    dma = list(dma)
    s1, s2, one = ACC0, ACC0 + 4, ACC0 + 8
    for i in range(8):
        A(f"v_mov_b32 v{ACC0+i}, 0")
    A(f"v_mov_b32 v{one}, 0x3f803f80")
    for k in range(36):
        if from_acc:
            for i in range(4):
                A(f"v_accvgpr_read_b32 v{XN+4*k+i}, a{4*k+i}")
        elif k % 4 == 0:
            A(f"s_waitcnt vmcnt({32 - k})")
        for i in range(4):
            A(f"v_dot2c_f32_bf16 v{s1+i}, v{XN+4*k+i}, v{one}")
            A(f"v_dot2c_f32_bf16 v{s2+i}, v{XN+4*k+i}, v{XN+4*k+i}")
    A("s_nop 2")
    for b in (s1, s2):
        A(f"v_add_f32 v{b}, v{b}, v{b+1}")
        A(f"v_add_f32 v{b+2}, v{b+2}, v{b+3}")
        A(f"v_add_f32 v{b}, v{b}, v{b+2}")
        A(f"v_mov_b32 v{b+1}, v{b}")
    A("s_nop 1")
    A(f"v_permlane32_swap_b32 v{s1}, v{s1+1}")
    A(f"v_permlane32_swap_b32 v{s2}, v{s2+1}")
    A(f"v_add_f32 v{s1}, v{s1}, v{s1+1}")
    A(f"v_add_f32 v{s2}, v{s2}, v{s2+1}")
    A(f"v_mul_f32 v{s1}, 0x3ae38e39, v{s1}")
    A(f"v_mul_f32 v{s2}, 0x3ae38e39, v{s2}")
    A(f"v_fma_f32 v{s2}, -v{s1}, v{s1}, v{s2}")
    A(f"v_max_f32 v{s2}, 0, v{s2}")
    A(f"v_cvt_pk_bf16_f32 v{s1+1}, v{s2}, v{s1}")
    A(f"v_lshlrev_b32 v{s2}, 16, v{s1+1}")
    A(f"v_and_b32 v{s1}, 0xffff0000, v{s1+1}")
    A(f"v_add_f32 v{s2}, 0x3727c5ac, v{s2}")
    A(f"v_cvt_pk_bf16_f32 v{s2}, v{s2}, v{s2}")
    A(f"v_lshlrev_b32 v{s2}, 16, v{s2}")
    A(f"v_sqrt_f32 v{s2}, v{s2}")
    A("s_nop 0")
    A(f"v_cvt_pk_bf16_f32 v{s2}, v{s2}, v{s2}")
    A(f"v_lshlrev_b32 v{s2}, 16, v{s2}")
    A(f"v_rcp_f32 v{s2}, v{s2}")
    A("s_nop 0")
    A(f"v_mul_f32 v{s1}, v{s1}, v{s2}")
    A(f"s_mov_b32 s{sT+6}, 0xffff0000")
    for i in range(144):
        t = ACC1 + 2 * (i % 4)
        A(f"v_lshlrev_b32 v{t}, 16, v{XN+i}")
        A(f"v_and_b32 v{t+1}, s{sT+6}, v{XN+i}")
        A(f"v_pk_fma_f32 {v(t,2)}, {v(t,2)}, {v(s2,2)}, {v(s1,2)} op_sel_hi:[1,0,0] neg_lo:[0,0,1] neg_hi:[0,0,1]")
        A(f"v_cvt_pk_bf16_f32 v{XN+i}, v{t}, v{t+1}")
        if i % 4 == 0 and dma:
            for x in dma.pop(0): A(x)

def signal(A, line_sgpr, amount=1):
    l = A.newlabel("sig")
    A(f"s_cmp_lg_u32 s{S_WAVE}, 0")
    A(f"s_cbranch_scc1 {l}")
    A(f"v_mov_b32 v{vT1}, {amount}")
    A(f"v_mov_b32 v{vT2}, 0")
    A("s_mov_b64 exec, 1")
    A(f"buffer_atomic_add v{vT1}, v{vT2}, {BUF}, s{line_sgpr} offen")
    A("s_mov_b64 exec, -1")
    A.label(l)

FINE = None
NP0 = 3
KV_FULL = 384

def two_types(A, epi_prev, epi0, dma, extra=()):
    lv, lj = A.newlabel("projv"), A.newlabel("projj")
    A(f"s_cmp_eq_u32 s{sTYP}, 1")
    A(f"s_cbranch_scc1 {lv}")
    for vt in range(2):
        if vt:
            A.label(lv)
        stage_proj(A, vt, epi_prev, epi0, dma, extra)
        if not vt:
            A(f"s_branch {lj}")
    A.label(lj)

def counts(A, fail):
    A(f"v_lshrrev_b32 v{vT1}, 2, v{vL}")
    read_counts(A, fail, vT1, True, 80)

RBF = 8
def first_slab(A):
    l1, l2 = A.newlabel("fs"), A.newlabel("fs2")
    A(f"s_mov_b32 s{sI}, 0")
    A(f"s_cmp_eq_u32 s{sORD}, 1")
    A(f"s_cbranch_scc1 {l1}")
    params_qkv(A, sI)
    A(f"v_mov_b32 v{vT4+2}, v{vD1}")
    A(f"s_branch {l2}")
    A.label(l1)
    params_w1(A, sF0)
    A(f"v_mov_b32 v{vT4+2}, v{vD1F}")
    A.label(l2)

def run(A, fail, done, hook=None):
    setup(A)
    lmain, lskip, lown, lnog = A.newlabel("main"), A.newlabel("nop0"), A.newlabel("own"), A.newlabel("notg0")
    A(f"s_lshl_b32 s{sLB}, s{S_WAVE}, 10")
    for i in range(4):
        A(f"v_add_u32 v{vA+i}, {SLAB}, v{vA+i}")
    A(f"s_cmp_ge_u32 s{sRB}, {RBF if 'noff' not in XO else 99}")
    A(f"s_cselect_b32 s{sORD}, 1, 0")
    A(f"s_cmp_lt_u32 s{S_ROLE}, 32")
    A(f"s_cselect_b32 s{sORD}, 0, s{sORD}")
    A.c("bulk: group 0 shares a power domain with the recurrence: it only projects K/V of row block 2, early")
    A(f"s_cmp_ge_u32 s{S_ROLE}, 32")
    A(f"s_cbranch_scc1 {lnog}")
    A(f"s_lshl_b32 s{sKV0}, s{S_ROLE}, 2")
    A(f"s_mov_b32 s{sNKV}, 4")
    A(f"s_mov_b32 s{sNQ}, 0")
    A(f"s_mov_b32 s{sSIG}, -2")
    A(f"s_add_u32 s{sSEG}, s{S_WAVE}, 8")
    A(f"s_branch {lskip}")
    A.label(lnog)
    A(f"s_mov_b32 s{sSIG}, s{sNKV}")
    A.c("bulk: first the K/V projections of row blocks 0 and 1")
    A(f"s_mov_b32 s{sP0R}, s{sRB}")
    A(f"s_mov_b32 s{sP0U}, s{sJ}")
    A(f"s_cmp_lt_u32 s{sRB}, {NP0}")
    A(f"s_cselect_b32 s{sNKV}, 0, s{sNKV}")
    A(f"s_cselect_b32 s{sSIG}, -2, s{sSIG}")
    A(f"s_cmp_lt_u32 s{sRB}, 2")
    A(f"s_cbranch_scc1 {lown}")
    A(f"s_sub_u32 s3, s{sRB}, 3")
    A(f"s_cmp_lt_u32 s3, 2")
    A(f"s_cbranch_scc1 {lskip}")
    A(f"s_sub_u32 s3, s{sRB}, 4")
    A(f"s_cmp_eq_u32 s{sRB}, 2")
    A(f"s_cselect_b32 s3, 0, s3")
    A(f"s_cmp_ge_u32 s3, 9")
    A(f"s_cbranch_scc1 {lskip}")
    A(f"s_mul_i32 s{sP0U}, s{sJ}, 9")
    A(f"s_add_u32 s3, s3, s{sP0U}")
    A(f"s_cmp_ge_u32 s3, 104")
    A(f"s_cbranch_scc1 {lskip}")
    A(f"s_and_b32 s{sP0R}, s3, 1")
    A(f"s_lshr_b32 s{sP0U}, s3, 1")
    A(f"s_add_u32 s{sP0U}, s{sP0U}, {NJ}")
    A.label(lown)
    A(f"s_mov_b32 s{sSAV}, s{sKV0}")
    A(f"s_mov_b32 s{sSAV+1}, s{sNKV}")
    A(f"s_lshl_b32 s{sKV0}, s{sP0U}, 1")
    A(f"s_mov_b32 s{sNKV}, 2")
    A(f"s_lshl_b32 s{sSEG}, s{sP0R}, 2")
    A(f"s_add_u32 s{sSEG}, s{sSEG}, s{S_WAVE}")
    layernorm(A)
    A(f"s_mov_b32 s{sI}, 0")
    params_qkv(A, sI)
    layernorm2(A, dma_ops(1, vD1))
    if hook: hook(0)
    flip(A)
    A(f"s_mov_b32 s{sOUT}, s{sT+2}")
    A(f"s_mov_b32 s{sTYP}, s{sNTYP}")
    A(f"s_mov_b32 s{sI}, 1")
    params_qkv(A, sI)
    two_types(A, [], store_epi(ACC0, (sOUT, 0), HP + 8), dma_ops(1, vD1))
    A(f"s_mov_b32 s{sPOUT}, s{sOUT}")
    flip(A, 2)
    A(f"s_mov_b32 s{sOUT}, s{sT+2}")
    A(f"s_mov_b32 s{sKV0}, s{sSAV}")
    A(f"s_mov_b32 s{sNKV}, s{sSAV+1}")
    A(f"s_lshl_b32 s{sSEG}, s{sRB}, 2")
    A(f"s_add_u32 s{sSEG}, s{sSEG}, s{S_WAVE}")
    first_slab(A)
    two_types(A, store_epi(ACC1, (sPOUT, 2048), HP), store_epi(ACC0, (sOUT, 0), HP + 8), dma_ops(1, vT4 + 2))
    A("s_nop 7")
    A("s_nop 3")
    for t in store_epi(ACC1, (sOUT, 2048), HP):
        A(t)
    counts(A, fail)
    A("s_barrier")
    A(f"s_lshl_b32 s{sT}, s{sP0R}, 7")
    A(f"s_add_u32 s{sT}, s{sT}, {WS_FLAG + FL_KV*128}")
    signal(A, sT, 6)
    if hook: hook(2)
    A(f"s_cmp_lt_u32 s{sRB}, 2")
    A(f"s_cbranch_scc1 {lmain}")
    layernorm(A)
    layernorm2(A)
    A(f"s_branch {lmain}")
    A.label(lskip)
    if 'pfw' in XO:
        A.c("late row blocks first pull the recurrence's weights into the memory-side cache, in the order it needs them")
        lpf = A.newlabel("nopfw")
        A(f"s_cmp_lt_u32 s{sRB}, 13")
        A(f"s_cbranch_scc1 {lpf}")
        A(f"s_cmp_lt_u32 s{S_ROLE}, 32")
        A(f"s_cbranch_scc1 {lpf}")
        A(f"s_mul_i32 s{sT}, s{sJ}, 3")
        A(f"s_add_u32 s{sT}, s{sT}, s{sRB}")
        A(f"s_sub_u32 s{sT}, s{sT}, 13")
        A(f"s_lshl_b32 s{sT}, s{sT}, 2")
        A(f"s_add_u32 s{sT}, s{sT}, s{S_WAVE}")
        A(f"s_lshl_b32 s{sT}, s{sT}, 13")
        A(f"v_lshlrev_b32 v{vT1}, 3, v{vL}")
        for i in range(4):
            for d in (S_WQ, S_WK):
                A(f"s_add_u32 s3, s{sT}, {i*144*8192}")
                A(f"buffer_load_dword v{vT2}, v{vT1}, s[{d}:{d+3}], s3 offen")
        for d in (S_WV, S_WO):
            for i in range(4):
                A(f"s_add_u32 s3, s{sT}, {i*144*8192}")
                A(f"buffer_load_dword v{vT2}, v{vT1}, s[{d}:{d+3}], s3 offen")
        A("s_waitcnt vmcnt(0)")
        A.label(lpf)
    layernorm(A)
    first_slab(A)
    layernorm2(A, dma_ops(1, vT4 + 2))
    counts(A, fail)
    if hook: hook(0)
    A.label(lmain)
    lff, lproj, lfin = A.newlabel("goffn"), A.newlabel("goproj"), A.newlabel("fin")
    A(f"s_cmp_eq_u32 s{sORD}, 1")
    A(f"s_cbranch_scc1 {lff}")
    A.label(lproj)
    A("s_waitcnt vmcnt(0)")
    A(f"s_add_u32 s{sN}, s{sNKV}, s{sNQ}")
    A(f"s_mov_b32 s{sPOUT}, 0x40000000")
    lp, lnx, lnx2, lns = (A.newlabel(x) for x in ("proj", "nx", "nx2", "nosig"))
    A.label(lp)
    flip(A, 4)
    A(f"s_mov_b32 s{sOUT}, s{sT+2}")
    if 'drop8' in XO:
        A(f"s_cmp_ge_u32 s{sSEG}, 32")
        A(f"s_cselect_b32 s{sOUT}, 0x40000000, s{sOUT}")
    A(f"s_mov_b32 s{sTYP}, s{sNTYP}")
    A(f"s_sub_u32 s3, s{sI}, 1")
    A(f"s_cmp_lg_u32 s3, s{sSIG}")
    A(f"s_cbranch_scc1 {lns}")
    A("s_waitcnt vmcnt(2)")
    A("s_barrier")
    if hook: hook(1)
    A(f"s_lshl_b32 s{sT}, s{sRB}, 7")
    A(f"s_add_u32 s{sT}, s{sT}, {WS_FLAG + FL_KV*128}")
    signal(A, sT, 32)
    A.label(lns)
    A(f"s_add_u32 s{sI}, s{sI}, 1")
    A(f"s_cmp_eq_u32 s{sI}, s{sN}")
    A(f"s_cbranch_scc1 {lnx}")
    params_qkv(A, sI)
    A(f"v_mov_b32 v{vT4+2}, v{vD1}")
    A(f"s_branch {lnx2}")
    A.label(lnx)
    params_w1(A, sF0)
    A(f"v_mov_b32 v{vT4+2}, v{vD1F}")
    A.label(lnx2)
    two_types(A, store_epi(ACC1, (sPOUT, 2048), HP), store_epi(ACC0, (sOUT, 0), HP + 8), dma_ops(1, vT4 + 2))
    A(f"s_mov_b32 s{sPOUT}, s{sOUT}")
    A(f"s_cmp_lt_u32 s{sI}, s{sN}")
    A(f"s_cbranch_scc1 {lp}")
    A("s_nop 7")
    A("s_nop 3")
    for t in store_epi(ACC1, (sPOUT, 2048), HP):
        A(t)
    A(f"s_cmp_eq_u32 s{sORD}, 1")
    A(f"s_cbranch_scc1 {lfin}")
    A(f"s_cmp_ge_u32 s{S_ROLE}, 32")
    A(f"s_cbranch_scc1 {lff}")
    A("s_waitcnt vmcnt(0)")
    A("s_barrier")
    A(f"s_mov_b32 s{sT}, {WS_FLAG + (FL_KV + 2)*128}")
    signal(A, sT, 12)
    if hook: hook(2)
    if True:
        A.c("pull the lines the recurrence will publish into the memory-side cache")
        A(f"v_lshlrev_b32 v{vT1}, 3, v{vL}")
        A(f"s_lshl_b32 s{sT}, s{S_ROLE}, 2")
        A(f"s_add_u32 s{sT}, s{sT}, s{S_WAVE}")
        A(f"s_lshl_b32 s{sT}, s{sT}, 13")
        A(f"s_add_u32 s{sT}, s{sT}, {WS_KVM}")
        for i in range(8):
            A(f"buffer_load_dword v{vT2}, v{vT1}, {BUF}, s{sT} offen sc1")
            A(f"s_add_u32 s{sT}, s{sT}, {1 << 20}")
        A("s_waitcnt vmcnt(0)")
    A(f"s_branch {done}")
    A.label(lff)
    A.c("bulk: fused FFN over this range of hidden units")
    for i in range(256):
        A(f"v_accvgpr_write_b32 a{i}, 0")
    for i in range(0, 32, 2):
        A(f"v_mov_b64 {v(OUTV+i,2)}, 0")
    A(f"s_mov_b32 s{sI}, 0")
    lf, lf2, lf3 = A.newlabel("ffn"), A.newlabel("ffnl"), A.newlabel("ffnj")
    A.label(lf)
    flip(A)
    A(f"s_add_u32 s{sT+6}, s{sF0}, s{sI}")
    params_w2(A, sT + 6)
    stage_proj(A, 0, [], silu_epi(ACC0, HP), dma_ops(2, vD2))
    flip(A)
    A(f"s_add_u32 s{sI}, s{sI}, 1")
    A(f"s_add_u32 s{sT+6}, s{sF0}, s{sI}")
    A(f"s_min_u32 s{sT+6}, s{sT+6}, 71")
    A(f"s_cmp_eq_u32 s{sI}, s{sNF}")
    A(f"s_cbranch_scc1 {lf2}")
    params_w1(A, sT + 6)
    A(f"v_mov_b32 v{vT4+2}, v{vD1F}")
    A(f"s_branch {lf3}")
    A.label(lf2)
    A(f"s_mov_b32 s{sT+6}, 0")
    params_qkv(A, sT + 6)
    A(f"v_mov_b32 v{vT4+2}, v{vD1}")
    A.label(lf3)
    stage_ffn2(A, silu_epi(ACC1, HP + 8), dma_ops(1, vT4 + 2))
    A(f"s_cmp_lt_u32 s{sI}, s{sNF}")
    A(f"s_cbranch_scc1 {lf}")
    A.c("bulk: FFN partial -> workspace")
    A(f"s_mul_i32 s{sOUT}, s{sSEG}, {36*16384}")
    A(f"s_lshl_b32 s3, s{sJ}, 10")
    A(f"s_add_u32 s{sOUT}, s{sOUT}, s3")
    A(f"s_add_u32 s{sOUT}, s{sOUT}, {WS_FFN}")
    A("s_nop 7")
    for dt in range(18):
        for half in range(2):
            b = 2 * dt + half
            hp = HP + 4 * (b % 4)
            for i in range(4):
                o = out_tile(dt) + 8 * half + 2 * i
                if dt < 16:
                    A(f"v_accvgpr_read_b32 v{vT1}, a{o-256}")
                    A(f"v_accvgpr_read_b32 v{vT2}, a{o-255}")
                    A(f"v_cvt_pk_bf16_f32 v{hp+i}, v{vT1}, v{vT2}")
                else:
                    A(f"v_cvt_pk_bf16_f32 v{hp+i}, v{o}, v{o+1}")
            A(f"buffer_store_dwordx4 {v(hp,4)}, v{vL}, {BUF}, s{sOUT} offen sc1")
            A(f"s_add_u32 s{sOUT}, s{sOUT}, 16384")
    A(f"s_mov_b32 s{sI}, 0")
    A(f"s_cmp_eq_u32 s{sORD}, 1")
    A(f"s_cbranch_scc1 {lproj}")
    A.label(lfin)
    A("s_waitcnt vmcnt(0)")
    A("s_barrier")
    A(f"s_lshl_b32 s{sT}, s{sRB}, 7")
    A(f"s_add_u32 s{sT}, s{sT}, {WS_FLAG + FL_ALL*128}")
    signal(A, sT)
```

```python
from common import *

L_M   = 0
L_O   = 0
XP    = 1088
L_X   = 9216
L_VM  = L_X + 4 * XP
L_KX  = L_VM + 2 * XP
L_JUNK= L_KX + 8192
L_KVC = L_JUNK + 512
L_RES = 24576
assert L_JUNK + 512 <= L_RES and L_KX % 16 == 0

vL16, vIDX, vMASK, vRES, vMA, vXW, vXR, vOW, vPST, vT = range(10)
WV0 = 72
def wreg(i):
    return WV0 + 8 * i

import os
W6 = os.environ.get('W6') == '1'
QK_LDS_KAPPA = [1, 2, 3, 6, 7, 10, 11, 14, 15] if W6 else [1, 2, 3, 4, 6, 7, 9, 10, 12, 13, 14, 15]
WO_REG = [(rd, k) for rd in range(4) for k in range(4) if (rd, k) not in (((1, 2), (2, 0), (2, 2), (3, 0), (3, 2), (3, 3)) if W6 else ((2, 2), (3, 0), (3, 2)))]

def unit_tables():
    loc = {}
    n = 0
    for k in range(18):
        loc[('q', k)] = ('r', n); n += 1
        if k not in QK_LDS_KAPPA:
            loc[('k', k)] = ('r', n); n += 1
    for k in range(18):
        loc[('v', k)] = ('r', n); n += 1
    for u in WO_REG:
        loc[('o',) + u] = ('r', n); n += 1
    assert n == 55
    off = 0
    for k in QK_LDS_KAPPA:
        loc[('k', k)] = ('l', off); off += 8192
    for rd in range(4):
        for k in range(4):
            if (rd, k) not in WO_REG:
                loc[('o', rd, k)] = ('l', off); off += 8192
    for k in range(4):
        loc[('o', 4, k)] = ('l', off - 4096); off += 4096
    assert off == 17 * 8192
    return loc
LOC = unit_tables()
WO_BASE = len(QK_LDS_KAPPA) * 8192
STB = [26, 34, 62]

sH = S_ROLE
sSTEP, sCNT, sKVOFF, sRHO, sISRED = 50, 51, 52, 53, 54
sPST = 55
sRLD, sMST, sC, sFV, sPUB, sFLAG, sKXO, sWARM = 60, 61, 62, 64, 65, 66, 67, 68
sBOOT, sSAVE, sINC, sFVD = 79, 78, 27, 71
BOOT = 0
sMLD, sGATE, sEXM = 24, 30, 28
sONE = 76
sQKVB, sWOB = 69, 70
sH1W, sH1R, sH2W, sH2R = 69, 70, 71, 75
sT = 72
SPIN_MAX = 20000
OPT = set()
AFTER = None
TPROBE = 0
LDST = None
KVGATE = 0
BUF = f"s[{S_WS}:{S_WS+3}]"

def setup(A):
    A.c("chain: lane constants (v0 = lane id on entry)")
    n, g, t1, t2, ln = 10, 11, 12, 13, 14
    A(f"v_mov_b32 v{ln}, v0")
    A(f"v_and_b32 v{n}, 15, v{ln}")
    A(f"v_lshrrev_b32 v{g}, 4, v{ln}")
    A(f"v_mov_b32 v{vIDX}, 0x44444444")
    A(f"v_mov_b32 v{t1}, 0xeeeeeeee")
    A(f"v_cmp_lt_u32 vcc, 7, v{n}")
    A("s_nop 1")
    A(f"v_cndmask_b32 v{vIDX}, v{vIDX}, v{t1}, vcc")
    A(f"v_mov_b32 v{vMASK}, 0")
    A(f"v_mov_b32 v{t1}, 0xff800000")
    A(f"v_cmp_gt_u32 vcc, 32, v{ln}")
    A("s_nop 1")
    A(f"v_cndmask_b32 v{vMASK}, v{vMASK}, v{t1}, vcc")
    A(f"v_lshlrev_b32 v{vL16}, 4, v{ln}")
    A(f"s_lshl_b32 s3, s{S_WAVE}, 11")
    A(f"s_add_u32 s3, s3, {L_RES}")
    A(f"v_add_u32 v{vRES}, s3, v{vL16}")
    A(f"v_and_b32 v{t1}, 7, v{ln}")
    A(f"v_lshl_add_u32 v{t1}, v{g}, 3, v{t1}")
    A(f"v_lshlrev_b32 v{vMA}, 4, v{t1}")
    A(f"v_and_b32 v{t1}, 1, v{g}")
    A(f"v_mul_u32_u24 v{t1}, {XP}, v{t1}")
    A(f"v_lshrrev_b32 v{t2}, 1, v{g}")
    A(f"v_lshl_add_u32 v{t2}, v{t2}, 4, v{n}")
    A(f"s_lshl_b32 s3, s{S_WAVE}, 5")
    A(f"v_add_u32 v{t2}, s3, v{t2}")
    A(f"v_lshl_add_u32 v{vXW}, v{t2}, 3, v{t1}")
    A(f"v_add_u32 v{vXW}, {L_X}, v{vXW}")
    A(f"v_and_b32 v{t1}, 3, v{n}")
    A(f"v_mul_u32_u24 v{t1}, {XP}, v{t1}")
    A(f"v_lshrrev_b32 v{t2}, 1, v{g}")
    A(f"v_lshlrev_b32 v{t2}, 4, v{t2}")
    A(f"v_and_b32 v{vXR}, 1, v{g}")
    A(f"v_lshl_add_u32 v{t2}, v{vXR}, 2, v{t2}")
    A(f"v_lshrrev_b32 v{vXR}, 2, v{n}")
    A(f"v_add_u32 v{t2}, v{t2}, v{vXR}")
    A(f"v_lshl_add_u32 v{vXR}, v{t2}, 3, v{t1}")
    A(f"v_add_u32 v{vXR}, {L_X}, v{vXR}")
    A(f"s_lshl_b32 s3, s{S_WAVE}, 9")
    A(f"s_add_u32 s3, s3, {L_O}")
    A(f"v_mov_b32 v{t1}, s3")
    A(f"v_mov_b32 v{t2}, {L_JUNK}")
    A(f"v_cmp_lt_u32 vcc, 7, v{n}")
    A("s_nop 1")
    A(f"v_cndmask_b32 v{t1}, v{t1}, v{t2}, vcc")
    A(f"v_add_u32 v{vOW}, v{t1}, v{vMA}")
    A(f"v_and_b32 v{t1}, 2, v{g}")
    A(f"v_lshrrev_b32 v{vPST}, 3, v{n}")
    A(f"v_add_u32 v{t1}, v{t1}, v{vPST}")
    A(f"v_mul_u32_u24 v{t1}, {PSTR}, v{t1}")
    A(f"v_and_b32 v{t2}, 1, v{g}")
    A(f"v_lshl_add_u32 v{t1}, v{t2}, 3, v{t1}")
    A(f"v_and_b32 v{vPST}, 7, v{n}")
    A(f"v_lshl_add_u32 v{vPST}, v{vPST}, 4, v{t1}")

def setup_scalars(A):
    A.c("chain: scalar constants")
    A(f"s_lshl_b32 s3, s{sH}, 7")
    A(f"s_mul_i32 s{sT}, s{S_WAVE}, {4*PSTR}")
    A(f"s_add_u32 s3, s3, s{sT}")
    A(f"s_add_u32 s{sPST}, s3, {WS_PART}")
    for rd in range(1, 4):
        A(f"s_add_u32 s{sPST+rd}, s{sPST}, {rd*16*PSTR}")
    A(f"s_add_u32 s{sPST+4}, s{sPST}, {56*PSTR}")
    A(f"s_lshl_b32 s{sRHO}, s{S_WAVE}, 5")
    A(f"s_add_u32 s{sRHO}, s{sRHO}, s{sH}")
    A(f"s_cmp_lt_u32 s{sRHO}, 72")
    A(f"s_cselect_b32 s{sISRED}, 1, 0")
    A(f"s_cmp_eq_u32 s{S_WAVE}, 3")
    A(f"s_cselect_b32 s{sISRED}, 0, s{sISRED}")
    A(f"s_mul_i32 s{sRLD}, s{sRHO}, {PSTR}")
    A(f"s_add_u32 s{sRLD}, s{sRLD}, {WS_PART}")
    A(f"s_lshl_b32 s{sMST}, s{sRHO}, 7")
    A(f"s_add_u32 s{sMST}, s{sMST}, {WS_M}")
    for i in range(3):
        A(f"s_mov_b32 s{sMLD+i}, {WS_M + 4096*i}")
    A(f"s_mov_b32 s{sC}, 0x3e029413")
    A(f"s_lshl_b32 s{sKVOFF}, s{sH}, 13")
    A(f"s_lshl_b32 s{sPUB}, s{sH}, 12")
    A(f"s_add_u32 s3, s{S_WAVE}, 1")
    A(f"s_cmp_eq_u32 s{S_WAVE}, 0")
    A(f"s_cselect_b32 s3, 0, s3")
    A(f"s_lshl_b32 s3, s3, 10")
    A(f"s_add_u32 s{sPUB}, s{sPUB}, s3")
    A(f"s_add_u32 s{sPUB}, s{sPUB}, {WS_KVM - 32*4096}")
    A(f"s_lshl_b32 s{sFLAG}, s{sH}, 7")
    A(f"s_add_u32 s{sFLAG}, s{sFLAG}, {WS_FLAG}")
    A(f"s_mov_b32 s{sINC}, {32*4096}")
    A(f"s_mov_b32 s{sFVD}, 1")
    if BOOT:
        A(f"s_cmp_eq_u32 s{sBOOT}, 1")
        A(f"s_cselect_b32 s3, {64*128}, 0")
        A(f"s_add_u32 s{sFLAG}, s{sFLAG}, s3")
        A(f"s_cmp_eq_u32 s{sBOOT}, 1")
        A(f"s_cselect_b32 s{sINC}, s{sINC}, {(BOOT+1)*32*4096}")
        A(f"s_cselect_b32 s{sFVD}, 0, 1")
        A(f"s_cselect_b32 s3, 0, {BOOT*32*8192}")
        A(f"s_add_u32 s{sKVOFF}, s{sKVOFF}, s3")
    A(f"s_lshl_b32 s{sKXO}, s{S_WAVE}, 11")
    A(f"s_mov_b32 s{sONE}, 0x3f803f80")
    A(f"s_mov_b32 s{sONE+1}, 0x3f803f80")
    A(f"s_mov_b32 s{sC+1}, s{sC}")
    A(f"s_lshr_b32 s{sWARM}, s{S_WAVE}, 1")
    A(f"s_mul_i32 s{sWARM}, s{sWARM}, {WS_V - WS_K}")
    A(f"s_and_b32 s3, s{S_WAVE}, 1")
    A(f"s_lshl_b32 s3, s3, 12")
    A(f"s_add_u32 s{sWARM}, s{sWARM}, s3")

def load_weights(A, fail, nrb):
    A.c("chain: weight load")
    ln, vQ, vO, vO4, vTR, vTR4, t1, t2, t3 = 14, 15, 16, 17, 18, 19, 20, 21, 22
    CV = 24
    A(f"v_lshrrev_b32 v{t1}, 4, v{ln}")
    A(f"v_lshlrev_b32 v{t2}, 2, v{t1}")
    A(f"v_xor_b32 v{t2}, v{t2}, v{ln}")
    A(f"v_and_b32 v{t2}, 15, v{t2}")
    A(f"v_lshlrev_b32 v{t2}, 4, v{t2}")
    A(f"v_and_b32 v{t3}, 1, v{t1}")
    A(f"v_lshlrev_b32 v{t3}, 1, v{t3}")
    A(f"v_lshrrev_b32 v{vQ}, 1, v{t1}")
    A(f"v_add_u32 v{t3}, v{t3}, v{vQ}")
    A(f"v_lshl_add_u32 v{vQ}, v{t3}, 13, v{t2}")
    A(f"v_lshrrev_b32 v{t3}, 1, v{t1}")
    A(f"v_lshlrev_b32 v{t3}, 4, v{t3}")
    A(f"v_and_b32 v{vO}, 1, v{t1}")
    A(f"v_add_u32 v{t3}, v{t3}, v{vO}")
    A(f"v_mul_u32_u24 v{t3}, 1152, v{t3}")
    A(f"v_add_u32 v{vO}, v{t3}, v{t2}")
    A(f"v_lshrrev_b32 v{t1}, 3, v{ln}")
    A(f"v_bfe_u32 v{t2}, v{t1}, 1, 1")
    A(f"v_lshlrev_b32 v{t3}, 4, v{t2}")
    A(f"v_lshlrev_b32 v{t2}, 2, v{t2}")
    A(f"v_xor_b32 v{t2}, v{t2}, v{ln}")
    A(f"v_and_b32 v{t2}, 7, v{t2}")
    A(f"v_lshlrev_b32 v{t2}, 4, v{t2}")
    A(f"v_and_b32 v{vO4}, 1, v{t1}")
    A(f"v_add_u32 v{t3}, v{t3}, v{vO4}")
    A(f"v_bfe_u32 v{vO4}, v{t1}, 2, 1")
    A(f"v_lshl_add_u32 v{t3}, v{vO4}, 1, v{t3}")
    A(f"v_mul_u32_u24 v{t3}, 1152, v{t3}")
    A(f"v_add_u32 v{vO4}, v{t3}, v{t2}")
    A(f"v_bfe_u32 v{t1}, v{ln}, 4, 1")
    A(f"v_bfe_u32 v{t2}, v{ln}, 2, 1")
    A(f"v_lshl_add_u32 v{t1}, v{t1}, 1, v{t2}")
    A(f"v_bfe_u32 v{t2}, v{ln}, 5, 1")
    A(f"v_lshl_add_u32 v{t2}, v{t2}, 3, v{t1}")
    A(f"v_bfe_u32 v{t3}, v{ln}, 3, 1")
    A(f"v_lshlrev_b32 v{t3}, 5, v{t3}")
    A(f"v_and_b32 v{vTR}, 3, v{ln}")
    A(f"v_lshl_add_u32 v{t3}, v{vTR}, 3, v{t3}")
    A(f"v_xor_b32 v{vTR}, s{S_WAVE}, v{t1}")
    A(f"v_lshl_add_u32 v{vTR}, v{vTR}, 6, v{t3}")
    A(f"v_lshl_add_u32 v{vTR}, v{t2}, 8, v{vTR}")
    A(f"v_add_u32 v{vTR}, {L_RES}, v{vTR}")
    A(f"v_lshrrev_b32 v{t1}, 1, v{t1}")
    A(f"s_and_b32 s3, s{S_WAVE}, 1")
    A(f"v_xor_b32 v{vTR4}, s3, v{t1}")
    A(f"v_lshl_add_u32 v{vTR4}, v{vTR4}, 6, v{t3}")
    A(f"v_lshl_add_u32 v{vTR4}, v{t2}, 7, v{vTR4}")
    A(f"v_add_u32 v{vTR4}, {L_RES + 15*8192}, v{vTR4}")
    vTRb = [vTR, 10, 11]
    A(f"v_add_u32 v10, {7*8192}, v{vTR}")
    A(f"v_add_u32 v11, {14*8192}, v{vTR}")
    vRb = [vRES, 12, 13]
    A(f"v_add_u32 v12, {7*8192}, v{vRES}")
    A(f"v_add_u32 v13, {14*8192}, v{vRES}")
    A(f"s_lshl_b32 s{sQKVB}, s{sH}, 8")
    A(f"s_lshl_b32 s3, s{S_WAVE}, 16")
    A(f"s_add_u32 s{sQKVB}, s{sQKVB}, s3")
    A(f"s_mul_i32 s{sWOB}, s{sH}, {128*1152}")
    A(f"s_mul_i32 s3, s{S_WAVE}, {4*1152}")
    A(f"s_add_u32 s{sWOB}, s{sWOB}, s3")
    A(f"s_lshl_b32 s{sT+1}, s{S_WAVE}, 11")
    A(f"s_add_u32 s{sT+1}, s{sT+1}, {L_RES}")
    A(f"s_lshl_b32 s{sT+2}, s{S_WAVE}, 10")
    A(f"s_add_u32 s{sT+2}, s{sT+2}, {L_RES + 15*8192}")

    regu = sorted([u for u in LOC if LOC[u][0] == 'r'], key=lambda u: LOC[u][1])
    resu = sorted([u for u in LOC if LOC[u][0] == 'l' and not (u[0] == 'o' and u[1] == 4)], key=lambda u: LOC[u][1])
    NR = 15
    seq = regu + resu
    first = (-len(regu)) % NR
    slot = lambda i: (first + i) % NR
    def issue(i):
        u = seq[i]
        for q in range(2):
            if u[0] == 'o':
                A(f"s_add_u32 s{sT}, s{sWOB}, {(u[2]*32 + 2*q)*1152 + u[1]*256}")
                d, vo = S_WO, vO
            else:
                A(f"s_add_u32 s{sT}, s{sQKVB}, {(u[1]*32 + 4*q)*8192}")
                d, vo = {'q': S_WQ, 'k': S_WK, 'v': S_WV}[u[0]], vQ
            A(f"s_add_u32 m0, s{sT+1}, {slot(i)*8192 + q*1024}")
            A("s_nop 0")
            A(f"buffer_load_dwordx4 v{vo}, s[{d}:{d+3}], s{sT} offen {PAR['ldf']} lds")
    def trread(dst, sl):
        for u4 in range(4):
            A(f"ds_read_b64_tr_b16 {r(dst+2*u4,2)}, v{vTRb[sl//7]} offset:{(sl%7)*8192 + 4096*(u4>>1) + 1024*(u4&1)}")
    order = []
    def issue_blk(i):
        issue(i); order.extend([i, i])
    vWR = 23
    A(f"v_and_b32 v{vWR}, 0xf0, v{vL16}")
    A(f"v_lshlrev_b32 v{vWR}, 3, v{vWR}")
    A(f"v_lshrrev_b32 v{t1}, 8, v{vL16}")
    A(f"v_min_u32 v{t1}, 1, v{t1}")
    A(f"v_lshl_or_b32 v{vWR}, v{t1}, 30, v{vWR}")
    A(f"s_lshl_b32 s{sT+3}, s{sH}, 13")
    A(f"s_lshl_b32 s3, s{S_WAVE}, 11")
    A(f"s_add_u32 s{sT+3}, s{sT+3}, s3")
    warmed = [NR]
    def warm_to(n):
        while warmed[0] < min(n, len(seq)):
            u = seq[warmed[0]]; warmed[0] += 1
            if u[0] != 'o' and PAR['wd']:
                d = {'q': S_WQ, 'k': S_WK, 'v': S_WV}[u[0]]
                A(f"s_mov_b32 m0, {L_JUNK}")
                A(f"s_add_u32 s{sT}, s{sT+3}, {u[1]*32*8192}")
                A(f"buffer_load_dword v{vWR}, s[{d}:{d+3}], s{sT} offen lds")
                order.append(None)
    issued = 0
    while issued < PAR['fill']:
        issue_blk(issued); issued += 1
    G = PAR['G']
    i = 0
    gi = 0
    pending_w = []
    HB = 40
    GA, GB = PAR['ga'], max(28, PAR['ga'] + 8)
    while i < len(seq):
        grp = list(range(i, min(i + G, len(seq))))
        if i < len(regu) < grp[-1] + 1:
            grp = list(range(i, len(regu)))
        last = max(p for p, b in enumerate(order) if b == grp[-1])
        assert len(order) - 1 - last < 60
        A(f"s_waitcnt vmcnt({len(order) - 1 - last})")
        if LDST and gi in LDST:
            A(f"s_memrealtime s[{LDST[gi]}:{LDST[gi]+1}]")
        if gi == 0:
            lnb = A.newlabel("noinit")
            if BOOT:
                A(f"s_cmp_eq_u32 s{sBOOT}, 1")
                A(f"s_cbranch_scc1 {lnb}")
            init_done(A)
            A.label(lnb)
        if gi == 19:
            assert m0pos < last
            mem0_write(A)
        if gi == GA:
            assert dbgpos < last
            lr, lb = A.newlabel("notyet"), A.newlabel("ready")
            eval_counts(A, 41, lr, True, 80)
            A(f"s_branch {lb}")
            A.label(lr)
            read_counts(A, fail, 40, True, 80)
            A.label(lb)
        if gi == GB and nrb:
            assert pollpos < last
            lb = A.newlabel("ready")
            if AFTER:
                A("s_memrealtime s[98:99]")
                A("s_mov_b32 s100, 0")
            A(f"v_cmp_gt_u32 vcc, 0x180, v43")
            A(f"s_cbranch_vccz {lb}")
            A("s_mov_b32 s100, 1")
            wait_kv(A, fail, nrb, 42)
            A.label(lb)
        A("s_barrier")
        if gi == 10:
            l = A.newlabel("hb")
            A(f"s_cmp_lt_u32 s{S_WAVE}, 2")
            A(f"s_cbranch_scc1 {l}")
            for k in range(4):
                A(f"ds_write_b128 v13, {v(HB+8*k,4)} offset:{4096 + k*4096}")
                A(f"ds_write_b128 v13, {v(HB+8*k+4,4)} offset:{4096 + k*4096 + 1024}")
            A.label(l)
        for t in pending_w:
            A(t)
        pending_w = []
        lim = issued + PAR['step']
        while issued < min(len(seq), i + NR, lim):
            issue_blk(issued); issued += 1
        if gi == 0:
            for k in range(4):
                A(f"s_add_u32 s{sT}, s{sWOB}, {k*32*1152 + 1024}")
                A(f"s_add_u32 m0, s{sT+2}, {k*4096}")
                A("s_nop 0")
                A(f"buffer_load_dwordx4 v{vO4}, s[{S_WO}:{S_WO+3}], s{sT} offen lds")
            order.extend([None] * 4); hbpos = len(order) - 1
        if gi == 11:
            mem0_issue(A)
            order.extend([None] * 18); m0pos = len(order) - 1
        warm_to(issued + PAR['wd'])
        if gi == GA - 9:
            A(f"v_lshrrev_b32 v40, 2, v{vL16}")
            A(f"global_load_dword v41, v40, s[{S_DBG}:{S_DBG+1}] sc1")
            order.append(None); dbgpos = len(order) - 1
        if gi == GA:
            kv_addr(A, nrb, 42)
            A(f"buffer_load_dword v43, v42, {BUF}, s{sT} offen sc1")
            order.append(None); pollpos = len(order) - 1
        if gi == GB:
            assert issued == len(seq)
            kx_addr(A, 70, 71)
            A(f"s_lshl_b32 s3, s{S_WAVE}, 11")
            for xt in range(2):
                A(f"s_add_u32 m0, s3, {L_KX + xt*1024}")
                A(f"s_add_u32 s{sT}, s3, {WS_K + xt*128}")
                A(f"s_add_u32 s{sT}, s{sT}, s{sKVOFF}")
                A(f"buffer_load_dwordx4 v70, {BUF}, s{sT} offen sc1 lds")
            A(f"v_lshlrev_b32 v{tWA}, 2, v{vL16}")
            warm(A, sKVOFF, tWA)
            A(f"s_add_u32 s{sT+2}, s{sKVOFF}, {32*8192}")
            warm(A, sT + 2, tWA)
            order.extend([None] * 4)
            if BOOT:
                A(f"v_mov_b32 v44, 0")
                A(f"s_lshl_b32 s{sT+2}, s{sH}, 7")
                A(f"s_add_u32 s{sT+2}, s{sT+2}, {WS_FLAG + 64*128}")
                A(f"buffer_load_dword v45, v44, {BUF}, s{sT+2} offen sc1")
                order.append(None)
        if gi == 9:
            assert hbpos < last
            for k in range(4):
                for u4 in range(4):
                    A(f"ds_read_b64_tr_b16 {v(HB+8*k+2*u4,2)}, v{vTR4} offset:{k*4096 + 2048*(u4>>1) + 512*(u4&1)}")
            A("s_waitcnt lgkmcnt(0)")
        for j, b in enumerate(grp):
            if b < len(regu):
                trread(wreg(LOC[seq[b]][1]), slot(b))
            else:
                assert slot(b) * 8192 == LOC[seq[b]][1]
                cv = CV + 8 * j
                if j == 0:
                    A("s_waitcnt lgkmcnt(0)")
                trread(cv, slot(b))
                sl = slot(b)
                pending_w += [f"ds_write_b128 v{vRb[sl//7]}, {v(cv,4)} offset:{(sl%7)*8192}",
                              f"ds_write_b128 v{vRb[sl//7]}, {v(cv+4,4)} offset:{(sl%7)*8192+1024}"]
        A("s_waitcnt lgkmcnt(0)")
        i = grp[-1] + 1
        gi += 1
    A("s_barrier")
    for t in pending_w:
        A(t)
    if BOOT:
        A.c("the start-up group must be past its first step before tags of its last one can be told from the initial ones")
        lp, lok = A.newlabel("bootw"), A.newlabel("bootok")
        A(f"s_cmp_eq_u32 s{sBOOT}, 1")
        A(f"s_cbranch_scc1 {lok}")
        A("s_mov_b32 s3, 0")
        A.label(lp)
        A("s_waitcnt vmcnt(0)")
        A("v_cmp_gt_i32 vcc, 1, v45")
        A(f"s_cbranch_vccz {lok}")
        A(f"buffer_load_dword v45, v44, {BUF}, s{sT+2} offen sc1")
        A("s_add_u32 s3, s3, 1")
        A("s_cmp_gt_u32 s3, 200000")
        A(f"s_cbranch_scc0 {lp}")
        A(f"s_branch {fail}")
        A.label(lok)
    A("s_waitcnt lgkmcnt(0)")

def mem0_issue(A):
    A.c("chain: mem0 -> LDS fragment image")
    q, t1, ad, D = 62, 63, 64, 44
    A(f"s_lshl_b32 s3, s{S_WAVE}, 6")
    A(f"v_lshrrev_b32 v{q}, 4, v{vL16}")
    A(f"v_add_u32 v{q}, s3, v{q}")
    A(f"v_bfe_u32 v{t1}, v{q}, 2, 3")
    A(f"v_mul_u32_u24 v{ad}, 1152, v{t1}")
    A(f"v_lshrrev_b32 v{t1}, 5, v{q}")
    A(f"v_lshl_add_u32 v{ad}, v{t1}, 4, v{ad}")
    A(f"v_and_b32 v{t1}, 1, v{q}")
    A(f"v_lshl_add_u32 v{ad}, v{t1}, 3, v{ad}")
    A(f"v_bfe_u32 v{t1}, v{q}, 1, 1")
    A(f"v_lshl_add_u32 v{ad}, v{t1}, 1, v{ad}")
    for it in range(9):
        A(f"buffer_load_ushort v{D+2*it}, v{ad}, s[{S_TMPD}:{S_TMPD+3}], 0 offen offset:{it*128}")
        A(f"buffer_load_ushort v{D+2*it+1}, v{ad}, s[{S_TMPD}:{S_TMPD+3}], 0 offen offset:{it*128+4}")
    A(f"v_lshlrev_b32 v{q}, 2, v{q}")

def mem0_write(A):
    q, D = 62, 44
    for it in range(9):
        A(f"v_lshl_or_b32 v{D+2*it}, v{D+2*it+1}, 16, v{D+2*it}")
        A(f"ds_write_b32 v{q}, v{D+2*it} offset:{L_M + it*1024}")

AF, ST = 10, 26
QACC, KACC, VACC, VX, PUB = 42, 46, 50, 54, 62
tVX, tWA, tFL, tFV, tKX = 70, 66, 67, 68, 36
XPK = 62
XF, KXF = 10, 26
SX0, SX1, SM = 42, 46, 62
VAF = 66
PAR = dict(mbs=2, vx0=-3, vx1=-2, was=7, ldf='nt', pubf='sc1', e0=2, mb2=(0, 'k'), wat=(2, 'q'), qks=(3, 9, 12, 16), rdelay=10, mdelay=7, kx=0, sp=7, ns=3, r1=4, kc=3, kb=6, ga=24, wd=0, G=2, fill=6, step=4)
sMK = 24
V_IN_QK = 6

def warm(A, seg_off_sgpr, va):
    A(f"s_add_u32 s{sT}, s{seg_off_sgpr}, s{sWARM}")
    A(f"s_mov_b32 m0, {L_JUNK}")
    A("s_nop 0")
    A(f"buffer_load_dword v{va}, {BUF}, s{sT} offen sc1 lds")

KBUF = {1: 26, 2: 62, 3: 34, 4: 26, 6: 34, 7: 26, 9: 34, 10: 26, 12: 34, 13: 26, 14: 62, 15: 34}
KFET = {1: 4, 3: 6, 4: 7, 6: 9, 7: 10, 9: 12, 10: 13, 11: 14, 12: 15}
if W6:
    KBUF = {1: 26, 2: 34, 3: 62, 6: 26, 7: 34, 10: 26, 11: 34, 14: 26, 15: 34}
    KFET = {2: 6, 4: 7, 7: 10, 8: 11, 11: 14, 12: 15}
MB = {1: (4, 5), 2: (6, 7), 3: (8,)}
NVQ = 12
tPA = 70
WA = 71

def pub_addr():
    return [f"v_bfe_u32 v{tPA}, v{vL16}, 5, 1", f"v_mul_i32_i24 v{tPA}, {256 - 2*XP}, v{tPA}", f"v_add_u32 v{tPA}, v{tPA}, v{vXR}"]

def pub_regs(w):
    return {0: [62, 66], 1: [66], 2: [66], 3: []}[w]

def pub_read(w):
    if w == 0:
        return [f"ds_read_b64_tr_b16 {v(62 + 4*j + 2*i, 2)}, v{tPA} offset:{2*XP + 512*j + 64*i}" for j in range(2) for i in range(2)]
    return [f"ds_read_b128 {v(66,4)}, v{vL16} offset:{L_VM + (w-1)*XP}"] if w < 3 else []

def pub_store(w, flags):
    return [f"buffer_store_dwordx4 {v(b,4)}, v{vL16}, {BUF}, s{sPUB} offen offset:{1024*j} {flags}" for j, b in enumerate(pub_regs(w))]

def kx_addr_ops(t, t2):
    return [f"v_bfe_u32 v{t2}, v{vL16}, 8, 2", f"v_and_b32 v{t}, 0x70, v{vL16}", f"v_lshl_add_u32 v{t}, v{t2}, 9, v{t}",
            f"v_and_b32 v{t2}, 0x80, v{vL16}", f"v_lshl_add_u32 v{t}, v{t2}, 1, v{t}"]

def kx_addr(A, t, t2):
    for x in kx_addr_ops(t, t2): A(x)

def kx_dma(A, w, t, ahead):
    for xt in range(2):
        A(f"s_mov_b32 m0, {L_KX + (2*w+xt)*1024}")
        A(f"s_add_u32 s{sT}, s{sKVOFF}, {WS_K + ahead*32*8192 + w*2048 + xt*128}")
        A(f"buffer_load_dwordx4 v{t}, {BUF}, s{sT} offen sc1 lds")

def vx_load(A):
    A(f"s_add_u32 s{sT}, s{sKVOFF}, {WS_V}")
    A(f"buffer_load_dwordx4 {v(VX,4)}, v{tVX}, {BUF}, s{sT} offen sc1")
    A(f"buffer_load_dwordx4 {v(VX+4,4)}, v{tVX}, {BUF}, s{sT} offen offset:256 sc1")

def vx_addr(A):
    A(f"v_and_b32 v{tVX}, 0xf0, v{vL16}")
    A(f"v_bfe_u32 v71, v{vL16}, 8, 2")
    A(f"v_lshl_add_u32 v71, v71, 9, s{sKXO}")
    A(f"v_add_u32 v{tVX}, v{tVX}, v71")

def kunit(k):
    o = LOC[('k', k)][1]
    base, o = (vRES, o) if o < 7 * 8192 else (vT, o - 7 * 8192)
    return [f"ds_read_b128 {v(KBUF[k],4)}, v{base} offset:{o}", f"ds_read_b128 {v(KBUF[k]+4,4)}, v{base} offset:{o+1024}"]

def st_preload(A):
    for k in (1, 2, 3):
        for t in kunit(k): A(t)

def pre_b1(A):
    for i in range(6):
        A(f"v_mov_b64 {v(QACC+2*i,2)}, 0")
    vx_addr(A)
    A(f"v_add_u32 v{vT}, {7*8192}, v{vRES}")

def delay(A, n):
    while n > 0:
        k = min(n, 4)
        A(f"s_nop {4*k-1}")
        n -= k

def smf(acc, af, w):
    return f"v_smfmac_f32_16x16x64_bf16 {v(acc,4)}, {v(af,4)}, {r(w,8)}, v{vIDX}"

STAMPS = {'al': (1, 2, 4, 6, 7), 'wo': (1, 2, 6, 7), 'sm': (1, 5, 6, 7), 'qk': (4, 5, 6, 7)}
def stamp(A, prof, i, mode=None):
    cur = [m for m in STAMPS if m in OPT]
    taken = STAMPS[cur[0]] if cur else ()
    if mode is True:
        mode = 'al'
    if prof and ((mode is None and i not in taken) or (mode in cur and i in taken)):
        A(f"{'s_memrealtime' if (mode == 'al' and i == 1) else 's_memtime'} s[{80+2*i}:{81+2*i}]")

def mread(L, dst, k):
    return L.op(f"ds_read_b128 {v(dst,4)}, v{vMA} offset:{L_M + k*512}")

def vstep(A, L, tokA, kv):
    tok, reg = tokA[('v', kv)]
    L.wait(tok)
    A(smf(VACC, reg, wreg(LOC[('v', kv)][1])))

def vload(L, tokA, kv, reg):
    tokA[('v', kv)] = (mread(L, reg, kv), reg)

def tagcheck(regs, ck, tag, stride):
    op = "0x80" if tag else "0xfe"
    out = []
    for i, b in enumerate(regs):
        d = [b + j for j in range(0, 4, stride)]
        if i == 0 and stride == 1:
            ops = [f"v_bitop3_b32 v{ck}, v{d[0]}, v{d[1]}, v{d[2]} bitop3:{op}", f"v_bitop3_b32 v{ck}, v{ck}, v{d[3]}, v{d[3]} bitop3:{op}"]
        elif i == 0:
            ops = [f"v_bitop3_b32 v{ck}, v{d[0]}, v{d[1]}, v{d[1]} bitop3:{op}"]
        else:
            ops = [f"v_bitop3_b32 v{ck}, v{ck}, v{d[j]}, v{d[j+1]} bitop3:{op}" for j in range(0, len(d), 2)]
        out.append(ops)
    out[-1] = out[-1] + [f"v_and_b32 v{ck}, 1, v{ck}", f"v_cmp_ne_u32 vcc, {tag}, v{ck}"]
    return out

def mload(A, reg, chunk):
    so, off = sMLD + chunk // 4, (chunk % 4) * 1024
    A(f"buffer_load_dwordx4 {v(reg,4)}, v{vL16}, {BUF}, s{so} offen offset:{off} sc1")

def mb_ops(w):
    mb = MB.get(w, ())
    ops = [f"s_mov_b32 m0, {L_M + (mb[0] // 4) * 4096}", "s_nop 0"] if mb else []
    return ops + [f"buffer_load_dwordx4 v{vL16}, {BUF}, s{sMLD + c // 4} offen offset:{(c % 4) * 1024} sc1 lds" for c in mb]

def mb_dma(A, w):
    for t in mb_ops(w): A(t)

def spin(A, cold, label, back, loads, check, fail, cnt):
    def f():
        A.label(label)
        loads()
        A(f"s_add_u32 s{sCNT}, s{sCNT}, {cnt}")
        A(f"s_cmp_gt_u32 s{sCNT}, {SPIN_MAX*cnt}")
        A(f"s_cbranch_scc1 {fail}")
        A("s_waitcnt vmcnt(0)")
        for t in check: A(t)
        A(f"s_cbranch_vccnz {label}")
        A(f"s_branch {back}")
    cold.append(f)

def qkv_stage(A, L, w, ptag, fail, cold, prof, last):
    tokA, tokU = {}, {1: 0, 2: 0, 3: 0}
    for k in range(3):
        if k == 2 and w in (0, 3) :
            A(f"s_waitcnt vmcnt({2 + (1 if w == 3 else 0)})")
        tokA[k] = mread(L, AF + 4 * (k % 4), k)
    slots = [(k, m) for k in range(18) for m in (("v", "q", "k") if k < NVQ else ("q", "k"))]
    idx = {x: i for i, x in enumerate(slots)}
    pre, post, valu = {}, {}, {}
    add = lambda d, key, *x: d.setdefault(idx[key], []).extend(x)
    def spread_valu(ops, start):
        i = idx[start]
        for t in ops:
            while valu.get(i):
                i += 1
            valu[i] = [t]
        return i
    rd_at = {k: [k + 3] for k in range(15)}
    KB = PAR['kb']
    for k in (15, 16, 17):
        add(post, (k, "q"), ("v", k - 3, AF + 4 * ((k + 3) % 4)))
    for k, ku in KFET.items():
        a_, b_ = kunit(ku)
        add(post, (k, "k"), ("l", None, a_))
        add(post, (k + 1, "v" if k + 1 < NVQ else "q"), ("l", ku, b_))
    if not last:
        for k, kps in ((16, (0, 1)), (17, (2, 3))):
            for kp in kps:
                add(post, (k, "k"), ("l", ('kx', kp), f"ds_read_b128 {v(KXF+4*kp,4)}, v{vL16} offset:{L_KX + 2*kp*1024}"))
    KC = PAR['kc']
    mb = MB.get(w, ())
    two = 'mb1' not in OPT and bool(mb)
    stg = 'stg' in OPT
    mbs = {1: (0, 3), 2: (1, 4), 3: (2,)}.get(w, ()) if stg else (PAR['mbs'],) * len(mb)
    vxs = (5 + w, 9 + w) if stg else (PAR['vx0'], PAR['vx1'])
    was = 13 + w if stg else PAR['was']
    kci = idx[(KC, "v")]
    early = (list(mbs) if two else []) + ([] if last else list(vxs) + [was])
    add(pre, (KC, "v"), f"s_waitcnt vmcnt({sum(x < kci for x in early)})")
    if two:
        ops = mb_ops(w)
        for sl_ in sorted(set(mbs)):
            lsk = A.newlabel("mb2skip")
            post.setdefault(sl_, []).extend([ops[0], f"s_cmp_eq_u32 s{sSTEP}, 0", f"s_cbranch_scc1 {lsk}"] +
                                            [op for x, op in zip(mbs, ops[2:]) if x == sl_] + [("label", lsk)])
    if mb:
        regs = [62 + 4 * i for i in range(len(mb))]
        rb = [f"ds_read_b128 {v(regs[i],4)}, v{vL16} offset:{L_M + c*1024}" for i, c in enumerate(mb)]
        for t in rb:
            add(pre, (KC, "v"), ("l", 'mb', t))
        chk = sum(tagcheck(regs, 62, ptag, 1), [])
        chk.insert(-2, f"v_bitop3_b32 v62, v62, v62, s{sEXM} bitop3:{'0xf5' if ptag else '0xa0'}")
        lb, lr = A.newlabel("mbok"), A.newlabel("mbre")
        st = idx[(KC + 1, "q")]
        post.setdefault(st, []).append(("w", 'mb'))
        for j, t in enumerate(chk):
            valu.setdefault(st + (2 * j) // 3, []).append(t)
        end = st + (2 * (len(chk) - 1)) // 3
        assert end < idx[(KB, "q")]
        add(pre, (KB, "q"), f"s_cbranch_vccnz {lr}", ("label", lb))
        def again():
            lp = A.newlabel("mbspin")
            A.label(lr)
            if two:
                mb_dma(A, w)
                A(f"s_add_u32 s{sCNT}, s{sCNT}, 65536")
                A(f"s_waitcnt vmcnt({len(mb) + sum(x > max(mbs) for x in early)})")
                for t in rb: A(t)
                A("s_waitcnt lgkmcnt(0)")
                for t in chk: A(t)
                A(f"s_cbranch_vccz {lb}")
            for _ in range(1 if two else 2):
                mb_dma(A, w)
                delay(A, 5)
            A.label(lp)
            mb_dma(A, w)
            A(f"s_add_u32 s{sCNT}, s{sCNT}, 65536")
            A(f"s_cmp_gt_u32 s{sCNT}, {SPIN_MAX*65536}")
            A(f"s_cbranch_scc1 {fail}")
            A(f"s_waitcnt vmcnt({2*len(mb)})")
            for t in rb: A(t)
            A("s_waitcnt lgkmcnt(0)")
            for t in chk: A(t)
            A(f"s_cbranch_vccnz {lp}")
            A(f"s_branch {lb}")
        cold.append(again)
    add(pre, (KB, "q"), "s_barrier")
    if KB == 6:
        del rd_at[5]
        rd_at[6] = [8, 9]
    if w == 0:
        spread_valu(pub_addr(), (0, "q"))
        for j, t in enumerate(pub_read(0)):
            add(post, (3 + j // 2, "v"), ("l", 'pub', t))
        pre[idx[(KB, "q")]].insert(0, ("w", 'pub'))
    for k, ks in rd_at.items():
        for kk in ks:
            add(post, (k, "q"), ("a", kk))
    vlate = 'vq' not in OPT
    if w in (1, 2):
        add(post, (15, "k") if vlate else (KB, "k"), ("l", 'pub', pub_read(w)[0]))
    nslow = 0
    late = 'late' in OPT
    fv = tFV
    b2 = 'b2' in OPT
    do_flag = w == 3
    spread_valu([f"v_mov_b32 v{fv}, s{sFV}"] if do_flag else [], (7, "v"))
    slow = [[("w", 'pub'), t] for t in pub_store(w, PAR['pubf'])]
    nearly = 0
    if not last:
        post.setdefault(vxs[0], []).extend([f"s_add_u32 s{sT}, s{sKVOFF}, {WS_V}", f"buffer_load_dwordx4 {v(VX,4)}, v{tVX}, {BUF}, s{sT} offen sc1"])
        post.setdefault(vxs[1], []).append(f"buffer_load_dwordx4 {v(VX+4,4)}, v{tVX}, {BUF}, s{sT} offen offset:256 sc1")
        post.setdefault(was - 2, []).extend([f"s_add_u32 s{sT+1}, s{sKVOFF}, {2*32*8192}", f"s_min_u32 s{sT+1}, s{sT+1}, {63*32*8192}",
                f"s_add_u32 s{sT+1}, s{sT+1}, s{sWARM}"])
        valu.setdefault(0, []).append(f"v_lshlrev_b32 v{WA}, 2, v{vL16}")
        post.setdefault(was, []).extend([f"s_mov_b32 m0, {L_JUNK}", "s_nop 0", f"buffer_load_dword v{WA}, {BUF}, s{sT+1} offen sc1 lds"])
        nearly = 1
    if do_flag:
        slow.append(["s_mov_b64 exec, 1", f"buffer_store_dword v{fv}, v{vL16}, {BUF}, s{sFLAG} offen sc1", "s_mov_b64 exec, -1"])
    nslow = len(slow) + nearly
    if KVGATE and w == 0 and ptag == 1 and not last:
        lg, lb2 = A.newlabel("kvs"), A.newlabel("kvsb")
        add(post, (12, "q"), f"s_bitcmp1_b64 s[{sGATE}:{sGATE+1}], s{sSTEP}", f"s_cbranch_scc1 {lg}", ("label", lb2))
        def sample():
            A.label(lg)
            A(f"v_lshlrev_b32 v71, 3, v{vL16}")
            A(f"s_mov_b32 m0, {L_KVC}")
            A(f"s_mov_b32 s{sT}, {WS_FLAG + 32*128}")
            A("s_mov_b64 exec, 0x1ffff")
            A(f"buffer_load_dword v71, {BUF}, s{sT} offen sc1 lds")
            A("s_mov_b64 exec, -1")
            A(f"s_branch {lb2}")
        cold.append(sample)
    held = slow if vlate and w in (1, 2) else []
    for sl_, ops in zip((22, 28), [] if held else slow):
        post.setdefault(sl_, []).extend(ops)
    tk = {}
    def emit(x):
        if isinstance(x, str):
            if any(o.startswith('no_') and o[3:].replace('-', ' ') in x for o in OPT):
                return
            A(x)
        elif x[0] == "l" and 'nounit' in OPT and (isinstance(x[1], int) or x[1] is None):
            if x[1] is not None: tokU[x[1]] = 0
        elif x[0] == "a":
            tokA[x[1]] = mread(L, AF + 4 * (x[1] % 4), x[1])
        elif x[0] == "v":
            vload(L, tokA, x[1], x[2])
        elif x[0] == "l":
            t = L.op(x[2])
            if isinstance(x[1], int): tokU[x[1]] = t
            elif isinstance(x[1], tuple): tokA[x[1]] = t
            else: tk[x[1]] = t
        elif x[0] == "w":
            L.wait(tk[x[1]])
        elif x[0] == "label":
            A.label(x[1])
    for i in (-3, -2, -1):
        for x in post.get(i, []): emit(x)
    for i, (k, m) in enumerate(slots):
        af = AF + 4 * (k % 4)
        if m == "q" and k in PAR.get('qks', ()):
            stamp(A, prof, 4 + PAR['qks'].index(k), 'qk')
        for x in pre.get(i, []): emit(x)
        if (k, m) == slots[idx[(k, "q")] - (1 if k < NVQ else 0)]:
            L.wait(tokA[k])
        if m == "k" and LOC[('k', k)][0] == 'l':
            L.wait(tokU[k])
            A(smf(KACC, af, KBUF[k]))
        else:
            A(smf({"v": VACC, "q": QACC, "k": KACC}[m], af, wreg(LOC[(m, k)][1])))
        for x in post.get(i, []): emit(x)
        for x in valu.get(i, []): emit(x)
    vload(L, tokA, 15, AF + 4)
    vstep(A, L, tokA, 12)
    A("s_nop 1")
    vstep(A, L, tokA, 13)
    A("s_nop 2")
    xpk = XPK
    A(f"v_cvt_pk_bf16_f32 v{xpk}, v{QACC}, v{QACC+1}")
    A(f"v_cvt_pk_bf16_f32 v{xpk+1}, v{QACC+2}, v{QACC+3}")
    L.op(f"ds_write_b64 v{vXW}, {v(xpk,2)}")
    A(f"v_cvt_pk_bf16_f32 v{xpk+2}, v{KACC}, v{KACC+1}")
    A(f"v_cvt_pk_bf16_f32 v{xpk+3}, v{KACC+2}, v{KACC+3}")
    tw = L.op(f"ds_write_b64 v{vXW}, {v(xpk+2,2)} offset:{2*XP}")
    vload(L, tokA, 16, QACC)
    vload(L, tokA, 17, KACC)
    for kv in (14, 15):
        vstep(A, L, tokA, kv)
        if kv == 14:
            for ops in held:
                for x in ops: emit(x)
    L.wait(tw)
    A("s_barrier")
    return tokA, nslow

def kick(A, w, tag, pos):
    if 'kick' in OPT and tag == 1 and w == 1 and pos == PAR.get('kp', 0):
        lk = A.newlabel("kick")
        A(f"s_and_b32 s3, s{sSTEP}, 14")
        A(f"s_lshl_b32 s3, s3, 8")
        A(f"s_add_u32 s3, s3, s{sH}")
        A(f"s_cmp_lg_u32 s3, {8*256 + 5}")
        A(f"s_cbranch_scc1 {lk}")
        delay(A, PAR.get('kick', 40))
        A.label(lk)

def step(A, w, tag, fail, cold, prof=False, stf="", entry=None, bootend=None):
    cls = max(w - 1, 0)
    L = LgkmTracker(A)
    A("s_waitcnt lgkmcnt(0)")
    A("s_barrier")
    stamp(A, prof, 0)
    stamp(A, prof, 1, True)
    A(f"s_mov_b32 s{sCNT}, 0")
    if TPROBE and w == 0 and tag == 0:
        lq = A.newlabel("tp")
        A(f"s_cmp_lg_u32 s{sSTEP}, {TPROBE}")
        A(f"s_cbranch_scc1 {lq}")
        A("s_memrealtime s[84:85]")
        A.label(lq)
    kick(A, w, tag, 1)
    tokA, nslow = qkv_stage(A, L, w, tag ^ 1, fail, cold, prof, False)
    stamp(A, prof, 2)
    tx = {}
    def xread(kp):
        L.op(f"ds_read_b64_tr_b16 {v(XF+4*kp,2)}, v{vXR} offset:{kp*256}")
        tx[kp] = L.op(f"ds_read_b64_tr_b16 {v(XF+4*kp+2,2)}, v{vXR} offset:{kp*256+64}")
    xread(0); xread(1)
    vstep(A, L, tokA, 16)
    xread(2); xread(3)
    vstep(A, L, tokA, 17)
    m1, m2, m3, mt = 70, 71, 20, 21
    ONES, PX, PM, LS, O0, VQ, O1 = 22, 26, 32, 10, 14, 66, 36
    VP = VQ + 2
    SC = [SX0 + i for i in range(8)] + [SM + i for i in range(4)]
    mf = lambda d, a_, b_, c: A(f"v_mfma_f32_16x16x32_bf16 {v(d,4)}, {v(a_,4)}, {v(b_,4)}, {c}")
    for kp in range(4):
        L.wait(max(tx[kp], tokA[('kx', kp)]))
        mf(SX0, KXF + 4 * kp, XF + 4 * kp, "0" if kp == 0 else v(SX0, 4))
        tokA[('kx1', kp)] = L.op(f"ds_read_b128 {v(KXF+4*kp,4)}, v{vL16} offset:{L_KX + (2*kp+1)*1024}")
        if kp < 2:
            A(f"v_mov_b32 v{SM+2*kp}, v{vMASK}")
            A(f"v_mov_b32 v{SM+2*kp+1}, v{vMASK}")
    sc = lambda x: f"v_mul_f32 v{x}, s{sC}, v{x}"
    fill = {0: [f"v_cvt_pk_bf16_f32 v{VP}, v{VACC}, v{VACC+1}", f"v_cvt_pk_bf16_f32 v{VP+1}, v{VACC+2}, v{VACC+3}"],
            1: [None, f"v_mov_b64 {v(VQ,2)}, {v(VP,2)}"],
            2: ["s_nop 0", sc(SX0), sc(SX0 + 1)],
            3: [f"v_permlane32_swap_b32 v{VQ}, v{VP}", f"v_permlane32_swap_b32 v{VQ+1}, v{VP+1}"]}
    for kp in range(4):
        mf(SM, XF + 4 * kp, XF + 4 * kp, v(SM, 4))
        for t in fill[kp]:
            if t is None:
                L.op(f"ds_write_b64 v{vXW}, {v(VP,2)} offset:{4*XP}")
            else:
                A(t)
    fill = {0: [sc(SX0 + 2), sc(SX0 + 3)], 1: [f"v_max3_f32 v{m1}, v{SX0}, v{SX0+1}, v{SX0+2}", "s_nop 0"],
            2: [sc(SM), sc(SM + 1)], 3: [sc(SM + 2), sc(SM + 3)]}
    for kp in range(4):
        L.wait(tokA[('kx1', kp)])
        mf(SX1, KXF + 4 * kp, XF + 4 * kp, "0" if kp == 0 else v(SX1, 4))
        for t in fill[kp]: A(t)
    A(f"v_max3_f32 v{m1}, v{m1}, v{SX0+3}, v{SM}")
    A(f"v_max3_f32 v{m2}, v{SM+1}, v{SM+2}, v{SM+3}")
    A(f"v_mov_b64 {v(30,2)}, 0")
    A(f"v_mov_b64 {v(34,2)}, 0")
    A(f"v_mov_b64 {v(ONES,2)}, s[{sONE}:{sONE+1}]")
    A(f"v_mov_b64 {v(ONES+2,2)}, s[{sONE}:{sONE+1}]")
    stamp(A, prof, 1, 'sm')
    for i in range(2):
        A(f"v_pk_mul_f32 {v(SX1+2*i,2)}, {v(SX1+2*i,2)}, s[{sC}:{sC+1}]")
    A(f"v_max3_f32 v{m1}, v{m1}, v{m2}, v{SX1}")
    A(f"v_max3_f32 v{m2}, v{SX1+1}, v{SX1+2}, v{SX1+3}")
    A(f"v_max_f32 v{mt}, v{m1}, v{m2}")
    A(f"v_max_f32 v{m1}, v{m1}, v{m2}")
    A("s_nop 1")
    A(f"v_permlane16_swap_b32 v{m1}, v{mt}")
    A(f"v_max_f32 v{m2}, v{m1}, v{mt}")
    A(f"v_max_f32 v{m1}, v{m1}, v{mt}")
    A("s_nop 1")
    A(f"v_permlane32_swap_b32 v{m1}, v{m2}")
    A(f"v_max_f32 v{m1}, v{m1}, v{m2}")
    for i in range(6):
        A(f"v_pk_add_f32 {v(SC[2*i],2)}, {v(SC[2*i],2)}, {v(m1,2)} op_sel_hi:[1,0] neg_lo:[0,1] neg_hi:[0,1]")
    stamp(A, prof, 5, 'sm')
    for i in range(8):
        A(f"v_exp_f32 v{SC[i]}, v{SC[i]}")
    A(f"v_exp_f32 v{SC[8]}, v{SC[8]}")
    for i in range(4):
        A(f"v_cvt_pk_bf16_f32 v{PX+i}, v{SC[2*i]}, v{SC[2*i+1]}")
    A(f"v_exp_f32 v{SC[9]}, v{SC[9]}")
    A(f"s_waitcnt vmcnt({nslow})")
    A(f"v_mfma_f32_16x16x32_bf16 {v(LS,4)}, {v(ONES,4)}, {v(PX,4)}, 0")
    A(f"v_exp_f32 v{SC[10]}, v{SC[10]}")
    A(f"v_mfma_f32_16x16x32_bf16 {v(O0,4)}, {v(VX,4)}, {v(PX,4)}, 0")
    A(f"v_exp_f32 v{SC[11]}, v{SC[11]}")
    A(f"v_mfma_f32_16x16x32_bf16 {v(O1,4)}, {v(VX+4,4)}, {v(PX,4)}, 0")
    A(f"v_cvt_pk_bf16_f32 v{PM}, v{SM}, v{SM+1}")
    A(f"v_cvt_pk_bf16_f32 v{PM+1}, v{SM+2}, v{SM+3}")
    A("s_nop 1")
    A(f"v_mfma_f32_16x16x32_bf16 {v(LS,4)}, {v(ONES,4)}, {v(PM,4)}, {v(LS,4)}")
    A(f"v_mfma_f32_16x16x32_bf16 {v(O0,4)}, {v(VQ,4)}, {v(PM,4)}, {v(O0,4)}")
    A(f"v_mfma_f32_16x16x32_bf16 {v(O1,4)}, {v(VQ,4)}, {v(PM-2,4)}, {v(O1,4)}")
    stamp(A, prof, 6, 'sm')
    OACC, OF, WST, OPK = 52, 10, 26, 22
    nr = 4 if cls == 0 else 5
    lu = [('o', rd, k) for rd in range(nr) for k in range(4) if (rd, k) not in WO_REG]
    tu = {}
    bufs = {0: 26, 1: 34, 2: 42, 3: 26, 4: 34, 5: 42, 6: 52}
    if W6:
        bufs = {0: 26, 1: 34, 2: 42, 3: 26, 4: 34, 5: 42, 6: 26, 7: 52, 8: 34, 9: 42}
    def fetch(i):
        o = LOC[lu[i]][1] - WO_BASE
        L.op(f"ds_read_b128 {v(bufs[i],4)}, v{vT} offset:{o}")
        tu[i] = L.op(f"ds_read_b128 {v(bufs[i]+4,4)}, v{vT} offset:{o+1024}")
    A(f"v_add_u32 v{vT}, {WO_BASE}, v{vRES}")
    for i in range(52, 60, 2):
        A(f"v_mov_b64 {v(i,2)}, 0")
    A("s_nop 0")
    m1 = 18
    A(f"v_rcp_f32 v{m1}, v{LS}")
    A(f"v_mov_b64 {v(60,2)}, 0")
    for i in range(2):
        A(f"v_pk_mul_f32 {v(O0+2*i,2)}, {v(O0+2*i,2)}, {v(m1,2)} op_sel_hi:[1,0]")
    for i in range(2):
        A(f"v_pk_mul_f32 {v(O1+2*i,2)}, {v(O1+2*i,2)}, {v(m1,2)} op_sel_hi:[1,0]")
    A(f"v_cvt_pk_bf16_f32 v{OPK}, v{O0}, v{O0+1}")
    A(f"v_cvt_pk_bf16_f32 v{OPK+1}, v{O0+2}, v{O0+3}")
    A(f"v_cvt_pk_bf16_f32 v{OPK+2}, v{O1}, v{O1+1}")
    A(f"v_cvt_pk_bf16_f32 v{OPK+3}, v{O1+2}, v{O1+3}")
    tw = L.op(f"ds_write_b128 v{vOW}, {v(OPK,4)}")
    stamp(A, prof, 7, 'sm')
    A(f"s_add_u32 s{sSTEP}, s{sSTEP}, 1")
    for i in range(62, 52 + 4 * nr, 2):
        A(f"v_mov_b64 {v(i,2)}, 0")
    L.wait(tw)
    A("s_barrier")
    stamp(A, prof, 4)
    to = {}
    for k in range(4):
        to[k] = L.op(f"ds_read_b128 {v(OF+4*k,4)}, v{vMA} offset:{L_O + k*512}")
    tagop = (lambda x: f"v_or_b32 v{x}, 1, v{x}") if tag else (lambda x: f"v_and_b32 v{x}, -2, v{x}")
    def emit_out(rd):
        p = OACC + 4 * rd
        return [f"v_cvt_pk_bf16_f32 v{p}, v{p}, v{p+1}", f"v_cvt_pk_bf16_f32 v{p+1}, v{p+2}, v{p+3}", tagop(p),
                f"buffer_store_dwordx2 {v(p,2)}, v{vPST}, {BUF}, s{sPST+rd} offen {stf}"]
    after = {0: 3, 1: 4, 2: 5}
    early = {1: 0, 3: 1, 5: 2, 15: 6}
    if W6:
        after = {0: 3, 1: 4, 2: 5, 3: 6, 4: 8, 5: 9}
        early = {0: 0, 2: 1, 4: 2, 13: 7}
    sched = {}
    for rd in range(nr - 1):
        o = emit_out(rd)
        b = 4 * rd + 3
        so = ([3, 4, 1, 1] if W6 else [3, 4, 1, 2])[w]
        if 'ea' in OPT and rd == 1:
            so = [1, 2, 1, 2][w]
        sched.setdefault(b + 3, []).append(o[0]); sched.setdefault(b + 4, []).append(o[1])
        sched.setdefault(b + 5, []).append(o[2]); sched.setdefault(b + 5 + so, []).append(o[3])
    tail = []
    for x in sorted(sched):
        if x >= 4 * nr:
            tail += sched[x]
    for rd in range(nr):
        for k in range(4):
            slot = 4 * rd + k
            if rd == 0:
                L.wait(to[k])
            u = ('o', rd, k)
            fill = 0
            if LOC[u][0] == 'r':
                A(smf(OACC + 4 * rd, OF + 4 * k, wreg(LOC[u][1])))
                if early.get(slot, 99) < len(lu):
                    fetch(early[slot]); fill = 2
            else:
                i = lu.index(u)
                L.wait(tu[i])
                A(smf(OACC + 4 * rd, OF + 4 * k, bufs[i]))
                if after.get(i, 99) < len(lu):
                    fetch(after[i]); fill = 2
            fill += len(sched.get(slot, []))
            if rd and k < 2 and fill < 3:
                A(f"s_nop {2 - fill}")
            for t in sorted(sched.get(slot, []), key=lambda x: (x.startswith("v_"), 0) if so else (0, 0)):
                if not ('nost' in OPT and t.startswith("buffer_store") and rd < 9 and False):
                    A(t)
            if slot in (0, 3, 7, 11):
                stamp(A, prof, {0: 1, 3: 2, 7: 6, 11: 7}[slot], 'wo')
    for t in tail:
        A(t)
    A(f"s_add_u32 s{sKVOFF}, s{sKVOFF}, {32*8192}")
    A(f"s_add_u32 s{sPUB}, s{sPUB}, s{sINC}")
    A(f"s_mov_b64 s[{sEXM}:{sEXM+1}], -1")
    A(f"s_sub_i32 s{sFV}, s{sSTEP}, s{sFVD}")
    A(f"s_mov_b32 s{sINC}, {32*4096}")
    for x in emit_out(nr - 1): A(x)
    stamp(A, prof, 5)
    RD, SEL, RA, ck, vMST = [10, 14, 18, 22], 26, 30, 34, 35
    rloads = lambda: [A(f"buffer_load_dwordx4 {v(RD[i],4)}, v{vL16}, {BUF}, s{sRLD} offen offset:{i*1024} sc1") for i in range(4)]
    def reduce_start(dly, bar=False):
        delay(A, dly)
        stamp(A, prof, 2, True)
        rloads()
        if bar:
            A("s_barrier")
        A(f"v_and_b32 v{ck}, 16, v{vL16}")
        A(f"v_mov_b32 v{RA}, 0x3f80")
        A(f"v_lshlrev_b32 v{RA}, v{ck}, v{RA}")
        A(f"v_bfe_u32 v{ck}, v{vL16}, 5, 3")
        for q in range(4):
            A(f"v_cmp_eq_u32 vcc, {q}, v{ck}")
            A("s_nop 1")
            A(f"v_cndmask_b32 v{SEL+q}, 0, v{RA}, vcc")
        A(f"v_and_b32 v{vMST}, 0xf0, v{vL16}")
        A(f"v_bfe_u32 v{ck}, v{vL16}, 8, 2")
        A(f"v_lshl_add_u32 v{vMST}, v{ck}, 2, v{vMST}")
        A(f"v_and_b32 v{ck}, 0x80, v{vL16}")
        A(f"v_lshl_add_u32 v{vMST}, v{ck}, 23, v{vMST}")
        pre_b1(A)
    def reduce_finish():
        lr = A.newlabel("rre")
        for i, ops in enumerate(tagcheck(RD, ck, tag, 2)):
            A(f"s_waitcnt vmcnt({3-i})")
            A(f"v_mfma_f32_16x16x32_bf16 {v(RA,4)}, {v(RD[i],4)}, {v(SEL,4)}, {'0' if i == 0 else v(RA,4)}")
            for t in ops: A(t)
        A(f"s_cbranch_vccnz {lr}")
        A("s_nop 3")
        def finish():
            A(f"v_permlane32_swap_b32 v{RA}, v{RA+1}")
            A(f"v_permlane32_swap_b32 v{RA+2}, v{RA+3}")
            A(f"v_add_f32 v{RA}, v{RA}, v{RA+1}")
            A(f"v_add_f32 v{RA+2}, v{RA+2}, v{RA+3}")
            A(f"v_cvt_pk_bf16_f32 v{RA}, v{RA}, v{RA+2}")
            A(tagop(RA))
            A(f"buffer_store_dword v{RA}, v{vMST}, {BUF}, s{sMST} offen {stf}")
            stamp(A, prof, 6, True)
        finish()
        lback = A.newlabel("rback")
        A.label(lback)
        def again():
            R2 = [54, 58, 62, 66]
            ld = lambda R: [A(f"buffer_load_dwordx4 {v(R[i],4)}, v{vL16}, {BUF}, s{sRLD} offen offset:{i*1024} sc1") for i in range(4)]
            lsp, lok = A.newlabel("rspin"), A.newlabel("rok")
            A.label(lr)
            ld(RD)
            delay(A, 6)
            A.label(lsp)
            for cur, nxt in ((RD, R2), (R2, RD)):
                ld(nxt)
                A(f"s_add_u32 s{sCNT}, s{sCNT}, 1")
                for i, ops in enumerate(tagcheck(cur, ck, tag, 2)):
                    A(f"s_waitcnt vmcnt({7-i})")
                    A(f"v_mfma_f32_16x16x32_bf16 {v(RA,4)}, {v(cur[i],4)}, {v(SEL,4)}, {'0' if i == 0 else v(RA,4)}")
                    for t in ops: A(t)
                A(f"s_cbranch_vccz {lok}")
            A(f"s_and_b32 s3, s{sCNT}, 0xffff")
            A(f"s_cmp_gt_u32 s3, {SPIN_MAX}")
            A(f"s_cbranch_scc0 {lsp}")
            A(f"s_branch {fail}")
            A.label(lok)
            A("s_nop 3")
            finish()
            A("s_waitcnt vmcnt(1)")
            A(f"s_branch {lback}")
        cold.append(again)
    def gather_a(chunks):
        ns = PAR['ns']
        sets = [10, 18, VX][:ns]
        ld = lambda b: [mload(A, b + 4 * i, c) for i, c in enumerate(chunks)]
        wr = lambda b: [A(f"ds_write_b128 v{vL16}, {v(b+4*i,4)} offset:{L_M + c*1024}") for i, c in enumerate(chunks)]
        ckf = lambda b: tagcheck([b, b + 4], 71, tag, 1)
        lok = A.newlabel("maok")
        labs = [A.newlabel("ma") for _ in range(ns + 1)]
        delay(A, PAR['mdelay'])
        stamp(A, prof, 4, True)
        for j, b in enumerate(sets):
            ld(b)
            if j == 0:
                st_preload(A)
            if j < ns - 1:
                delay(A, PAR['sp'] - (2 if j == 0 else 0))
        def tail(b, j):
            wr(b)
            A("s_barrier")
            mb_dma(A, w)
            if j == 0 and ns > 1 and False:
                A(f"s_waitcnt vmcnt({2*(ns-2) + (1 if w == 3 else 0)})")
        for i, ops in enumerate(ckf(sets[0])):
            A(f"s_waitcnt vmcnt({2*ns-1-i})")
            for t in ops: A(t)
        A(f"s_cbranch_vccnz {labs[1]}")
        stamp(A, prof, 7, True)
        tail(sets[0], 0)
        A.label(lok)
        def later():
            assert ns == 3
            lrot = A.newlabel("marot")
            oks = [A.newlabel("mahit") for _ in range(ns)]
            def look(j):
                A(f"s_add_u32 s{sCNT}, s{sCNT}, {0x1000000 if prof else 1}")
                for i, ops in enumerate(ckf(sets[j])):
                    A(f"s_waitcnt vmcnt({3-i})")
                    for t in ops: A(t)
                A(f"s_cbranch_vccz {oks[j]}")
                ld(sets[(j + 2) % 3])
            A.label(labs[1])
            look(1)
            A.label(lrot)
            for j in (2, 0, 1):
                look(j)
            A(f"s_add_u32 s{sCNT}, s{sCNT}, 1")
            A(f"s_and_b32 s3, s{sCNT}, 0xffff")
            A(f"s_cmp_gt_u32 s3, {SPIN_MAX}")
            A(f"s_cbranch_scc0 {lrot}")
            A(f"s_branch {fail}")
            for j in range(ns):
                A.label(oks[j])
                stamp(A, prof, 7, True)
                wr(sets[j])
                A("s_barrier")
                mb_dma(A, w)
                if j != 1:
                    A(f"s_waitcnt vmcnt({len(MB.get(w, ()))})")
                A(f"s_branch {lok}")
        cold.append(later)
    def junction():
        if entry:
            if bootend:
                A(f"s_cmp_eq_u32 s{sBOOT}, 1")
                A(f"s_cbranch_scc1 {bootend}")
            A.label(entry)
    kick(A, w, tag, 0)
    ea = 'ea' in OPT
    kx1 = ea
    if ea and w == 3:
        kx_addr(A, tKX, tKX + 1)
    if not (ea and w == 0):
        A("s_barrier")
    if ea and w == 3:
        for q in range(4):
            kx_dma(A, q, tKX, 0)
    if w == 0:
        reduce_start(PAR['e0'] if ea else PAR['rdelay'], ea)
        reduce_finish()
        A("s_barrier")
        junction()
        gather_a((0, 1))
    elif w == 3:
        pre_b1(A)
        kx_addr(A, tKX, tKX + 1)
        if KVGATE and tag == 1:
            lg, lb = A.newlabel("kvgate"), A.newlabel("kvback")
            A(f"s_sub_u32 s3, s{sSTEP}, 2")
            A(f"s_bitcmp1_b64 s[{sGATE}:{sGATE+1}], s3")
            A(f"s_cbranch_scc1 {lg}")
            A.label(lb)
            def kvgate():
                A.label(lg)
                A(f"s_mov_b32 s{sT+1}, 64")
                for g, n in KVGATE[:-1]:
                    A(f"s_cmp_eq_u32 s{sSTEP}, {g}")
                    A(f"s_cselect_b32 s{sT+1}, {4*(n-1)}, s{sT+1}")
                A(f"v_lshrrev_b32 v10, 2, v{vL16}")
                A(f"v_min_u32 v10, s{sT+1}, v10")
                A(f"ds_read_b32 v11, v10 offset:{L_KVC}")
                A("s_waitcnt lgkmcnt(0)")
                A(f"v_cmp_gt_u32 vcc, 0x180, v11")
                A(f"s_cbranch_vccz {lb}")
                A(f"v_lshlrev_b32 v10, 5, v10")
                A(f"s_mov_b32 s{sT}, {WS_FLAG + 32*128}")
                wait_kv(A, fail, None, 10)
                A(f"s_branch {lb}")
            cold.append(kvgate)
        if 'kxq' not in OPT and not kx1:
            delay(A, PAR['rdelay'] + PAR['kx'])
            for q in range(4):
                kx_dma(A, q, tKX, 0)
        if AFTER: AFTER(A)
        A("s_barrier")
        junction()
        gather_a((2, 3))
    else:
        lo, lj = A.newlabel("nored"), A.newlabel("redj")
        if w == 2:
            A(f"s_cmp_ge_u32 s{sH}, 8")
            A(f"s_cbranch_scc1 {lo}")
            def nored():
                A.label(lo)
                pre_b1(A)
                A("s_barrier")
                A(f"s_branch {lj}")
            cold.append(nored)
        reduce_start(PAR['rdelay'] + PAR['r1'], ea)
        if not ea:
            A("s_barrier")
        kick(A, w, tag, 2)
        reduce_finish()
        A.label(lj)
        junction()
        st_preload(A)
        A("s_barrier")
        stamp(A, prof, 4, True)
        mb_dma(A, w)
    stamp(A, prof, 7)

def kv_addr(A, nrb, vt):
    A(f"v_and_b32 v{vt}, 0xf0, v{vL16}")
    A(f"v_min_u32 v{vt}, {16*max(nrb-1, 0)}, v{vt}")
    A(f"v_lshlrev_b32 v{vt}, 3, v{vt}")
    A(f"s_mov_b32 s{sT}, {WS_FLAG + 32*128}")

def wait_kv(A, fail, nrb, vt):
    lp = A.newlabel("kvw")
    if nrb is not None:
        kv_addr(A, nrb, vt)
    A(f"s_mov_b32 s3, 0")
    A.label(lp)
    A(f"buffer_load_dword v{vt+1}, v{vt}, {BUF}, s{sT} offen sc1")
    A(f"s_add_u32 s3, s3, 1")
    A(f"s_cmp_gt_u32 s3, 200000")
    A(f"s_cbranch_scc1 {fail}")
    A("s_waitcnt vmcnt(0)")
    A(f"v_cmp_gt_u32 vcc, 0x180, v{vt+1}")
    A(f"s_cbranch_vccnz {lp}")

def last_step(A, w, fail, cold):
    L = LgkmTracker(A)
    A("s_waitcnt lgkmcnt(0)")
    A("s_barrier")
    tokA, nslow = qkv_stage(A, L, w, 0, fail, cold, False, True)
    for kv in (16, 17):
        vstep(A, L, tokA, kv)
    if w == 0:
        for t in pub_addr(): A(t)
    A("s_nop 7")
    A(f"v_cvt_pk_bf16_f32 v40, v{VACC}, v{VACC+1}")
    A(f"v_cvt_pk_bf16_f32 v41, v{VACC+2}, v{VACC+3}")
    A(f"ds_write_b64 v{vXW}, v[40:41] offset:{4*XP}")
    A(f"s_add_u32 s{sPUB}, s{sPUB}, {32*4096}")
    A("s_waitcnt vmcnt(0) lgkmcnt(0)")
    A("s_barrier")
    for t in pub_read(w): A(t)
    if w == 3:
        A(f"v_mov_b32 v{tFV}, 63")
        A("s_mov_b64 exec, 1")
        A(f"buffer_store_dword v{tFV}, v{vL16}, {BUF}, s{sFLAG} offen sc1")
        A("s_mov_b64 exec, -1")
    A("s_waitcnt lgkmcnt(0)")
    for b in pub_regs(w):
        for i in range(4):
            A(f"v_or_b32 v{b+i}, 1, v{b+i}")
    for t in pub_store(w, "sc1"): A(t)

def run(A, fail, done, prof=None, stf="", bootdone=None):
    labs = [A.newlabel(f"wave{c}") for c in range(4)]
    A(f"s_mov_b32 s{sSTEP}, 0")
    A(f"s_mov_b32 s{sCNT}, 0")
    A(f"s_mov_b32 s{sFV}, -1")
    A(f"s_mov_b32 s{sGATE}, {sum(1 << (g - 2) for g, _ in KVGATE) if KVGATE else 0}")
    A(f"s_mov_b32 s{sGATE+1}, 0")
    A(f"s_mov_b64 s[{sEXM}:{sEXM+1}], 0")
    for c in range(1, 4):
        A(f"s_cmp_eq_u32 s{S_WAVE}, {c}")
        A(f"s_cbranch_scc1 {labs[c]}")
    for w in range(4):
        A.label(labs[w])
        cold = []
        lo, la = A.newlabel("loop"), A.newlabel("last")
        entry = A.newlabel("entry") if BOOT else None
        bootend = A.newlabel("bootend") if bootdone else None
        pre_b1(A)
        if BOOT or 'w0' in OPT:
            A("s_waitcnt vmcnt(0)")
        if BOOT:
            lz = A.newlabel("fromzero")
            if bootdone:
                A(f"s_cmp_eq_u32 s{sBOOT}, 1")
                A(f"s_cbranch_scc1 {lz}")
            A(f"s_mov_b32 s{sSTEP}, {BOOT}")
            A(f"s_mov_b64 s[{sEXM}:{sEXM+1}], -1")
            A(f"s_branch {entry}")
            A.label(lz)
        st_preload(A)
        A(".p2align 6")
        A.label(lo)
        step(A, w, 0, fail, cold, prof, stf)
        if prof: prof(A)
        A(f"s_cmp_eq_u32 s{sSTEP}, 63")
        A(f"s_cbranch_scc1 {la}")
        step(A, w, 1, fail, cold, prof, stf, entry, bootend)
        if prof: prof(A)
        A(f"s_branch {lo}")
        A.label(la)
        last_step(A, w, fail, cold)
        A(f"s_branch {done}")
        if bootend:
            A.label(bootend)
            if w == 0:
                for t in pub_addr(): A(t)
            for t in pub_read(w): A(t)
            A("s_waitcnt lgkmcnt(0)")
            for t in pub_store(w, "sc1"): A(t)
            A("s_waitcnt vmcnt(0)")
            A("s_barrier")
            if w == 3:
                A(f"v_mov_b32 v{tFV}, 3")
                A("s_mov_b64 exec, 1")
                A(f"buffer_store_dword v{tFV}, v{vL16}, {BUF}, s{sFLAG} offen sc1")
                A("s_mov_b64 exec, -1")
            A(f"s_branch {bootdone}")
        i = 0
        while i < len(cold):
            cold[i](); i += 1
```

```python
from asm import *

MB = 1 << 20
WS_K    = 0
WS_V    = 16 * MB
WS_Q    = 32 * MB
WS_KVM  = 48 * MB + 32 * 4096
WS_PART = 60 * MB
import os
PSTR    = int(os.environ.get('PSTR', 4224))
WS_M    = WS_PART + 72 * PSTR
WS_FLAG = 62 * MB
WS_H1   = WS_FLAG + 128 * 128
WS_H2   = WS_FLAG + 144 * 128
WS_PROF = 63 * MB
WS_FFN  = 64 * MB
WS_EP   = 112 * MB
WS_SIZE = 268435456

S_WS, S_WQ, S_WK, S_WV, S_WO, S_X, S_W1, S_W2, S_OUT, S_TMPD = 4, 8, 12, 16, 20, 24, 28, 32, 36, 40
S_DBG = 44
S_WAVE, S_XCC, S_ROLE, S_LOCAL = 46, 47, 48, 49

WBYTES = 576 * 4096 * 2

class LgkmTracker:
    def __init__(self, A):
        self.A = A
        self.issued = 0
        self.done = 0
    def op(self, text):
        self.A(text)
        self.issued += 1
        return self.issued
    def wait(self, tok):
        if tok <= self.done:
            return
        n = self.issued - tok
        assert n <= 15, n
        self.A(f"s_waitcnt lgkmcnt({n})")
        self.done = tok
    def all(self):
        self.A("s_waitcnt lgkmcnt(0)")
        self.done = self.issued

def srd(A, d, ptr, nbytes):
    A(f"s_mov_b32 s{d}, s{ptr}")
    A(f"s_and_b32 s{d+1}, s{ptr+1}, 0xffff")
    A(f"s_mov_b32 s{d+2}, {nbytes}")
    A(f"s_mov_b32 s{d+3}, 0x20000")

XCCX = [3]
def prologue(A, exit_label):
    A(f"s_cmp_ge_u32 s2, 256")
    A(f"s_cbranch_scc1 {exit_label}")
    A("s_load_dwordx16 s[52:67], s[0:1], 0")
    A("s_load_dwordx8 s[68:75], s[0:1], 64")
    A("s_load_dwordx2 s[76:77], s[0:1], 96")
    A(f"s_getreg_b32 s{S_XCC}, hwreg(HW_REG_XCC_ID, 0, 3)")
    if XCCX[0]:
        A(f"s_xor_b32 s{S_XCC}, s{S_XCC}, {XCCX[0]}")
    A("v_lshrrev_b32 v1, 6, v0")
    A("v_and_b32 v0, 63, v0")
    A(f"v_readfirstlane_b32 s{S_WAVE}, v1")
    A("s_waitcnt lgkmcnt(0)")
    A(f"s_mov_b64 s[{S_DBG}:{S_DBG+1}], s[74:75]")
    srd(A, S_WS, 76, WS_SIZE)
    srd(A, S_WQ, 56, WBYTES)
    srd(A, S_WK, 58, WBYTES)
    srd(A, S_WV, 60, WBYTES)
    srd(A, S_WO, 62, WBYTES)
    srd(A, S_X, 52, 2048 * 576 * 2)
    srd(A, S_W1, 68, 576 * 4608 * 2)
    srd(A, S_W2, 70, 576 * 4608 * 2)
    srd(A, S_OUT, 72, 2048 * 576 * 2)
    srd(A, S_TMPD, 54, 8 * 576 * 2)


DBG_INIT = 240
def xcc_slot(A, dst, x):
    A(f"s_lshr_b32 s3, s{x}, 1")
    A(f"s_lshl_b32 s{dst}, s{x}, 2")
    A("s_lshl_b32 s3, s3, 6")
    A(f"s_add_u32 s{dst}, s{dst}, s3")
def xcc_slot_py(x):
    return (x // 2) * 64 + 4 * x

def prefetch_code(A, start, end):
    A("s_getpc_b64 s[52:53]")
    l = A.newlabel("pc")
    A.label(l)
    A(f"s_sub_u32 s52, s52, {l} - {start}")
    A("s_subb_u32 s53, s53, 0")
    A("s_and_b32 s53, s53, 0xffff")
    A(f"s_mov_b32 s54, {end} - {start}")
    A("s_mov_b32 s55, 0x20000")
    A("s_lshr_b32 s3, s2, 3")
    A("s_and_b32 s3, s3, 7")
    A("s_lshl_b32 s3, s3, 2")
    A(f"s_add_u32 s3, s3, s{S_WAVE}")
    A("s_lshl_b32 s3, s3, 13")
    A("v_lshlrev_b32 v3, 7, v0")
    A("s_mov_b32 m0, 1024")
    A("s_nop 0")
    A("buffer_load_dword v3, s[52:55], s3 offen lds")

def warm_weights(A):
    l = A.newlabel("nowarm")
    A(f"s_cmp_lg_u32 s{S_XCC}, 0")
    A(f"s_cbranch_scc1 {l}")
    A("s_lshr_b32 s3, s2, 3")
    A("s_lshl_b32 s3, s3, 2")
    A(f"s_add_u32 s3, s3, s{S_WAVE}")
    A("s_lshl_b32 s3, s3, 13")
    A(f"buffer_load_dword v3, s[{S_WQ}:{S_WQ+3}], s3 offen lds")
    A(f"buffer_load_dword v3, s[{S_WK}:{S_WK+3}], s3 offen lds")
    A.label(l)

def take_ticket(A):
    l = A.newlabel("tk")
    A(f"s_cmp_lg_u32 s{S_WAVE}, 0")
    A(f"s_cbranch_scc1 {l}")
    xcc_slot(A, 51, S_XCC)
    A(f"s_add_u32 s52, s{S_DBG}, s51")
    A(f"s_addc_u32 s53, s{S_DBG+1}, 0")
    A("s_mov_b32 s50, 1")
    A("s_atomic_add s50, s[52:53], 0 glc")
    A("s_waitcnt lgkmcnt(0)")
    A("v_mov_b32 v1, s50")
    A("v_mov_b32 v2, 0")
    A("ds_write_b32 v2, v1")
    A("s_waitcnt lgkmcnt(0)")
    A.label(l)
    A("s_barrier")
    A("v_mov_b32 v2, 0")
    A("ds_read_b32 v1, v2")
    A("s_waitcnt lgkmcnt(0)")
    A("v_readfirstlane_b32 s50, v1")
    A("s_barrier")

def init_shared(A):
    l, l2 = A.newlabel("ini"), A.newlabel("ini2")
    A(f"s_cmp_lg_u32 s{S_WAVE}, 1")
    A(f"s_cbranch_scc1 {l}")
    for i in range(4):
        A(f"v_mov_b32 v{20+i}, 1")
    A("v_mov_b32 v24, 0")
    A("v_lshlrev_b32 v25, 4, v0")
    A("v_lshlrev_b32 v26, 7, v0")
    A(f"s_mul_i32 s3, s{S_ROLE}, 12288")
    A(f"s_add_u32 s3, s3, {WS_PART}")
    for i in range(12):
        A(f"buffer_store_dwordx4 v[20:23], v25, s[{S_WS}:{S_WS+3}], s3 offen sc1")
        A("s_add_u32 s3, s3, 1024")
    A(f"s_cmp_lg_u32 s{S_ROLE}, 0")
    A(f"s_cbranch_scc1 {l}")
    A(f"s_mov_b32 s3, {WS_FLAG}")
    A(f"buffer_store_dword v24, v26, s[{S_WS}:{S_WS+3}], s3 offen sc1")
    A(f"s_mov_b32 s3, {WS_FLAG + 8192}")
    A(f"buffer_store_dword v24, v26, s[{S_WS}:{S_WS+3}], s3 offen sc1")
    A.label(l)

def init_done(A):
    l = A.newlabel("inid")
    A(f"s_cmp_lg_u32 s{S_WAVE}, 1")
    A(f"s_cbranch_scc1 {l}")
    A("s_mov_b32 s3, 1")
    A(f"s_atomic_add s3, s[{S_DBG}:{S_DBG+1}], {DBG_INIT}")
    A.label(l)

def eval_counts(A, vr, again, need_init=True, sb=52):
    if need_init:
        A(f"v_readlane_b32 s3, v{vr}, {DBG_INIT//4}")
        A("s_cmp_lt_u32 s3, 32")
        A(f"s_cbranch_scc1 {again}")
    A("s_mov_b32 s3, 0")
    for x in range(8):
        A(f"v_readlane_b32 s{sb+x}, v{vr}, {xcc_slot_py(x)//4}")
        A(f"s_add_u32 s3, s3, s{sb+x}")
    A("s_cmp_lt_u32 s3, 256")
    A(f"s_cbranch_scc1 {again}")
    A(f"s_mov_b32 s{S_LOCAL}, 1")
    for x in range(8):
        A(f"s_cmp_eq_u32 s{sb+x}, 32")
        A(f"s_cselect_b32 s{S_LOCAL}, s{S_LOCAL}, 0")

def read_counts(A, fail, vt, need_init=True, sb=52):
    lp = A.newlabel("cnt")
    A(f"s_mov_b32 s{sb+8}, 0")
    A.label(lp)
    A(f"global_load_dword v{vt+1}, v{vt}, s[{S_DBG}:{S_DBG+1}] sc1")
    A(f"s_add_u32 s{sb+8}, s{sb+8}, 1")
    A(f"s_cmp_gt_u32 s{sb+8}, 100000")
    A(f"s_cbranch_scc1 {fail}")
    A("s_waitcnt vmcnt(0)")
    eval_counts(A, vt + 1, lp, need_init, sb)

def assign_roles(A, fail):
    l = A.newlabel("role")
    A(f"s_lshl_b32 s{S_ROLE}, s{S_XCC}, 5")
    A(f"s_add_u32 s{S_ROLE}, s{S_ROLE}, s50")
    A("s_cmp_lt_u32 s50, 32")
    A(f"s_cbranch_scc1 {l}")
    A.c("more than 32 workgroups on this XCC: take a role left vacant on another one")
    A("v_lshlrev_b32 v1, 2, v0")
    read_counts(A, fail, 1, False)
    A("s_sub_u32 s50, s50, 32")
    for x in range(8):
        A(f"s_sub_i32 s3, s{52+x}, 32")
        A("s_max_i32 s3, s3, 0")
        A(f"s_cmp_gt_u32 s{S_XCC}, {x}")
        A("s_cselect_b32 s3, s3, 0")
        A("s_add_u32 s50, s50, s3")
    A(f"s_mov_b32 s{S_ROLE}, 0")
    for x in range(8):
        A(f"s_sub_i32 s3, 32, s{52+x}")
        A("s_max_i32 s3, s3, 0")
        A(f"s_add_u32 s61, s{52+x}, s50")
        A(f"s_add_u32 s61, s61, {32*x}")
        A("s_cmp_lt_u32 s50, s3")
        A(f"s_cselect_b32 s{S_ROLE}, s61, s{S_ROLE}")
        A("s_sub_u32 s50, s50, s3")
    A.label(l)
```

```python
from common import *
from bulk import read_addr, FL_ALL, FL_GRP

BUF = f"s[{S_WS}:{S_WS+3}]"
L_QKV = 0
L_KVM = 49152
L_OX  = 53248
EPB = 36 * 32768
vL, vKM, vVM, vRA, vRF, vRO, vT1, vT2, vT3, vT4 = 240, 241, 242, 243, 244, 245, 246, 247, 248, 249
MASK = 0
QF, KF, KMF = 16, 48, 80
SX, SM = 112, 128
PX = 144
VF = 156
OA = 168
OF = 16
WA = 184
SELA, SELB = 216, 220
RD = 48
RACC, XR = 224, 228
sH, sG, sSEG, sK, sQB, sEPW, sEPR, sISR, sC, sCNT, sRBOK, sTAG, sU, sNT, sWB = 50, 51, 52, 53, 54, 55, 56, 57, 58, 60, 61, 62, 63, 64, 65
sKVM, sFLG = 66, 67
sT = 72
SPIN_MAX = 400000
XO = set()
XP = {}
BOOT = 0

def ts(A, i):
    if 'tail' in XO:
        A(f"s_memrealtime s[{80+2*i}:{81+2*i}]")

def wo_reg(t, k):
    return 256 + 32 * t + 4 * k

def idle(A):
    A("s_sleep 2")
    mode = [x for x in XO if x.startswith('burn')]
    if mode:
        l = A.newlabel("nb")
        A(f"s_cmp_lg_u32 s{sG}, 0")
        A(f"s_cbranch_scc1 {l}")
        m = mode[0][4:]
        for i in range(24):
            if 'm' in m: A(f"v_mfma_f32_32x32x16_bf16 {v(WA+16*(i%2),16)}, {r(wo_reg(i%5,i%8),4)}, {r(wo_reg((i+2)%5,(i+3)%8),4)}, {v(WA+16*(i%2),16)}")
            if 'v' in m:
                for j in range(3): A(f"v_exp_f32 v{OA+j}, v{MASK+j}")
            if 'l' in m: A(f"ds_read_b128 {v(OA+4,4)}, v{vL} offset:{(i%8)*1024}")
        A("s_waitcnt lgkmcnt(0)")
        A.label(l)

def poll_ge(A, line_sgpr, val, fail, backoff=False):
    lp = A.newlabel("pw")
    A(f"s_mov_b32 s{sCNT}, 0")
    A(f"v_mov_b32 v{vT1}, 0")
    A.label(lp)
    A(f"buffer_load_dword v{vT2}, v{vT1}, {BUF}, s{line_sgpr} offen sc1")
    A(f"s_add_u32 s{sCNT}, s{sCNT}, 1")
    A(f"s_cmp_gt_u32 s{sCNT}, {SPIN_MAX}")
    A(f"s_cbranch_scc1 {fail}")
    A("s_waitcnt vmcnt(0)")
    A(f"v_cmp_gt_i32 vcc, {val}, v{vT2}")
    lq = A.newlabel("pwok")
    A(f"s_cbranch_vccz {lq}")
    if backoff and 'nobo' not in XO:
        A(f"v_readfirstlane_b32 s3, v{vT2}")
        A(f"s_add_u32 s3, s3, 2")
        A(f"s_cmp_ge_i32 s3, {val}")
        A(f"s_cbranch_scc1 {lp}")
        A("s_sleep 16")
    else:
        idle(A)
    A(f"s_branch {lp}")
    A.label(lq)

def release(A):
    l = A.newlabel("rel")
    A(f"s_cmp_eq_u32 s{S_LOCAL}, 1")
    A(f"s_cbranch_scc1 {l}")
    A("s_waitcnt vmcnt(0)")
    A("buffer_wbl2 sc1")
    A("s_waitcnt vmcnt(0)")
    A.label(l)

def setup(A, fail):
    A.c("engine: setup")
    A(f"v_mov_b32 v{vL}, v246")
    A(f"s_and_b32 s{sH}, s{S_ROLE}, 31")
    A(f"s_lshr_b32 s{sG}, s{S_ROLE}, 5")
    A(f"s_mul_i32 s{sEPW}, s{sG}, {2*EPB}")
    A(f"s_lshl_b32 s3, s{sH}, 10")
    A(f"s_add_u32 s{sEPW}, s{sEPW}, s3")
    A(f"s_add_u32 s{sEPW}, s{sEPW}, {WS_EP}")
    for i in range(4):
        A(f"v_mov_b32 v{i}, 1")
    A(f"s_mul_i32 s{sT}, s{S_WAVE}, {18*32768}")
    A(f"s_add_u32 s{sT}, s{sT}, s{sEPW}")
    for i in range(18):
        A(f"buffer_store_dwordx4 v[0:3], v{vL}, {BUF}, s{sT} offen")
        A(f"s_add_u32 s{sT}, s{sT}, 32768")
    lt = A.newlabel("notlast")
    A(f"s_cmp_lg_u32 s{sG}, 0")
    A(f"s_cbranch_scc1 {lt}")
    for i in range(4):
        A(f"v_mov_b32 v{4+i}, 0")
    A(f"s_lshl_b32 s{sT}, s{sH}, 2")
    A(f"s_add_u32 s{sT}, s{sT}, s{S_WAVE}")
    A(f"s_lshl_b32 s{sT}, s{sT}, 10")
    A(f"s_add_u32 s{sT}, s{sT}, {WS_KVM + 63*32*4096}")
    A(f"buffer_store_dwordx4 v[4:7], v{vL}, {BUF}, s{sT} offen sc1")
    A.label(lt)
    A(f"v_lshrrev_b32 v{vT4}, 4, v{vL}")
    A(f"v_bfe_u32 v{vT1}, v{vT4}, 3, 2")
    A(f"v_bfe_u32 v{vT3}, v{vT4}, 5, 1")
    A(f"v_lshl_add_u32 v{vT1}, v{vT3}, 3, v{vT1}")
    A(f"v_mul_u32_u24 v{vT1}, 1152, v{vT1}")
    A(f"v_bfe_u32 v{vT2}, v{vT4}, 4, 1")
    A(f"v_lshlrev_b32 v{vT2}, 2, v{vT2}")
    A(f"v_xor_b32 v{vT2}, v{vT2}, v{vT4}")
    A(f"v_and_b32 v{vT2}, 7, v{vT2}")
    A(f"v_lshl_add_u32 v{vT1}, v{vT2}, 4, v{vT1}")
    A(f"s_mul_i32 s{sWB}, s{sH}, {128*1152}")
    A(f"s_lshr_b32 s3, s{S_WAVE}, 1")
    A(f"s_mul_i32 s3, s3, {16*1152}")
    A(f"s_add_u32 s{sWB}, s{sWB}, s3")
    A(f"s_and_b32 s3, s{S_WAVE}, 1")
    A(f"s_mul_i32 s3, s3, {4*1152}")
    A(f"s_add_u32 s{sWB}, s{sWB}, s3")
    A(f"s_lshl_b32 s{sT+1}, s{S_WAVE}, 10")
    for i in range(36):
        A(f"s_add_u32 m0, s{sT+1}, {i*4096}")
        A(f"s_add_u32 s{sT}, s{sWB}, {(i & 3)*32*1152 + (i >> 2)*128}")
        A(f"buffer_load_dwordx4 v{vT1}, s[{S_WO}:{S_WO+3}], s{sT} offen lds")
    ln = vT4
    read_addr(A, vRA, ln, vT1, vT2)
    A(f"s_mul_i32 s{sU}, s{S_WAVE}, 5")
    A(f"s_cmp_eq_u32 s{S_WAVE}, 3")
    A(f"s_cselect_b32 s{sU}, 14, s{sU}")
    A(f"s_waitcnt vmcnt(0)")
    release(A)
    A("s_barrier")
    A(f"s_lshl_b32 s{sT}, s{sG}, 7")
    A(f"s_add_u32 s{sT}, s{sT}, {WS_FLAG + FL_GRP*128}")
    l = A.newlabel("gs")
    A(f"s_cmp_lg_u32 s{S_WAVE}, 0")
    A(f"s_cbranch_scc1 {l}")
    A(f"v_mov_b32 v{vT1}, 1")
    A(f"v_mov_b32 v{vT2}, 0")
    A("s_mov_b64 exec, 1")
    A(f"buffer_atomic_add v{vT1}, v{vT2}, {BUF}, s{sT} offen")
    A(f"s_cmp_eq_u32 s{sG}, 0")
    A(f"s_cselect_b32 s3, 12, 0")
    A(f"v_mov_b32 v{vT1}, s3")
    A(f"s_mov_b32 s3, {WS_FLAG + 48*128}")
    A(f"buffer_atomic_add v{vT1}, v{vT2}, {BUF}, s3 offen")
    A("s_mov_b64 exec, -1")
    A.label(l)
    for t in range(5):
        A(f"s_add_u32 s3, s{sU}, {t}")
        A(f"s_min_u32 s3, s3, 17")
        A(f"s_lshr_b32 s{sT+1}, s3, 1")
        A(f"s_lshl_b32 s{sT+1}, s{sT+1}, 14")
        A(f"s_and_b32 s3, s3, 1")
        A(f"s_lshl_b32 s3, s3, 6")
        A(f"v_xor_b32 v{vT1}, s3, v{vRA}")
        A(f"v_add_u32 v{vT1}, s{sT+1}, v{vT1}")
        for k in range(8):
            A(f"ds_read_b64_tr_b16 {r(wo_reg(t,k),2)}, v{vT1} offset:{k*2048}")
            A(f"ds_read_b64_tr_b16 {r(wo_reg(t,k)+2,2)}, v{vT1} offset:{k*2048+512}")
        A("s_waitcnt lgkmcnt(0)")
    A(f"v_and_b32 v{vT1}, 31, v{ln}")
    A(f"v_bfe_u32 v{vT2}, v{ln}, 5, 1")
    A(f"v_lshlrev_b32 v{vT2}, 2, v{vT2}")
    A(f"v_sub_u32 v{vT1}, v{vT1}, v{vT2}")
    A(f"v_mov_b32 v{vT2}, 0xff800000")
    for i in range(16):
        A(f"v_cmp_gt_i32 vcc, {8*(i>>2) + (i&3)}, v{vT1}")
        A("s_nop 1")
        A(f"v_cndmask_b32 v{MASK+i}, 0, v{vT2}, vcc")
    A(f"v_and_b32 v{vKM}, 0x70, v{vL}")
    A(f"v_bfe_u32 v{vT1}, v{ln}, 5, 1")
    A(f"v_lshl_add_u32 v{vKM}, v{vT1}, 8, v{vKM}")
    A(f"v_and_b32 v{vVM}, 31, v{ln}")
    A(f"s_lshl_b32 s3, s{S_WAVE}, 5")
    A(f"v_add_u32 v{vVM}, s3, v{vVM}")
    A(f"v_lshlrev_b32 v{vVM}, 3, v{vVM}")
    A(f"v_lshl_add_u32 v{vVM}, v{vT1}, 10, v{vVM}")
    A(f"s_lshl_b32 s{sNT}, s{sH}, 1")
    A(f"s_add_u32 s{sNT}, s{sNT}, s{S_WAVE}")
    A(f"s_add_u32 s3, s{sH}, 64")
    A(f"s_cmp_eq_u32 s{S_WAVE}, 2")
    A(f"s_cselect_b32 s{sNT}, s3, s{sNT}")
    A(f"s_cmp_lt_u32 s{sNT}, 72")
    A(f"s_cselect_b32 s{sISR}, 1, 0")
    A(f"s_cmp_eq_u32 s{S_WAVE}, 3")
    A(f"s_cselect_b32 s{sISR}, 0, s{sISR}")
    A(f"s_lshr_b32 s{sT}, s{sNT}, 1")
    A(f"s_lshl_b32 s{sEPR}, s{sT}, 15")
    A(f"s_and_b32 s3, s{sNT}, 1")
    A(f"s_lshl_b32 s3, s3, 8")
    A(f"s_add_u32 s{sEPR}, s{sEPR}, s3")
    A(f"s_mul_i32 s3, s{sG}, {2*EPB}")
    A(f"s_add_u32 s{sEPR}, s{sEPR}, s3")
    A(f"s_add_u32 s{sEPR}, s{sEPR}, {WS_EP}")
    A(f"v_and_b32 v{vRA}, 0xf0, v{vL}")
    A(f"v_lshrrev_b32 v{vT1}, 4, v{ln}")
    A(f"v_lshl_add_u32 v{vRA}, v{vT1}, 10, v{vRA}")
    A(f"v_lshrrev_b32 v{vT2}, 1, v{vT1}")
    A(f"v_and_b32 v{vRO}, 15, v{ln}")
    A(f"s_and_b32 s3, s{sNT}, 1")
    A(f"s_lshl_b32 s3, s3, 4")
    A(f"v_add_u32 v{vRO}, s3, v{vRO}")
    A(f"v_mul_u32_u24 v{vRO}, 1152, v{vRO}")
    A(f"v_lshl_add_u32 v{vRO}, v{vT2}, 3, v{vRO}")
    A(f"v_and_b32 v{vT2}, 1, v{vT1}")
    A(f"v_lshl_add_u32 v{vRO}, v{vT2}, 4, v{vRO}")
    A(f"s_lshl_b32 s3, s{sT}, 5")
    A(f"v_add_u32 v{vRO}, s3, v{vRO}")
    A(f"v_and_b32 v{vT1}, 1, v{ln}")
    A(f"v_lshlrev_b32 v{vT1}, 4, v{vT1}")
    A(f"v_mov_b32 v{vT2}, 0x3f80")
    A(f"v_lshlrev_b32 v{vT2}, v{vT1}, v{vT2}")
    A(f"v_bfe_u32 v{vT1}, v{ln}, 1, 3")
    for q in range(8):
        A(f"v_cmp_eq_u32 vcc, {q}, v{vT1}")
        A("s_nop 1")
        A(f"v_cndmask_b32 v{SELA+q}, 0, v{vT2}, vcc")
    A(f"v_mov_b64 {v(PX+10,2)}, 0")
    A(f"v_mov_b64 {v(VF+10,2)}, 0")
    A(f"s_mov_b32 s{sC}, 0x3e029413")
    A(f"s_mov_b32 s{sC+1}, 0x3e029413")
    A(f"s_lshl_b32 s3, s{sU}, 16")
    A(f"s_add_u32 s{sEPW}, s{sEPW}, s3")
    A(f"s_lshl_b32 s{sT}, s{sG}, 7")
    A(f"s_add_u32 s{sT}, s{sT}, {WS_FLAG + FL_GRP*128}")
    poll_ge(A, sT, 32, fail)
    A("s_barrier")

def need_rb(A, seg, fail):
    l, lp = A.newlabel("rbok"), A.newlabel("rbp")
    A(f"s_lshr_b32 s{sT}, s{seg}, 2")
    A(f"s_bitcmp1_b32 s{sRBOK}, s{sT}")
    A(f"s_cbranch_scc1 {l}")
    A(f"v_and_b32 v{vT1}, 0xf0, v{vL}")
    A(f"v_lshlrev_b32 v{vT1}, 3, v{vT1}")
    A(f"s_mov_b32 s{sT+1}, {WS_FLAG + FL_ALL*128}")
    A(f"s_mov_b32 s{sCNT}, 0")
    A.label(lp)
    A(f"buffer_load_dword v{vT2}, v{vT1}, {BUF}, s{sT+1} offen sc1")
    A(f"s_add_u32 s{sCNT}, s{sCNT}, 1")
    A(f"s_cmp_gt_u32 s{sCNT}, {SPIN_MAX}")
    A(f"s_cbranch_scc1 {fail}")
    A("s_waitcnt vmcnt(0)")
    A(f"v_cmp_le_u32 vcc, 12, v{vT2}")
    A(f"s_and_b32 s{sRBOK}, vcc_lo, 0xffff")
    A(f"s_bitcmp1_b32 s{sRBOK}, s{sT}")
    A(f"s_cbranch_scc1 {l}")
    A("s_sleep 8" if 'nobo' not in XO else "s_sleep 2")
    A(f"s_branch {lp}")
    A.label(l)

def qkv_fetch(A, seg, bufsel):
    A(f"s_lshl_b32 s{sT}, s{seg}, 5")
    A(f"s_add_u32 s{sT}, s{sT}, s{sH}")
    A(f"s_lshl_b32 s{sT}, s{sT}, 13")
    A(f"s_lshl_b32 s3, s{S_WAVE}, 11")
    A(f"s_add_u32 s{sT}, s{sT}, s3")
    A(f"s_add_u32 s{sT+1}, s{bufsel}, s3")
    for m, base in enumerate((WS_Q, WS_K, WS_V)):
        A(f"s_add_u32 m0, s{sT+1}, {m*8192}")
        A(f"s_add_u32 s{sT+2}, s{sT}, {base}")
        A(f"buffer_load_dwordx4 v{vL}, {BUF}, s{sT+2} offen sc1 lds")
        A(f"buffer_load_dwordx4 v{vL}, {BUF}, s{sT+2} offen offset:1024 sc1 lds")

KVL, FFA = 232, 256 + 160

def segment(A, fail):
    L = LgkmTracker(A)
    ln, ln2 = A.newlabel("nonext"), A.newlabel("next")
    A(f"s_add_u32 s{sT+6}, s{sSEG}, 6")
    A(f"s_xor_b32 s{sT+7}, s{sQB}, 24576")
    A(f"s_cmp_gt_u32 s{sT+6}, 62")
    A(f"s_cbranch_scc1 {ln}")
    need_rb(A, sT + 6, fail)
    A(f"s_branch {ln2}")
    A.label(ln)
    A(f"s_mov_b32 s{sT+6}, 4096")
    A.label(ln2)
    A("s_waitcnt vmcnt(0)")
    A("s_barrier")
    A(f"v_add_u32 v{vT3}, s{sQB}, v{vL}")
    tq = {}
    for k in range(8):
        L.op(f"ds_read_b128 {v(QF+4*k,4)}, v{vT3} offset:{k*1024}")
        tq[k] = L.op(f"ds_read_b128 {v(KF+4*k,4)}, v{vT3} offset:{8192 + k*1024}")
        if k == 5:
            L.wait(tq[0])
    A(f"s_lshl_b32 s{sKVM}, s{sSEG}, 5")
    A(f"s_add_u32 s{sKVM}, s{sKVM}, s{sH}")
    A(f"s_lshl_b32 s{sKVM}, s{sKVM}, 2")
    A(f"s_add_u32 s{sKVM}, s{sKVM}, s{S_WAVE}")
    A(f"s_lshl_b32 s{sKVM}, s{sKVM}, 10")
    A(f"s_add_u32 s{sKVM}, s{sKVM}, {WS_KVM}")
    A(f"s_cmp_gt_i32 s{sFLG}, s{sSEG}")
    A(f"s_cselect_b32 s3, s{sKVM}, 0x40000000")
    A(f"buffer_load_dwordx4 {v(KVL,4)}, v{vL}, {BUF}, s3 offen sc1")
    A(f"s_mul_i32 s{sT}, s{sSEG}, {36*16384}")
    A(f"s_lshr_b32 s3, s{sNT}, 1")
    A(f"s_lshl_b32 s3, s3, 14")
    A(f"s_add_u32 s{sT}, s{sT}, s3")
    A(f"s_and_b32 s3, s{sNT}, 1")
    A(f"s_lshl_b32 s3, s3, 8")
    A(f"s_add_u32 s{sT}, s{sT}, s3")
    A(f"s_add_u32 s{sT}, s{sT}, {WS_FFN}")
    A(f"s_mul_i32 s{sT+1}, s{sSEG}, {32*1152}")
    A(f"s_cmp_eq_u32 s{sISR}, 1")
    A(f"s_cselect_b32 s{sT}, s{sT}, 0x40000000")
    A(f"s_cselect_b32 s{sT+1}, s{sT+1}, 0x40000000")
    for u in range(3):
        for hf in range(2):
            A(f"buffer_load_dwordx4 {r(FFA+8*u+4*hf,4)}, v{vRA}, {BUF}, s{sT} offen offset:{hf*512} sc1")
        A(f"s_add_u32 s{sT}, s{sT}, 4096")
    A(f"buffer_load_dwordx2 {v(XR,2)}, v{vRO}, s[{S_X}:{S_X+3}], s{sT+1} offen")
    qkv_fetch(A, sT + 6, sT + 7)
    A(f"s_lshl_b32 s3, s{S_WAVE}, 11")
    A(f"v_add_u32 v{vT3}, s3, v{vT3}")
    for k in range(8):
        L.wait(tq[k])
        A(f"v_mfma_f32_32x32x16_bf16 {v(SX,16)}, {v(KF+4*k,4)}, {v(QF+4*k,4)}, {v(MASK,16) if k == 0 else v(SX,16)}")
    L.op(f"ds_read_b128 {v(VF,4)}, v{vT3} offset:{16384}")
    L.op(f"ds_read_b128 {v(VF+4,4)}, v{vT3} offset:{16384+1024}")
    lk2, lp = A.newlabel("kvmok"), A.newlabel("kvmp")
    A(f"s_lshl_b32 s3, s{S_WAVE}, 10")
    A(f"v_add_u32 v{vT3}, s3, v{vL}")
    A(f"s_cmp_gt_i32 s{sFLG}, s{sSEG}")
    A("s_waitcnt vmcnt(13)")
    A(f"s_cbranch_scc1 {lk2}")
    A(f"s_lshl_b32 s{sT+3}, s{sH}, 7")
    A(f"s_add_u32 s{sT+3}, s{sT+3}, {WS_FLAG}")
    A(f"s_add_u32 s{sT+4}, s{sSEG}, 1")
    A(f"s_cmp_eq_u32 s{sSEG}, 63")
    A(f"s_cselect_b32 s{sT+4}, 62, s{sT+4}")
    poll_ge(A, sT + 3, f"s{sT+4}", fail, True)
    A(f"v_readfirstlane_b32 s{sFLG}, v{vT2}")
    ts(A, 0)
    A(f"s_mov_b32 s{sCNT}, 0")
    A.label(lp)
    A(f"buffer_load_dwordx4 {v(KVL,4)}, v{vL}, {BUF}, s{sKVM} offen sc1")
    A(f"s_add_u32 s{sCNT}, s{sCNT}, 1")
    A(f"s_cmp_gt_u32 s{sCNT}, {SPIN_MAX}")
    A(f"s_cbranch_scc1 {fail}")
    A(f"s_cmp_lg_u32 s{sSEG}, 63")
    A("s_waitcnt vmcnt(0)")
    A(f"s_cbranch_scc1 {lk2}")
    A(f"v_bitop3_b32 v{vT1}, v{KVL}, v{KVL+1}, v{KVL+2} bitop3:0x80")
    A(f"v_bitop3_b32 v{vT1}, v{vT1}, v{KVL+3}, 1 bitop3:0x80")
    A(f"v_cmp_ne_u32 vcc, 1, v{vT1}")
    A(f"s_cbranch_vccnz {lp}")
    ts(A, 0)
    A.label(lk2)
    A(f"ds_write_b128 v{vT3}, {v(KVL,4)} offset:{L_KVM}")
    L.all()
    A("s_barrier")
    tk = {k: L.op(f"ds_read_b128 {v(KMF+4*k,4)}, v{vKM} offset:{L_KVM + (k>>2)*1024 + (k&1)*512 + ((k>>1)&1)*128}") for k in range(8)}
    L.op(f"ds_read_b64 {v(VF+8,2)}, v{vVM} offset:{L_KVM + 2048}")
    for k in range(8):
        L.wait(tk[k])
        A(f"v_mfma_f32_32x32x16_bf16 {v(SM,16)}, {v(KMF+4*k,4)}, {v(QF+4*k,4)}, {'0' if k == 0 else v(SM,16)}")
    ts(A, 1)
    m1, m2, l1 = vT1, vT2, vT3
    A(f"v_max3_f32 v{m1}, v{SX}, v{SX+1}, v{SX+2}")
    for i in range(3, 15, 2):
        A(f"v_max3_f32 v{m1}, v{m1}, v{SX+i}, v{SX+i+1}")
    A(f"v_max_f32 v{m1}, v{m1}, v{SX+15}")
    A("s_nop 3")
    A(f"v_max3_f32 v{m1}, v{m1}, v{SM}, v{SM+1}")
    A(f"v_max3_f32 v{m2}, v{m1}, v{SM+2}, v{SM+3}")
    A(f"v_max3_f32 v{m1}, v{m1}, v{SM+2}, v{SM+3}")
    A("s_nop 1")
    A(f"v_permlane32_swap_b32 v{m1}, v{m2}")
    A(f"v_max_f32 v{m1}, v{m1}, v{m2}")
    for i in range(10):
        A(f"v_pk_add_f32 {v(SX+2*i,2)}, {v(SX+2*i,2)}, {v(m1,2)} op_sel_hi:[1,0] neg_lo:[0,1] neg_hi:[0,1]")
    for i in range(10):
        A(f"v_pk_mul_f32 {v(SX+2*i,2)}, {v(SX+2*i,2)}, s[{sC}:{sC+1}]")
    for i in range(20):
        A(f"v_exp_f32 v{SX+i}, v{SX+i}")
    for i in range(10):
        A(f"v_cvt_pk_bf16_f32 v{PX+i}, v{SX+2*i}, v{SX+2*i+1}")
    L.all()
    A("s_nop 0")
    A(f"v_mfma_f32_32x32x16_bf16 {v(OA,16)}, {v(VF,4)}, {v(PX,4)}, 0")
    A(f"v_pk_add_f32 {v(SX,2)}, {v(SX,2)}, {v(SX+2,2)}")
    A(f"v_mfma_f32_32x32x16_bf16 {v(OA,16)}, {v(VF+4,4)}, {v(PX+4,4)}, {v(OA,16)}")
    A(f"v_mfma_f32_32x32x16_bf16 {v(OA,16)}, {v(VF+8,4)}, {v(PX+8,4)}, {v(OA,16)}")
    for i in range(2, 10):
        A(f"v_pk_add_f32 {v(SX,2)}, {v(SX,2)}, {v(SX+2*i,2)}")
    A(f"v_add_f32 v{m1}, v{SX}, v{SX+1}")
    A(f"v_add_f32 v{m2}, v{SX}, v{SX+1}")
    A("s_nop 1")
    A(f"v_permlane32_swap_b32 v{m1}, v{m2}")
    A(f"v_add_f32 v{m1}, v{m1}, v{m2}")
    A(f"v_rcp_f32 v{m1}, v{m1}")
    A("s_nop 0")
    for i in range(8):
        A(f"v_pk_mul_f32 {v(OA+2*i,2)}, {v(OA+2*i,2)}, {v(m1,2)} op_sel_hi:[1,0]")
    for i in range(8):
        A(f"v_cvt_pk_bf16_f32 v{PX+i}, v{OA+2*i}, v{OA+2*i+1}")
    A(f"s_lshl_b32 s3, s{S_WAVE}, 11")
    A(f"v_add_u32 v{vT3}, s3, v{vL}")
    A(f"ds_write_b128 v{vT3}, {v(PX,4)} offset:{L_OX}")
    A(f"ds_write_b128 v{vT3}, {v(PX+4,4)} offset:{L_OX+1024}")
    A("s_waitcnt lgkmcnt(0)")
    A("s_barrier")
    ts(A, 2)
    L = LgkmTracker(A)
    to = {k: L.op(f"ds_read_b128 {v(OF+4*k,4)}, v{vL} offset:{L_OX + k*1024}") for k in range(8)}
    A(f"s_and_b32 s3, s{sK}, 1")
    A(f"s_mul_i32 s{sT+5}, s3, {EPB}")
    A(f"s_add_u32 s{sT}, s{sEPW}, s{sT+5}")
    A(f"s_lshr_b32 s{sTAG}, s{sK}, 1")
    A(f"s_and_b32 s{sTAG}, s{sTAG}, 1")
    def epi(t):
        acc = WA + 16 * (t % 2)
        ops = []
        for half in range(2):
            for i in range(4):
                ops.append(f"v_cvt_pk_bf16_f32 v{acc+8*half+i}, v{acc+8*half+2*i}, v{acc+8*half+2*i+1}")
            for i in range(4):
                ops.append(f"v_and_or_b32 v{acc+8*half+i}, v{acc+8*half+i}, -2, s{sTAG}")
            ops.append(f"buffer_store_dwordx4 {v(acc+8*half,4)}, v{vL}, {BUF}, s{sT} offen")
            ops.append(f"s_add_u32 s{sT}, s{sT}, 32768")
        return ops
    l4, lj = A.newlabel("t4"), A.newlabel("tj")
    for t in range(5):
        if t == 4:
            A(f"s_cmp_ge_u32 s{S_WAVE}, 2")
            A(f"s_cbranch_scc1 {l4}")
        acc = WA + 16 * (t % 2)
        ops = epi(t - 1) if t else []
        for k in range(8):
            L.wait(to[k])
            A(f"v_mfma_f32_32x32x16_bf16 {v(acc,16)}, {r(wo_reg(t,k),4)}, {v(OF+4*k,4)}, {'0' if k == 0 else v(acc,16)}")
            if ops and k < 3:
                A("s_nop 3")
            if k >= 3:
                for x in ops[4*(k-3):4*(k-2)]:
                    A(x)
    A("s_nop 11")
    for x in epi(4): A(x)
    A(f"s_branch {lj}")
    A.label(l4)
    A("s_nop 11")
    for x in epi(3): A(x)
    A.label(lj)
    ts(A, 3)
    release(A)
    le = A.newlabel("segend")
    A(f"s_cmp_eq_u32 s{sISR}, 0")
    A(f"s_cbranch_scc1 {le}")
    A(f"s_mov_b32 s{sCNT}, 0")
    A("s_waitcnt vmcnt(14)")
    for i in range(6):
        A(f"v_mfma_f32_16x16x32_bf16 {v(RACC,4)}, {v(SELA+4*(i%2),4)}, {r(FFA+4*i,4)}, {'0' if i == 0 else v(RACC,4)}")
    for _ in range(XP.get('ed', 4)):
        A("s_nop 15")
    lp = A.newlabel("epoll")
    A.label(lp)
    A(f"s_add_u32 s{sT}, s{sEPR}, s{sT+5}")
    for u in range(8):
        for hf in range(2):
            A(f"buffer_load_dwordx4 {v(RD+8*u+4*hf,4)}, v{vRA}, {BUF}, s{sT} offen offset:{hf*512} sc1")
        A(f"s_add_u32 s{sT}, s{sT}, 4096")
    A(f"s_add_u32 s{sCNT}, s{sCNT}, 1")
    A(f"s_cmp_gt_u32 s{sCNT}, {SPIN_MAX}")
    A(f"s_cbranch_scc1 {fail}")
    a1, o1 = vT1, vT2
    for i in range(16):
        b = RD + 4 * i
        A(f"s_waitcnt vmcnt({15-i})")
        A(f"v_mfma_f32_16x16x32_bf16 {v(OA,4)}, {v(SELA+4*(i%2),4)}, {v(b,4)}, {v(RACC,4) if i == 0 else v(OA,4)}")
        if i == 0:
            A(f"v_bitop3_b32 v{a1}, v{b}, v{b+1}, v{b+2} bitop3:0x80")
            A(f"v_bitop3_b32 v{o1}, v{b}, v{b+1}, v{b+2} bitop3:0xfe")
            A(f"v_and_b32 v{a1}, v{a1}, v{b+3}")
            A(f"v_or_b32 v{o1}, v{o1}, v{b+3}")
        else:
            A(f"v_bitop3_b32 v{a1}, v{a1}, v{b}, v{b+1} bitop3:0x80")
            A(f"v_bitop3_b32 v{o1}, v{o1}, v{b}, v{b+1} bitop3:0xfe")
            A(f"v_bitop3_b32 v{a1}, v{a1}, v{b+2}, v{b+3} bitop3:0x80")
            A(f"v_bitop3_b32 v{o1}, v{o1}, v{b+2}, v{b+3} bitop3:0xfe")
    A(f"v_xor_b32 v{a1}, s{sTAG}, v{a1}")
    A(f"v_xor_b32 v{o1}, s{sTAG}, v{o1}")
    A(f"v_or_b32 v{a1}, v{a1}, v{o1}")
    A(f"v_and_b32 v{a1}, 1, v{a1}")
    A(f"v_cmp_ne_u32 vcc, 0, v{a1}")
    A(f"s_cbranch_vccnz {lp}")
    ts(A, 4)
    A(f"v_lshlrev_b32 v{vT1}, 16, v{XR}")
    A(f"v_and_b32 v{vT2}, 0xffff0000, v{XR}")
    A(f"v_lshlrev_b32 v{vT3}, 16, v{XR+1}")
    A(f"v_and_b32 v{vT4}, 0xffff0000, v{XR+1}")
    for i in range(4):
        A(f"v_add_f32 v{OA+i}, v{OA+i}, v{vT1+i}")
    A(f"v_cvt_pk_bf16_f32 v{OA}, v{OA}, v{OA+1}")
    A(f"v_cvt_pk_bf16_f32 v{OA+1}, v{OA+2}, v{OA+3}")
    A(f"s_mul_i32 s{sT}, s{sSEG}, {32*1152}")
    A(f"buffer_store_dwordx2 {v(OA,2)}, v{vRO}, s[{S_OUT}:{S_OUT+3}], s{sT} offen")
    A.label(le)

def run(A, fail, done, hook=None):
    setup(A, fail)
    if hook: hook()
    A(f"s_sub_u32 s{sSEG}, s{sG}, 1")
    A(f"s_cmp_eq_u32 s{sG}, 0")
    A(f"s_cselect_b32 s{sSEG}, 63, s{sSEG}")
    A(f"s_mov_b32 s{sK}, 0")
    A(f"s_mov_b32 s{sQB}, {L_QKV}")
    A(f"s_mov_b32 s{sRBOK}, 0")
    A(f"s_mov_b32 s{sFLG}, -1")
    need_rb(A, sSEG, fail)
    qkv_fetch(A, sSEG, sQB)
    lp = A.newlabel("seg")
    A.label(lp)
    segment(A, fail)
    if 'eseg' in XO:
        A("s_memrealtime s[84:85]")
        A(f"s_lshl_b32 s3, s{sSEG}, 5")
        A(f"s_add_u32 s3, s3, s{sH}")
        A("s_lshl_b32 s3, s3, 2")
        A(f"s_add_u32 s3, s3, {WS_PROF + 262144}")
        A("s_waitcnt lgkmcnt(0)")
        A(f"v_mov_b32 v{vT1}, s84")
        A(f"v_mov_b32 v{vT2}, 0")
        A(f"buffer_store_dword v{vT1}, v{vT2}, {BUF}, s3 offen")
    A(f"s_add_u32 s{sSEG}, s{sSEG}, 6")
    A(f"s_add_u32 s{sK}, s{sK}, 1")
    A(f"s_xor_b32 s{sQB}, s{sQB}, 24576")
    A(f"s_cmp_lt_u32 s{sSEG}, 63")
    A(f"s_cbranch_scc1 {lp}")
    if 'wbe' in XO:
        A(f"s_cmp_gt_u32 s{sSEG}, {60 + 6}")
        A(f"s_cbranch_scc1 {done}")
        A(f"s_cmp_lg_u32 s{S_WAVE}, 0")
        A(f"s_cbranch_scc1 {done}")
        A("s_waitcnt vmcnt(0)")
        A("buffer_wbl2 sc1")
    A(f"s_branch {done}")
```

```python
import sys
from common import *
import chain, bulk, engine

KN = "parallel_sum__memory_aug_recurrent_mem_tr__dense_activation_silu__prompt_kernel"
REF = open("parallel_sum__memory_aug_recurrent_mem_tr__dense_activation_silu__prompt.s.ref").read()
COMMENT = REF[:REF.index("; Override launch geometry")]
HDR = COMMENT + f"""; @launch grid=(256,1,1) block=(256,1,1) lds=163840
.amdgcn_target "amdgcn-amd-amdhsa--gfx950"
.text
.globl {KN}
.p2align 8
.type {KN},@function
{KN}:
"""
FTR = f"""
.section .rodata,"a"
.p2align 6
.amdhsa_kernel {KN}
  .amdhsa_next_free_vgpr 512
  .amdhsa_next_free_sgpr 102
  .amdhsa_accum_offset 256
  .amdhsa_group_segment_fixed_size 0
  .amdhsa_kernarg_size 104
  .amdhsa_user_sgpr_count 2
  .amdhsa_user_sgpr_kernarg_segment_ptr 1
  .amdhsa_system_sgpr_workgroup_id_x 1
.end_amdhsa_kernel
"""

XO = set()
def tstamp(A, prof, i):
    if prof:
        A(f"s_memrealtime s[{i}:{i+1}]")

def steplog(A):
    A("s_memrealtime s[80:81]")
    A("s_memtime s[82:83]")
    A(f"s_lshl_b32 s3, s{chain.sSTEP}, 5")
    A(f"s_add_u32 s3, s3, s{S_ROLE}")
    A("s_lshl_b32 s3, s3, 2")
    A(f"s_add_u32 s3, s3, {WS_PROF + 65536}")
    A("s_waitcnt lgkmcnt(0)")
    A("v_mov_b32 v10, s80")
    A("v_mov_b32 v11, 0")
    A(f"buffer_store_dword v10, v11, s[{S_WS}:{S_WS+3}], s3 offen")
    A("v_mov_b32 v12, s82")
    A(f"s_add_u32 s3, s3, 16384")
    A(f"buffer_store_dword v12, v11, s[{S_WS}:{S_WS+3}], s3 offen")

def fine(A, i):
    A("s_memrealtime s[96:97]")
    A(f"s_lshl_b32 s3, s{S_ROLE}, 4")
    A(f"s_add_u32 s3, s3, {WS_PROF + 131072 + 4*i}")
    A("s_waitcnt lgkmcnt(0)")
    A("v_mov_b32 v253, s96")
    A("v_mov_b32 v254, 0")
    A(f"buffer_store_dword v253, v254, s[{S_WS}:{S_WS+3}], s3 offen")
    A("s_waitcnt vmcnt(63)")

def build(prof=False, force_nonlocal=False):
    A = Asm()
    tstamp(A, prof, 22)
    if prof:
        A("s_waitcnt lgkmcnt(0)")
        A("s_mov_b32 s101, s22")
    prologue(A, "L_exit")
    if 'nopf' not in XO:
        prefetch_code(A, KN, "L_codeend")
    take_ticket(A)
    assign_roles(A, "L_exit")
    A(f"s_mov_b32 s{chain.sBOOT}, 0")
    A(f"s_cmp_ge_u32 s{S_ROLE}, 32")
    A("s_cbranch_scc1 L_notchain")
    chain.AFTER = (lambda A_: steplog(A_)) if prof and 'dbg' not in XO and not any(x.startswith('probe') for x in XO) else None
    init_shared(A)
    A.label("L_chain")
    chain.setup(A)
    chain.setup_scalars(A)
    chain.load_weights(A, "L_exit", 2)
    if force_nonlocal:
        A(f"s_mov_b32 s{S_LOCAL}, 0")
    tstamp(A, prof, 92)
    tstamp(A, prof, 94)
    if prof:
        A("s_memtime s[90:91]")
    A(f"s_cmp_eq_u32 s{chain.sBOOT}, 1")
    A("s_cbranch_scc1 L_chain_far")
    A(f"s_cmp_eq_u32 s{S_LOCAL}, 0")
    A("s_cbranch_scc1 L_chain_far")
    chain.run(A, "L_exit0", "L_done0")
    chain.AFTER = None
    A.label("L_exit0")
    A("s_endpgm")
    A.label("L_done0")
    A("s_branch L_done1")
    A.label("L_chain_far")
    if 'nofar' not in XO:
        chain.run(A, "L_exit1", "L_done1", None, "sc1", "L_bootdone" if chain.BOOT else None)
    A.label("L_exit")
    A.label("L_exit1")
    A("s_endpgm")
    A.label("L_done1")
    A("s_branch L_done")
    A.label("L_notchain")
    if chain.BOOT:
        A.c("start-up group: 32 workgroups spread over the other XCDs run the first steps while XCC 0 loads its weights")
        A(f"s_and_b32 s3, s{S_ROLE}, 15")
        A("s_sub_u32 s3, s3, 13")
        A("s_cmp_ge_u32 s3, 3")
        A("s_cbranch_scc1 L_bulk")
        A(f"s_lshr_b32 s50, s{S_ROLE}, 4")
        A("s_sub_u32 s50, s50, 4")
        A("s_mul_i32 s50, s50, 3")
        A("s_add_u32 s50, s50, s3")
        A("s_cmp_ge_u32 s50, 32")
        A("s_cbranch_scc1 L_bulk")
        A(f"s_mov_b32 s{chain.sSAVE}, s{S_ROLE}")
        A(f"s_mov_b32 s{S_ROLE}, s50")
        A(f"s_mov_b32 s{chain.sBOOT}, 1")
        A("s_branch L_chain")
        A.label("L_bootdone")
        tstamp(A, prof, 94)
        A(f"s_mov_b32 s{S_ROLE}, s{chain.sSAVE}")
        A(f"v_lshrrev_b32 v0, 4, v{chain.vL16}")
        A("s_load_dwordx2 s[52:53], s[0:1], 0")
        A("s_load_dwordx2 s[54:55], s[0:1], 64")
        A("s_waitcnt lgkmcnt(0)")
        if prof:
            A("s_mov_b32 s99, s94")
        srd(A, S_X, 52, 2048 * 576 * 2)
        srd(A, S_W1, 54, 576 * 4608 * 2)
    A.label("L_bulk")
    A(f"s_sub_u32 s{S_ROLE}, s{S_ROLE}, 32")
    bulk.run(A, "L_exit2", "L_engine", (lambda i: (tstamp(A, prof, 96), prof and (A('s_waitcnt lgkmcnt(0)'), A('s_mov_b32 s99, s96'))) if i == 2 else tstamp(A, prof, 92) if i == 3 else (tstamp(A, prof, 96), prof and (A('s_waitcnt lgkmcnt(0)'), A('s_mov_b32 s98, s96'))) if i else (tstamp(A, prof, 94), prof and (A('s_waitcnt lgkmcnt(0)'), A('s_mov_b32 s100, s94')))))
    A.label("L_engine")
    if force_nonlocal:
        A(f"s_mov_b32 s{S_LOCAL}, 0")
    tstamp(A, prof, 92)
    engine.run(A, "L_exit2", "L_done2", (lambda: tstamp(A, prof, 94)))
    A.label("L_done2")
    if 'wb' in XO:
        A(f"s_cmp_lg_u32 s{S_WAVE}, 0")
        A("s_cbranch_scc1 L_nowb")
        A("s_waitcnt vmcnt(0)")
        A("buffer_wbl2 sc1")
        A.label("L_nowb")
    A(f"s_add_u32 s{S_ROLE}, s{S_ROLE}, 32")
    A.label("L_done")
    probe = [x for x in XO if x.startswith('probe')]
    if probe:
        A(f"s_or_b32 s3, s{S_ROLE}, s{S_WAVE}")
        A("s_cmp_lg_u32 s3, 0")
        A("s_cbranch_scc1 L_exit2")
        A("s_memrealtime s[96:97]")
        A("s_waitcnt lgkmcnt(0)")
        q = probe[0][5:]
        if q == "0": A("s_mov_b32 s3, 0")
        if q == "S": A("s_sub_u32 s3, s92, s101")
        if q == "E": A("s_sub_u32 s3, s96, s101")
        if q[0] == "T": A("s_sub_u32 s3, s84, s101")
        if q == "C":
            A("s_memtime s[82:83]")
            A("s_waitcnt lgkmcnt(0)")
            A("s_sub_u32 s3, s82, s90")
            A("s_lshr_b32 s3, s3, 5")
        A("s_add_u32 s3, s3, 1000")
        A("s_add_u32 s98, s96, s3")
        A.label("L_probe")
        A("s_memrealtime s[96:97]")
        A("s_waitcnt lgkmcnt(0)")
        A("s_sub_i32 s3, s98, s96")
        A("s_cmp_gt_i32 s3, 0")
        A("s_cbranch_scc1 L_probe")
        A("s_endpgm")
    if 'dbg' in XO:
        tstamp(A, prof, 96)
        A("s_waitcnt lgkmcnt(0)")
        A(f"s_cmp_lt_u32 s{S_ROLE}, 32")
        A("s_cselect_b32 s3, 16, 32")
        A("v_mov_b32 v20, s3")
        A("s_mov_b64 exec, 1")
        for i, x in enumerate((92, 94, 96)):
            A(f"s_sub_u32 s3, s{x}, s101")
            A("v_mov_b32 v21, s3")
            A(f"global_atomic_umax v20, v21, s[{S_DBG}:{S_DBG+1}] offset:{4*i}")
        A("s_endpgm")
    if prof and 'tail' in XO:
        A("s_waitcnt lgkmcnt(0)")
        for i in range(5):
            A(f"v_writelane_b32 v16, s{80+2*i}, {i}")
        A(f"s_lshl_b32 s3, s{S_ROLE}, 2")
        A(f"s_add_u32 s3, s3, s{S_WAVE}")
        A("s_lshl_b32 s3, s3, 5")
        A(f"s_add_u32 s3, s3, {WS_PROF + 196608}")
        A("v_mbcnt_lo_u32_b32 v20, -1, 0")
        A("v_lshlrev_b32 v20, 2, v20")
        A("s_mov_b64 exec, 0xff")
        A(f"buffer_store_dword v16, v20, s[{S_WS}:{S_WS+3}], s3 offen")
        A("s_mov_b64 exec, -1")
    if prof:
        tstamp(A, prof, 96)
        A("s_waitcnt lgkmcnt(0)")
        for i in range(4):
            A(f"v_mov_b32 v{16+i}, s{(101, 92, 94, 96)[i]}")
        A(f"s_lshl_b32 s3, s{S_ROLE}, 2")
        A(f"s_add_u32 s3, s3, s{S_WAVE}")
        A("s_lshl_b32 s3, s3, 4")
        A(f"s_add_u32 s3, s3, {WS_PROF}")
        A("v_mov_b32 v20, 0")
        A(f"buffer_store_dwordx4 v[16:19], v20, s[{S_WS}:{S_WS+3}], s3 offen")
        A("v_mov_b32 v16, s100")
        A("v_mov_b32 v17, s98")
        A("v_mov_b32 v18, s99")
        A(f"s_add_u32 s3, s3, 16384")
        A(f"buffer_store_dwordx4 v[16:19], v20, s[{S_WS}:{S_WS+3}], s3 offen")
    A.label("L_exit2")
    A("s_endpgm")
    A.label("L_codeend")
    return HDR + A.text() + FTR

if __name__ == "__main__":
    chain.KVGATE = ((6, 3), (10, 5), (18, 8), (30, 17))
    open("parallel_sum__memory_aug_recurrent_mem_tr__dense_activation_silu__prompt.s", "w").write(build())
    open("full_prof.s", "w").write(build(True))
    open("full_far.s", "w").write(build(True, True))
    P0 = dict(chain.PAR)
    for x in sys.argv[1:]:
        XO.clear(); XO.update(x.split("+"))
        engine.XO = XO; bulk.XO = XO; chain.OPT = XO
        chain.PAR.update(P0)
        chain.BOOT = engine.BOOT = 2 if 'boot' in XO else 0
        engine.XP = chain.PAR
        XCCX[0] = ([int(y[1:]) for y in XO if y[0] == 'X'] + [3])[0]
        chain.TPROBE = ([int(y[6:]) for y in XO if y.startswith('probeT')] + [0])[0]
        for y in XO:
            if '=' in y: chain.PAR[y.split('=')[0]] = int(y.split('=')[1].replace('n', '-')) if y.split('=')[1].lstrip('n').isdigit() else y.split('=')[1].replace('_', ' ')
        bulk.FINE = fine if 'fine' in XO else None
        open(f"v_{x}.s", "w").write(build('prof' in XO))
```
